```python
import torch

def _softmax(x, axis=-1):
    return torch.softmax(x, dim=axis)
def _gelu(x):
    return torch.nn.functional.gelu(x, approximate="tanh")
def _silu(x):
    return torch.nn.functional.silu(x)
def _sigmoid(x):
    return torch.sigmoid(x)
def _layernorm(x, axis=-1, eps=1e-5):
    m = x.mean(dim=axis, keepdim=True)
    v = x.var(dim=axis, keepdim=True, unbiased=False)
    return (x - m) / torch.sqrt(v + eps)
def _scatter_add(tgt, idx, src, axis=0):
    return tgt.clone().index_add_(axis, idx, src)
def _segment_sum(src, seg, n):
    out = torch.zeros((n,) + src.shape[1:], dtype=src.dtype)
    return out.index_add_(0, seg, src)
def _pad(x, pw):
    flat = tuple(v for pair in reversed(pw) for v in pair)
    return torch.nn.functional.pad(x, flat)

kernel_name = 'sequential_preLN__ssm_conv_s4d__dense_activation_squared_relu__prompt'

def setup_inputs():

    _w = (lambda a: (lambda t: t.to(torch.bfloat16) if t.is_floating_point() else t)(torch.as_tensor(a)))
    def _A_setup():
        Bsz, L, D, N = 1, 2048, 640, 128
        return {
            "u": _w((lambda *s: torch.randn(*s, dtype=torch.bfloat16) * 0.05)(Bsz, L, D)),
            "log_A_real": _w((lambda *s: torch.randn(*s, dtype=torch.bfloat16) * 3.2)(D, N) * 0.5),
            "A_imag": _w((lambda *s: torch.randn(*s, dtype=torch.bfloat16) * 0.05)(D, N) * 3.14),
            "C_real": _w((lambda *s: torch.randn(*s, dtype=torch.bfloat16) * 0.2)(D, N) / N ** 0.5),
            "C_imag": _w((lambda *s: torch.randn(*s, dtype=torch.bfloat16) * 0.2)(D, N) / N ** 0.5),
            "log_dt": _w((lambda *s: torch.randn(*s, dtype=torch.bfloat16) * 0.05)(D) * 0.5 - 4.0),
            "D_skip": _w((lambda *s: torch.randn(*s, dtype=torch.bfloat16) * 0.05)(D)),
        }
    _A_in = _A_setup()

    def _B_setup():
        B, S, D, F = 1, 2048, 640, 1728
        return {
            "x": _w((lambda *s: torch.randn(*s, dtype=torch.bfloat16) * 0.05)(B, S, D)),
            "w1": _w((lambda *s: torch.randn(*s, dtype=torch.bfloat16) * 0.05)(D, F)),
            "b1": _w((lambda *s: torch.randn(*s, dtype=torch.bfloat16) * 0.4)(F)),
            "w2": _w((lambda *s: torch.randn(*s, dtype=torch.bfloat16) * 0.05)(F, D)),
            "b2": _w((lambda *s: torch.randn(*s, dtype=torch.bfloat16) * 1.6)(D)),
        }
    _B_in = _B_setup()

    return {
        "A_u": _A_in["u"],
        "A_log_A_real": _A_in["log_A_real"],
        "A_A_imag": _A_in["A_imag"],
        "A_C_real": _A_in["C_real"],
        "A_C_imag": _A_in["C_imag"],
        "A_log_dt": _A_in["log_dt"],
        "A_D_skip": _A_in["D_skip"],
        "B_x": _B_in["x"],
        "B_w1": _B_in["w1"],
        "B_b1": _B_in["b1"],
        "B_w2": _B_in["w2"],
        "B_b2": _B_in["b2"],
    }

def reference(A_u, A_log_A_real, A_A_imag, A_C_real, A_C_imag, A_log_dt, A_D_skip, B_x, B_w1, B_b1, B_w2, B_b2):
    def _A_ref(u, log_A_real, A_imag, C_real, C_imag, log_dt, D_skip):
        L = u.shape[1]
        dt = torch.exp(log_dt)
        A = -torch.exp(log_A_real) + 1j * A_imag
        C = (C_real + 1j * C_imag) * dt[:, None]
        pos = (lambda x, dt: x.to(dt))(torch.arange(L), log_dt.dtype)
        P = torch.exp((A * dt[:, None])[:, :, None] * pos[None, None, :])
        K = 2.0 * torch.einsum("dn,dnl->dl", C, P).real
        L2 = 2 * L
        u_t = (lambda x, *d: x.permute(*d))(u, 0, 2, 1)
        Kf = (lambda x, *a, **k: torch.fft.rfft(x.float(), *a, **k))(K, L2)
        Uf = (lambda x, *a, **k: torch.fft.rfft(x.float(), *a, **k))(u_t, L2)
        y = (lambda x, *a, **k: torch.fft.irfft(x, *a, **k).to(torch.bfloat16))(Uf * Kf[None, :, :], L2)[:, :, :L]
        y = (lambda x, *d: x.permute(*d))(y, 0, 2, 1)
        return y + u * D_skip[None, None, :]

    def _B_ref(x, w1, b1, w2, b2):
        h = torch.einsum("bsd,df->bsf", x, w1) + b1
        zero = torch.zeros_like(h)
        r = torch.where(h > zero, h, zero)
        h = r * r
        out = torch.einsum("bsf,fd->bsd", h, w2) + b2
        return out

    x = A_u
    h = x + _A_ref(_layernorm(x, axis=-1), A_log_A_real, A_A_imag, A_C_real, A_C_imag, A_log_dt, A_D_skip)
    h2 = h + _B_ref(_layernorm(h, axis=-1), B_w1, B_b1, B_w2, B_b2)
    return h2
```

```python
import sys
NAME = "sequential_preLN__ssm_conv_s4d__dense_activation_squared_relu__prompt"

L, D, NS, F = 2048, 640, 128, 1728
WS_UT = 0x0000000
WS_XT = 0x0280000
WS_KR = 0x0500000
KR_CH = 16896
KR_CP = 4224
KR_PRE = 128
WS_H = 0x1000000
WS_H1 = 0x1300000
WS_SIZE = 0x10000000

out = []
def e(s=""):
    out.append(s)
def lab(s):
    out.append(s + ":")
def c(s):
    out.append("    ; " + s)
def i(s):
    out.append("    " + s)

def vr(a, n=1):
    return "v%d" % a if n == 1 else "v[%d:%d]" % (a, a + n - 1)
def ar(a, n=1):
    return "a%d" % a if n == 1 else "a[%d:%d]" % (a, a + n - 1)
def sr(a, n=1):
    return "s%d" % a if n == 1 else "s[%d:%d]" % (a, a + n - 1)

def srd(dst, ptr_lo, nbytes, off=0):
    if off:
        i("s_add_u32 s%d, s%d, 0x%x" % (dst, ptr_lo, off))
        i("s_addc_u32 s%d, s%d, 0" % (dst + 1, ptr_lo + 1))
    else:
        i("s_mov_b32 s%d, s%d" % (dst, ptr_lo))
        i("s_mov_b32 s%d, s%d" % (dst + 1, ptr_lo + 1))
    i("s_mov_b32 s%d, 0x%x" % (dst + 2, nbytes))
    i("s_mov_b32 s%d, 0x00020000" % (dst + 3))

def nop(n):
    while n > 0:
        k = min(n, 16)
        i("s_nop %d" % (k - 1))
        n -= k

def kernel_begin(name):
    e(".text")
    e(".globl %s" % name)
    e(".p2align 8")
    e(".type %s,@function" % name)
    lab(name)

def kernel_desc(name, nvgpr, nsgpr, accum):
    e('.section .rodata,"a"')
    e(".p2align 6")
    e(".amdhsa_kernel %s" % name)
    e("  .amdhsa_next_free_vgpr %d" % nvgpr)
    e("  .amdhsa_next_free_sgpr %d" % nsgpr)
    e("  .amdhsa_accum_offset %d" % accum)
    e("  .amdhsa_group_segment_fixed_size 0")
    e("  .amdhsa_kernarg_size 120")
    e("  .amdhsa_user_sgpr_count 2")
    e("  .amdhsa_user_sgpr_kernarg_segment_ptr 1")
    e("  .amdhsa_system_sgpr_workgroup_id_x 1")
    e(".end_amdhsa_kernel")

LOG2E = 0x3fb8aa3b
NLOG2E = 0xbfb8aa3b
INV2PI = "0.15915494"
SEL_LO = 0x05040100
SEL_HI = 0x07060302

def round_bf16(dst, src):
    i("v_cvt_pk_bf16_f32 v%d, v%d, v%d" % (dst, src, src))
    i("v_lshlrev_b32 v%d, 16, v%d" % (dst, dst))

K1_NLN = 256
K1_NKG = 640
K1_LDS = 63 * 544
XROW = 544

def gen_k1():
    name = "k1_kernel"
    kernel_begin(name)
    i("s_cmp_ge_u32 s2, %d" % (K1_NLN + K1_NKG))
    i("s_cbranch_scc1 K1_END")
    i("s_load_dwordx16 s[16:31], s[0:1], 0")
    i("s_load_dwordx2 s[32:33], s[0:1], 112")
    i("v_lshrrev_b32 v1, 6, v0")
    i("v_and_b32 v2, 63, v0")
    i("v_readfirstlane_b32 s3, v1")
    i("s_waitcnt lgkmcnt(0)")
    srd(8, 32, WS_SIZE)
    i("s_cmp_ge_u32 s2, %d" % K1_NLN)
    i("s_cbranch_scc1 K1_KGEN")
    srd(4, 16, L * D * 2)
    i("s_mul_i32 s12, s2, %d" % (8 * 1280))
    i("v_lshlrev_b32 v3, 3, v0")
    i("s_cmp_eq_u32 s3, 3")
    i("s_cbranch_scc1 K1_LN_STATS")
    for k in range(8):
        i("s_add_u32 s13, s12, %d" % (k * 1280))
        i("buffer_load_dwordx2 v[%d:%d], v3, s[4:7], s13 offen" % (10 + 2 * k, 11 + 2 * k))
    i("s_cmp_lt_u32 s3, 2")
    i("s_cbranch_scc1 K1_LN_BAR")
    lab("K1_LN_STATS")
    i("v_lshrrev_b32 v4, 4, v2")
    i("s_sub_u32 s13, s3, 2")
    i("s_lshl_b32 s13, s13, 2")
    i("v_add_u32 v4, s13, v4")
    i("v_mul_u32_u24 v5, 1280, v4")
    i("v_and_b32 v6, 15, v2")
    i("v_lshl_add_u32 v5, v6, 4, v5")
    for k in range(5):
        i("buffer_load_dwordx4 v[%d:%d], v5, s[4:7], s12 offen offset:%d" % (32 + 4 * k, 35 + 4 * k, 256 * k))
    i("v_mov_b32 v7, 0x3f803f80")
    i("v_mov_b32 v8, 0")
    i("v_mov_b32 v9, 0")
    i("s_waitcnt vmcnt(0)")
    for k in range(20):
        i("v_dot2_f32_bf16 v8, v%d, v7, v8" % (32 + k))
        i("v_dot2_f32_bf16 v9, v%d, v%d, v9" % (32 + k, 32 + k))
    for r in (8, 4, 2, 1):
        nop(2)
        i("v_add_f32_dpp v8, v8, v8 row_ror:%d row_mask:0xf bank_mask:0xf" % r)
        i("v_add_f32_dpp v9, v9, v9 row_ror:%d row_mask:0xf bank_mask:0xf" % r)
    i("v_mul_f32 v8, 0x%x, v8" % 0x3acccccd)
    i("v_mul_f32 v9, 0x%x, v9" % 0x3acccccd)
    i("v_fma_f32 v9, -v8, v8, v9")
    i("v_max_f32 v9, 0, v9")
    round_bf16(8, 8)
    round_bf16(9, 9)
    i("v_add_f32 v9, 0x%x, v9" % 0x3727c5ac)
    round_bf16(9, 9)
    i("v_sqrt_f32 v9, v9")
    nop(1)
    round_bf16(9, 9)
    i("v_rcp_f32 v9, v9")
    i("v_lshlrev_b32 v4, 3, v4")
    i("v_cmp_eq_u32 vcc, 0, v6")
    i("s_and_saveexec_b64 s[14:15], vcc")
    i("ds_write_b64 v4, v[8:9]")
    i("s_mov_b64 exec, s[14:15]")
    i("s_waitcnt lgkmcnt(0)")
    lab("K1_LN_BAR")
    i("s_barrier")
    i("s_cmp_eq_u32 s3, 3")
    i("s_cbranch_scc1 K1_END")
    i("v_mov_b32 v4, 0")
    for k in range(4):
        i("ds_read_b128 v[%d:%d], v4 offset:%d" % (32 + 4 * k, 35 + 4 * k, 16 * k))
    i("v_cmp_gt_u32 vcc, 160, v0")
    i("s_and_saveexec_b64 s[14:15], vcc")
    i("s_cbranch_execz K1_END")
    i("s_waitcnt vmcnt(0) lgkmcnt(0)")
    i("s_mov_b32 s14, 0x%x" % SEL_LO)
    i("s_mov_b32 s15, 0x%x" % SEL_HI)
    for ch in range(4):
        for ii in range(4):
            lo = 10 + 2 * (2 * ii) + (ch >> 1)
            hi = 10 + 2 * (2 * ii + 1) + (ch >> 1)
            i("v_perm_b32 v%d, v%d, v%d, s%d" % (64 + 4 * ch + ii, hi, lo, 14 + (ch & 1)))
    i("v_lshlrev_b32 v5, 6, v0")
    i("s_mul_i32 s13, s2, %d" % (640 * 16))
    i("s_add_u32 s12, s13, 0x%x" % WS_XT)
    for ch in range(4):
        i("buffer_store_dwordx4 v[%d:%d], v5, s[8:11], s12 offen offset:%d" % (64 + 4 * ch, 67 + 4 * ch, 16 * ch))
    for k in range(8):
        m = 32 + 2 * k
        r = m + 1
        for jj in range(2):
            x = 10 + 2 * k + jj
            a, b = 48, 49
            a = 48 + 2 * jj
            b = a + 1
            i("v_lshlrev_b32 v%d, 16, v%d" % (a, x))
            i("v_and_b32 v%d, 0xffff0000, v%d" % (b, x))
            i("v_sub_f32 v%d, v%d, v%d" % (a, a, m))
            i("v_sub_f32 v%d, v%d, v%d" % (b, b, m))
            i("v_cvt_pk_bf16_f32 v%d, v%d, v%d" % (b, a, b))
            i("v_lshlrev_b32 v%d, 16, v%d" % (a, b))
            i("v_and_b32 v%d, 0xffff0000, v%d" % (b, b))
            i("v_mul_f32 v%d, v%d, v%d" % (96 + 4 * k + 2 * jj, a, r))
            i("v_mul_f32 v%d, v%d, v%d" % (96 + 4 * k + 2 * jj + 1, b, r))
    for ch in range(4):
        for ii in range(4):
            i("v_cvt_pk_bf16_f32 v%d, v%d, v%d" % (80 + 4 * ch + ii, 96 + 4 * (2 * ii) + ch, 96 + 4 * (2 * ii + 1) + ch))
    i("s_add_u32 s12, s13, 0x%x" % WS_UT)
    for ch in range(4):
        i("buffer_store_dwordx4 v[%d:%d], v5, s[8:11], s12 offen offset:%d" % (80 + 4 * ch, 83 + 4 * ch, 16 * ch))
    i("s_endpgm")

    lab("K1_KGEN")
    i("s_sub_u32 s12, s2, %d" % K1_NLN)
    i("s_lshr_b32 s13, s12, 1")
    i("s_lshl_b32 s13, s13, 2")
    i("s_load_dword s34, s[26:27], s13")
    i("s_load_dword s35, s[28:29], s13")
    i("s_and_b32 s14, s3, 1")
    i("s_lshl_b32 s15, s14, 6")
    i("v_add_u32 v3, s15, v2")
    i("v_lshlrev_b32 v4, 1, v3")
    i("s_lshl_b32 s15, s12, 8")
    srd(4, 18, D * NS * 2)
    i("buffer_load_ushort v10, v4, s[4:7], s15 offen")
    srd(36, 20, D * NS * 2)
    i("buffer_load_ushort v11, v4, s[36:39], s15 offen")
    srd(40, 22, D * NS * 2)
    i("buffer_load_ushort v12, v4, s[40:43], s15 offen")
    srd(44, 24, D * NS * 2)
    i("buffer_load_ushort v13, v4, s[44:47], s15 offen")
    i("v_lshlrev_b32 v5, 2, v3")
    i("s_waitcnt lgkmcnt(0)")
    i("s_and_b32 s13, s12, 1")
    i("s_lshl_b32 s13, s13, 4")
    i("s_lshr_b32 s34, s34, s13")
    i("s_lshl_b32 s34, s34, 16")
    i("s_lshr_b32 s35, s35, s13")
    i("s_lshl_b32 s35, s35, 16")
    i("v_mov_b32 v14, s34")
    i("v_mul_f32 v14, 0x%x, v14" % LOG2E)
    i("v_exp_f32 v14, v14")
    nop(1)
    round_bf16(14, 14)
    i("s_waitcnt vmcnt(0)")
    for r in (10, 11, 12, 13):
        i("v_lshlrev_b32 v%d, 16, v%d" % (r, r))
    i("v_mul_f32 v10, 0x%x, v10" % LOG2E)
    i("v_exp_f32 v10, v10")
    nop(1)
    round_bf16(10, 10)
    i("v_mul_f32 v10, v10, v14")
    i("v_mul_f32 v10, 0x%x, v10" % NLOG2E)
    i("v_mul_f32 v11, v11, v14")
    i("v_mul_f32 v11, %s, v11" % INV2PI)
    i("v_mul_f32 v12, v12, v14")
    i("v_mul_f32 v13, v13, v14")
    i("v_add_f32 v12, v12, v12")
    i("v_add_f32 v13, v13, v13")
    def cexp(dst, p):
        i("v_mul_f32 v%d, 0x%x, v10" % (dst, f2u(float(p))))
        i("v_mul_f32 v%d, 0x%x, v11" % (dst + 1, f2u(float(p))))
        i("v_exp_f32 v%d, v%d" % (dst, dst))
        i("v_fract_f32 v%d, v%d" % (dst + 1, dst + 1))
        nop(1)
        i("v_cos_f32 v6, v%d" % (dst + 1))
        i("v_sin_f32 v%d, v%d" % (dst + 1, dst + 1))
        nop(1)
        i("v_mul_f32 v%d, v%d, v%d" % (dst + 1, dst, dst + 1))
        i("v_mul_f32 v%d, v%d, v6" % (dst, dst))
    def cmul(dst, x, s, t):
        i("v_pk_mul_f32 v[%d:%d], v[%d:%d], v[%d:%d] op_sel:[0,0] op_sel_hi:[1,0]" % (t, t + 1, x, x + 1, s, s + 1))
        i("v_pk_fma_f32 v[%d:%d], v[%d:%d], v[%d:%d], v[%d:%d] op_sel:[1,1,0] op_sel_hi:[0,1,1] neg_lo:[0,1,0]" % (dst, dst + 1, x, x + 1, s, s + 1, t, t + 1))
    def putx(x, row, tmp):
        i("v_cvt_pk_bf16_f32 v%d, v%d, -v%d" % (tmp, x, x + 1))
        i("ds_write_b32 v5, v%d offset:%d" % (tmp, row * XROW))
    def puty(x, row, tmp):
        i("v_cvt_pk_bf16_f32 v%d, v%d, v%d" % (tmp, x, x + 1))
        i("ds_write_b32 v5, v%d offset:%d" % (tmp, row * XROW))
    i("s_cmp_ge_u32 s3, 2")
    i("s_cbranch_scc1 K1_KG_P1")
    cexp(20, 1)
    cexp(22, 16)
    i("v_mov_b32 v24, 1.0")
    i("v_mov_b32 v25, 0")
    for p in range(16):
        putx(12, p, 30)
        puty(24, 47 + p, 31)
        if p < 15:
            cmul(12, 12, 20, 26)
            cmul(24, 24, 22, 28)
    i("s_branch K1_KG_MM")
    lab("K1_KG_P1")
    cexp(20, 256)
    cexp(22, 2)
    cexp(24, 4)
    cexp(26, 8)
    cmul(42, 12, 20, 28)
    for tau in range(2, 8):
        cmul(40 + 2 * tau, 40 + 2 * (tau - 1), 20, 28)
    chains = [(42, 22, 16, 9), (44, 24, 25, 5), (46, 24, 30, 5), (48, 26, 35, 3), (50, 26, 38, 3), (52, 26, 41, 3), (54, 26, 44, 3)]
    maxlen = 9
    tmpi = 0
    for step in range(maxlen):
        for (x, s, row0, n) in chains:
            if step < n:
                putx(x, row0 + step, 30 + (tmpi & 1))
                if step < n - 1:
                    cmul(x, x, s, 32 + 2 * (tmpi & 1))
                tmpi += 1
    lab("K1_KG_MM")
    i("s_waitcnt lgkmcnt(0)")
    i("s_barrier")
    i("s_cmp_eq_u32 s3, 0")
    i("s_cselect_b32 s14, 0, 16")
    i("s_cselect_b32 s15, 8, 4")
    i("s_cselect_b32 s13, 4, 2")
    i("s_cmp_eq_u32 s3, 2")
    i("s_cselect_b32 s14, 25, s14")
    i("s_cselect_b32 s15, 5, s15")
    i("s_cmp_eq_u32 s3, 3")
    i("s_cselect_b32 s14, 35, s14")
    i("s_cselect_b32 s15, 6, s15")
    i("s_cselect_b32 s13, 3, s13")
    i("v_and_b32 v6, 15, v2")
    i("v_lshrrev_b32 v7, 4, v2")
    i("v_lshrrev_b32 v8, 3, v6")
    i("v_mul_u32_u24 v8, s15, v8")
    i("v_bfe_u32 v9, v6, 2, 1")
    i("v_mul_u32_u24 v9, s13, v9")
    i("v_add_u32 v8, v8, v9")
    i("v_and_b32 v9, 3, v6")
    i("v_add3_u32 v8, v8, v9, s14")
    i("v_mul_u32_u24 v8, %d, v8" % XROW)
    i("v_lshl_add_u32 v8, v7, 4, v8")
    i("v_add_u32 v9, 47, v6")
    i("v_mul_u32_u24 v9, %d, v9" % XROW)
    i("v_lshl_add_u32 v9, v7, 4, v9")
    for mu in range(8):
        i("ds_read_b128 v[%d:%d], v8 offset:%d" % (32 + 4 * mu, 35 + 4 * mu, 64 * mu))
        i("ds_read_b128 v[%d:%d], v9 offset:%d" % (64 + 4 * mu, 67 + 4 * mu, 64 * mu))
    for mu in range(8):
        i("s_waitcnt lgkmcnt(%d)" % (14 - 2 * mu))
        i("v_mfma_f32_16x16x32_bf16 v[20:23], v[%d:%d], v[%d:%d], %s" % (32 + 4 * mu, 35 + 4 * mu, 64 + 4 * mu, 67 + 4 * mu, "0" if mu == 0 else "v[20:23]"))
    i("s_mul_i32 s13, s12, %d" % KR_CH)
    i("s_add_u32 s13, s13, 0x%x" % (WS_KR + KR_PRE))
    i("v_lshlrev_b32 v10, 5, v6")
    nop(8)
    i("s_cmp_eq_u32 s3, 1")
    i("s_cbranch_scc1 K1_KG_S1")
    i("s_cmp_eq_u32 s3, 2")
    i("s_cbranch_scc1 K1_KG_S2")
    i("s_cmp_eq_u32 s3, 3")
    i("s_cbranch_scc1 K1_KG_S3")
    def stores(vd, n, voff):
        for cpy in range(4):
            i("s_add_u32 s14, s13, %d" % (cpy * (KR_CP - 2)))
            i("buffer_store_dwordx%d v[%d:%d], v%d, s[8:11], s14 offen" % (n, vd, vd + n - 1, voff))
    i("v_cmp_eq_u32 vcc, 0, v2")
    i("v_mov_b32 v11, s35")
    i("v_cndmask_b32 v11, 0, v11, vcc")
    i("v_add_f32 v20, v20, v11")
    i("v_cvt_pk_bf16_f32 v24, v23, v22")
    i("v_cvt_pk_bf16_f32 v25, v21, v20")
    i("v_lshl_add_u32 v10, v7, 3, v10")
    i("v_sub_u32 v10, 4088, v10")
    stores(24, 2, 10)
    i("v_mov_b32 v26, 0")
    i("v_mov_b32 v27, 0")
    i("v_mul_u32_u24 v12, %d, v2" % (KR_CP - 2))
    i("v_add_u32 v12, 4096, v12")
    i("v_cmp_gt_u32 vcc, 4, v2")
    i("s_and_saveexec_b64 s[14:15], vcc")
    i("buffer_store_dwordx2 v[26:27], v12, s[8:11], s13 offen")
    i("s_endpgm")
    lab("K1_KG_S1")
    i("v_cvt_pk_bf16_f32 v24, v22, v21")
    i("v_cvt_pk_bf16_f32 v25, v20, v20")
    i("v_lshl_add_u32 v10, v7, 3, v10")
    i("v_sub_u32 v10, 3576, v10")
    stores(24, 2, 10)
    i("s_endpgm")
    lab("K1_KG_S2")
    i("v_cvt_pk_bf16_f32 v24, v22, v22")
    i("v_cvt_pk_bf16_f32 v25, v21, v21")
    i("v_cvt_pk_bf16_f32 v26, v21, v20")
    i("v_cvt_pk_bf16_f32 v27, v20, v20")
    i("v_lshrrev_b32 v11, 1, v7")
    i("v_lshl_add_u32 v10, v11, 9, v10")
    i("v_and_b32 v11, 1, v7")
    i("v_lshl_add_u32 v10, v11, 4, v10")
    i("v_sub_u32 v10, 3056, v10")
    stores(24, 4, 10)
    i("s_endpgm")
    lab("K1_KG_S3")
    i("v_cvt_pk_bf16_f32 v24, v22, v22")
    i("v_mov_b32 v25, v24")
    i("v_cvt_pk_bf16_f32 v26, v21, v21")
    i("v_mov_b32 v27, v26")
    i("v_mov_b32 v28, v26")
    i("v_cvt_pk_bf16_f32 v29, v21, v20")
    i("v_cvt_pk_bf16_f32 v30, v20, v20")
    i("v_mov_b32 v31, v30")
    i("v_lshl_add_u32 v10, v7, 9, v10")
    i("v_sub_u32 v10, 2016, v10")
    stores(24, 4, 10)
    i("v_add_u32 v10, 16, v10")
    stores(28, 4, 10)
    lab("K1_END")
    i("s_endpgm")
    kernel_desc(name, 128, 48, 128)

import struct
def f2u(f):
    return struct.unpack("<I", struct.pack("<f", f))[0]

K2_KL = 0
K2_KCH = 16640
K2_KCP = 4160
K2_UL = 4 * K2_KCH
K2_TL = K2_UL + 2048 + 16384
K2_LDS = K2_TL + 16384

def gen_k2():
    name = "k2_kernel"
    kernel_begin(name)
    i("s_cmp_ge_u32 s2, 160")
    i("s_cbranch_scc1 K2_END")
    i("s_load_dwordx2 s[32:33], s[0:1], 112")
    i("v_lshrrev_b32 v1, 6, v0")
    i("v_and_b32 v2, 63, v0")
    i("v_readfirstlane_b32 s3, v1")
    i("v_and_b32 v3, 15, v2")
    i("v_lshrrev_b32 v4, 4, v2")
    i("s_waitcnt lgkmcnt(0)")
    srd(8, 32, WS_SIZE)
    i("s_lshl_b32 s12, s2, 2")
    i("v_lshrrev_b32 v5, 2, v2")
    i("v_mul_u32_u24 v5, 640, v5")
    i("v_and_b32 v6, 3, v2")
    i("v_xor_b32 v6, v6, v4")
    i("v_add3_u32 v5, v5, v6, s12")
    i("v_lshlrev_b32 v5, 4, v5")
    i("s_lshl_b32 s13, s3, 2")
    i("s_mul_i32 s14, s13, %d" % (16 * 10240))
    i("s_add_u32 s14, s14, 0x%x" % WS_UT)
    i("s_lshl_b32 s15, s13, 10")
    i("s_add_u32 s15, s15, %d" % (K2_UL + 2048))
    for k in range(4):
        i("s_mov_b32 m0, s15")
        i("s_add_u32 s15, s15, 1024")
        i("buffer_load_dwordx4 v5, s[8:11], s14 offen lds")
        i("s_add_u32 s14, s14, %d" % (16 * 10240))
    i("v_lshlrev_b32 v6, 4, v2")
    i("s_add_u32 s13, s12, s3")
    i("s_mul_i32 s14, s13, %d" % KR_CH)
    i("s_add_u32 s14, s14, 0x%x" % (WS_KR + KR_PRE))
    i("s_mul_i32 s15, s3, %d" % K2_KCH)
    for cpy in range(4):
        for k in range(4):
            i("s_add_u32 m0, s15, %d" % (cpy * K2_KCP + k * 1024))
            i("s_add_u32 s16, s14, %d" % (cpy * KR_CP + k * 1024))
            i("buffer_load_dwordx4 v6, s[8:11], s16 offen lds")
    i("v_lshrrev_b32 v7, 1, v4")
    i("v_lshl_add_u32 v7, v3, 1, v7")
    i("v_mul_u32_u24 v7, 640, v7")
    i("v_add_u32 v7, s13, v7")
    i("v_lshlrev_b32 v7, 4, v7")
    i("v_and_b32 v8, 1, v4")
    i("v_lshl_add_u32 v7, v8, 3, v7")
    i("s_mov_b32 s16, 0x%x" % WS_XT)
    for al in range(8):
        i("buffer_load_dwordx2 v[%d:%d], v7, s[8:11], s16 offen" % (200 + 2 * al, 201 + 2 * al))
        if al < 7:
            i("s_add_u32 s16, s16, %d" % (32 * 10240))
    for r in range(4):
        i("v_mov_b32 v%d, 0" % (20 + r))
    i("v_bfe_u32 v8, v2, 2, 2")
    i("v_mul_u32_u24 v8, %d, v8" % K2_KCP)
    i("v_and_b32 v9, 3, v2")
    i("v_lshl_add_u32 v8, v9, 4, v8")
    i("v_add_u32 v8, s15, v8")
    i("ds_write_b128 v8, v[20:23] offset:4096")
    i("v_lshlrev_b32 v8, 3, v0")
    i("v_add_u32 v8, %d, v8" % K2_UL)
    i("ds_write_b64 v8, v[20:21]")
    i("v_and_b32 v8, 3, v3")
    i("v_sub_u32 v8, 3, v8")
    i("v_mul_u32_u24 v8, %d, v8" % K2_KCP)
    i("v_lshrrev_b32 v9, 2, v3")
    i("v_lshlrev_b32 v9, 3, v9")
    i("v_lshl_add_u32 v9, v4, 4, v9")
    i("v_sub_u32 v9, %d, v9" % (4104 - 4032))
    i("v_add3_u32 v10, v8, v9, s15")
    i("v_lshlrev_b32 v8, 1, v3")
    i("v_add_u32 v8, 1, v8")
    i("v_sub_u32 v8, v8, v4")
    i("v_ashrrev_i32 v9, 2, v8")
    i("v_lshlrev_b32 v8, 6, v8")
    i("v_add_u32 v8, %d, v8" % (K2_UL + 256))
    for r in range(4):
        i("v_subrev_u32 v11, %d, v9" % r)
        i("v_and_b32 v11, 3, v11")
        i("v_xor_b32 v11, s3, v11")
        i("v_lshl_add_u32 v%d, v11, 4, v8" % (12 + r))
    i("s_waitcnt vmcnt(8) lgkmcnt(0)")
    i("s_barrier")
    def FR(s, ii): return 24 + 64 * s + 4 * ii
    def GR(s, jj): return 24 + 64 * s + 32 + 4 * jj
    ACC = 160
    def reads(rho):
        s = rho & 1
        lst = []
        for ii in range(8):
            sig = rho + 8 * ii
            off = 64 * (63 - sig)
            lst.append("ds_read_b64 v[%d:%d], v10 offset:%d" % (FR(s, ii), FR(s, ii) + 1, off))
            lst.append("ds_read_b64 v[%d:%d], v10 offset:%d" % (FR(s, ii) + 2, FR(s, ii) + 3, off + 8))
            lst.append("ds_read_b128 v[%d:%d], v%d offset:%d" % (GR(s, ii), GR(s, ii) + 3, 12 + (rho & 3), 2048 * ii + 256 * (7 - rho)))
        return lst
    for r in reads(0):
        i(r)
    for rho in range(8):
        s = rho & 1
        nxt = reads(rho + 1) if rho < 7 else []
        i("s_waitcnt lgkmcnt(0)")
        mf = []
        for al in range(8):
            for ii in range(al + 1):
                jj = al - ii
                first = (rho == 0 and ii == 0)
                mf.append("v_mfma_f32_16x16x32_bf16 v[%d:%d], v[%d:%d], v[%d:%d], %s" % (
                    ACC + 4 * al, ACC + 4 * al + 3, FR(s, ii), FR(s, ii) + 3, GR(s, jj), GR(s, jj) + 3,
                    "0" if first else "v[%d:%d]" % (ACC + 4 * al, ACC + 4 * al + 3)))
        k = 0
        for n, m in enumerate(mf):
            i(m)
            if k < len(nxt) and n < 30:
                i(nxt[k]); k += 1
        while k < len(nxt):
            i(nxt[k]); k += 1
    i("s_waitcnt vmcnt(0)")
    nop(8)
    i("v_lshlrev_b32 v8, 5, v3")
    i("v_lshl_add_u32 v8, v4, 3, v8")
    i("s_lshl_b32 s16, s3, 12")
    i("s_add_u32 s16, s16, %d" % K2_TL)
    i("v_add_u32 v8, s16, v8")
    for al in range(8):
        x0, x1 = 200 + 2 * al, 201 + 2 * al
        a = ACC + 4 * al
        i("v_lshlrev_b32 v20, 16, v%d" % x0)
        i("v_and_b32 v21, 0xffff0000, v%d" % x0)
        i("v_lshlrev_b32 v22, 16, v%d" % x1)
        i("v_and_b32 v23, 0xffff0000, v%d" % x1)
        i("v_pk_add_f32 v[20:21], v[20:21], v[%d:%d]" % (a, a + 1))
        i("v_pk_add_f32 v[22:23], v[22:23], v[%d:%d]" % (a + 2, a + 3))
        i("v_cvt_pk_bf16_f32 v%d, v20, v21" % (24 + 2 * al))
        i("v_cvt_pk_bf16_f32 v%d, v22, v23" % (25 + 2 * al))
        i("ds_write_b64 v8, v[%d:%d] offset:%d" % (24 + 2 * al, 25 + 2 * al, 512 * al))
    i("s_waitcnt lgkmcnt(0)")
    i("s_barrier")
    i("s_lshr_b32 s13, s2, 3")
    i("s_lshl_b32 s13, s13, 2")
    i("s_and_b32 s14, s2, 3")
    i("s_add_u32 s13, s13, s14")
    i("s_lshl_b32 s13, s13, 15")
    i("s_bfe_u32 s14, s2, 0x10002")
    i("s_lshl_b32 s14, s14, 3")
    i("s_add_u32 s13, s13, s14")
    i("s_add_u32 s13, s13, 0x%x" % WS_H)
    i("v_lshlrev_b32 v8, 2, v0")
    i("v_add_u32 v8, %d, v8" % K2_TL)
    i("v_lshlrev_b32 v9, 5, v0")
    i("s_mov_b32 s14, 0x%x" % SEL_LO)
    i("s_mov_b32 s15, 0x%x" % SEL_HI)
    for it in range(4):
        for ch in range(4):
            i("ds_read_b32 v%d, v8 offset:%d" % (40 + 4 * it + ch, ch * 4096 + it * 1024))
    for it in range(4):
        i("s_waitcnt lgkmcnt(%d)" % (12 - 4 * it))
        b = 40 + 4 * it
        o = 60 + 4 * it
        i("v_perm_b32 v%d, v%d, v%d, s14" % (o, b + 1, b))
        i("v_perm_b32 v%d, v%d, v%d, s14" % (o + 1, b + 3, b + 2))
        i("v_perm_b32 v%d, v%d, v%d, s15" % (o + 2, b + 1, b))
        i("v_perm_b32 v%d, v%d, v%d, s15" % (o + 3, b + 3, b + 2))
        i("buffer_store_dwordx2 v[%d:%d], v9, s[8:11], s13 offen" % (o, o + 1))
        i("buffer_store_dwordx2 v[%d:%d], v9, s[8:11], s13 offen offset:16" % (o + 2, o + 3))
        if it < 3:
            i("s_add_u32 s13, s13, %d" % (256 * 32))
    lab("K2_END")
    i("s_endpgm")
    kernel_desc(name, 224, 48, 224)

K3_WL = 0
K3_SL = 640 * 224
K3_LDS = K3_SL + 512

def gen_k3():
    name = "k3_kernel"
    kernel_begin(name)
    i("s_cmp_ge_u32 s2, 256")
    i("s_cbranch_scc1 K3_END")
    i("s_load_dwordx4 s[16:19], s[0:1], 64")
    i("s_load_dwordx2 s[32:33], s[0:1], 112")
    i("v_lshrrev_b32 v1, 6, v0")
    i("v_and_b32 v2, 63, v0")
    i("v_readfirstlane_b32 s3, v1")
    i("v_and_b32 v3, 15, v2")
    i("v_lshrrev_b32 v4, 4, v2")
    i("s_and_b32 s20, s2, 7")
    i("s_lshr_b32 s21, s2, 3")
    i("s_lshr_b32 s22, s21, 4")
    i("s_lshl_b32 s20, s20, 1")
    i("s_add_u32 s20, s20, s22")
    i("s_and_b32 s21, s21, 15")
    i("s_waitcnt lgkmcnt(0)")
    srd(8, 32, WS_SIZE)
    srd(4, 16, D * F * 2)
    srd(12, 18, F * 2)
    i("s_mul_i32 s23, s21, 224")
    i("s_mov_b32 s24, %d" % ((1 << 20) // 14 + 1))
    for k in range(7):
        i("v_add_u32 v5, %d, v2" % (64 * k))
        i("v_mul_lo_u32 v6, v5, s24")
        i("v_lshrrev_b32 v6, 20, v6")
        i("v_mul_u32_u24 v7, 14, v6")
        i("v_sub_u32 v7, v5, v7")
        i("v_mul_u32_u24 v6, 3456, v6")
        i("v_lshl_add_u32 v6, v7, 4, v6")
        i("v_add_u32 v%d, s23, v6" % (240 + k))
    i("v_lshlrev_b32 v5, 11, v4")
    i("v_add_u32 v5, v5, v3")
    i("s_lshl_b32 s25, s20, 7")
    i("s_lshl_b32 s26, s3, 5")
    i("s_add_u32 s25, s25, s26")
    i("v_add_u32 v5, s25, v5")
    i("v_lshlrev_b32 v247, 4, v5")
    HB = 16
    ACC = 176
    def issue_chunk(g):
        i("s_add_u32 s27, s3, %d" % (4 * g))
        i("s_mul_i32 s28, s27, %d" % (32 * 3456))
        i("s_mul_i32 s29, s27, 7168")
        for k in range(7):
            i("s_add_u32 m0, s29, %d" % (1024 * k))
            i("s_nop 0")
            i("buffer_load_dwordx4 v%d, s[4:7], s28 offen lds" % (240 + k))
        for kk in range(4):
            kap = 4 * g + kk
            i("s_mov_b32 s30, 0x%x" % (WS_H + kap * 131072))
            for lt in range(2):
                r = HB + 8 * kap + 4 * lt
                i("buffer_load_dwordx4 v[%d:%d], v247, s[8:11], s30 offen offset:%d" % (r, r + 3, 256 * lt))
    for g in range(4):
        issue_chunk(g)
    i("v_lshrrev_b32 v5, 2, v3")
    i("v_lshl_add_u32 v5, v4, 2, v5")
    i("v_mul_u32_u24 v5, 224, v5")
    i("v_and_b32 v6, 3, v3")
    i("v_lshl_add_u32 v8, v6, 3, v5")
    i("v_add_u32 v9, %d, v8" % (8 * 7168))
    i("v_add_u32 v10, %d, v8" % (16 * 7168))
    i("v_mov_b32 v11, 0x3f803f80")
    i("v_mov_b32 v232, 0x3f803f80")
    i("v_mov_b32 v233, 0x3f803f80")
    i("v_mov_b32 v234, 0x3f803f80")
    i("v_mov_b32 v235, 0x3f803f80")
    for r in range(12, 16):
        i("v_mov_b32 v%d, 0" % r)
    def wreads(kap):
        s = kap & 1
        base = 8 + kap // 8
        o = (kap % 8) * 7168
        lst = []
        for t in range(7):
            r = 28 * s + 4 * t
            lst.append("ds_read_b64_tr_b16 a[%d:%d], v%d offset:%d" % (r, r + 1, base, o + 32 * t))
            lst.append("ds_read_b64_tr_b16 a[%d:%d], v%d offset:%d" % (r + 2, r + 3, base, o + 32 * t + 3584))
        return lst
    for g in range(5):
        if g == 0:
            i("s_waitcnt vmcnt(45)")
        elif g == 1:
            i("s_waitcnt vmcnt(45)")
        elif g == 2:
            i("s_waitcnt vmcnt(30)")
        elif g == 3:
            i("s_waitcnt vmcnt(15)")
        else:
            i("s_waitcnt vmcnt(0)")
        i("s_barrier")
        for r in wreads(4 * g):
            i(r)
        for kk in range(4):
            kap = 4 * g + kk
            s = kap & 1
            nxt = wreads(kap + 1) if kk < 3 else []
            i("s_waitcnt lgkmcnt(0)")
            mf = []
            for t in range(7):
                for lt in range(2):
                    a = ACC + 8 * t + 4 * lt
                    h = HB + 8 * kap + 4 * lt
                    mf.append("v_mfma_f32_16x16x32_bf16 v[%d:%d], a[%d:%d], v[%d:%d], %s" % (
                        a, a + 3, 28 * s + 4 * t, 28 * s + 4 * t + 3, h, h + 3, "0" if kap == 0 else "v[%d:%d]" % (a, a + 3)))
            va = []
            for lt in range(2):
                for r in range(4):
                    h = HB + 8 * kap + 4 * lt + r
                    va.append("v_dot2_f32_bf16 v%d, v%d, v11, v%d" % (12 + lt, h, 12 + lt))
                    va.append("v_dot2_f32_bf16 v%d, v%d, v%d, v%d" % (14 + lt, h, h, 14 + lt))
            k = 0; kv = 0
            for n, m in enumerate(mf):
                i(m)
                if k < len(nxt):
                    i(nxt[k]); k += 1
                if kv < len(va):
                    i(va[kv]); kv += 1
            while kv < len(va):
                i(va[kv]); kv += 1
            emit_colsum(kap, s)
        if g == 0:
            issue_chunk(4)
    nop(8)
    i("s_lshl_b32 s27, s3, 6")
    i("v_lshlrev_b32 v5, 4, v4")
    i("v_add_u32 v5, s27, v5")
    i("v_add_u32 v5, %d, v5" % K3_SL)
    for r in range(8):
        i("v_accvgpr_read_b32 v%d, a%d" % (16 + r, 56 + r))
    i("ds_write_b128 v5, v[16:19]")
    i("ds_write_b128 v5, v[20:23] offset:256")
    for r in (12, 13, 14, 15):
        i("v_mov_b32 v24, v%d" % r)
        nop(1)
        i("v_permlane32_swap_b32 v24, v%d" % r)
        nop(1)
        i("v_add_f32 v%d, v24, v%d" % (r, r))
        i("v_mov_b32 v24, v%d" % r)
        nop(1)
        i("v_permlane16_swap_b32 v24, v%d" % r)
        nop(1)
        i("v_add_f32 v%d, v24, v%d" % (r, r))
    for lt in range(2):
        m, v = 12 + lt, 14 + lt
        i("v_mul_f32 v%d, 0x3acccccd, v%d" % (m, m))
        i("v_mul_f32 v%d, 0x3acccccd, v%d" % (v, v))
        i("v_fma_f32 v%d, -v%d, v%d, v%d" % (v, m, m, v))
        i("v_max_f32 v%d, 0, v%d" % (v, v))
        round_bf16(m, m)
        round_bf16(v, v)
        i("v_add_f32 v%d, 0x3727c5ac, v%d" % (v, v))
        round_bf16(v, v)
        i("v_sqrt_f32 v%d, v%d" % (v, v))
        nop(1)
        round_bf16(v, v)
        i("v_rcp_f32 v%d, v%d" % (v, v))
        nop(1)
        i("v_mul_f32 v%d, v%d, v%d" % (m, m, v))
    i("v_lshlrev_b32 v5, 3, v4")
    i("v_add_u32 v5, s23, v5")
    for t in range(7):
        i("buffer_load_dwordx2 v[%d:%d], v5, s[12:15], 0 offen offset:%d" % (32 + 2 * t, 33 + 2 * t, 32 * t))
    i("s_waitcnt lgkmcnt(0)")
    i("s_barrier")
    i("v_lshlrev_b32 v5, 4, v4")
    i("v_add_u32 v5, %d, v5" % K3_SL)
    for t in range(7):
        i("ds_read_b128 v[%d:%d], v5 offset:%d" % (48 + 4 * t, 51 + 4 * t, 64 * t))
    i("v_lshlrev_b32 v6, 4, v2")
    i("s_lshl_b32 s27, s20, 3")
    i("s_lshl_b32 s28, s3, 1")
    i("s_add_u32 s27, s27, s28")
    i("s_lshl_b32 s27, s27, 10")
    i("s_add_u32 s27, s27, 0x%x" % WS_H1)
    i("s_mul_i32 s28, s21, 7")
    i("s_waitcnt vmcnt(0) lgkmcnt(0)")
    for t in range(7):
        i("v_lshlrev_b32 v80, 16, v%d" % (32 + 2 * t))
        i("v_and_b32 v81, 0xffff0000, v%d" % (32 + 2 * t))
        i("v_lshlrev_b32 v82, 16, v%d" % (33 + 2 * t))
        i("v_and_b32 v83, 0xffff0000, v%d" % (33 + 2 * t))
        i("s_add_u32 s29, s28, %d" % t)
        i("s_lshr_b32 s30, s29, 1")
        i("s_lshl_b32 s30, s30, 17")
        i("s_and_b32 s29, s29, 1")
        i("s_lshl_b32 s29, s29, 3")
        i("s_add_u32 s30, s30, s29")
        i("s_add_u32 s30, s30, s27")
        for lt in range(2):
            a = ACC + 8 * t + 4 * lt
            m, v = 12 + lt, 14 + lt
            s = 48 + 4 * t
            for r in range(4):
                i("v_fma_f32 v%d, -v%d, v%d, v%d" % (84 + r, m, s + r, 80 + r))
            for r in range(4):
                i("v_fma_f32 v%d, v%d, v%d, v%d" % (84 + r, a + r, v, 84 + r))
            for r in range(4):
                i("v_max_f32 v%d, 0, v%d" % (84 + r, 84 + r))
            for r in range(4):
                i("v_mul_f32 v%d, v%d, v%d" % (84 + r, 84 + r, 84 + r))
            o = 88 + 2 * lt + 4 * (t & 1)
            i("v_cvt_pk_bf16_f32 v%d, v84, v85" % o)
            i("v_cvt_pk_bf16_f32 v%d, v86, v87" % (o + 1))
            i("buffer_store_dwordx2 v[%d:%d], v6, s[8:11], s30 offen offset:%d" % (o, o + 1, 1024 * lt))
    lab("K3_END")
    i("s_endpgm")
    kernel_desc(name, 320, 48, 256)

def emit_colsum(kap, s):
    lbl = "K3_CS%d" % kap
    for w in range(4):
        if w < 3:
            i("s_cmp_lg_u32 s3, %d" % w)
            i("s_cbranch_scc1 %s_%d" % (lbl, w))
        for n, t in enumerate((w, w + 4)):
            if t < 7:
                i("v_mfma_f32_16x16x32_bf16 a[%d:%d], a[%d:%d], v[232:235], %s" % (
                    56 + 4 * n, 59 + 4 * n, 28 * s + 4 * t, 28 * s + 4 * t + 3, "0" if kap == 0 else "a[%d:%d]" % (56 + 4 * n, 59 + 4 * n)))
        if w < 3:
            i("s_branch %s_E" % lbl)
            lab("%s_%d" % (lbl, w))
    lab("%s_E" % lbl)

K4_SLOTS = 6
K4_WREG = K4_SLOTS * 5120
K4_LDS = 4 * K4_WREG

def gen_k4():
    name = "k4_kernel"
    kernel_begin(name)
    i("s_cmp_ge_u32 s2, 256")
    i("s_cbranch_scc1 K4_END")
    i("s_load_dwordx4 s[16:19], s[0:1], 80")
    i("s_load_dwordx2 s[34:35], s[0:1], 96")
    i("s_load_dwordx2 s[32:33], s[0:1], 112")
    i("v_lshrrev_b32 v1, 6, v0")
    i("v_and_b32 v2, 63, v0")
    i("v_readfirstlane_b32 s3, v1")
    i("v_and_b32 v3, 15, v2")
    i("v_lshrrev_b32 v4, 4, v2")
    i("s_and_b32 s20, s2, 7")
    i("s_lshr_b32 s21, s2, 3")
    i("s_lshr_b32 s22, s21, 3")
    i("s_lshl_b32 s20, s20, 2")
    i("s_add_u32 s20, s20, s22")
    i("s_and_b32 s21, s21, 7")
    i("s_waitcnt lgkmcnt(0)")
    srd(8, 32, WS_SIZE)
    srd(4, 16, F * D * 2)
    srd(12, 18, D * 2)
    srd(36, 34, L * D * 2)
    i("s_mul_i32 s22, s3, 14")
    i("s_sub_u32 s23, s3, 2")
    i("s_max_i32 s23, s23, 0")
    i("s_sub_u32 s22, s22, s23")
    i("s_cmp_lt_u32 s3, 2")
    i("s_cselect_b32 s23, 14, 13")
    i("s_mul_i32 s24, s21, 160")
    i("s_mov_b32 s25, %d" % ((1 << 20) // 10 + 1))
    for k in range(5):
        i("v_add_u32 v5, %d, v2" % (64 * k))
        i("v_mul_lo_u32 v6, v5, s25")
        i("v_lshrrev_b32 v6, 20, v6")
        i("v_mul_u32_u24 v7, 10, v6")
        i("v_sub_u32 v7, v5, v7")
        i("v_mul_u32_u24 v6, 1280, v6")
        i("v_lshl_add_u32 v6, v7, 4, v6")
        i("v_add_u32 v%d, s24, v6" % (240 + k))
    i("v_lshlrev_b32 v245, 4, v2")
    i("s_mul_i32 s26, s22, %d" % (32 * 1280))
    i("s_lshl_b32 s27, s22, 7")
    i("s_lshl_b32 s29, s20, 2")
    i("s_add_u32 s27, s27, s29")
    i("s_lshl_b32 s27, s27, 10")
    i("s_add_u32 s27, s27, 0x%x" % WS_H1)
    i("s_mul_i32 s28, s3, %d" % K4_WREG)
    HB = 16
    ACC = 128
    def issue(slot):
        for k in range(5):
            i("s_add_u32 m0, s28, %d" % (slot * 5120 + 1024 * k))
            i("s_nop 0")
            i("buffer_load_dwordx4 v%d, s[4:7], s26 offen lds" % (240 + k))
        for lt in range(4):
            r = HB + 16 * slot + 4 * lt
            i("buffer_load_dwordx4 v[%d:%d], v245, s[8:11], s27 offen offset:%d" % (r, r + 3, 1024 * lt))
        i("s_add_u32 s26, s26, %d" % (32 * 1280))
        i("s_add_u32 s27, s27, %d" % (128 * 1024))
    for sl in range(K4_SLOTS):
        issue(sl)
    i("v_lshrrev_b32 v5, 2, v3")
    i("v_lshl_add_u32 v5, v4, 2, v5")
    i("v_mul_u32_u24 v5, 160, v5")
    i("v_and_b32 v6, 3, v3")
    i("v_lshl_add_u32 v8, v6, 3, v5")
    i("v_add_u32 v8, s28, v8")
    for r in range(80):
        i("v_mov_b32 v%d, 0" % (ACC + r))
    NST = 14
    for n in range(NST):
        slot = n % K4_SLOTS
        if n == 13:
            i("s_cmp_eq_u32 s23, 13")
            i("s_cbranch_scc1 K4_RED")
        later14 = min(14, n + 6) - n - 1
        later13 = min(13, n + 6) - n - 1
        later = min(later14, max(later13, 0))
        i("s_waitcnt vmcnt(%d)" % (9 * later))
        for dl in range(5):
            r = 4 * dl
            i("ds_read_b64_tr_b16 a[%d:%d], v8 offset:%d" % (r, r + 1, slot * 5120 + 32 * dl))
            i("ds_read_b64_tr_b16 a[%d:%d], v8 offset:%d" % (r + 2, r + 3, slot * 5120 + 32 * dl + 2560))
        for dl in range(5):
            i("s_waitcnt lgkmcnt(%d)" % (8 - 2 * dl))
            for lt in range(4):
                a = ACC + 16 * dl + 4 * lt
                h = HB + 16 * slot + 4 * lt
                i("v_mfma_f32_16x16x32_bf16 v[%d:%d], a[%d:%d], v[%d:%d], v[%d:%d]" % (a, a + 3, 4 * dl, 4 * dl + 3, h, h + 3, a, a + 3))
        if n + 6 < 14:
            if n + 6 == 13:
                i("s_cmp_eq_u32 s23, 13")
                i("s_cbranch_scc1 K4_SKIP%d" % n)
            issue(slot)
            if n + 6 == 13:
                lab("K4_SKIP%d" % n)
    lab("K4_RED")
    i("s_waitcnt vmcnt(0) lgkmcnt(0)")
    i("s_barrier")
    nop(8)
    i("v_lshlrev_b32 v5, 4, v2")
    i("s_mul_i32 s29, s3, 5120")
    i("v_add_u32 v5, s29, v5")
    i("v_add_u32 v9, 40960, v5")
    for lt in range(4):
        for dl in range(5):
            a = ACC + 16 * dl + 4 * lt
            base = 5 if lt < 2 else 9
            i("ds_write_b128 v%d, v[%d:%d] offset:%d" % (base, a, a + 3, (lt & 1) * 20480 + dl * 1024))
    i("s_lshl_b32 s29, s20, 6")
    i("s_lshl_b32 s30, s3, 4")
    i("s_add_u32 s29, s29, s30")
    i("v_add_u32 v6, s29, v3")
    i("v_lshl_add_u32 v7, v4, 11, v6")
    i("v_lshlrev_b32 v7, 4, v7")
    i("s_mul_i32 s30, s21, 5")
    for dl in range(5):
        i("s_add_u32 s31, s30, %d" % dl)
        i("s_lshr_b32 s22, s31, 1")
        i("s_lshl_b32 s22, s22, 17")
        i("s_and_b32 s31, s31, 1")
        i("s_lshl_b32 s31, s31, 3")
        i("s_add_u32 s22, s22, s31")
        i("s_add_u32 s22, s22, 0x%x" % WS_H)
        i("buffer_load_dwordx2 v[%d:%d], v7, s[8:11], s22 offen" % (16 + 2 * dl, 17 + 2 * dl))
    i("v_lshlrev_b32 v10, 3, v4")
    i("v_add_u32 v10, s24, v10")
    for dl in range(5):
        i("buffer_load_dwordx2 v[%d:%d], v10, s[12:15], 0 offen offset:%d" % (32 + 2 * dl, 33 + 2 * dl, 32 * dl))
    i("s_waitcnt lgkmcnt(0)")
    i("s_barrier")
    i("v_lshlrev_b32 v5, 4, v2")
    i("s_mul_i32 s29, s3, 20480")
    i("v_add_u32 v5, s29, v5")
    for src in range(4):
        for dl in range(5):
            r = 48 + 20 * src + 4 * dl
            i("ds_read_b128 v[%d:%d], v5 offset:%d" % (r, r + 3, src * 5120 + dl * 1024))
    i("v_mul_u32_u24 v6, 1280, v6")
    i("v_add_u32 v6, v6, v10")
    i("s_waitcnt vmcnt(0) lgkmcnt(0)")
    for dl in range(5):
        r = 48 + 4 * dl
        for src in range(1, 4):
            i("v_pk_add_f32 v[%d:%d], v[%d:%d], v[%d:%d]" % (r, r + 1, r, r + 1, r + 20 * src, r + 20 * src + 1))
            i("v_pk_add_f32 v[%d:%d], v[%d:%d], v[%d:%d]" % (r + 2, r + 3, r + 2, r + 3, r + 20 * src + 2, r + 20 * src + 3))
        i("v_cvt_pk_bf16_f32 v130, v%d, v%d" % (r, r + 1))
        i("v_cvt_pk_bf16_f32 v131, v%d, v%d" % (r + 2, r + 3))
        for (src, dst) in ((130, 132), (131, 134)):
            i("v_lshlrev_b32 v%d, 16, v%d" % (dst, src))
            i("v_and_b32 v%d, 0xffff0000, v%d" % (dst + 1, src))
        for (src, dst) in ((32 + 2 * dl, 136), (33 + 2 * dl, 138)):
            i("v_lshlrev_b32 v%d, 16, v%d" % (dst, src))
            i("v_and_b32 v%d, 0xffff0000, v%d" % (dst + 1, src))
        i("v_pk_add_f32 v[132:133], v[132:133], v[136:137]")
        i("v_pk_add_f32 v[134:135], v[134:135], v[138:139]")
        i("v_cvt_pk_bf16_f32 v130, v132, v133")
        i("v_cvt_pk_bf16_f32 v131, v134, v135")
        for (src, dst) in ((130, 132), (131, 134)):
            i("v_lshlrev_b32 v%d, 16, v%d" % (dst, src))
            i("v_and_b32 v%d, 0xffff0000, v%d" % (dst + 1, src))
        for (src, dst) in ((16 + 2 * dl, 136), (17 + 2 * dl, 138)):
            i("v_lshlrev_b32 v%d, 16, v%d" % (dst, src))
            i("v_and_b32 v%d, 0xffff0000, v%d" % (dst + 1, src))
        i("v_pk_add_f32 v[132:133], v[132:133], v[136:137]")
        i("v_pk_add_f32 v[134:135], v[134:135], v[138:139]")
        i("v_cvt_pk_bf16_f32 v%d, v132, v133" % (140 + 2 * dl))
        i("v_cvt_pk_bf16_f32 v%d, v134, v135" % (141 + 2 * dl))
        i("buffer_store_dwordx2 v[%d:%d], v6, s[36:39], 0 offen offset:%d" % (140 + 2 * dl, 141 + 2 * dl, 32 * dl))
    lab("K4_END")
    i("s_endpgm")
    kernel_desc(name, 276, 48, 256)

def header():
    ref = open("cdna_kernels/%s.s.ref" % NAME).read().splitlines()
    for ln in ref:
        if ln.startswith("; Override"):
            break
        e(ln)
    e("; @launch kernel=k1_kernel grid=(%d,1,1) block=(256,1,1) lds=%d" % (K1_NLN + K1_NKG, K1_LDS))
    e("; @launch kernel=k2_kernel grid=(160,1,1) block=(256,1,1) lds=%d" % K2_LDS)
    e("; @launch kernel=k3_kernel grid=(256,1,1) block=(256,1,1) lds=%d" % K3_LDS)
    e("; @launch kernel=k4_kernel grid=(256,1,1) block=(256,1,1) lds=%d" % K4_LDS)
    e('.amdgcn_target "amdgcn-amd-amdhsa--gfx950"')

if __name__ == "__main__":
    header()
    gen_k1()
    gen_k2()
    gen_k3()
    gen_k4()
    path = sys.argv[1] if len(sys.argv) > 1 else "cdna_kernels/%s.s" % NAME
    open(path, "w").write("\n".join(out) + "\n")
    print("wrote", path, len(out), "lines")
```

```python
import sys, os, struct
NAME = "sequential_preLN__ssm_conv_s4d__dense_activation_squared_relu__prompt"
KNAME = NAME + "_kernel"
L, D, NS, F = 2048, 640, 128, 1728
STAMPS = os.environ.get("STAMPS", "0") == "1"
STOP = os.environ.get("STOP", "")

WS_ST1 = 0x000000
WS_CS  = 0x008000
WS_ST2 = 0x010000
WS_FL  = 0x020000
WS_H   = 0x100000
WS_H1  = 0x400000
WS_W1P = 0xC00000
WS_W2P = 0x1000000
WS_STAMP = 0x8000000
WS_SIZE = 0x10000000
FL_S2, FL_GO2, FL_S2B, FL_S3, FL_SIZE = 0, 3072, 4096, 6144, 8192
DBG_C1, DBG_CW, DBG_GO1, DBG_GOW = 0, 4, 128, 132
XROW = 544
FAC_CH = 63 * XROW
KCH, KCP = FAC_CH, 4160
UL = 137216
XL = 50944
TL = 16640
MISC = 158720
M_CH, M_ST, M_S1, M_XT, M_TR, M_HS, M_EP = 0, 32, 64, 68, 72, 76, 80
M_STAT, M_CS, M_B1 = 256, 1280, 1792
LDS_TOTAL = 163840

out = []
def e(s=""): out.append(s)
def lab(s): out.append(s + ":")
def i(s): out.append("    " + s)
def f2u(f): return struct.unpack("<I", struct.pack("<f", f))[0]
def nop(n):
    while n > 0:
        k = min(n, 16); i("s_nop %d" % (k - 1)); n -= k
def srd(dst, ptr_lo, nbytes):
    i("s_mov_b32 s%d, s%d" % (dst, ptr_lo))
    i("s_mov_b32 s%d, s%d" % (dst + 1, ptr_lo + 1))
    i("s_mov_b32 s%d, 0x%x" % (dst + 2, nbytes))
    i("s_mov_b32 s%d, 0x00020000" % (dst + 3))
def round_bf16(dst, src):
    i("v_cvt_pk_bf16_f32 v%d, v%d, v%d" % (dst, src, src))
    i("v_lshlrev_b32 v%d, 16, v%d" % (dst, dst))
_uid = [0]
def uid(p):
    _uid[0] += 1
    return "%s_%d" % (p, _uid[0])
def stamp(k):
    if STAMPS:
        assert k < 15
        i("s_memrealtime s[%d:%d]" % (70 + 2 * k, 71 + 2 * k))
def stamp_flush():
    if not STAMPS: return
    i("s_memrealtime s[100:101]")
    i("s_waitcnt lgkmcnt(0)")
    i("s_mov_b64 exec, 1")
    i("s_lshl_b32 s46, s2, 3")
    i("s_add_u32 s46, s46, s3")
    i("s_lshl_b32 s46, s46, 7")
    i("s_add_u32 s46, s46, 0x%x" % WS_STAMP)
    i("v_mov_b32 v0, 0")
    for k in range(16):
        i("v_mov_b32 v2, s%d" % (70 + 2 * k))
        i("v_mov_b32 v3, s%d" % (71 + 2 * k))
        i("buffer_store_dwordx2 v[2:3], v0, s[8:11], s46 offen offset:%d" % (8 * k))
        i("s_nop 1")

LOG2E, NLOG2E, INV2PI = 0x3fb8aa3b, 0xbfb8aa3b, "0.15915494"
SEL_LO, SEL_HI = 0x05040100, 0x07060302
INV640, EPS = 0x3acccccd, 0x3727c5ac
SPIN_LIMIT = 1 << 18

def poll(srd_reg, soff, nlanes, ndw, vt, spread=False, sleep=2):
    top, done = uid("POLL"), uid("POLLD")
    i("s_mov_b64 s[68:69], exec")
    m = (1 << nlanes) - 1
    i("s_mov_b32 exec_lo, 0x%x" % (m & 0xffffffff))
    i("s_mov_b32 exec_hi, 0x%x" % (m >> 32))
    if spread:
        i("v_lshrrev_b32 v%d, 1, v1" % (vt + 4))
        i("v_lshlrev_b32 v%d, 7, v%d" % (vt + 4, vt + 4))
        i("v_and_b32 v%d, 1, v1" % (vt + 5))
        i("v_lshl_add_u32 v%d, v%d, 4, v%d" % (vt + 4, vt + 5, vt + 4))
    else:
        i("v_lshlrev_b32 v%d, %d, v1" % (vt + 4, {1: 2, 4: 4}[ndw]))
    i("s_mov_b32 s47, 0")
    lab(top)
    if ndw == 1:
        i("buffer_load_dword v%d, v%d, s[%d:%d], %s offen sc1" % (vt, vt + 4, srd_reg, srd_reg + 3, soff))
        i("s_waitcnt vmcnt(0)")
    else:
        i("buffer_load_dwordx4 v[%d:%d], v%d, s[%d:%d], %s offen sc1" % (vt, vt + 3, vt + 4, srd_reg, srd_reg + 3, soff))
        i("s_waitcnt vmcnt(0)")
        i("v_min_u32 v%d, v%d, v%d" % (vt, vt, vt + 1))
        i("v_min_u32 v%d, v%d, v%d" % (vt + 2, vt + 2, vt + 3))
        i("v_min_u32 v%d, v%d, v%d" % (vt, vt, vt + 2))
    i("v_cmp_ne_u32 vcc, 0, v%d" % vt)
    i("s_cmp_eq_u64 vcc, exec")
    i("s_cbranch_scc1 %s" % done)
    i("s_sleep %d" % sleep)
    i("s_add_u32 s47, s47, 1")
    i("s_cmp_lt_u32 s47, %d" % SPIN_LIMIT)
    i("s_cbranch_scc1 %s" % top)
    lab(done)
    i("s_mov_b64 exec, s[68:69]")

def set_flag(srd_reg, soff, va=4):
    i("s_mov_b64 s[68:69], exec")
    i("s_mov_b64 exec, 1")
    i("v_mov_b32 v%d, 0" % va)
    i("v_mov_b32 v%d, 1" % (va + 1))
    i("buffer_store_dword v%d, v%d, s[%d:%d], %s offen sc1" % (va + 1, va, srd_reg, srd_reg + 3, soff))
    i("s_mov_b64 exec, s[68:69]")

def arrive_last(cnt_off, total, go_off):
    lbl = uid("ARR")
    i("s_mov_b64 s[68:69], exec")
    i("s_mov_b64 exec, 1")
    i("v_mov_b32 v4, %d" % cnt_off)
    i("v_mov_b32 v5, 1")
    i("buffer_atomic_add v5, v4, s[56:59], 0 offen sc0 sc1")
    i("s_waitcnt vmcnt(0)")
    i("v_readfirstlane_b32 s13, v5")
    i("s_mov_b64 exec, s[68:69]")
    i("s_cmp_lg_u32 s13, %d" % (total - 1))
    i("s_cbranch_scc1 %s" % lbl)
    i("s_mov_b32 s13, %d" % go_off)
    set_flag(56, "s13")
    lab(lbl)

def lds_wait(off, target, vt=4, sleep=1):
    top, d = uid("LW"), uid("LWD")
    i("v_mov_b32 v%d, %d" % (vt, MISC + off))
    lab(top)
    i("ds_read_b32 v%d, v%d" % (vt + 1, vt))
    i("s_waitcnt lgkmcnt(0)")
    i("v_readfirstlane_b32 s13, v%d" % (vt + 1))
    i("s_cmp_ge_u32 s13, %d" % target)
    i("s_cbranch_scc1 %s" % d)
    i("s_sleep %d" % sleep)
    i("s_branch %s" % top)
    lab(d)

def lds_add(off, va=4, rtn=False):
    i("s_mov_b64 exec, 1")
    i("v_mov_b32 v%d, %d" % (va, MISC + off))
    i("v_mov_b32 v%d, 1" % (va + 1))
    if rtn:
        i("ds_add_rtn_u32 v%d, v%d, v%d" % (va + 1, va, va + 1))
        i("s_waitcnt lgkmcnt(0)")
        i("v_readfirstlane_b32 s13, v%d" % (va + 1))
    else:
        i("ds_add_u32 v%d, v%d" % (va, va + 1))
    i("s_mov_b64 exec, -1")

def ln_finish(m, v, mr):
    i("v_mul_f32 v%d, 0x%x, v%d" % (m, INV640, m))
    i("v_mul_f32 v%d, 0x%x, v%d" % (v, INV640, v))
    i("v_fma_f32 v%d, -v%d, v%d, v%d" % (v, m, m, v))
    i("v_max_f32 v%d, 0, v%d" % (v, v))
    round_bf16(m, m)
    round_bf16(v, v)
    i("v_add_f32 v%d, 0x%x, v%d" % (v, EPS, v))
    round_bf16(v, v)
    i("v_sqrt_f32 v%d, v%d" % (v, v))
    nop(1)
    round_bf16(v, v)
    i("v_rcp_f32 v%d, v%d" % (v, v))
    nop(1)
    if mr: i("v_mul_f32 v%d, v%d, v%d" % (m, m, v))

W1S, W2R = 8, 120
def w1_load(chunks, regbase):
    i("v_lshlrev_b32 v4, 4, v1")
    for n, c in enumerate(chunks):
        i("s_and_b32 s46, s3, 3")
        i("s_add_u32 s46, s46, %d" % (4 * c))
        i("s_mul_i32 s46, s46, 7168")
        i("s_add_u32 s46, s46, s62")
        for t in range(7):
            r = regbase + 28 * n + 4 * t
            i("buffer_load_dwordx4 v[%d:%d], v4, s[8:11], s46 offen offset:%d sc1" % (r, r + 3, 1024 * t if t < 4 else 0))
            if t == 3: pass
            if t == 3:
                out.pop()
                i("buffer_load_dwordx4 v[%d:%d], v4, s[8:11], s46 offen offset:3072 sc1" % (r, r + 3))
                i("s_add_u32 s46, s46, 4096")
            if t > 3:
                out.pop()
                i("buffer_load_dwordx4 v[%d:%d], v4, s[8:11], s46 offen offset:%d sc1" % (r, r + 3, 1024 * (t - 4)))
def w1_write(chunks, regbase):
    i("v_lshlrev_b32 v4, 4, v1")
    for n, c in enumerate(chunks):
        i("s_and_b32 s46, s3, 3")
        i("s_add_u32 s46, s46, %d" % (4 * c))
        i("s_mul_i32 s46, s46, 7168")
        i("v_add_u32 v5, s46, v4")
        for t in range(7):
            r = regbase + 28 * n + 4 * t
            i("ds_write_b128 v5, v[%d:%d] offset:%d" % (r, r + 3, 1024 * t))
def w2_load(steps, slots):
    for st, sl in zip(steps, slots):
        i("s_add_u32 s46, s61, %d" % (st * 5120))
        for dl in range(5):
            r = W2R + 20 * sl + 4 * dl
            if dl < 4:
                i("buffer_load_dwordx4 v[%d:%d], v4, s[8:11], s46 offen offset:%d sc1" % (r, r + 3, 1024 * dl))
            else:
                i("s_add_u32 s46, s46, 4096")
                i("buffer_load_dwordx4 v[%d:%d], v4, s[8:11], s46 offen sc1" % (r, r + 3))

def main():
    ref = open("cdna_kernels/%s.s.ref" % NAME).read().splitlines()
    for ln in ref:
        if ln.startswith("; Override"): break
        e(ln)
    e("; @launch grid=(256,1,1) block=(512,1,1) lds=%d" % LDS_TOTAL)
    e('.amdgcn_target "amdgcn-amd-amdhsa--gfx950"')
    e(".text")
    e(".globl %s" % KNAME)
    e(".p2align 8")
    e(".type %s,@function" % KNAME)
    lab(KNAME)
    i("s_cmp_ge_u32 s2, 256")
    i("s_cbranch_scc1 L_END")
    stamp(0)
    i("s_load_dwordx16 s[16:31], s[0:1], 0")
    i("s_load_dwordx8 s[36:43], s[0:1], 64")
    i("s_load_dwordx2 s[44:45], s[0:1], 96")
    i("s_load_dwordx4 s[32:35], s[0:1], 104")
    i("v_lshrrev_b32 v4, 6, v0")
    i("v_and_b32 v1, 63, v0")
    i("v_and_b32 v2, 15, v1")
    i("v_readfirstlane_b32 s3, v4")
    i("v_lshrrev_b32 v3, 4, v1")
    i("s_and_b32 s64, s2, 7")
    i("s_lshr_b32 s65, s2, 3")
    i("s_lshr_b32 s66, s64, 1")
    i("s_lshl_b32 s66, s66, 2")
    i("s_lshr_b32 s46, s65, 3")
    i("s_add_u32 s66, s66, s46")
    i("s_and_b32 s67, s64, 1")
    i("s_lshl_b32 s67, s67, 3")
    i("s_and_b32 s46, s65, 7")
    i("s_add_u32 s67, s67, s46")
    i("s_mul_i32 s62, s67, %d" % (20 * 7168))
    i("s_add_u32 s62, s62, 0x%x" % WS_W1P)
    i("s_and_b32 s46, s64, 1")
    i("s_lshl_b32 s46, s46, 2")
    i("s_and_b32 s47, s65, 3")
    i("s_add_u32 s60, s46, s47")
    i("s_mul_i32 s61, s60, 54")
    i("s_and_b32 s46, s3, 3")
    i("s_mul_i32 s46, s46, 7")
    i("s_add_u32 s61, s61, s46")
    i("s_lshr_b32 s46, s3, 2")
    i("s_mul_i32 s46, s46, 27")
    i("s_add_u32 s61, s61, s46")
    i("s_mul_i32 s61, s61, 5120")
    i("s_add_u32 s61, s61, 0x%x" % WS_W2P)
    i("s_waitcnt lgkmcnt(0)")
    srd(8, 34, WS_SIZE)
    srd(48, 36, D * F * 2)
    srd(52, 40, F * D * 2)
    srd(56, 32, 256)
    i("s_cmp_lt_u32 s65, 8")
    i("s_cbranch_scc1 L_STATS")
    i("s_cmp_lt_u32 s65, 28")
    i("s_cbranch_scc1 L_CONV")
    i("s_branch L_COLSUM")
    lab("L_STATS")
    i("s_lshl_b32 s46, s65, 3")
    i("s_add_u32 s12, s46, s64")
    i("s_lshl_b32 s13, s12, 5")
    i("s_lshl_b32 s14, s3, 2")
    i("s_add_u32 s13, s13, s14")
    i("v_add_u32 v4, s13, v3")
    i("v_mul_u32_u24 v5, 1280, v4")
    i("v_lshl_add_u32 v5, v2, 4, v5")
    for k in range(5):
        i("global_load_dwordx4 v[%d:%d], v5, s[16:17] offset:%d" % (32 + 4 * k, 35 + 4 * k, 256 * k))
    i("s_cmp_lg_u32 s12, 0")
    i("s_cbranch_scc1 L_NOZ")
    i("s_cmp_lg_u32 s3, 7")
    i("s_cbranch_scc1 L_NOZ")
    for r in range(4): i("v_mov_b32 v%d, 0" % (60 + r))
    i("v_lshlrev_b32 v6, 4, v1")
    i("s_mov_b32 s14, 0x%x" % WS_FL)
    for k in range(FL_SIZE // 1024):
        i("buffer_store_dwordx4 v[60:63], v6, s[8:11], s14 offen sc1")
        i("s_add_u32 s14, s14, 1024")
    lab("L_NOZ")
    i("v_mov_b32 v7, 0x3f803f80")
    for r in range(8, 16): i("v_mov_b32 v%d, 0" % r)
    i("s_waitcnt vmcnt(0)")
    for k in range(20):
        i("v_dot2_f32_bf16 v%d, v%d, v7, v%d" % (8 + (k & 3), 32 + k, 8 + (k & 3)))
        i("v_dot2_f32_bf16 v%d, v%d, v%d, v%d" % (12 + (k & 3), 32 + k, 32 + k, 12 + (k & 3)))
    nop(3)
    i("v_add_f32 v8, v8, v9")
    i("v_add_f32 v10, v10, v11")
    i("v_add_f32 v12, v12, v13")
    i("v_add_f32 v14, v14, v15")
    i("v_add_f32 v8, v8, v10")
    i("v_add_f32 v9, v12, v14")
    for r in (8, 4, 2, 1):
        nop(2)
        i("v_add_f32_dpp v8, v8, v8 row_ror:%d row_mask:0xf bank_mask:0xf" % r)
        i("v_add_f32_dpp v9, v9, v9 row_ror:%d row_mask:0xf bank_mask:0xf" % r)
    ln_finish(8, 9, False)
    i("v_lshlrev_b32 v4, 3, v4")
    i("v_cmp_eq_u32 vcc, 0, v2")
    i("s_and_saveexec_b64 s[68:69], vcc")
    i("s_mov_b32 s14, 0x%x" % WS_ST1)
    i("buffer_store_dwordx2 v[8:9], v4, s[8:11], s14 offen sc1")
    i("s_mov_b64 exec, s[68:69]")
    i("s_waitcnt vmcnt(0)")
    i("s_barrier")
    i("s_cmp_lg_u32 s3, 0")
    i("s_cbranch_scc1 L_REPACK")
    arrive_last(DBG_C1, 64, DBG_GO1)
    i("s_branch L_REPACK")
    lab("L_COLSUM")
    i("s_getpc_b64 s[46:47]")
    lab("L_PC")
    i("s_sub_u32 s46, s46, L_PC-%s" % KNAME)
    i("s_subb_u32 s47, s47, 0")
    i("v_lshlrev_b32 v4, 7, v0")
    i("v_cmp_gt_u32 vcc, L_CODE_END-%s, v4" % KNAME)
    i("s_and_saveexec_b64 s[68:69], vcc")
    i("s_cbranch_execz L_NOPF")
    i("global_load_dword v200, v4, s[46:47]")
    lab("L_NOPF")
    i("s_mov_b64 exec, s[68:69]")
    i("s_sub_u32 s46, s65, 28")
    i("s_lshl_b32 s46, s46, 3")
    i("s_add_u32 s12, s46, s64")
    i("s_cmp_ge_u32 s12, 27")
    i("s_cbranch_scc1 L_REPACK")
    i("v_lshrrev_b32 v4, 3, v1")
    i("s_lshl_b32 s13, s3, 3")
    i("v_add_u32 v4, s13, v4")
    i("v_mul_u32_u24 v4, 3456, v4")
    i("v_and_b32 v5, 7, v1")
    i("v_lshl_add_u32 v4, v5, 4, v4")
    i("s_lshl_b32 s13, s12, 7")
    for it in range(10):
        i("buffer_load_dwordx4 v[%d:%d], v4, s[48:51], s13 offen" % (32 + 4 * it, 35 + 4 * it))
        i("s_add_u32 s13, s13, %d" % (64 * 3456))
    for r in range(8): i("v_mov_b32 v%d, 0" % (8 + r))
    for it in range(10):
        i("s_waitcnt vmcnt(%d)" % (9 - it))
        for dw in range(4):
            x = 32 + 4 * it + dw
            i("v_lshlrev_b32 v16, 16, v%d" % x)
            i("v_and_b32 v17, 0xffff0000, v%d" % x)
            i("v_pk_add_f32 v[%d:%d], v[%d:%d], v[16:17]" % (8 + 2 * dw, 9 + 2 * dw, 8 + 2 * dw, 9 + 2 * dw))
    nop(1)
    for r in range(8):
        i("v_add_f32_dpp v%d, v%d, v%d row_ror:8 row_mask:0xf bank_mask:0xf" % (8 + r, 8 + r, 8 + r))
    for op in ("v_permlane16_swap_b32", "v_permlane32_swap_b32"):
        for r in range(8): i("v_mov_b32 v%d, v%d" % (16 + r, 8 + r))
        nop(1)
        for r in range(8): i("%s v%d, v%d" % (op, 16 + r, 8 + r))
        nop(1)
        for r in range(8): i("v_add_f32 v%d, v%d, v%d" % (8 + r, 8 + r, 16 + r))
    i("v_lshlrev_b32 v4, 5, v1")
    i("s_lshl_b32 s13, s3, 8")
    i("v_add_u32 v4, s13, v4")
    i("v_add_u32 v4, 60000, v4")
    i("s_mov_b64 exec, 0xff")
    i("ds_write_b128 v4, v[8:11] offset:32")
    i("ds_write_b128 v4, v[12:15] offset:48")
    i("s_mov_b64 exec, -1")
    i("s_waitcnt lgkmcnt(0)")
    i("s_barrier")
    i("s_cmp_lg_u32 s3, 0")
    i("s_cbranch_scc1 L_REPACK")
    i("v_lshlrev_b32 v4, 2, v1")
    i("v_add_u32 v5, 60032, v4")
    for w in range(8):
        i("ds_read_b32 v%d, v5 offset:%d" % (8 + w, 256 * w))
    i("s_waitcnt lgkmcnt(0)")
    for w in range(1, 8): i("v_add_f32 v8, v8, v%d" % (8 + w))
    i("s_lshl_b32 s13, s12, 8")
    i("s_add_u32 s13, s13, 0x%x" % WS_CS)
    i("buffer_store_dword v8, v4, s[8:11], s13 offen sc1")
    lab("L_REPACK")
    stamp(1)
    i("s_sub_u32 s46, s65, 20")
    i("s_cmp_lt_u32 s65, 8")
    i("s_cselect_b32 s46, s65, s46")
    i("s_lshl_b32 s46, s46, 3")
    i("s_add_u32 s46, s46, s64")
    i("s_lshl_b32 s12, s46, 3")
    i("s_add_u32 s12, s12, s3")
    i("s_mul_i32 s14, s3, 7168")
    i("v_lshrrev_b32 v5, 2, v2")
    i("v_lshl_add_u32 v5, v3, 2, v5")
    i("v_and_b32 v6, 3, v2")
    i("v_lshlrev_b32 v6, 3, v6")
    i("v_lshlrev_b32 v7, 4, v1")
    i("s_cmp_ge_u32 s12, 752")
    i("s_cbranch_scc1 L_RP_DONE")
    i("s_cmp_ge_u32 s12, 320")
    i("s_cbranch_scc1 L_RP_W2")
    i("s_mul_i32 s13, s12, 52429")
    i("s_lshr_b32 s13, s13, 20")
    i("s_mul_i32 s15, s13, 20")
    i("s_sub_u32 s15, s12, s15")
    i("s_mul_i32 s4, s15, %d" % (32 * 3456))
    i("s_mul_i32 s5, s13, 224")
    i("s_add_u32 s4, s4, s5")
    i("s_mov_b32 s47, %d" % ((1 << 20) // 14 + 1))
    for k in range(7):
        i("v_add_u32 v8, %d, v1" % (64 * k))
        i("v_mul_lo_u32 v9, v8, s47")
        i("v_lshrrev_b32 v9, 20, v9")
        i("v_mul_u32_u24 v10, 14, v9")
        i("v_sub_u32 v10, v8, v10")
        i("v_mul_u32_u24 v9, 3456, v9")
        i("v_lshl_add_u32 v9, v10, 4, v9")
        i("s_add_u32 m0, s14, %d" % (1024 * k))
        i("s_nop 0")
        i("buffer_load_dwordx4 v9, s[48:51], s4 offen lds")
    i("v_mul_u32_u24 v5, 224, v5")
    i("v_add3_u32 v5, v5, v6, s14")
    i("s_mul_i32 s4, s12, 7168")
    i("s_add_u32 s4, s4, 0x%x" % WS_W1P)
    i("s_waitcnt vmcnt(0)")
    for t in range(7):
        i("ds_read_b64_tr_b16 v[%d:%d], v5 offset:%d" % (32 + 4 * t, 33 + 4 * t, 32 * t))
        i("ds_read_b64_tr_b16 v[%d:%d], v5 offset:%d" % (34 + 4 * t, 35 + 4 * t, 32 * t + 3584))
    for t in range(7):
        i("s_waitcnt lgkmcnt(%d)" % (12 - 2 * t))
        if t == 4: i("s_add_u32 s4, s4, 4096")
        i("buffer_store_dwordx4 v[%d:%d], v7, s[8:11], s4 offen offset:%d sc1" % (32 + 4 * t, 35 + 4 * t, 1024 * (t % 4)))
    i("s_branch L_RP_DONE")
    lab("L_RP_W2")
    i("s_sub_u32 s12, s12, 320")
    i("s_mul_i32 s13, s12, 19419")
    i("s_lshr_b32 s13, s13, 20")
    i("s_mul_i32 s15, s13, 54")
    i("s_sub_u32 s15, s12, s15")
    i("s_mul_i32 s4, s15, %d" % (32 * 1280))
    i("s_mul_i32 s5, s13, 160")
    i("s_add_u32 s4, s4, s5")
    i("s_mov_b32 s47, %d" % ((1 << 20) // 10 + 1))
    for k in range(5):
        i("v_add_u32 v8, %d, v1" % (64 * k))
        i("v_mul_lo_u32 v9, v8, s47")
        i("v_lshrrev_b32 v9, 20, v9")
        i("v_mul_u32_u24 v10, 10, v9")
        i("v_sub_u32 v10, v8, v10")
        i("v_mul_u32_u24 v9, 1280, v9")
        i("v_lshl_add_u32 v9, v10, 4, v9")
        i("s_add_u32 m0, s14, %d" % (1024 * k))
        i("s_nop 0")
        i("buffer_load_dwordx4 v9, s[52:55], s4 offen lds")
    i("v_mul_u32_u24 v5, 160, v5")
    i("v_add3_u32 v5, v5, v6, s14")
    i("s_mul_i32 s4, s12, 5120")
    i("s_add_u32 s4, s4, 0x%x" % WS_W2P)
    i("s_waitcnt vmcnt(0)")
    for t in range(5):
        i("ds_read_b64_tr_b16 v[%d:%d], v5 offset:%d" % (32 + 4 * t, 33 + 4 * t, 32 * t))
        i("ds_read_b64_tr_b16 v[%d:%d], v5 offset:%d" % (34 + 4 * t, 35 + 4 * t, 32 * t + 2560))
    for t in range(5):
        i("s_waitcnt lgkmcnt(%d)" % (8 - 2 * t))
        if t == 4: i("s_add_u32 s4, s4, 4096")
        i("buffer_store_dwordx4 v[%d:%d], v7, s[8:11], s4 offen offset:%d sc1" % (32 + 4 * t, 35 + 4 * t, 1024 * (t % 4)))
    lab("L_RP_DONE")
    i("s_waitcnt vmcnt(0)")
    i("s_barrier")
    stamp(2)
    i("s_cmp_lg_u32 s3, 0")
    i("s_cbranch_scc1 L_NC_W")
    arrive_last(DBG_CW, 96, DBG_GOW)
    i("s_mov_b32 s46, %d" % DBG_GOW)
    poll(56, "s46", 1, 1, 8, sleep=4)
    lab("L_NC_W")
    i("s_barrier")
    stamp(3)
    i("s_cmp_lt_u32 s3, 4")
    i("s_cbranch_scc1 L_PHASE_B")
    w1_load([0, 1, 2, 3], W1S)
    w2_load(range(6), range(6))
    i("s_waitcnt vmcnt(30)")
    w1_write([0, 1, 2, 3], W1S)
    w1_load([4], W1S)
    i("s_waitcnt vmcnt(0)")
    w1_write([4], W1S)
    i("s_branch L_PHASE_B")

    lab("L_CONV")
    i("s_mul_i32 s12, s64, 20")
    i("s_add_u32 s12, s12, s65")
    i("s_sub_u32 s12, s12, 8")
    i("s_lshl_b32 s13, s12, 2")
    i("s_and_b32 s14, s3, 3")
    i("s_add_u32 s15, s13, s14")
    i("s_lshr_b32 s46, s15, 1")
    i("s_lshl_b32 s46, s46, 2")
    i("s_load_dword s4, s[26:27], s46")
    i("s_load_dword s5, s[28:29], s46")
    i("s_lshr_b32 s6, s3, 2")
    i("s_lshl_b32 s46, s6, 6")
    i("v_add_u32 v4, s46, v1")
    i("s_lshl_b32 s47, s15, 8")
    i("v_lshl_add_u32 v5, v4, 1, s47")
    i("global_load_ushort v10, v5, s[18:19]")
    i("global_load_ushort v11, v5, s[20:21]")
    i("global_load_ushort v12, v5, s[22:23]")
    i("global_load_ushort v13, v5, s[24:25]")
    i("s_cmp_lt_u32 s3, 4")
    i("s_cbranch_scc1 L_CV_NOX")
    i("v_subrev_u32 v6, 256, v0")
    i("v_mul_u32_u24 v6, %d, v6" % (8 * 1280))
    i("s_lshl_b32 s46, s13, 1")
    i("v_add_u32 v6, s46, v6")
    i("v_add_u32 v7, 5120, v6")
    for k in range(4):
        i("global_load_dwordx2 v[%d:%d], v6, s[16:17] offset:%d" % (100 + 2 * k, 101 + 2 * k, 1280 * k))
    lab("L_CV_NOX")
    i("s_mul_i32 s46, s14, %d" % FAC_CH)
    i("v_lshl_add_u32 v5, v4, 2, s46")
    i("s_waitcnt lgkmcnt(0)")
    i("s_and_b32 s46, s15, 1")
    i("s_lshl_b32 s46, s46, 4")
    i("s_lshr_b32 s4, s4, s46")
    i("s_lshl_b32 s4, s4, 16")
    i("s_lshr_b32 s5, s5, s46")
    i("s_lshl_b32 s5, s5, 16")
    i("v_mov_b32 v14, s4")
    i("v_mul_f32 v14, 0x%x, v14" % LOG2E)
    i("v_exp_f32 v14, v14")
    nop(1)
    round_bf16(14, 14)
    i("s_cmp_lt_u32 s3, 4")
    i("s_cbranch_scc1 L_CV_W0")
    i("s_waitcnt vmcnt(4)")
    i("s_branch L_CV_W1")
    lab("L_CV_W0")
    i("s_waitcnt vmcnt(0)")
    lab("L_CV_W1")
    stamp(1)
    for r in (10, 11, 12, 13): i("v_lshlrev_b32 v%d, 16, v%d" % (r, r))
    i("v_mul_f32 v10, 0x%x, v10" % LOG2E)
    i("v_exp_f32 v10, v10")
    nop(1)
    round_bf16(10, 10)
    i("v_mul_f32 v10, v10, v14")
    i("v_mul_f32 v10, 0x%x, v10" % NLOG2E)
    i("v_mul_f32 v11, v11, v14")
    i("v_mul_f32 v11, %s, v11" % INV2PI)
    i("v_mul_f32 v12, v12, v14")
    i("v_mul_f32 v13, v13, v14")
    i("v_add_f32 v32, v12, v12")
    i("v_add_f32 v33, v13, v13")
    bases = [(20, 1), (22, 16), (24, 256), (26, 2), (28, 4), (30, 8)]
    for (dst, p) in bases:
        i("v_mul_f32 v%d, 0x%x, v10" % (dst, f2u(float(p))))
        i("v_mul_f32 v%d, 0x%x, v11" % (dst + 1, f2u(float(p))))
    for (dst, p) in bases:
        i("v_exp_f32 v%d, v%d" % (dst, dst))
        i("v_fract_f32 v%d, v%d" % (dst + 1, dst + 1))
    for n, (dst, p) in enumerate(bases):
        i("v_cos_f32 v%d, v%d" % (52 + n, dst + 1))
        i("v_sin_f32 v%d, v%d" % (dst + 1, dst + 1))
    nop(1)
    for n, (dst, p) in enumerate(bases):
        i("v_mul_f32 v%d, v%d, v%d" % (dst + 1, dst, dst + 1))
        i("v_mul_f32 v%d, v%d, v%d" % (dst, dst, 52 + n))
    i("v_mov_b32 v34, 1.0")
    i("v_mov_b32 v35, 0")
    i("v_mov_b32 v36, v32")
    i("v_mov_b32 v37, v33")
    chains = [dict(x=32, s=20, row=0, n=16, y=False, start=0), dict(x=34, s=22, row=47, n=16, y=True, start=0)]
    for (tau, s, row, n) in [(1, 26, 16, 9), (2, 28, 25, 5), (3, 28, 30, 5), (4, 30, 35, 3), (5, 30, 38, 3), (6, 30, 41, 3), (7, 30, 44, 3)]:
        chains.append(dict(x=36 + 2 * tau, s=s, row=row, n=n, y=False, start=tau))
    rnd = 0; pos = [0] * len(chains); tmpc = 0
    while any(pos[k] < c["n"] for k, c in enumerate(chains)):
        muls, fmas, cv, wr = [], [], [], []
        ti = 0
        if rnd < 7:
            t = 52 + 2 * ti; ti += 1
            x, d = 36 + 2 * rnd, 36 + 2 * (rnd + 1)
            muls.append("v_pk_mul_f32 v[%d:%d], v[%d:%d], v[24:25] op_sel:[0,0] op_sel_hi:[1,0]" % (t, t + 1, x, x + 1))
            fmas.append("v_pk_fma_f32 v[%d:%d], v[%d:%d], v[24:25], v[%d:%d] op_sel:[1,1,0] op_sel_hi:[0,1,1] neg_lo:[0,1,0]" % (d, d + 1, x, x + 1, t, t + 1))
        for k, c in enumerate(chains):
            if rnd >= c["start"] and pos[k] < c["n"]:
                x = c["x"]; p = 72 + (tmpc % 16); tmpc += 1
                cv.append("v_cvt_pk_bf16_f32 v%d, v%d, %sv%d" % (p, x, "" if c["y"] else "-", x + 1))
                wr.append("ds_write_b32 v5, v%d offset:%d" % (p, (c["row"] + pos[k]) * XROW))
                if pos[k] < c["n"] - 1:
                    t = 52 + 2 * ti; ti += 1
                    assert t + 1 < 72
                    muls.append("v_pk_mul_f32 v[%d:%d], v[%d:%d], v[%d:%d] op_sel:[0,0] op_sel_hi:[1,0]" % (t, t + 1, x, x + 1, c["s"], c["s"] + 1))
                    fmas.append("v_pk_fma_f32 v[%d:%d], v[%d:%d], v[%d:%d], v[%d:%d] op_sel:[1,1,0] op_sel_hi:[0,1,1] neg_lo:[0,1,0]" % (x, x + 1, x, x + 1, c["s"], c["s"] + 1, t, t + 1))
                pos[k] += 1
        if rnd in (1, 4, 7, 10):
            k = 4 + (rnd - 1) // 3
            lb = uid("XG")
            i("s_cmp_lt_u32 s3, 4")
            i("s_cbranch_scc1 %s" % lb)
            i("global_load_dwordx2 v[%d:%d], v7, s[16:17] offset:%d" % (100 + 2 * k, 101 + 2 * k, 1280 * (k & 3)))
            lab(lb)
        for s_ in cv + muls + wr + fmas: i(s_)
        rnd += 1
    stamp(2)
    i("s_cmp_lg_u32 s3, 4")
    i("s_cbranch_scc1 L_CV_B1")
    i("v_lshlrev_b32 v8, 2, v1")
    i("v_add_u32 v8, %d, v8" % MISC)
    i("v_mov_b32 v9, 0")
    i("ds_write_b32 v8, v9")
    lab("L_CV_B1")
    i("s_waitcnt lgkmcnt(0)")
    i("s_barrier")
    stamp(3)
    i("s_cmp_ge_u32 s3, 4")
    i("s_cbranch_scc1 L_CV_NORM")
    segp = {0: (0, 8, 4), 1: (16, 4, 2), 2: (25, 5, 2), 3: (35, 6, 3)}
    i("s_mul_i32 s46, s3, %d" % FAC_CH)
    i("v_lshrrev_b32 v8, 3, v2")
    i("v_bfe_u32 v9, v2, 2, 1")
    i("v_and_b32 v10, 3, v2")
    for t in range(4):
        b0, a0, c0 = segp[t]
        i("v_mul_u32_u24 v11, %d, v8" % a0)
        i("v_mul_u32_u24 v12, %d, v9" % c0)
        i("v_add3_u32 v11, v11, v12, v10")
        i("v_add_u32 v11, %d, v11" % b0)
        i("v_mul_u32_u24 v11, %d, v11" % XROW)
        i("v_lshl_add_u32 v11, v3, 4, v11")
        i("v_add_u32 v%d, s46, v11" % (16 + t))
    i("v_add_u32 v11, 47, v2")
    i("v_mul_u32_u24 v11, %d, v11" % XROW)
    i("v_lshl_add_u32 v11, v3, 4, v11")
    i("v_add_u32 v15, s46, v11")
    for mu in range(8):
        i("ds_read_b128 v[%d:%d], v15 offset:%d" % (32 + 4 * mu, 35 + 4 * mu, 64 * mu))
        i("ds_read_b128 v[%d:%d], v16 offset:%d" % (64 + 4 * mu, 67 + 4 * mu, 64 * mu))
    accs = [20, 24, 28, 192]
    for t in range(4):
        nxt = ["ds_read_b128 v[%d:%d], v%d offset:%d" % (64 + 32 * (t + 1) + 4 * mu, 67 + 32 * (t + 1) + 4 * mu, 17 + t, 64 * mu) for mu in range(8)] if t < 3 else []
        for s_ in nxt: i(s_)
        a0 = accs[t]
        for mu in range(8):
            if t == 0: i("s_waitcnt lgkmcnt(%d)" % min(15, 8 + 14 - 2 * mu))
            else: i("s_waitcnt lgkmcnt(%d)" % ((8 if nxt else 0) + 7 - mu))
            i("v_mfma_f32_16x16x32_bf16 v[%d:%d], v[%d:%d], v[%d:%d], %s" % (a0, a0 + 3, 64 + 32 * t + 4 * mu, 67 + 32 * t + 4 * mu, 32 + 4 * mu, 35 + 4 * mu, "0" if mu == 0 else "v[%d:%d]" % (a0, a0 + 3)))
    i("s_mul_i32 s46, s3, %d" % KCH)
    i("v_lshlrev_b32 v10, 5, v2")
    i("v_cmp_eq_u32 vcc, 0, v1")
    i("v_mov_b32 v11, s5")
    i("v_lshl_add_u32 v12, v3, 3, v10")
    i("v_cndmask_b32 v11, 0, v11, vcc")
    nop(4)
    i("v_add_f32 v20, v20, v11")
    i("v_cvt_pk_bf16_f32 v64, v23, v22")
    i("v_cvt_pk_bf16_f32 v65, v21, v20")
    i("v_sub_u32 v13, 4088, v12")
    i("v_add_u32 v13, s46, v13")
    i("ds_write_b64 v13, v[64:65]")
    i("v_cvt_pk_bf16_f32 v66, v26, v25")
    i("v_cvt_pk_bf16_f32 v67, v24, v24")
    i("v_sub_u32 v13, 3576, v12")
    i("v_add_u32 v13, s46, v13")
    i("ds_write_b64 v13, v[66:67]")
    i("v_cvt_pk_bf16_f32 v68, v30, v30")
    i("v_cvt_pk_bf16_f32 v69, v29, v29")
    i("v_cvt_pk_bf16_f32 v70, v29, v28")
    i("v_cvt_pk_bf16_f32 v71, v28, v28")
    i("v_lshrrev_b32 v11, 1, v3")
    i("v_lshl_add_u32 v12, v11, 9, v10")
    i("v_and_b32 v11, 1, v3")
    i("v_lshl_add_u32 v12, v11, 4, v12")
    i("v_sub_u32 v13, 3056, v12")
    i("v_add_u32 v13, s46, v13")
    i("ds_write_b128 v13, v[68:71]")
    i("v_cvt_pk_bf16_f32 v72, v194, v194")
    i("v_mov_b32 v73, v72")
    i("v_cvt_pk_bf16_f32 v74, v193, v193")
    i("v_mov_b32 v75, v74")
    i("v_mov_b32 v76, v74")
    i("v_cvt_pk_bf16_f32 v77, v193, v192")
    i("v_cvt_pk_bf16_f32 v78, v192, v192")
    i("v_mov_b32 v79, v78")
    i("v_lshl_add_u32 v12, v3, 9, v10")
    i("v_sub_u32 v13, 2016, v12")
    i("v_add_u32 v13, s46, v13")
    i("ds_write_b128 v13, v[72:75]")
    i("ds_write_b128 v13, v[76:79] offset:16")
    for r in range(4): i("v_mov_b32 v%d, 0" % (32 + r))
    i("v_bfe_u32 v8, v1, 2, 2")
    i("v_mul_u32_u24 v8, %d, v8" % KCP)
    i("v_and_b32 v9, 3, v1")
    i("v_lshl_add_u32 v8, v9, 4, v8")
    i("v_add_u32 v8, s46, v8")
    i("ds_write_b128 v8, v[32:35] offset:4096")
    i("v_lshl_add_u32 v8, v1, 3, s46")
    i("v_add_u32 v9, %d, v8" % KCP)
    i("v_add_u32 v10, %d, v8" % (2 * KCP))
    i("v_add_u32 v11, %d, v8" % (3 * KCP))
    i("s_waitcnt lgkmcnt(0)")
    for it in range(8):
        i("ds_read_b64 v[%d:%d], v8 offset:%d" % (32 + 4 * it, 33 + 4 * it, 512 * it))
        i("ds_read_b64 v[%d:%d], v8 offset:%d" % (34 + 4 * it, 35 + 4 * it, 512 * it + 8))
    for it in range(8):
        i("s_waitcnt lgkmcnt(%d)" % min(15, 14 - 2 * it + 3 * it))
        d = 32 + 4 * it; a = 64 + 4 * it
        i("v_alignbit_b32 v%d, v%d, v%d, 16" % (a, d + 1, d))
        i("v_alignbit_b32 v%d, v%d, v%d, 16" % (a + 1, d + 2, d + 1))
        i("v_alignbit_b32 v%d, v%d, v%d, 16" % (a + 2, d + 3, d + 2))
        o = 128 * it
        i("ds_write2_b32 v9, v%d, v%d offset0:%d offset1:%d" % (a, a + 1, o % 256, o % 256 + 1) if it < 2 else "ds_write2st64_b32 v9, v9, v9" ) if False else None
        if it and it % 1 == 0:
            i("v_add_u32 v9, 512, v9"); i("v_add_u32 v10, 512, v10"); i("v_add_u32 v11, 512, v11")
        i("ds_write2_b32 v9, v%d, v%d offset0:0 offset1:1" % (a, a + 1))
        i("ds_write2_b32 v10, v%d, v%d offset0:0 offset1:1" % (d + 1, d + 2))
        i("ds_write2_b32 v11, v%d, v%d offset0:0 offset1:1" % (a + 1, a + 2))
    stamp(12)
    i("s_branch L_CV_B2")
    lab("L_CV_NORM")
    i("s_cmp_lg_u32 s3, 4")
    i("s_cbranch_scc1 L_CV_NW")
    i("s_mov_b32 s46, %d" % DBG_GO1)
    poll(56, "s46", 1, 1, 8, sleep=1)
    lds_add(M_S1, 8)
    i("s_branch L_CV_NG")
    lab("L_CV_NW")
    lds_wait(M_S1, 1)
    lab("L_CV_NG")
    stamp(5)
    i("v_subrev_u32 v6, 256, v0")
    i("v_lshlrev_b32 v6, 6, v6")
    i("s_mov_b32 s46, 0x%x" % WS_ST1)
    for k in range(4):
        i("buffer_load_dwordx4 v[%d:%d], v6, s[8:11], s46 offen offset:%d sc1" % (120 + 4 * k, 123 + 4 * k, 16 * k))
    i("s_mov_b32 s46, 0x%x" % SEL_LO)
    i("s_mov_b32 s47, 0x%x" % SEL_HI)
    i("s_waitcnt vmcnt(4)")
    for ch in range(4):
        for ii in range(4):
            lo = 100 + 2 * (2 * ii) + (ch >> 1); hi = 100 + 2 * (2 * ii + 1) + (ch >> 1)
            i("v_perm_b32 v%d, v%d, v%d, s%d" % (136 + 4 * ch + ii, hi, lo, 46 + (ch & 1)))
    for k in range(8):
        for jj in range(2):
            x = 100 + 2 * k + jj
            i("v_lshlrev_b32 v%d, 16, v%d" % (168 + 4 * k + 2 * jj, x))
            i("v_and_b32 v%d, 0xffff0000, v%d" % (168 + 4 * k + 2 * jj + 1, x))
    i("s_waitcnt vmcnt(0)")
    stamp(8)
    for k in range(8):
        m = 120 + 2 * k; r = m + 1
        for jj in range(2):
            a = 168 + 4 * k + 2 * jj; b = a + 1
            i("v_sub_f32 v%d, v%d, v%d" % (a, a, m))
            i("v_sub_f32 v%d, v%d, v%d" % (b, b, m))
            i("v_cvt_pk_bf16_f32 v%d, v%d, v%d" % (8 + jj, a, b))
        for jj in range(2):
            a = 168 + 4 * k + 2 * jj; b = a + 1
            i("v_lshlrev_b32 v%d, 16, v%d" % (a, 8 + jj))
            i("v_and_b32 v%d, 0xffff0000, v%d" % (b, 8 + jj))
            i("v_mul_f32 v%d, v%d, v%d" % (a, a, r))
            i("v_mul_f32 v%d, v%d, v%d" % (b, b, r))
    for ch in range(4):
        for ii in range(4):
            i("v_cvt_pk_bf16_f32 v%d, v%d, v%d" % (152 + 4 * ch + ii, 168 + 4 * (2 * ii) + ch, 168 + 4 * (2 * ii + 1) + ch))
    i("v_subrev_u32 v6, 256, v0")
    i("v_bfe_u32 v7, v6, 2, 2")
    i("v_lshlrev_b32 v6, 6, v6")
    for ch in range(4):
        i("v_xor_b32 v8, %d, v7" % ch)
        i("v_lshl_add_u32 v%d, v8, 4, v6" % (20 + ch))
        i("v_add_u32 v9, %d, v%d" % (UL + 2048, 20 + ch))
        i("ds_write_b128 v9, v[%d:%d]" % (152 + 4 * ch, 155 + 4 * ch))
    i("v_mov_b32 v8, 0")
    i("v_mov_b32 v9, 0")
    i("v_subrev_u32 v6, 256, v0")
    i("v_lshlrev_b32 v6, 3, v6")
    i("v_add_u32 v6, %d, v6" % UL)
    i("ds_write_b64 v6, v[8:9]")
    lab("L_CV_B2")
    i("s_waitcnt lgkmcnt(0)")
    i("s_barrier")
    stamp(4)
    i("s_cmp_ge_u32 s3, 4")
    i("s_cbranch_scc1 L_CV_HELP")
    i("s_mul_i32 s15, s3, %d" % KCH)
    i("v_and_b32 v8, 3, v2")
    i("v_sub_u32 v8, 3, v8")
    i("v_mul_u32_u24 v8, %d, v8" % KCP)
    i("v_lshrrev_b32 v9, 2, v2")
    i("v_lshlrev_b32 v9, 3, v9")
    i("v_lshl_add_u32 v9, v3, 4, v9")
    i("v_sub_u32 v9, %d, v9" % (4104 - 4032))
    i("v_add3_u32 v10, v8, v9, s15")
    i("v_lshlrev_b32 v8, 1, v2")
    i("v_add_u32 v8, 1, v8")
    i("v_sub_u32 v8, v8, v3")
    i("v_ashrrev_i32 v9, 2, v8")
    i("v_lshlrev_b32 v8, 6, v8")
    i("v_add_u32 v8, %d, v8" % (UL + 256))
    for r in range(4):
        i("v_subrev_u32 v11, %d, v9" % r)
        i("v_and_b32 v11, 3, v11")
        i("v_xor_b32 v11, s3, v11")
        i("v_lshl_add_u32 v%d, v11, 4, v8" % (12 + r))
    def FR(s, ii): return 24 + 64 * s + 4 * ii
    def GR(s, jj): return 24 + 64 * s + 32 + 4 * jj
    ACC = 160
    def reads(rho):
        s = rho & 1; lst = []
        for ii in range(8):
            sig = rho + 8 * ii; off = 64 * (63 - sig)
            lst.append("ds_read_b64 v[%d:%d], v10 offset:%d" % (FR(s, ii), FR(s, ii) + 1, off))
            lst.append("ds_read_b64 v[%d:%d], v10 offset:%d" % (FR(s, ii) + 2, FR(s, ii) + 3, off + 8))
            lst.append("ds_read_b128 v[%d:%d], v%d offset:%d" % (GR(s, ii), GR(s, ii) + 3, 12 + (rho & 3), 2048 * ii + 256 * (7 - rho)))
        return lst
    for r in reads(0): i(r)
    i("v_lshrrev_b32 v16, 1, v3")
    i("v_lshl_add_u32 v16, v2, 1, v16")
    i("v_bfe_u32 v17, v16, 2, 2")
    i("v_xor_b32 v17, s3, v17")
    i("v_lshlrev_b32 v16, 6, v16")
    i("v_lshl_add_u32 v16, v17, 4, v16")
    i("v_and_b32 v17, 1, v3")
    i("v_lshl_add_u32 v16, v17, 3, v16")
    i("v_add_u32 v16, %d, v16" % XL)
    for rho in range(8):
        s = rho & 1
        nxt = reads(rho + 1) if rho < 7 else ["ds_read_b64 v[%d:%d], v16 offset:%d" % (200 + 2 * al, 201 + 2 * al, 2048 * al) for al in range(8)]
        if rho == 7: lds_wait(M_XT, 4, 18)
        i("s_waitcnt lgkmcnt(0)")
        mf = []
        for al in range(8):
            for ii in range(al + 1):
                jj = al - ii
                first = (rho == 0 and ii == 0)
                mf.append("v_mfma_f32_16x16x32_bf16 v[%d:%d], v[%d:%d], v[%d:%d], %s" % (
                    ACC + 4 * al, ACC + 4 * al + 3, FR(s, ii), FR(s, ii) + 3, GR(s, jj), GR(s, jj) + 3,
                    "0" if first else "v[%d:%d]" % (ACC + 4 * al, ACC + 4 * al + 3)))
        k = 0
        for n, m in enumerate(mf):
            i(m)
            if k < len(nxt) and n < 30:
                i(nxt[k]); k += 1
        while k < len(nxt):
            i(nxt[k]); k += 1
    stamp(5)
    i("s_waitcnt lgkmcnt(0)")
    nop(6)
    i("v_lshlrev_b32 v8, 5, v2")
    i("v_lshl_add_u32 v8, v3, 3, v8")
    i("s_lshl_b32 s46, s3, 12")
    i("s_add_u32 s46, s46, %d" % TL)
    i("v_add_u32 v8, s46, v8")
    for al in range(8):
        x0, x1 = 200 + 2 * al, 201 + 2 * al
        a = ACC + 4 * al
        i("v_lshlrev_b32 v20, 16, v%d" % x0)
        i("v_and_b32 v21, 0xffff0000, v%d" % x0)
        i("v_lshlrev_b32 v22, 16, v%d" % x1)
        i("v_and_b32 v23, 0xffff0000, v%d" % x1)
        i("v_pk_add_f32 v[20:21], v[20:21], v[%d:%d]" % (a, a + 1))
        i("v_pk_add_f32 v[22:23], v[22:23], v[%d:%d]" % (a + 2, a + 3))
        i("v_cvt_pk_bf16_f32 v%d, v20, v21" % (24 + 2 * al))
        i("v_cvt_pk_bf16_f32 v%d, v22, v23" % (25 + 2 * al))
        i("ds_write_b64 v8, v[%d:%d] offset:%d" % (24 + 2 * al, 25 + 2 * al, 512 * al))
    i("s_waitcnt lgkmcnt(0)")
    lds_add(M_TR + 16, 4)
    lds_wait(M_TR + 16, 4)
    i("v_lshlrev_b32 v252, 2, v0")
    i("v_add_u32 v252, %d, v252" % TL)
    i("v_lshlrev_b32 v253, 4, v0")
    i("s_lshl_b32 s14, s12, 14")
    i("s_add_u32 s14, s14, 0x%x" % WS_H)
    i("s_mov_b32 s46, 0x%x" % SEL_LO)
    i("s_mov_b32 s47, 0x%x" % SEL_HI)
    for it in range(4):
        for ch in range(4):
            i("ds_read_b32 v%d, v252 offset:%d" % (8 + 4 * it + ch, ch * 4096 + it * 1024))
    for it in range(4):
        i("s_waitcnt lgkmcnt(%d)" % (12 - 4 * it))
        b = 8 + 4 * it; o = 32 + 4 * it
        i("v_perm_b32 v%d, v%d, v%d, s46" % (o, b + 1, b))
        i("v_perm_b32 v%d, v%d, v%d, s46" % (o + 1, b + 3, b + 2))
        i("v_perm_b32 v%d, v%d, v%d, s47" % (o + 2, b + 1, b))
        i("v_perm_b32 v%d, v%d, v%d, s47" % (o + 3, b + 3, b + 2))
        i("buffer_store_dwordx4 v[%d:%d], v253, s[8:11], s14 offen sc1" % (o, o + 3))
        if it < 3: i("s_add_u32 s14, s14, 4096")
    lds_add(M_TR, 4)
    i("s_waitcnt vmcnt(0)")
    lds_add(M_HS, 4, rtn=True)
    stamp(6)
    i("s_cmp_lg_u32 s13, 3")
    i("s_cbranch_scc1 L_PHASE_B")
    i("s_lshr_b32 s13, s12, 3")
    i("s_lshl_b32 s13, s13, 7")
    i("s_and_b32 s46, s12, 7")
    i("s_lshl_b32 s46, s46, 2")
    i("s_add_u32 s13, s13, s46")
    i("s_add_u32 s13, s13, 0x%x" % (WS_FL + FL_S2))
    set_flag(8, "s13")
    i("s_branch L_PHASE_B")
    lab("L_CV_HELP")
    for ch in range(4):
        i("v_add_u32 v9, %d, v%d" % (XL, 20 + ch))
        i("ds_write_b128 v9, v[%d:%d]" % (136 + 4 * ch, 139 + 4 * ch))
    i("s_waitcnt lgkmcnt(0)")
    lds_add(M_XT, 8)
    i("s_cmp_lg_u32 s3, 4")
    i("s_cbranch_scc1 L_CV_HW1")
    i("s_mov_b32 s46, %d" % DBG_GOW)
    poll(56, "s46", 1, 1, 8, sleep=4)
    lds_add(M_EP, 8)
    i("s_branch L_CV_HW2")
    lab("L_CV_HW1")
    lds_wait(M_EP, 1, 4, sleep=4)
    lab("L_CV_HW2")
    stamp(9)
    w1_load([0, 1, 2, 3], W1S)
    w2_load(range(6), range(6))
    stamp(12)
    lds_wait(M_TR, 4, 4, sleep=4)
    stamp(13)
    i("s_waitcnt vmcnt(30)")
    stamp(14)
    w1_write([0, 1, 2, 3], W1S)
    w1_load([4], W1S)
    i("s_waitcnt vmcnt(0)")
    w1_write([4], W1S)
    stamp(6)

    lab("L_PHASE_B")
    if STOP == "A": i("s_branch L_FIN")
    i("s_cmp_lg_u32 s3, 0")
    i("s_cbranch_scc1 L_B_W")
    i("v_lshlrev_b32 v4, 2, v2")
    i("v_add_u32 v4, %d, v4" % MISC)
    i("v_mov_b32 v5, 0")
    i("ds_write_b32 v4, v5")
    i("v_mov_b32 v4, %d" % (MISC + M_EP + 4))
    i("ds_write_b32 v4, v5")
    i("s_waitcnt lgkmcnt(0)")
    i("s_cmp_lg_u32 s65, 31")
    i("s_cbranch_scc1 L_B_NL")
    i("s_mov_b32 s46, 0x%x" % (WS_FL + FL_S2))
    poll(8, "s46", 40, 4, 8, spread=True, sleep=1)
    i("s_lshl_b32 s13, s64, 7")
    i("s_add_u32 s13, s13, 0x%x" % (WS_FL + FL_GO2))
    set_flag(8, "s13")
    i("s_branch L_B_W")
    lab("L_B_NL")
    i("s_lshl_b32 s46, s64, 7")
    i("s_add_u32 s46, s46, 0x%x" % (WS_FL + FL_GO2))
    poll(8, "s46", 1, 1, 8, sleep=1)
    lab("L_B_W")
    i("s_waitcnt vmcnt(0) lgkmcnt(0)")
    i("s_barrier")
    stamp(7)
    i("s_cmp_ge_u32 s3, 4")
    i("s_cbranch_scc1 L_B_LOAD")
    HB, RING, ACC, WF = 16, 6, 64, 120
    i("s_lshl_b32 s12, s66, 7")
    i("s_lshl_b32 s13, s3, 5")
    i("s_add_u32 s12, s12, s13")
    i("v_lshlrev_b32 v5, 14, v3")
    i("v_lshl_add_u32 v5, v2, 4, v5")
    i("s_lshl_b32 s13, s12, 3")
    i("v_add_u32 v5, s13, v5")
    i("v_lshlrev_b32 v4, 4, v1")
    vq = []
    def hl(kap, half):
        r = HB + 8 * (kap % RING) + 4 * half
        i("s_mov_b32 s13, 0x%x" % (WS_H + kap * 8 * 16384 + half * 4 * 16384))
        i("buffer_load_dwordx4 v[%d:%d], v5, s[8:11], s13 offen sc1" % (r, r + 3))
        vq.append(("h", kap, half))
    for kap in range(RING):
        hl(kap, 0); hl(kap, 1)
    i("v_add_u32 v8, 0, v4")
    i("v_add_u32 v9, %d, v4" % (8 * 7168))
    i("v_add_u32 v10, %d, v4" % (16 * 7168))
    def wreads(kap):
        s = kap & 1; base = 8 + kap // 8; o = (kap % 8) * 7168
        return ["ds_read_b128 v[%d:%d], v%d offset:%d" % (WF + 28 * s + 4 * t, WF + 28 * s + 4 * t + 3, base, o + 1024 * t) for t in range(7)]
    for r in wreads(0): i(r)
    def swaps(kap):
        r = HB + 8 * (kap % RING)
        return ["v_swap_b32 v%d, v%d" % (r + 2, r + 4), "v_swap_b32 v%d, v%d" % (r + 3, r + 5)]
    def wait_h(kap):
        idx = max(n for n, x in enumerate(vq) if x[0] == "h" and x[1] == kap)
        return "s_waitcnt vmcnt(%d)" % min(63, len(vq) - 1 - idx)
    i(wait_h(0))
    stamp(12)
    for s_ in swaps(0): i(s_)
    w2pf = [(3, 0), (3, 1), (3, 2), (3, 3), (3, 4), (4, 0), (4, 1), (4, 2), (4, 3), (4, 4), (5, 0), (5, 1), (5, 2), (5, 3), (5, 4)]
    for kap in range(20):
        s = kap & 1
        nxt = wreads(kap + 1) if kap < 19 else []
        i("s_waitcnt lgkmcnt(0)")
        k = 0; n = 0
        for t in range(7):
            for par in range(2):
                a = ACC + 8 * t + 4 * par
                h = HB + 8 * (kap % RING) + 4 * par
                w = WF + 28 * s + 4 * t
                i("v_mfma_f32_16x16x32_bf16 v[%d:%d], v[%d:%d], v[%d:%d], %s" % (a, a + 3, w, w + 3, h, h + 3, "0" if kap == 0 else "v[%d:%d]" % (a, a + 3)))
                if k < len(nxt) and n % 2 == 0:
                    i(nxt[k]); k += 1
                if kap >= 1 and kap - 1 + RING < 20 and n in (2, 8):
                    hl(kap - 1 + RING, 0 if n == 2 else 1)
                if kap >= 14 and n in (4, 10) and w2pf and kap - 1 + RING >= 20 - 0:
                    st, dl = w2pf.pop(0)
                    i("s_add_u32 s13, s61, %d" % (st * 5120 + dl * 1024))
                    r = W2R + 20 * st + 4 * dl
                    i("buffer_load_dwordx4 v[%d:%d], v4, s[8:11], s13 offen sc1" % (r, r + 3))
                    vq.append(("w", st, dl))
                if n == 11 and kap < 19:
                    i(wait_h(kap + 1))
                    for s_ in swaps(kap + 1): i(s_)
                n += 1
    while w2pf:
        st, dl = w2pf.pop(0)
        i("s_add_u32 s13, s61, %d" % (st * 5120 + dl * 1024))
        r = W2R + 20 * st + 4 * dl
        i("buffer_load_dwordx4 v[%d:%d], v4, s[8:11], s13 offen sc1" % (r, r + 3))
    stamp(8)
    lds_wait(M_EP + 4, 1, 6)
    stamp(14)
    i("v_lshlrev_b32 v6, 4, v2")
    i("s_lshl_b32 s13, s3, 8")
    i("s_add_u32 s13, s13, %d" % (MISC + M_STAT))
    i("v_add_u32 v6, s13, v6")
    i("ds_read_b128 v[12:15], v6")
    i("v_lshlrev_b32 v7, 4, v3")
    i("v_add_u32 v7, %d, v7" % MISC)
    for t in range(7):
        i("ds_read_b128 v[%d:%d], v7 offset:%d" % (120 + 4 * t, 123 + 4 * t, M_CS + 64 * t))
        i("ds_read_b128 v[%d:%d], v7 offset:%d" % (148 + 4 * t, 151 + 4 * t, M_B1 + 64 * t))
    i("s_lshl_b32 s27, s66, 3")
    i("s_lshl_b32 s28, s3, 1")
    i("s_add_u32 s27, s27, s28")
    i("s_lshl_b32 s27, s27, 10")
    i("s_add_u32 s27, s27, 0x%x" % WS_H1)
    i("s_mul_i32 s28, s67, 7")
    i("s_waitcnt lgkmcnt(0)")
    for t in range(7):
        for par in range(2):
            a = ACC + 8 * t + 4 * par
            st = 12 + 2 * par
            cs = 120 + 4 * t; b1 = 148 + 4 * t
            tmp = 48 + 4 * par
            for hh in range(2):
                i("v_pk_fma_f32 v[%d:%d], v[%d:%d], v[%d:%d], v[%d:%d] op_sel:[0,0,0] op_sel_hi:[1,0,1] neg_lo:[0,1,0] neg_hi:[0,1,0]" % (tmp + 2 * hh, tmp + 2 * hh + 1, cs + 2 * hh, cs + 2 * hh + 1, st, st + 1, b1 + 2 * hh, b1 + 2 * hh + 1))
            for hh in range(2):
                i("v_pk_fma_f32 v[%d:%d], v[%d:%d], v[%d:%d], v[%d:%d] op_sel:[0,1,0] op_sel_hi:[1,1,1]" % (tmp + 2 * hh, tmp + 2 * hh + 1, a + 2 * hh, a + 2 * hh + 1, st, st + 1, tmp + 2 * hh, tmp + 2 * hh + 1))
            for r in range(4): i("v_max_f32 v%d, 0, v%d" % (tmp + r, tmp + r))
            for hh in range(2):
                i("v_pk_mul_f32 v[%d:%d], v[%d:%d], v[%d:%d]" % (tmp + 2 * hh, tmp + 2 * hh + 1, tmp + 2 * hh, tmp + 2 * hh + 1, tmp + 2 * hh, tmp + 2 * hh + 1))
            o = 16 + 4 * t + 2 * par
            i("v_cvt_pk_bf16_f32 v%d, v%d, v%d" % (o, tmp, tmp + 1))
            i("v_cvt_pk_bf16_f32 v%d, v%d, v%d" % (o + 1, tmp + 2, tmp + 3))
    def st16(t, par, n):
        o = 64 + 4 * n
        i("v_mov_b32 v%d, v%d" % (o, 16 + 4 * t + 2 * par))
        i("v_mov_b32 v%d, v%d" % (o + 1, 17 + 4 * t + 2 * par))
        i("v_mov_b32 v%d, v%d" % (o + 2, 16 + 4 * (t + 1) + 2 * par))
        i("v_mov_b32 v%d, v%d" % (o + 3, 17 + 4 * (t + 1) + 2 * par))
        i("buffer_store_dwordx4 v[%d:%d], v4, s[8:11], s29 offen offset:%d sc1" % (o, o + 3, 1024 * par))
    def st8(t, par, half):
        o = 16 + 4 * t + 2 * par
        i("buffer_store_dwordx2 v[%d:%d], v4, s[8:11], s29 offen offset:%d sc1" % (o, o + 1, 1024 * par + 8 * half))
    def beta_off(t):
        i("s_add_u32 s29, s28, %d" % t)
        i("s_lshr_b32 s29, s29, 1")
        i("s_lshl_b32 s29, s29, 17")
        i("s_add_u32 s29, s29, s27")
    stamp(1)
    i("s_bitcmp1_b32 s67, 0")
    i("s_cbranch_scc1 L_B_ODD")
    n = 0
    for t in (0, 2, 4):
        beta_off(t)
        for par in range(2): st16(t, par, n); n += 1
    beta_off(6)
    for par in range(2): st8(6, par, 0)
    i("s_branch L_B_STD")
    lab("L_B_ODD")
    beta_off(0)
    for par in range(2): st8(0, par, 1)
    n = 0
    for t in (1, 3, 5):
        beta_off(t)
        for par in range(2): st16(t, par, n); n += 1
    lab("L_B_STD")
    i("s_waitcnt vmcnt(0)")
    lds_add(M_ST + 4, 6, rtn=True)
    stamp(9)
    i("s_cmp_lg_u32 s13, 3")
    i("s_cbranch_scc1 L_B_NS3")
    i("s_lshl_b32 s13, s66, 5")
    i("s_add_u32 s13, s13, s67")
    i("s_lshl_b32 s13, s13, 2")
    i("s_add_u32 s13, s13, 0x%x" % (WS_FL + FL_S3))
    set_flag(8, "s13", 6)
    lab("L_B_NS3")
    w2_load([0, 1, 2], [0, 1, 2])
    i("s_branch L_PHASE_C")

    lab("L_B_LOAD")
    i("s_lshl_b32 s12, s66, 7")
    i("s_lshl_b32 s13, s67, 3")
    i("s_add_u32 s12, s12, s13")
    i("s_sub_u32 s14, s3, 4")
    i("s_mul_i32 s14, s14, 40")
    i("v_lshrrev_b32 v5, 2, v1")
    i("v_add_u32 v5, s14, v5")
    i("v_and_b32 v6, 3, v1")
    i("v_lshlrev_b32 v7, 14, v5")
    i("v_lshl_add_u32 v7, v6, 4, v7")
    i("s_lshl_b32 s13, s12, 3")
    i("s_add_u32 s13, s13, 0x%x" % WS_H)
    for k in range(3):
        if k == 2:
            i("s_mov_b64 exec, 0xffffffff")
            for r in range(4): pass
        i("buffer_load_dwordx4 v[%d:%d], v7, s[8:11], s13 offen sc1" % (16 + 4 * k, 19 + 4 * k))
        i("s_add_u32 s13, s13, %d" % (16 * 16384))
    i("s_mov_b64 exec, -1")
    i("s_mov_b32 exec_lo, 0")
    for r in range(4): i("v_mov_b32 v%d, 0" % (24 + r))
    i("s_mov_b64 exec, -1")
    i("v_mov_b32 v7, 0x3f803f80")
    for r in range(8, 16): i("v_mov_b32 v%d, 0" % r)
    i("s_waitcnt vmcnt(0)")
    for k in range(3):
        for hf in range(2):
            for dw in range(2):
                x = 16 + 4 * k + 2 * hf + dw
                i("v_dot2_f32_bf16 v%d, v%d, v7, v%d" % (8 + 4 * dw + 2 * hf, x, 8 + 4 * dw + 2 * hf))
                i("v_dot2_f32_bf16 v%d, v%d, v%d, v%d" % (9 + 4 * dw + 2 * hf, x, x, 9 + 4 * dw + 2 * hf))
    nop(3)
    for r in range(4): i("v_add_f32 v%d, v%d, v%d" % (8 + r, 8 + r, 12 + r))
    for rr in (8, 4):
        nop(2)
        for r in range(4):
            i("v_add_f32_dpp v%d, v%d, v%d row_ror:%d row_mask:0xf bank_mask:0xf" % (8 + r, 8 + r, 8 + r, rr))
    for op in ("v_permlane16_swap_b32", "v_permlane32_swap_b32"):
        for r in range(4): i("v_mov_b32 v%d, v%d" % (12 + r, 8 + r))
        nop(1)
        for r in range(4): i("%s v%d, v%d" % (op, 12 + r, 8 + r))
        nop(1)
        for r in range(4): i("v_add_f32 v%d, v%d, v%d" % (8 + r, 8 + r, 12 + r))
    i("s_sub_u32 s13, s3, 4")
    i("s_lshl_b32 s13, s13, 6")
    i("s_add_u32 s13, s13, %d" % (MISC + 2304))
    i("v_lshlrev_b32 v5, 4, v1")
    i("v_add_u32 v5, s13, v5")
    i("s_mov_b64 exec, 0xf")
    i("ds_write_b128 v5, v[8:11]")
    i("s_mov_b64 exec, -1")
    i("s_waitcnt lgkmcnt(0)")
    lds_add(M_ST, 4, rtn=True)
    i("s_cmp_lg_u32 s13, 3")
    i("s_cbranch_scc1 L_B_LDONE")
    i("s_mov_b64 exec, 0xf")
    i("v_lshlrev_b32 v5, 4, v1")
    i("v_add_u32 v5, %d, v5" % (MISC + 2304))
    for w in range(4):
        i("ds_read_b128 v[%d:%d], v5 offset:%d" % (16 + 4 * w, 19 + 4 * w, 64 * w))
    i("s_waitcnt lgkmcnt(0)")
    for w in range(1, 4):
        i("v_pk_add_f32 v[16:17], v[16:17], v[%d:%d]" % (16 + 4 * w, 17 + 4 * w))
        i("v_pk_add_f32 v[18:19], v[18:19], v[%d:%d]" % (18 + 4 * w, 19 + 4 * w))
    ln_finish(16, 17, True)
    ln_finish(18, 19, True)
    i("v_lshlrev_b32 v5, 4, v1")
    i("s_lshl_b32 s13, s12, 3")
    i("s_add_u32 s13, s13, 0x%x" % WS_ST2)
    i("buffer_store_dwordx4 v[16:19], v5, s[8:11], s13 offen sc1")
    i("s_mov_b64 exec, -1")
    i("s_mul_i32 s14, s67, 112")
    i("v_lshlrev_b32 v5, 2, v1")
    i("s_lshl_b32 s13, s14, 2")
    i("s_add_u32 s13, s13, 0x%x" % WS_CS)
    i("buffer_load_dword v20, v5, s[8:11], s13 offen sc1")
    i("buffer_load_dword v21, v5, s[8:11], s13 offen offset:256 sc1")
    srd(4, 38, F * 2)
    i("v_lshlrev_b32 v6, 1, v1")
    i("s_lshl_b32 s13, s14, 1")
    i("buffer_load_ushort v22, v6, s[4:7], s13 offen")
    i("buffer_load_ushort v23, v6, s[4:7], s13 offen offset:128")
    i("s_waitcnt vmcnt(0)")
    i("s_lshl_b32 s13, s66, 5")
    i("s_add_u32 s13, s13, s67")
    i("s_lshl_b32 s13, s13, 2")
    i("s_add_u32 s13, s13, 0x%x" % (WS_FL + FL_S2B))
    set_flag(8, "s13", 6)
    i("v_lshlrev_b32 v22, 16, v22")
    i("v_lshlrev_b32 v23, 16, v23")
    i("v_add_u32 v6, %d, v5" % MISC)
    i("ds_write_b32 v6, v20 offset:%d" % M_CS)
    i("ds_write_b32 v6, v21 offset:%d" % (M_CS + 256))
    i("ds_write_b32 v6, v22 offset:%d" % M_B1)
    i("ds_write_b32 v6, v23 offset:%d" % (M_B1 + 256))
    i("s_lshl_b32 s46, s66, 7")
    i("s_add_u32 s46, s46, 0x%x" % (WS_FL + FL_S2B))
    poll(8, "s46", 16, 1, 8, sleep=2)
    i("v_lshlrev_b32 v5, 4, v1")
    i("s_lshl_b32 s13, s66, 10")
    i("s_add_u32 s13, s13, 0x%x" % WS_ST2)
    i("buffer_load_dwordx4 v[16:19], v5, s[8:11], s13 offen sc1")
    i("v_add_u32 v6, %d, v5" % (MISC + M_STAT))
    i("s_waitcnt vmcnt(0)")
    i("ds_write_b128 v6, v[16:19]")
    i("s_waitcnt lgkmcnt(0)")
    lds_add(M_EP + 4, 6)
    lab("L_B_LDONE")
    i("v_lshlrev_b32 v4, 4, v1")

    lab("L_PHASE_C")
    if STOP == "B": i("s_branch L_FIN")
    i("s_lshr_b32 s12, s64, 1")
    i("s_lshl_b32 s12, s12, 3")
    i("s_lshr_b32 s13, s65, 2")
    i("s_add_u32 s12, s12, s13")
    i("s_cmp_lg_u32 s3, 4")
    i("s_cbranch_scc1 L_C_W")
    i("s_lshr_b32 s46, s12, 1")
    i("s_lshl_b32 s46, s46, 7")
    i("s_add_u32 s46, s46, 0x%x" % (WS_FL + FL_S3))
    poll(8, "s46", 16, 1, 8, sleep=1)
    lab("L_C_W")
    i("s_barrier")
    stamp(10)
    i("s_and_b32 s4, s3, 3")
    i("s_mul_i32 s5, s4, 7")
    i("s_lshr_b32 s6, s3, 2")
    i("s_mul_i32 s7, s6, 27")
    i("s_add_u32 s5, s5, s7")
    i("s_lshl_b32 s5, s5, 7")
    i("s_lshl_b32 s7, s12, 2")
    i("s_add_u32 s5, s5, s7")
    i("s_lshl_b32 s5, s5, 10")
    i("s_add_u32 s5, s5, 0x%x" % WS_H1)
    R2, ACC2 = 8, 40
    vq = [("old",)] * 15
    vq = []
    def h1l(st, lt):
        r = R2 + 16 * (st & 1) + 4 * lt
        i("s_add_u32 s13, s5, %d" % (st * 131072))
        i("buffer_load_dwordx4 v[%d:%d], v4, s[8:11], s13 offen offset:%d sc1" % (r, r + 3, 1024 * lt))
        vq.append(("h", st, lt))
    for st in range(2):
        for lt in range(4): h1l(st, lt)
    for r in range(80): i("v_mov_b32 v%d, 0" % (ACC2 + r))
    def wait_for(tag):
        idx = max(n for n, x in enumerate(vq) if x == tag)
        i("s_waitcnt vmcnt(%d)" % min(63, len(vq) - 1 - idx))
    for st in range(7):
        if st == 6:
            i("s_cmp_eq_u32 s4, 3")
            i("s_cbranch_scc1 L_C_RED")
            wait_for(("w", 6, 4))
        sl = st if st < 6 else 0
        for lt in range(4):
            wait_for(("h", st, lt))
            if st == 0 and lt == 0: stamp(2)
            for dl in range(5):
                a = ACC2 + 16 * dl + 4 * lt
                w = W2R + 20 * sl + 4 * dl
                h = R2 + 16 * (st & 1) + 4 * lt
                i("v_mfma_f32_16x16x32_bf16 v[%d:%d], v[%d:%d], v[%d:%d], v[%d:%d]" % (a, a + 3, w, w + 3, h, h + 3, a, a + 3))
            if st + 2 < 7: h1l(st + 2, lt)
        if st == 0:
            i("s_add_u32 s46, s61, %d" % (6 * 5120))
            for dl in range(5):
                r = W2R + 4 * dl
                if dl == 4: i("s_add_u32 s46, s46, 4096")
                i("buffer_load_dwordx4 v[%d:%d], v4, s[8:11], s46 offen offset:%d sc1" % (r, r + 3, 1024 * (dl % 4)))
                vq.append(("w", 6, dl))
    lab("L_C_RED")
    stamp(11)
    i("s_waitcnt vmcnt(0)")
    i("s_barrier")
    nop(8)
    i("s_mul_i32 s13, s3, 10240")
    i("v_add_u32 v5, s13, v4")
    i("s_cmp_eq_u32 s6, 0")
    i("s_cbranch_scc0 L_C_R1B")
    for dl in range(5):
        for par in range(2):
            a = ACC2 + 16 * dl + 4 * (2 + par)
            i("ds_write_b128 v5, v[%d:%d] offset:%d" % (a, a + 3, 1024 * (2 * dl + par)))
    i("s_branch L_C_R1C")
    lab("L_C_R1B")
    for dl in range(5):
        for par in range(2):
            a = ACC2 + 16 * dl + 4 * par
            i("ds_write_b128 v5, v[%d:%d] offset:%d" % (a, a + 3, 1024 * (2 * dl + par)))
    for dl in range(5):
        for r in range(8):
            i("v_mov_b32 v%d, v%d" % (ACC2 + 16 * dl + r, ACC2 + 16 * dl + 8 + r))
    lab("L_C_R1C")
    srd(56, 42, D * 2)
    srd(48, 44, L * D * 2)
    i("s_lshl_b32 s15, s12, 6")
    i("s_lshl_b32 s13, s6, 5")
    i("s_add_u32 s15, s15, s13")
    i("v_lshlrev_b32 v6, 1, v2")
    i("v_add_u32 v6, s15, v6")
    i("s_mul_i32 s7, s60, 5")
    for j in range(3):
        i("s_add_u32 s13, s4, %d" % (4 * j))
        i("s_lshr_b32 s46, s13, 1")
        i("s_min_u32 s46, s46, 4")
        i("s_add_u32 s46, s46, s7")
        i("s_and_b32 s47, s13, 1")
        i("s_lshl_b32 s13, s46, 16")
        i("s_lshl_b32 s15, s47, 3")
        i("s_add_u32 s13, s13, s15")
        i("s_add_u32 s13, s13, 0x%x" % WS_H)
        i("v_lshlrev_b32 v7, 14, v3")
        i("v_lshl_add_u32 v7, v6, 3, v7")
        i("buffer_load_dwordx2 v[%d:%d], v7, s[8:11], s13 offen sc1" % (8 + 2 * j, 9 + 2 * j))
        i("s_lshl_b32 s13, s46, 5")
        i("v_lshlrev_b32 v7, 3, v3")
        i("buffer_load_dwordx2 v[%d:%d], v7, s[56:59], s13 offen" % (16 + 2 * j, 17 + 2 * j))
    i("s_waitcnt lgkmcnt(0)")
    i("s_barrier")
    i("s_xor_b32 s13, s3, 4")
    i("s_mul_i32 s13, s13, 10240")
    i("v_add_u32 v5, s13, v4")
    for tl in range(10):
        i("ds_read_b128 v[%d:%d], v5 offset:%d" % (120 + 4 * tl, 123 + 4 * tl, 1024 * tl))
    for tl in range(10):
        i("s_waitcnt lgkmcnt(%d)" % (9 - tl))
        dl, par = tl >> 1, tl & 1
        a = ACC2 + 16 * dl + 4 * par
        i("v_pk_add_f32 v[%d:%d], v[%d:%d], v[%d:%d]" % (a, a + 1, a, a + 1, 120 + 4 * tl, 121 + 4 * tl))
        i("v_pk_add_f32 v[%d:%d], v[%d:%d], v[%d:%d]" % (a + 2, a + 3, a + 2, a + 3, 122 + 4 * tl, 123 + 4 * tl))
    i("s_mul_i32 s13, s3, 10240")
    i("s_add_u32 s13, s13, 81920")
    i("v_add_u32 v5, s13, v4")
    for tl in range(10):
        dl, par = tl >> 1, tl & 1
        a = ACC2 + 16 * dl + 4 * par
        i("ds_write_b128 v5, v[%d:%d] offset:%d" % (a, a + 3, 1024 * tl))
    i("s_waitcnt lgkmcnt(0)")
    i("s_barrier")
    i("s_mul_i32 s13, s6, 40960")
    i("s_lshl_b32 s15, s4, 10")
    i("s_add_u32 s13, s13, s15")
    i("s_add_u32 s13, s13, 81920")
    i("v_add_u32 v5, s13, v4")
    for j in range(3):
        for src in range(4):
            r = 120 + 16 * j + 4 * src
            off = src * 10240 + 4096 * j
            if j == 2 and src == 3: off = 0
            i("ds_read_b128 v[%d:%d], v5 offset:%d" % (r, r + 3, off) if not (j == 2 and src == 3) else "ds_read_b128 v[%d:%d], v5 offset:%d" % (r, r + 3, src * 10240 + 4096 * j))
    i("s_waitcnt vmcnt(0) lgkmcnt(0)")
    for j in range(3):
        if j == 2:
            i("s_cmp_ge_u32 s4, 2")
            i("s_cbranch_scc1 L_FIN")
        r = 120 + 16 * j
        for src in range(1, 4):
            i("v_pk_add_f32 v[%d:%d], v[%d:%d], v[%d:%d]" % (r, r + 1, r, r + 1, r + 4 * src, r + 4 * src + 1))
            i("v_pk_add_f32 v[%d:%d], v[%d:%d], v[%d:%d]" % (r + 2, r + 3, r + 2, r + 3, r + 4 * src + 2, r + 4 * src + 3))
        i("v_cvt_pk_bf16_f32 v30, v%d, v%d" % (r, r + 1))
        i("v_cvt_pk_bf16_f32 v31, v%d, v%d" % (r + 2, r + 3))
        for (src, dst) in ((30, 32), (31, 34), (16 + 2 * j, 36), (17 + 2 * j, 38)):
            i("v_lshlrev_b32 v%d, 16, v%d" % (dst, src))
            i("v_and_b32 v%d, 0xffff0000, v%d" % (dst + 1, src))
        i("v_pk_add_f32 v[32:33], v[32:33], v[36:37]")
        i("v_pk_add_f32 v[34:35], v[34:35], v[38:39]")
        i("v_cvt_pk_bf16_f32 v30, v32, v33")
        i("v_cvt_pk_bf16_f32 v31, v34, v35")
        for (src, dst) in ((30, 32), (31, 34), (8 + 2 * j, 36), (9 + 2 * j, 38)):
            i("v_lshlrev_b32 v%d, 16, v%d" % (dst, src))
            i("v_and_b32 v%d, 0xffff0000, v%d" % (dst + 1, src))
        i("v_pk_add_f32 v[32:33], v[32:33], v[36:37]")
        i("v_pk_add_f32 v[34:35], v[34:35], v[38:39]")
        i("v_cvt_pk_bf16_f32 v%d, v32, v33" % (24 + 2 * j))
        i("v_cvt_pk_bf16_f32 v%d, v34, v35" % (25 + 2 * j))
        i("s_add_u32 s13, s4, %d" % (4 * j))
        i("s_lshr_b32 s46, s13, 1")
        i("s_add_u32 s46, s46, s7")
        i("s_and_b32 s47, s13, 1")
        i("s_mul_i32 s47, s47, 1280")
        i("s_lshl_b32 s46, s46, 5")
        i("s_add_u32 s46, s46, s47")
        i("v_mul_u32_u24 v7, 1280, v6")
        i("v_lshl_add_u32 v7, v3, 3, v7")
        i("buffer_store_dwordx2 v[%d:%d], v7, s[48:51], s46 offen" % (24 + 2 * j, 25 + 2 * j))
    lab("L_FIN")
    stamp_flush()
    lab("L_END")
    i("s_endpgm")
    lab("L_CODE_END")
    e('.section .rodata,"a"')
    e(".p2align 6")
    e(".amdhsa_kernel %s" % KNAME)
    e("  .amdhsa_next_free_vgpr 256")
    e("  .amdhsa_next_free_sgpr 102")
    e("  .amdhsa_accum_offset 256")
    e("  .amdhsa_group_segment_fixed_size 0")
    e("  .amdhsa_kernarg_size 120")
    e("  .amdhsa_user_sgpr_count 2")
    e("  .amdhsa_user_sgpr_kernarg_segment_ptr 1")
    e("  .amdhsa_system_sgpr_workgroup_id_x 1")
    e(".end_amdhsa_kernel")

if __name__ == "__main__":
    main()
    path = sys.argv[1] if len(sys.argv) > 1 else "cdna_kernels/%s.s" % NAME
    open(path, "w").write("\n".join(x for x in out if x is not None) + "\n")
    print("wrote", path, len(out), "lines")
```

```python
import sys, os, struct
NAME = "sequential_preLN__ssm_conv_s4d__dense_activation_squared_relu__prompt"
KNAME = NAME + "_kernel"
L, D, NS, F = 2048, 640, 128, 1728
STAMPS = os.environ.get("STAMPS", "0") == "1"
STOP = os.environ.get("STOP", "")

WS_ST1 = 0x000000
WS_CS  = 0x008000
WS_ST2 = 0x010000
WS_FL  = 0x020000
WS_H   = 0x100000
WS_H1  = 0x400000
WS_W1P = 0xC00000
WS_W2P = 0x1000000
WS_STAMP = 0x8000000
WS_SIZE = 0x10000000
FL_CP, FL_CP2, FL_SIZE = 0, 1024, 2048
DBG_C1, DBG_CW, DBG_CP, DBG_CP2, DBG_GO1, DBG_GOW, DBG_GOP, DBG_GOP2 = 0, 4, 8, 12, 128, 132, 136, 140
XROW = 544
FAC_CH = 63 * XROW
KCH, KCP = FAC_CH, 4160
UL = 137216
XL = 50944
TL = 16640
MISC = 158720
M_CH, M_ST, M_S1, M_XT, M_TR, M_HS, M_EP, M_GP = 0, 32, 64, 68, 72, 76, 80, 92
M_STAT, M_CS, M_B1 = 256, 1280, 1792
LDS_TOTAL = 163840

out = []
def e(s=""): out.append(s)
def lab(s): out.append(s + ":")
def i(s): out.append("    " + s)
def f2u(f): return struct.unpack("<I", struct.pack("<f", f))[0]
def nop(n):
    while n > 0:
        k = min(n, 16); i("s_nop %d" % (k - 1)); n -= k
def srd(dst, ptr_lo, nbytes):
    i("s_mov_b32 s%d, s%d" % (dst, ptr_lo))
    i("s_mov_b32 s%d, s%d" % (dst + 1, ptr_lo + 1))
    i("s_mov_b32 s%d, 0x%x" % (dst + 2, nbytes))
    i("s_mov_b32 s%d, 0x00020000" % (dst + 3))
def round_bf16(dst, src):
    i("v_cvt_pk_bf16_f32 v%d, v%d, v%d" % (dst, src, src))
    i("v_lshlrev_b32 v%d, 16, v%d" % (dst, dst))
_uid = [0]
def uid(p):
    _uid[0] += 1
    return "%s_%d" % (p, _uid[0])
def stamp(k):
    if STAMPS:
        assert k < 15
        i("s_memrealtime s[%d:%d]" % (70 + 2 * k, 71 + 2 * k))
def stamp_flush():
    if not STAMPS: return
    i("s_memrealtime s[100:101]")
    i("s_waitcnt lgkmcnt(0)")
    i("s_mov_b64 exec, 1")
    i("s_lshl_b32 s46, s2, 3")
    i("s_add_u32 s46, s46, s3")
    i("s_lshl_b32 s46, s46, 7")
    i("s_add_u32 s46, s46, 0x%x" % WS_STAMP)
    i("v_mov_b32 v0, 0")
    for k in range(16):
        i("v_mov_b32 v2, s%d" % (70 + 2 * k))
        i("v_mov_b32 v3, s%d" % (71 + 2 * k))
        i("buffer_store_dwordx2 v[2:3], v0, s[8:11], s46 offen offset:%d" % (8 * k))
        i("s_nop 1")

LOG2E, NLOG2E, INV2PI = 0x3fb8aa3b, 0xbfb8aa3b, "0.15915494"
SEL_LO, SEL_HI = 0x05040100, 0x07060302
INV640, EPS = 0x3acccccd, 0x3727c5ac
SPIN_LIMIT = 1 << 18

def poll(srd_reg, soff, nlanes, ndw, vt, spread=False, sleep=2):
    top, done = uid("POLL"), uid("POLLD")
    i("s_mov_b64 s[68:69], exec")
    m = (1 << nlanes) - 1
    i("s_mov_b32 exec_lo, 0x%x" % (m & 0xffffffff))
    i("s_mov_b32 exec_hi, 0x%x" % (m >> 32))
    if spread:
        i("v_lshrrev_b32 v%d, 1, v1" % (vt + 4))
        i("v_lshlrev_b32 v%d, 7, v%d" % (vt + 4, vt + 4))
        i("v_and_b32 v%d, 1, v1" % (vt + 5))
        i("v_lshl_add_u32 v%d, v%d, 4, v%d" % (vt + 4, vt + 5, vt + 4))
    else:
        i("v_lshlrev_b32 v%d, %d, v1" % (vt + 4, {1: 2, 4: 4}[ndw]))
    i("s_mov_b32 s47, 0")
    lab(top)
    if ndw == 1:
        i("buffer_load_dword v%d, v%d, s[%d:%d], %s offen sc1" % (vt, vt + 4, srd_reg, srd_reg + 3, soff))
        i("s_waitcnt vmcnt(0)")
    else:
        i("buffer_load_dwordx4 v[%d:%d], v%d, s[%d:%d], %s offen sc1" % (vt, vt + 3, vt + 4, srd_reg, srd_reg + 3, soff))
        i("s_waitcnt vmcnt(0)")
        i("v_min_u32 v%d, v%d, v%d" % (vt, vt, vt + 1))
        i("v_min_u32 v%d, v%d, v%d" % (vt + 2, vt + 2, vt + 3))
        i("v_min_u32 v%d, v%d, v%d" % (vt, vt, vt + 2))
    i("v_cmp_ne_u32 vcc, 0, v%d" % vt)
    i("s_cmp_eq_u64 vcc, exec")
    i("s_cbranch_scc1 %s" % done)
    i("s_sleep %d" % sleep)
    i("s_add_u32 s47, s47, 1")
    i("s_cmp_lt_u32 s47, %d" % SPIN_LIMIT)
    i("s_cbranch_scc1 %s" % top)
    lab(done)
    i("s_mov_b64 exec, s[68:69]")

def set_flag(srd_reg, soff, va=4):
    i("s_mov_b64 s[68:69], exec")
    i("s_mov_b64 exec, 1")
    i("v_mov_b32 v%d, 0" % va)
    i("v_mov_b32 v%d, 1" % (va + 1))
    i("buffer_store_dword v%d, v%d, s[%d:%d], %s offen sc1" % (va + 1, va, srd_reg, srd_reg + 3, soff))
    i("s_mov_b64 exec, s[68:69]")

def arrive_last(cnt_off, total, go_off):
    lbl = uid("ARR")
    i("s_mov_b64 s[68:69], exec")
    i("s_mov_b64 exec, 1")
    i("v_mov_b32 v4, %d" % cnt_off)
    i("v_mov_b32 v5, 1")
    i("buffer_atomic_add v5, v4, s[56:59], 0 offen sc0 sc1")
    i("s_waitcnt vmcnt(0)")
    i("v_readfirstlane_b32 s13, v5")
    i("s_mov_b64 exec, s[68:69]")
    i("s_cmp_lg_u32 s13, %d" % (total - 1))
    i("s_cbranch_scc1 %s" % lbl)
    i("s_mov_b32 s13, %d" % go_off)
    set_flag(56, "s13")
    lab(lbl)

def arrive_shard(floff, va=4):
    i("s_mov_b64 s[68:69], exec")
    i("s_mov_b64 exec, 1")
    i("s_lshl_b32 s13, s64, 7")
    i("s_add_u32 s13, s13, 0x%x" % (WS_FL + floff))
    i("v_mov_b32 v%d, 0" % va)
    i("v_mov_b32 v%d, 1" % (va + 1))
    i("buffer_atomic_add v%d, v%d, s[8:11], s13 offen sc1" % (va + 1, va))
    i("s_mov_b64 exec, s[68:69]")
def poll_shards(floff, vt, sleep=4):
    top, done = uid("PS"), uid("PSD")
    i("s_mov_b64 s[68:69], exec")
    i("s_mov_b64 exec, 0xff")
    i("v_lshlrev_b32 v%d, 7, v1" % (vt + 1))
    i("s_mov_b32 s46, 0x%x" % (WS_FL + floff))
    i("s_mov_b32 s47, 0")
    lab(top)
    i("buffer_load_dword v%d, v%d, s[8:11], s46 offen sc1" % (vt, vt + 1))
    i("s_waitcnt vmcnt(0)")
    i("v_cmp_le_u32 vcc, 32, v%d" % vt)
    i("s_cmp_eq_u64 vcc, exec")
    i("s_cbranch_scc1 %s" % done)
    i("s_sleep %d" % sleep)
    i("s_add_u32 s47, s47, 1")
    i("s_cmp_lt_u32 s47, %d" % SPIN_LIMIT)
    i("s_cbranch_scc1 %s" % top)
    lab(done)
    i("s_mov_b64 exec, s[68:69]")
def h1_poison(v0=4):
    skip = uid("HPS")
    i("v_lshlrev_b32 v%d, 4, v1" % (v0 + 4))
    for r in range(4): i("v_mov_b32 v%d, -1" % (v0 + r))
    i("s_lshl_b32 s27, s66, 3")
    i("s_and_b32 s28, s3, 3")
    i("s_lshl_b32 s28, s28, 1")
    i("s_add_u32 s27, s27, s28")
    i("s_lshl_b32 s27, s27, 10")
    i("s_add_u32 s27, s27, 0x%x" % WS_H1)
    i("s_mul_i32 s28, s67, 7")
    i("s_lshr_b32 s28, s28, 1")
    i("s_lshl_b32 s28, s28, 17")
    i("s_add_u32 s29, s27, s28")
    i("s_bitcmp1_b32 s67, 0")
    i("s_cbranch_scc1 %s" % skip)
    for par in range(2): i("buffer_store_dwordx4 v[%d:%d], v%d, s[8:11], s29 offen offset:%d sc1" % (v0, v0 + 3, v0 + 4, 1024 * par))
    lab(skip)
    for b_ in range(1, 4):
        i("s_add_u32 s29, s29, 131072")
        for par in range(2): i("buffer_store_dwordx4 v[%d:%d], v%d, s[8:11], s29 offen offset:%d sc1" % (v0, v0 + 3, v0 + 4, 1024 * par))
def st2_poison():
    i("s_mov_b64 s[68:69], exec")
    i("s_mov_b64 exec, 0xf")
    for r in range(4): i("v_mov_b32 v%d, -1" % (4 + r))
    i("v_lshlrev_b32 v8, 4, v1")
    i("s_lshl_b32 s13, s66, 10")
    i("s_lshl_b32 s46, s67, 6")
    i("s_add_u32 s13, s13, s46")
    i("s_add_u32 s13, s13, 0x%x" % WS_ST2)
    i("buffer_store_dwordx4 v[4:7], v8, s[8:11], s13 offen sc1")
    i("s_mov_b64 exec, s[68:69]")

def lds_wait(off, target, vt=4, sleep=1):
    top, d = uid("LW"), uid("LWD")
    i("v_mov_b32 v%d, %d" % (vt, MISC + off))
    lab(top)
    i("ds_read_b32 v%d, v%d" % (vt + 1, vt))
    i("s_waitcnt lgkmcnt(0)")
    i("v_readfirstlane_b32 s13, v%d" % (vt + 1))
    i("s_cmp_ge_u32 s13, %d" % target)
    i("s_cbranch_scc1 %s" % d)
    i("s_sleep %d" % sleep)
    i("s_branch %s" % top)
    lab(d)

def lds_add(off, va=4, rtn=False):
    i("s_mov_b64 exec, 1")
    i("v_mov_b32 v%d, %d" % (va, MISC + off))
    i("v_mov_b32 v%d, 1" % (va + 1))
    if rtn:
        i("ds_add_rtn_u32 v%d, v%d, v%d" % (va + 1, va, va + 1))
        i("s_waitcnt lgkmcnt(0)")
        i("v_readfirstlane_b32 s13, v%d" % (va + 1))
    else:
        i("ds_add_u32 v%d, v%d" % (va, va + 1))
    i("s_mov_b64 exec, -1")

def ln_finish(m, v, mr):
    i("v_mul_f32 v%d, 0x%x, v%d" % (m, INV640, m))
    i("v_mul_f32 v%d, 0x%x, v%d" % (v, INV640, v))
    i("v_fma_f32 v%d, -v%d, v%d, v%d" % (v, m, m, v))
    i("v_max_f32 v%d, 0, v%d" % (v, v))
    round_bf16(m, m)
    round_bf16(v, v)
    i("v_add_f32 v%d, 0x%x, v%d" % (v, EPS, v))
    round_bf16(v, v)
    i("v_sqrt_f32 v%d, v%d" % (v, v))
    nop(1)
    round_bf16(v, v)
    i("v_rcp_f32 v%d, v%d" % (v, v))
    nop(1)
    if mr: i("v_mul_f32 v%d, v%d, v%d" % (m, m, v))

W1S, W2R = 8, 120
W1V = 240
def w1_prep():
    i("s_mul_i32 s46, s67, 224")
    i("s_mov_b32 s47, %d" % ((1 << 20) // 14 + 1))
    for k in range(7):
        i("v_add_u32 v4, %d, v1" % (64 * k))
        i("v_mul_lo_u32 v5, v4, s47")
        i("v_lshrrev_b32 v5, 20, v5")
        i("v_mul_u32_u24 v6, 14, v5")
        i("v_sub_u32 v6, v4, v6")
        i("v_mul_u32_u24 v5, 3456, v5")
        i("v_lshl_add_u32 v5, v6, 4, v5")
        i("v_add_u32 v%d, s46, v5" % (W1V + k))
def w1_load(chunks, regbase):
    for n, c in enumerate(chunks):
        i("s_and_b32 s46, s3, 3")
        i("s_add_u32 s46, s46, %d" % (4 * c))
        i("s_mul_i32 s46, s46, %d" % (32 * 3456))
        for t in range(7):
            r = regbase + 28 * n + 4 * t
            i("buffer_load_dwordx4 v[%d:%d], v%d, s[48:51], s46 offen" % (r, r + 3, W1V + t))
def w1_dma(chunks):
    for c in chunks:
        i("s_and_b32 s46, s3, 3")
        i("s_add_u32 s46, s46, %d" % (4 * c))
        i("s_mul_i32 s47, s46, %d" % (32 * 3456))
        i("s_mul_i32 s46, s46, 7168")
        for t in range(7):
            i("s_add_u32 m0, s46, %d" % (1024 * t))
            i("s_nop 0")
            i("buffer_load_dwordx4 v%d, s[48:51], s47 offen lds" % (W1V + t))
def w1_write(chunks, regbase):
    i("v_lshlrev_b32 v4, 4, v1")
    for n, c in enumerate(chunks):
        i("s_and_b32 s46, s3, 3")
        i("s_add_u32 s46, s46, %d" % (4 * c))
        i("s_mul_i32 s46, s46, 7168")
        i("v_add_u32 v5, s46, v4")
        for t in range(7):
            r = regbase + 28 * n + 4 * t
            i("ds_write_b128 v5, v[%d:%d] offset:%d" % (r, r + 3, 1024 * t))
def w2_load(steps, slots):
    for st, sl in zip(steps, slots):
        i("s_add_u32 s46, s61, %d" % (st * 5120))
        for dl in range(5):
            r = W2R + 20 * sl + 4 * dl
            if dl < 4:
                i("buffer_load_dwordx4 v[%d:%d], v4, s[8:11], s46 offen offset:%d sc1" % (r, r + 3, 1024 * dl))
            else:
                i("s_add_u32 s46, s46, 4096")
                i("buffer_load_dwordx4 v[%d:%d], v4, s[8:11], s46 offen sc1" % (r, r + 3))

def main():
    ref = open("cdna_kernels/%s.s.ref" % NAME).read().splitlines()
    for ln in ref:
        if ln.startswith("; Override"): break
        e(ln)
    e("; @launch grid=(256,1,1) block=(512,1,1) lds=%d" % LDS_TOTAL)
    e('.amdgcn_target "amdgcn-amd-amdhsa--gfx950"')
    e(".text")
    e(".globl %s" % KNAME)
    e(".p2align 8")
    e(".type %s,@function" % KNAME)
    lab(KNAME)
    i("s_cmp_ge_u32 s2, 256")
    i("s_cbranch_scc1 L_END")
    stamp(0)
    i("s_load_dwordx16 s[16:31], s[0:1], 0")
    i("s_load_dwordx8 s[36:43], s[0:1], 64")
    i("s_load_dwordx2 s[44:45], s[0:1], 96")
    i("s_load_dwordx4 s[32:35], s[0:1], 104")
    i("v_lshrrev_b32 v4, 6, v0")
    i("v_and_b32 v1, 63, v0")
    i("v_and_b32 v2, 15, v1")
    i("v_readfirstlane_b32 s3, v4")
    i("v_lshrrev_b32 v3, 4, v1")
    i("s_and_b32 s64, s2, 7")
    i("s_lshr_b32 s65, s2, 3")
    i("s_lshr_b32 s66, s64, 1")
    i("s_lshl_b32 s66, s66, 2")
    i("s_lshr_b32 s46, s65, 3")
    i("s_add_u32 s66, s66, s46")
    i("s_and_b32 s67, s64, 1")
    i("s_lshl_b32 s67, s67, 3")
    i("s_and_b32 s46, s65, 7")
    i("s_add_u32 s67, s67, s46")
    i("s_and_b32 s46, s64, 1")
    i("s_lshl_b32 s46, s46, 2")
    i("s_and_b32 s47, s65, 3")
    i("s_add_u32 s60, s46, s47")
    i("s_mul_i32 s61, s60, 54")
    i("s_and_b32 s46, s3, 3")
    i("s_mul_i32 s46, s46, 7")
    i("s_add_u32 s61, s61, s46")
    i("s_lshr_b32 s46, s3, 2")
    i("s_mul_i32 s46, s46, 27")
    i("s_add_u32 s61, s61, s46")
    i("s_mul_i32 s61, s61, 5120")
    i("s_add_u32 s61, s61, 0x%x" % WS_W2P)
    i("s_waitcnt lgkmcnt(0)")
    srd(8, 34, WS_SIZE)
    srd(48, 36, D * F * 2)
    srd(52, 40, F * D * 2)
    srd(56, 32, 256)
    i("s_cmp_lt_u32 s65, 8")
    i("s_cbranch_scc1 L_STATS")
    i("s_cmp_lt_u32 s65, 28")
    i("s_cbranch_scc1 L_CONV")
    i("s_branch L_COLSUM")
    def rp_ids():
        i("s_sub_u32 s46, s65, 20")
        i("s_cmp_lt_u32 s65, 8")
        i("s_cselect_b32 s46, s65, s46")
        i("s_lshl_b32 s46, s46, 3")
        i("s_add_u32 s59x, s46, s64".replace("s59x", "s46"))
        i("s_mov_b32 s62, s46")
        i("s_mul_i32 s63, s3, 96")
        i("s_add_u32 s63, s63, s46")
    def rp_block():
        done = uid("RPD")
        i("s_cmp_ge_u32 s63, 432")
        i("s_cbranch_scc1 %s" % done)
        i("s_mul_i32 s14, s3, 5120")
        i("s_add_u32 s14, s14, 114688")
        i("s_mul_i32 s13, s63, 19419")
        i("s_lshr_b32 s13, s13, 20")
        i("s_mul_i32 s15, s13, 54")
        i("s_sub_u32 s15, s63, s15")
        i("s_mul_i32 s4, s15, %d" % (32 * 1280))
        i("s_mul_i32 s5, s13, 160")
        i("s_add_u32 s4, s4, s5")
        i("s_mov_b32 s47, %d" % ((1 << 20) // 10 + 1))
        for k in range(5):
            i("v_add_u32 v8, %d, v1" % (64 * k))
            i("v_mul_lo_u32 v9, v8, s47")
            i("v_lshrrev_b32 v9, 20, v9")
            i("v_mul_u32_u24 v10, 10, v9")
            i("v_sub_u32 v10, v8, v10")
            i("v_mul_u32_u24 v9, 1280, v9")
            i("v_lshl_add_u32 v9, v10, 4, v9")
            i("s_add_u32 m0, s14, %d" % (1024 * k))
            i("s_nop 0")
            i("buffer_load_dwordx4 v9, s[52:55], s4 offen lds")
        i("v_lshrrev_b32 v5, 2, v2")
        i("v_lshl_add_u32 v5, v3, 2, v5")
        i("v_and_b32 v6, 3, v2")
        i("v_lshlrev_b32 v6, 3, v6")
        i("v_mul_u32_u24 v5, 160, v5")
        i("v_add3_u32 v5, v5, v6, s14")
        i("v_lshlrev_b32 v7, 4, v1")
        i("s_mul_i32 s4, s63, 5120")
        i("s_add_u32 s4, s4, 0x%x" % WS_W2P)
        i("s_waitcnt vmcnt(0)")
        for t in range(5):
            i("ds_read_b64_tr_b16 v[%d:%d], v5 offset:%d" % (64 + 4 * t, 65 + 4 * t, 32 * t))
            i("ds_read_b64_tr_b16 v[%d:%d], v5 offset:%d" % (66 + 4 * t, 67 + 4 * t, 32 * t + 2560))
        for t in range(5):
            i("s_waitcnt lgkmcnt(%d)" % (8 - 2 * t))
            if t == 4: i("s_add_u32 s4, s4, 4096")
            i("buffer_store_dwordx4 v[%d:%d], v7, s[8:11], s4 offen offset:%d sc1" % (64 + 4 * t, 67 + 4 * t, 1024 * (t % 4)))
        lab(done)

    lab("L_STATS")
    i("s_lshl_b32 s46, s65, 3")
    i("s_add_u32 s12, s46, s64")
    i("s_lshl_b32 s13, s12, 5")
    i("s_lshl_b32 s14, s3, 2")
    i("s_add_u32 s13, s13, s14")
    i("v_add_u32 v4, s13, v3")
    i("v_mul_u32_u24 v5, 1280, v4")
    i("v_lshl_add_u32 v5, v2, 4, v5")
    for k in range(5):
        i("global_load_dwordx4 v[%d:%d], v5, s[16:17] offset:%d" % (32 + 4 * k, 35 + 4 * k, 256 * k))
    i("s_cmp_lg_u32 s12, 0")
    i("s_cbranch_scc1 L_NOZ")
    i("s_cmp_lg_u32 s3, 7")
    i("s_cbranch_scc1 L_NOZ")
    for r in range(4): i("v_mov_b32 v%d, 0" % (60 + r))
    i("v_lshlrev_b32 v6, 4, v1")
    i("s_mov_b32 s14, 0x%x" % WS_FL)
    for k in range(FL_SIZE // 1024):
        i("buffer_store_dwordx4 v[60:63], v6, s[8:11], s14 offen offset:%d sc1" % (1024 * k))
    lab("L_NOZ")
    i("v_mov_b32 v7, 0x3f803f80")
    for r in range(8, 16): i("v_mov_b32 v%d, 0" % r)
    i("s_waitcnt vmcnt(0)")
    for k in range(20):
        i("v_dot2_f32_bf16 v%d, v%d, v7, v%d" % (8 + (k & 3), 32 + k, 8 + (k & 3)))
        i("v_dot2_f32_bf16 v%d, v%d, v%d, v%d" % (12 + (k & 3), 32 + k, 32 + k, 12 + (k & 3)))
    nop(3)
    i("v_add_f32 v8, v8, v9")
    i("v_add_f32 v10, v10, v11")
    i("v_add_f32 v12, v12, v13")
    i("v_add_f32 v14, v14, v15")
    i("v_add_f32 v8, v8, v10")
    i("v_add_f32 v9, v12, v14")
    for r in (8, 4, 2, 1):
        nop(2)
        i("v_add_f32_dpp v8, v8, v8 row_ror:%d row_mask:0xf bank_mask:0xf" % r)
        i("v_add_f32_dpp v9, v9, v9 row_ror:%d row_mask:0xf bank_mask:0xf" % r)
    ln_finish(8, 9, False)
    i("v_lshlrev_b32 v4, 3, v4")
    i("v_cmp_eq_u32 vcc, 0, v2")
    i("s_and_saveexec_b64 s[68:69], vcc")
    i("s_mov_b32 s14, 0x%x" % WS_ST1)
    i("buffer_store_dwordx2 v[8:9], v4, s[8:11], s14 offen sc1")
    i("s_mov_b64 exec, s[68:69]")
    i("s_waitcnt vmcnt(0)")
    i("s_barrier")
    stamp(1)
    i("s_cmp_lg_u32 s3, 0")
    i("s_cbranch_scc1 L_NC1")
    arrive_last(DBG_C1, 64, DBG_GO1)
    i("s_branch L_NC1")
    lab("L_COLSUM")
    i("s_getpc_b64 s[46:47]")
    lab("L_PC")
    i("s_sub_u32 s46, s46, L_PC-%s" % KNAME)
    i("s_subb_u32 s47, s47, 0")
    i("v_lshlrev_b32 v4, 7, v0")
    i("v_cmp_gt_u32 vcc, L_CODE_END-%s, v4" % KNAME)
    i("s_and_saveexec_b64 s[68:69], vcc")
    i("s_cbranch_execz L_NOPF")
    i("global_load_dword v200, v4, s[46:47]")
    lab("L_NOPF")
    i("s_mov_b64 exec, s[68:69]")
    stamp(1)
    lab("L_NC1")
    rp_ids()
    i("s_cmp_lg_u32 s3, 0")
    i("s_cbranch_scc1 L_NC2")
    i("v_lshlrev_b32 v8, 2, v1")
    i("v_add_u32 v8, %d, v8" % MISC)
    i("v_mov_b32 v9, 0")
    i("ds_write_b32 v8, v9")
    i("s_mov_b32 s46, %d" % DBG_GO1)
    poll(56, "s46", 1, 1, 8, sleep=2)
    lab("L_NC2")
    i("s_waitcnt lgkmcnt(0)")
    i("s_barrier")
    i("s_cmp_lg_u32 s3, 7")
    i("s_cbranch_scc1 L_NC4")
    st2_poison()
    i("s_waitcnt vmcnt(0)")
    arrive_shard(FL_CP)
    lab("L_NC4")
    i("s_cmp_ge_u32 s3, 5")
    i("s_cbranch_scc1 L_NC4B")
    rp_block()
    i("s_waitcnt vmcnt(0)")
    lds_add(M_CH + 8, 4, rtn=True)
    i("s_cmp_lg_u32 s13, 4")
    i("s_cbranch_scc1 L_NC4B")
    arrive_last(DBG_CW, 96, DBG_GOW)
    lab("L_NC4B")
    i("s_cmp_lt_u32 s65, 28")
    i("s_cbranch_scc1 L_NC5")
    i("s_sub_u32 s46, s65, 28")
    i("s_lshl_b32 s46, s46, 3")
    i("s_add_u32 s12, s46, s64")
    i("s_cmp_ge_u32 s12, 27")
    i("s_cbranch_scc1 L_NC5")
    i("v_lshrrev_b32 v4, 3, v1")
    i("s_lshl_b32 s13, s3, 3")
    i("v_add_u32 v4, s13, v4")
    i("v_mul_u32_u24 v4, 3456, v4")
    i("v_and_b32 v5, 7, v1")
    i("v_lshl_add_u32 v4, v5, 4, v4")
    i("s_lshl_b32 s13, s12, 7")
    for it in range(10):
        i("buffer_load_dwordx4 v[%d:%d], v4, s[48:51], s13 offen" % (64 + 4 * it, 67 + 4 * it))
        i("s_add_u32 s13, s13, %d" % (64 * 3456))
    for r in range(8): i("v_mov_b32 v%d, 0" % (8 + r))
    for it in range(10):
        i("s_waitcnt vmcnt(%d)" % (9 - it))
        for dw in range(4):
            x = 64 + 4 * it + dw
            i("v_lshlrev_b32 v16, 16, v%d" % x)
            i("v_and_b32 v17, 0xffff0000, v%d" % x)
            i("v_pk_add_f32 v[%d:%d], v[%d:%d], v[16:17]" % (8 + 2 * dw, 9 + 2 * dw, 8 + 2 * dw, 9 + 2 * dw))
    nop(1)
    for r in range(8):
        i("v_add_f32_dpp v%d, v%d, v%d row_ror:8 row_mask:0xf bank_mask:0xf" % (8 + r, 8 + r, 8 + r))
    for op in ("v_permlane16_swap_b32", "v_permlane32_swap_b32"):
        for r in range(8): i("v_mov_b32 v%d, v%d" % (16 + r, 8 + r))
        nop(1)
        for r in range(8): i("%s v%d, v%d" % (op, 16 + r, 8 + r))
        nop(1)
        for r in range(8): i("v_add_f32 v%d, v%d, v%d" % (8 + r, 8 + r, 16 + r))
    i("v_lshlrev_b32 v4, 5, v1")
    i("s_lshl_b32 s13, s3, 8")
    i("v_add_u32 v4, s13, v4")
    i("v_add_u32 v4, 60000, v4")
    i("s_mov_b64 exec, 0xff")
    i("ds_write_b128 v4, v[8:11] offset:32")
    i("ds_write_b128 v4, v[12:15] offset:48")
    i("s_mov_b64 exec, -1")
    i("s_waitcnt lgkmcnt(0)")
    i("s_barrier")
    i("s_cmp_lg_u32 s3, 0")
    i("s_cbranch_scc1 L_NC5B")
    i("v_lshlrev_b32 v4, 2, v1")
    i("v_add_u32 v5, 60032, v4")
    for w in range(8):
        i("ds_read_b32 v%d, v5 offset:%d" % (8 + w, 256 * w))
    i("s_waitcnt lgkmcnt(0)")
    for w in range(1, 8): i("v_add_f32 v8, v8, v%d" % (8 + w))
    i("s_lshl_b32 s13, s12, 8")
    i("s_add_u32 s13, s13, 0x%x" % WS_CS)
    i("buffer_store_dword v8, v4, s[8:11], s13 offen sc1")
    i("s_waitcnt vmcnt(0)")
    lab("L_NC5B")
    i("s_barrier")
    lab("L_NC5")
    stamp(3)
    i("s_cmp_ge_u32 s3, 4")
    i("s_cbranch_scc1 L_NC_LD")
    i("s_branch L_PHASE_B")
    lab("L_NC_LD")
    w1_prep()
    w1_dma([0, 1, 2, 3])
    lds_wait(M_CH + 8, 5, 4, sleep=4)
    w1_dma([4])
    h1_poison(248)
    i("s_waitcnt vmcnt(0)")
    lds_add(M_CH + 12, 248, rtn=True)
    i("s_cmp_lg_u32 s13, 3")
    i("s_cbranch_scc1 L_PHASE_B")
    arrive_shard(FL_CP2, 248)
    i("s_branch L_PHASE_B")

    lab("L_CONV")
    i("s_mul_i32 s12, s64, 20")
    i("s_add_u32 s12, s12, s65")
    i("s_sub_u32 s12, s12, 8")
    i("s_lshl_b32 s13, s12, 2")
    i("s_and_b32 s14, s3, 3")
    i("s_add_u32 s15, s13, s14")
    i("s_lshr_b32 s46, s15, 1")
    i("s_lshl_b32 s46, s46, 2")
    i("s_load_dword s4, s[26:27], s46")
    i("s_load_dword s5, s[28:29], s46")
    i("s_lshr_b32 s6, s3, 2")
    i("s_lshl_b32 s46, s6, 6")
    i("v_add_u32 v4, s46, v1")
    i("s_lshl_b32 s47, s15, 8")
    i("v_lshl_add_u32 v5, v4, 1, s47")
    i("global_load_ushort v10, v5, s[18:19]")
    i("global_load_ushort v11, v5, s[20:21]")
    i("global_load_ushort v12, v5, s[22:23]")
    i("global_load_ushort v13, v5, s[24:25]")
    i("s_cmp_lt_u32 s3, 4")
    i("s_cbranch_scc1 L_CV_PH")
    i("v_subrev_u32 v6, 256, v0")
    i("v_mul_u32_u24 v6, %d, v6" % (8 * 1280))
    i("s_lshl_b32 s46, s13, 1")
    i("v_add_u32 v6, s46, v6")
    i("v_add_u32 v7, 5120, v6")
    for k in range(4):
        i("global_load_dwordx2 v[%d:%d], v6, s[16:17] offset:%d" % (100 + 2 * k, 101 + 2 * k, 1280 * k))
    i("s_branch L_CV_NOX")
    lab("L_CV_PH")
    for r in range(4): i("v_mov_b32 v%d, -1" % (60 + r))
    i("v_lshlrev_b32 v6, 4, v0")
    i("s_lshl_b32 s46, s12, 14")
    i("s_add_u32 s46, s46, 0x%x" % WS_H)
    for it in range(4):
        i("buffer_store_dwordx4 v[60:63], v6, s[8:11], s46 offen sc1")
        if it < 3: i("s_add_u32 s46, s46, 4096")
    i("s_cmp_lg_u32 s3, 3")
    i("s_cbranch_scc1 L_CV_NOX")
    i("v_mov_b32 v254, v4")
    i("v_mov_b32 v255, v5")
    st2_poison()
    i("v_mov_b32 v4, v254")
    i("v_mov_b32 v5, v255")
    lab("L_CV_NOX")
    i("s_mul_i32 s46, s14, %d" % FAC_CH)
    i("v_lshl_add_u32 v5, v4, 2, s46")
    i("s_waitcnt lgkmcnt(0)")
    i("s_and_b32 s46, s15, 1")
    i("s_lshl_b32 s46, s46, 4")
    i("s_lshr_b32 s4, s4, s46")
    i("s_lshl_b32 s4, s4, 16")
    i("s_lshr_b32 s5, s5, s46")
    i("s_lshl_b32 s5, s5, 16")
    i("v_mov_b32 v14, s4")
    i("v_mul_f32 v14, 0x%x, v14" % LOG2E)
    i("v_exp_f32 v14, v14")
    nop(1)
    round_bf16(14, 14)
    i("s_cmp_lt_u32 s3, 4")
    i("s_cbranch_scc1 L_CV_W0")
    i("s_waitcnt vmcnt(4)")
    i("s_branch L_CV_W1")
    lab("L_CV_W0")
    i("s_waitcnt vmcnt(5)")
    i("s_cmp_eq_u32 s3, 3")
    i("s_cbranch_scc1 L_CV_W1")
    i("s_waitcnt vmcnt(4)")
    lab("L_CV_W1")
    stamp(1)
    for r in (10, 11, 12, 13): i("v_lshlrev_b32 v%d, 16, v%d" % (r, r))
    i("v_mul_f32 v10, 0x%x, v10" % LOG2E)
    i("v_exp_f32 v10, v10")
    nop(1)
    round_bf16(10, 10)
    i("v_mul_f32 v10, v10, v14")
    i("v_mul_f32 v10, 0x%x, v10" % NLOG2E)
    i("v_mul_f32 v11, v11, v14")
    i("v_mul_f32 v11, %s, v11" % INV2PI)
    i("v_mul_f32 v12, v12, v14")
    i("v_mul_f32 v13, v13, v14")
    i("v_add_f32 v32, v12, v12")
    i("v_add_f32 v33, v13, v13")
    bases = [(20, 1), (22, 16), (24, 256), (26, 2), (28, 4), (30, 8)]
    for (dst, p) in bases:
        i("v_mul_f32 v%d, 0x%x, v10" % (dst, f2u(float(p))))
        i("v_mul_f32 v%d, 0x%x, v11" % (dst + 1, f2u(float(p))))
    for (dst, p) in bases:
        i("v_exp_f32 v%d, v%d" % (dst, dst))
        i("v_fract_f32 v%d, v%d" % (dst + 1, dst + 1))
    for n, (dst, p) in enumerate(bases):
        i("v_cos_f32 v%d, v%d" % (52 + n, dst + 1))
        i("v_sin_f32 v%d, v%d" % (dst + 1, dst + 1))
    nop(1)
    for n, (dst, p) in enumerate(bases):
        i("v_mul_f32 v%d, v%d, v%d" % (dst + 1, dst, dst + 1))
        i("v_mul_f32 v%d, v%d, v%d" % (dst, dst, 52 + n))
    i("v_mov_b32 v34, 1.0")
    i("v_mov_b32 v35, 0")
    i("v_mov_b32 v36, v32")
    i("v_mov_b32 v37, v33")
    chains = [dict(x=32, s=20, row=0, n=16, y=False, start=0), dict(x=34, s=22, row=47, n=16, y=True, start=0)]
    for (tau, s, row, n) in [(1, 26, 16, 9), (2, 28, 25, 5), (3, 28, 30, 5), (4, 30, 35, 3), (5, 30, 38, 3), (6, 30, 41, 3), (7, 30, 44, 3)]:
        chains.append(dict(x=36 + 2 * tau, s=s, row=row, n=n, y=False, start=tau))
    rnd = 0; pos = [0] * len(chains); tmpc = 0
    while any(pos[k] < c["n"] for k, c in enumerate(chains)):
        muls, fmas, cv, wr = [], [], [], []
        ti = 0
        if rnd < 7:
            t = 52 + 2 * ti; ti += 1
            x, d = 36 + 2 * rnd, 36 + 2 * (rnd + 1)
            muls.append("v_pk_mul_f32 v[%d:%d], v[%d:%d], v[24:25] op_sel:[0,0] op_sel_hi:[1,0]" % (t, t + 1, x, x + 1))
            fmas.append("v_pk_fma_f32 v[%d:%d], v[%d:%d], v[24:25], v[%d:%d] op_sel:[1,1,0] op_sel_hi:[0,1,1] neg_lo:[0,1,0]" % (d, d + 1, x, x + 1, t, t + 1))
        for k, c in enumerate(chains):
            if rnd >= c["start"] and pos[k] < c["n"]:
                x = c["x"]; p = 72 + (tmpc % 16); tmpc += 1
                cv.append("v_cvt_pk_bf16_f32 v%d, v%d, %sv%d" % (p, x, "" if c["y"] else "-", x + 1))
                wr.append("ds_write_b32 v5, v%d offset:%d" % (p, (c["row"] + pos[k]) * XROW))
                if pos[k] < c["n"] - 1:
                    t = 52 + 2 * ti; ti += 1
                    assert t + 1 < 72
                    muls.append("v_pk_mul_f32 v[%d:%d], v[%d:%d], v[%d:%d] op_sel:[0,0] op_sel_hi:[1,0]" % (t, t + 1, x, x + 1, c["s"], c["s"] + 1))
                    fmas.append("v_pk_fma_f32 v[%d:%d], v[%d:%d], v[%d:%d], v[%d:%d] op_sel:[1,1,0] op_sel_hi:[0,1,1] neg_lo:[0,1,0]" % (x, x + 1, x, x + 1, c["s"], c["s"] + 1, t, t + 1))
                pos[k] += 1
        if rnd in (1, 4, 7, 10):
            k = 4 + (rnd - 1) // 3
            lb = uid("XG")
            i("s_cmp_lt_u32 s3, 4")
            i("s_cbranch_scc1 %s" % lb)
            i("global_load_dwordx2 v[%d:%d], v7, s[16:17] offset:%d" % (100 + 2 * k, 101 + 2 * k, 1280 * (k & 3)))
            lab(lb)
        for s_ in cv + muls + wr + fmas: i(s_)
        rnd += 1
    stamp(2)
    i("s_cmp_lg_u32 s3, 4")
    i("s_cbranch_scc1 L_CV_B1")
    i("v_lshlrev_b32 v8, 2, v1")
    i("v_add_u32 v8, %d, v8" % MISC)
    i("v_mov_b32 v9, 0")
    i("ds_write_b32 v8, v9")
    lab("L_CV_B1")
    i("s_cmp_ge_u32 s3, 4")
    i("s_cbranch_scc1 L_CV_B1B")
    i("s_waitcnt vmcnt(0)")
    lab("L_CV_B1B")
    i("s_waitcnt lgkmcnt(0)")
    i("s_barrier")
    stamp(3)
    i("s_cmp_ge_u32 s3, 4")
    i("s_cbranch_scc1 L_CV_NORM")
    segp = {0: (0, 8, 4), 1: (16, 4, 2), 2: (25, 5, 2), 3: (35, 6, 3)}
    i("s_mul_i32 s46, s3, %d" % FAC_CH)
    i("v_lshrrev_b32 v8, 3, v2")
    i("v_bfe_u32 v9, v2, 2, 1")
    i("v_and_b32 v10, 3, v2")
    for t in range(4):
        b0, a0, c0 = segp[t]
        i("v_mul_u32_u24 v11, %d, v8" % a0)
        i("v_mul_u32_u24 v12, %d, v9" % c0)
        i("v_add3_u32 v11, v11, v12, v10")
        i("v_add_u32 v11, %d, v11" % b0)
        i("v_mul_u32_u24 v11, %d, v11" % XROW)
        i("v_lshl_add_u32 v11, v3, 4, v11")
        i("v_add_u32 v%d, s46, v11" % (16 + t))
    i("v_add_u32 v11, 47, v2")
    i("v_mul_u32_u24 v11, %d, v11" % XROW)
    i("v_lshl_add_u32 v11, v3, 4, v11")
    i("v_add_u32 v15, s46, v11")
    for mu in range(8):
        i("ds_read_b128 v[%d:%d], v15 offset:%d" % (32 + 4 * mu, 35 + 4 * mu, 64 * mu))
        i("ds_read_b128 v[%d:%d], v16 offset:%d" % (64 + 4 * mu, 67 + 4 * mu, 64 * mu))
    accs = [20, 24, 28, 192]
    for t in range(4):
        nxt = ["ds_read_b128 v[%d:%d], v%d offset:%d" % (64 + 32 * (t + 1) + 4 * mu, 67 + 32 * (t + 1) + 4 * mu, 17 + t, 64 * mu) for mu in range(8)] if t < 3 else []
        for s_ in nxt: i(s_)
        a0 = accs[t]
        for mu in range(8):
            if t == 0: i("s_waitcnt lgkmcnt(%d)" % min(15, 8 + 14 - 2 * mu))
            else: i("s_waitcnt lgkmcnt(%d)" % ((8 if nxt else 0) + 7 - mu))
            i("v_mfma_f32_16x16x32_bf16 v[%d:%d], v[%d:%d], v[%d:%d], %s" % (a0, a0 + 3, 64 + 32 * t + 4 * mu, 67 + 32 * t + 4 * mu, 32 + 4 * mu, 35 + 4 * mu, "0" if mu == 0 else "v[%d:%d]" % (a0, a0 + 3)))
    i("s_mul_i32 s46, s3, %d" % KCH)
    i("v_lshlrev_b32 v10, 5, v2")
    i("v_cmp_eq_u32 vcc, 0, v1")
    i("v_mov_b32 v11, s5")
    i("v_lshl_add_u32 v12, v3, 3, v10")
    i("v_cndmask_b32 v11, 0, v11, vcc")
    nop(4)
    i("v_add_f32 v20, v20, v11")
    i("v_cvt_pk_bf16_f32 v64, v23, v22")
    i("v_cvt_pk_bf16_f32 v65, v21, v20")
    i("v_sub_u32 v13, 4088, v12")
    i("v_add_u32 v13, s46, v13")
    i("ds_write_b64 v13, v[64:65]")
    i("v_cvt_pk_bf16_f32 v66, v26, v25")
    i("v_cvt_pk_bf16_f32 v67, v24, v24")
    i("v_sub_u32 v13, 3576, v12")
    i("v_add_u32 v13, s46, v13")
    i("ds_write_b64 v13, v[66:67]")
    i("v_cvt_pk_bf16_f32 v68, v30, v30")
    i("v_cvt_pk_bf16_f32 v69, v29, v29")
    i("v_cvt_pk_bf16_f32 v70, v29, v28")
    i("v_cvt_pk_bf16_f32 v71, v28, v28")
    i("v_lshrrev_b32 v11, 1, v3")
    i("v_lshl_add_u32 v12, v11, 9, v10")
    i("v_and_b32 v11, 1, v3")
    i("v_lshl_add_u32 v12, v11, 4, v12")
    i("v_sub_u32 v13, 3056, v12")
    i("v_add_u32 v13, s46, v13")
    i("ds_write_b128 v13, v[68:71]")
    i("v_cvt_pk_bf16_f32 v72, v194, v194")
    i("v_mov_b32 v73, v72")
    i("v_cvt_pk_bf16_f32 v74, v193, v193")
    i("v_mov_b32 v75, v74")
    i("v_mov_b32 v76, v74")
    i("v_cvt_pk_bf16_f32 v77, v193, v192")
    i("v_cvt_pk_bf16_f32 v78, v192, v192")
    i("v_mov_b32 v79, v78")
    i("v_lshl_add_u32 v12, v3, 9, v10")
    i("v_sub_u32 v13, 2016, v12")
    i("v_add_u32 v13, s46, v13")
    i("ds_write_b128 v13, v[72:75]")
    i("ds_write_b128 v13, v[76:79] offset:16")
    for r in range(4): i("v_mov_b32 v%d, 0" % (32 + r))
    i("v_bfe_u32 v8, v1, 2, 2")
    i("v_mul_u32_u24 v8, %d, v8" % KCP)
    i("v_and_b32 v9, 3, v1")
    i("v_lshl_add_u32 v8, v9, 4, v8")
    i("v_add_u32 v8, s46, v8")
    i("ds_write_b128 v8, v[32:35] offset:4096")
    i("v_lshl_add_u32 v8, v1, 3, s46")
    i("v_add_u32 v9, %d, v8" % KCP)
    i("v_add_u32 v10, %d, v8" % (2 * KCP))
    i("v_add_u32 v11, %d, v8" % (3 * KCP))
    i("s_waitcnt lgkmcnt(0)")
    for it in range(8):
        i("ds_read_b64 v[%d:%d], v8 offset:%d" % (32 + 4 * it, 33 + 4 * it, 512 * it))
        i("ds_read_b64 v[%d:%d], v8 offset:%d" % (34 + 4 * it, 35 + 4 * it, 512 * it + 8))
    for it in range(8):
        i("s_waitcnt lgkmcnt(%d)" % min(15, 14 - 2 * it + 3 * it))
        d = 32 + 4 * it; a = 64 + 4 * it
        i("v_alignbit_b32 v%d, v%d, v%d, 16" % (a, d + 1, d))
        i("v_alignbit_b32 v%d, v%d, v%d, 16" % (a + 1, d + 2, d + 1))
        i("v_alignbit_b32 v%d, v%d, v%d, 16" % (a + 2, d + 3, d + 2))
        o = 128 * it
        i("ds_write2_b32 v9, v%d, v%d offset0:%d offset1:%d" % (a, a + 1, o % 256, o % 256 + 1) if it < 2 else "ds_write2st64_b32 v9, v9, v9" ) if False else None
        if it and it % 1 == 0:
            i("v_add_u32 v9, 512, v9"); i("v_add_u32 v10, 512, v10"); i("v_add_u32 v11, 512, v11")
        i("ds_write2_b32 v9, v%d, v%d offset0:0 offset1:1" % (a, a + 1))
        i("ds_write2_b32 v10, v%d, v%d offset0:0 offset1:1" % (d + 1, d + 2))
        i("ds_write2_b32 v11, v%d, v%d offset0:0 offset1:1" % (a + 1, a + 2))
    stamp(12)
    i("s_branch L_CV_B2")
    lab("L_CV_NORM")
    i("s_cmp_lg_u32 s3, 4")
    i("s_cbranch_scc1 L_CV_NW")
    i("s_mov_b32 s46, %d" % DBG_GO1)
    poll(56, "s46", 1, 1, 8, sleep=1)
    lds_add(M_S1, 8)
    arrive_shard(FL_CP, 8)
    i("s_branch L_CV_NG")
    lab("L_CV_NW")
    lds_wait(M_S1, 1)
    lab("L_CV_NG")
    stamp(5)
    i("v_subrev_u32 v6, 256, v0")
    i("v_lshlrev_b32 v6, 6, v6")
    i("s_mov_b32 s46, 0x%x" % WS_ST1)
    for k in range(4):
        i("buffer_load_dwordx4 v[%d:%d], v6, s[8:11], s46 offen offset:%d sc1" % (120 + 4 * k, 123 + 4 * k, 16 * k))
    i("s_mov_b32 s46, 0x%x" % SEL_LO)
    i("s_mov_b32 s47, 0x%x" % SEL_HI)
    i("s_waitcnt vmcnt(4)")
    for ch in range(4):
        for ii in range(4):
            lo = 100 + 2 * (2 * ii) + (ch >> 1); hi = 100 + 2 * (2 * ii + 1) + (ch >> 1)
            i("v_perm_b32 v%d, v%d, v%d, s%d" % (136 + 4 * ch + ii, hi, lo, 46 + (ch & 1)))
    for k in range(8):
        for jj in range(2):
            x = 100 + 2 * k + jj
            i("v_lshlrev_b32 v%d, 16, v%d" % (168 + 4 * k + 2 * jj, x))
            i("v_and_b32 v%d, 0xffff0000, v%d" % (168 + 4 * k + 2 * jj + 1, x))
    i("s_waitcnt vmcnt(0)")
    stamp(8)
    for k in range(8):
        m = 120 + 2 * k; r = m + 1
        for jj in range(2):
            a = 168 + 4 * k + 2 * jj; b = a + 1
            i("v_sub_f32 v%d, v%d, v%d" % (a, a, m))
            i("v_sub_f32 v%d, v%d, v%d" % (b, b, m))
            i("v_cvt_pk_bf16_f32 v%d, v%d, v%d" % (8 + jj, a, b))
        for jj in range(2):
            a = 168 + 4 * k + 2 * jj; b = a + 1
            i("v_lshlrev_b32 v%d, 16, v%d" % (a, 8 + jj))
            i("v_and_b32 v%d, 0xffff0000, v%d" % (b, 8 + jj))
            i("v_mul_f32 v%d, v%d, v%d" % (a, a, r))
            i("v_mul_f32 v%d, v%d, v%d" % (b, b, r))
    for ch in range(4):
        for ii in range(4):
            i("v_cvt_pk_bf16_f32 v%d, v%d, v%d" % (152 + 4 * ch + ii, 168 + 4 * (2 * ii) + ch, 168 + 4 * (2 * ii + 1) + ch))
    i("v_subrev_u32 v6, 256, v0")
    i("v_bfe_u32 v7, v6, 2, 2")
    i("v_lshlrev_b32 v6, 6, v6")
    for ch in range(4):
        i("v_xor_b32 v8, %d, v7" % ch)
        i("v_lshl_add_u32 v%d, v8, 4, v6" % (20 + ch))
        i("v_add_u32 v9, %d, v%d" % (UL + 2048, 20 + ch))
        i("ds_write_b128 v9, v[%d:%d]" % (152 + 4 * ch, 155 + 4 * ch))
    i("v_mov_b32 v8, 0")
    i("v_mov_b32 v9, 0")
    i("v_subrev_u32 v6, 256, v0")
    i("v_lshlrev_b32 v6, 3, v6")
    i("v_add_u32 v6, %d, v6" % UL)
    i("ds_write_b64 v6, v[8:9]")
    lab("L_CV_B2")
    i("s_waitcnt lgkmcnt(0)")
    i("s_barrier")
    stamp(4)
    i("s_cmp_ge_u32 s3, 4")
    i("s_cbranch_scc1 L_CV_HELP")
    i("s_mul_i32 s15, s3, %d" % KCH)
    i("v_and_b32 v8, 3, v2")
    i("v_sub_u32 v8, 3, v8")
    i("v_mul_u32_u24 v8, %d, v8" % KCP)
    i("v_lshrrev_b32 v9, 2, v2")
    i("v_lshlrev_b32 v9, 3, v9")
    i("v_lshl_add_u32 v9, v3, 4, v9")
    i("v_sub_u32 v9, %d, v9" % (4104 - 4032))
    i("v_add3_u32 v10, v8, v9, s15")
    i("v_lshlrev_b32 v8, 1, v2")
    i("v_add_u32 v8, 1, v8")
    i("v_sub_u32 v8, v8, v3")
    i("v_ashrrev_i32 v9, 2, v8")
    i("v_lshlrev_b32 v8, 6, v8")
    i("v_add_u32 v8, %d, v8" % (UL + 256))
    for r in range(4):
        i("v_subrev_u32 v11, %d, v9" % r)
        i("v_and_b32 v11, 3, v11")
        i("v_xor_b32 v11, s3, v11")
        i("v_lshl_add_u32 v%d, v11, 4, v8" % (12 + r))
    def FR(s, ii): return 24 + 64 * s + 4 * ii
    def GR(s, jj): return 24 + 64 * s + 32 + 4 * jj
    ACC = 160
    def reads(rho):
        s = rho & 1; lst = []
        for ii in range(8):
            sig = rho + 8 * ii; off = 64 * (63 - sig)
            lst.append("ds_read_b64 v[%d:%d], v10 offset:%d" % (FR(s, ii), FR(s, ii) + 1, off))
            lst.append("ds_read_b64 v[%d:%d], v10 offset:%d" % (FR(s, ii) + 2, FR(s, ii) + 3, off + 8))
            lst.append("ds_read_b128 v[%d:%d], v%d offset:%d" % (GR(s, ii), GR(s, ii) + 3, 12 + (rho & 3), 2048 * ii + 256 * (7 - rho)))
        return lst
    for r in reads(0): i(r)
    i("v_lshrrev_b32 v16, 1, v3")
    i("v_lshl_add_u32 v16, v2, 1, v16")
    i("v_bfe_u32 v17, v16, 2, 2")
    i("v_xor_b32 v17, s3, v17")
    i("v_lshlrev_b32 v16, 6, v16")
    i("v_lshl_add_u32 v16, v17, 4, v16")
    i("v_and_b32 v17, 1, v3")
    i("v_lshl_add_u32 v16, v17, 3, v16")
    i("v_add_u32 v16, %d, v16" % XL)
    for rho in range(8):
        s = rho & 1
        nxt = reads(rho + 1) if rho < 7 else ["ds_read_b64 v[%d:%d], v16 offset:%d" % (200 + 2 * al, 201 + 2 * al, 2048 * al) for al in range(8)]
        if rho == 7: lds_wait(M_XT, 4, 18)
        i("s_waitcnt lgkmcnt(0)")
        mf = []
        for al in range(8):
            for ii in range(al + 1):
                jj = al - ii
                first = (rho == 0 and ii == 0)
                mf.append("v_mfma_f32_16x16x32_bf16 v[%d:%d], v[%d:%d], v[%d:%d], %s" % (
                    ACC + 4 * al, ACC + 4 * al + 3, FR(s, ii), FR(s, ii) + 3, GR(s, jj), GR(s, jj) + 3,
                    "0" if first else "v[%d:%d]" % (ACC + 4 * al, ACC + 4 * al + 3)))
        k = 0
        for n, m in enumerate(mf):
            i(m)
            if k < len(nxt) and n < 30:
                i(nxt[k]); k += 1
        while k < len(nxt):
            i(nxt[k]); k += 1
    stamp(5)
    i("s_waitcnt lgkmcnt(0)")
    nop(6)
    i("v_lshlrev_b32 v8, 5, v2")
    i("v_lshl_add_u32 v8, v3, 3, v8")
    i("s_lshl_b32 s46, s3, 12")
    i("s_add_u32 s46, s46, %d" % TL)
    i("v_add_u32 v8, s46, v8")
    for al in range(8):
        x0, x1 = 200 + 2 * al, 201 + 2 * al
        a = ACC + 4 * al
        i("v_lshlrev_b32 v20, 16, v%d" % x0)
        i("v_and_b32 v21, 0xffff0000, v%d" % x0)
        i("v_lshlrev_b32 v22, 16, v%d" % x1)
        i("v_and_b32 v23, 0xffff0000, v%d" % x1)
        i("v_pk_add_f32 v[20:21], v[20:21], v[%d:%d]" % (a, a + 1))
        i("v_pk_add_f32 v[22:23], v[22:23], v[%d:%d]" % (a + 2, a + 3))
        i("v_cvt_pk_bf16_f32 v%d, v20, v21" % (24 + 2 * al))
        i("v_cvt_pk_bf16_f32 v%d, v22, v23" % (25 + 2 * al))
        i("ds_write_b64 v8, v[%d:%d] offset:%d" % (24 + 2 * al, 25 + 2 * al, 512 * al))
    i("s_waitcnt lgkmcnt(0)")
    lds_add(M_TR + 16, 4)
    lds_wait(M_TR + 16, 4)
    i("v_lshlrev_b32 v252, 2, v0")
    i("v_add_u32 v252, %d, v252" % TL)
    i("v_lshlrev_b32 v253, 4, v0")
    i("s_lshl_b32 s14, s12, 14")
    i("s_add_u32 s14, s14, 0x%x" % WS_H)
    i("s_mov_b32 s46, 0x%x" % SEL_LO)
    i("s_mov_b32 s47, 0x%x" % SEL_HI)
    for it in range(4):
        for ch in range(4):
            i("ds_read_b32 v%d, v252 offset:%d" % (8 + 4 * it + ch, ch * 4096 + it * 1024))
    for it in range(4):
        i("s_waitcnt lgkmcnt(%d)" % (12 - 4 * it))
        b = 8 + 4 * it; o = 32 + 4 * it
        i("v_perm_b32 v%d, v%d, v%d, s46" % (o, b + 1, b))
        i("v_perm_b32 v%d, v%d, v%d, s46" % (o + 1, b + 3, b + 2))
        i("v_perm_b32 v%d, v%d, v%d, s47" % (o + 2, b + 1, b))
        i("v_perm_b32 v%d, v%d, v%d, s47" % (o + 3, b + 3, b + 2))
        i("buffer_store_dwordx4 v[%d:%d], v253, s[8:11], s14 offen sc1" % (o, o + 3))
        if it < 3: i("s_add_u32 s14, s14, 4096")
    lds_add(M_TR, 4)
    stamp(6)
    i("s_branch L_PHASE_B")
    lab("L_CV_HELP")
    for ch in range(4):
        i("v_add_u32 v9, %d, v%d" % (XL, 20 + ch))
        i("ds_write_b128 v9, v[%d:%d]" % (136 + 4 * ch, 139 + 4 * ch))
    i("s_waitcnt lgkmcnt(0)")
    lds_add(M_XT, 8)
    w1_prep()
    w1_load([0, 1, 2, 3], W1S)
    h1_poison(248)
    stamp(9)
    lds_wait(M_TR, 4, 4, sleep=2)
    stamp(13)
    i("s_bitcmp1_b32 s67, 0")
    i("s_cbranch_scc1 L_CV_V6")
    i("s_waitcnt vmcnt(8)")
    i("s_branch L_CV_V8")
    lab("L_CV_V6")
    i("s_waitcnt vmcnt(6)")
    lab("L_CV_V8")
    stamp(14)
    w1_dma([4])
    w1_write([0, 1, 2, 3], W1S)
    i("s_waitcnt vmcnt(0)")
    lds_add(M_GP, 248, rtn=True)
    i("s_cmp_lg_u32 s13, 3")
    i("s_cbranch_scc1 L_CV_NGP")
    arrive_shard(FL_CP2, 248)
    lab("L_CV_NGP")
    stamp(6)

    lab("L_PHASE_B")
    if STOP == "A": i("s_branch L_FIN")
    i("s_cmp_lg_u32 s3, 0")
    i("s_cbranch_scc1 L_B_W")
    poll_shards(FL_CP, 8, sleep=2)
    lab("L_B_W")
    i("s_waitcnt lgkmcnt(0)")
    i("s_barrier")
    stamp(7)
    i("s_cmp_ge_u32 s3, 4")
    i("s_cbranch_scc1 L_B_LOAD")
    HB, RING, ACC, WF = 16, 6, 64, 120
    i("s_lshl_b32 s12, s66, 7")
    i("s_lshl_b32 s13, s3, 5")
    i("s_add_u32 s12, s12, s13")
    i("v_lshlrev_b32 v5, 14, v3")
    i("v_lshl_add_u32 v5, v2, 4, v5")
    i("s_lshl_b32 s13, s12, 3")
    i("v_add_u32 v5, s13, v5")
    i("v_lshlrev_b32 v4, 4, v1")
    vq = []
    def hl(kap, half):
        r = HB + 8 * (kap % RING) + 4 * half
        i("s_mov_b32 s13, 0x%x" % (WS_H + kap * 8 * 16384 + half * 4 * 16384))
        i("buffer_load_dwordx4 v[%d:%d], v5, s[8:11], s13 offen sc1" % (r, r + 3))
        vq.append(("h", kap, half))
    for kap in range(RING):
        hl(kap, 0); hl(kap, 1)
    i("v_lshrrev_b32 v6, 2, v2")
    i("v_lshl_add_u32 v6, v3, 2, v6")
    i("v_mul_u32_u24 v6, 224, v6")
    i("v_and_b32 v7, 3, v2")
    i("v_lshl_add_u32 v8, v7, 3, v6")
    i("v_add_u32 v9, %d, v8" % (8 * 7168))
    i("v_add_u32 v10, %d, v8" % (16 * 7168))
    def wreads(kap):
        s = kap & 1; base = 8 + kap // 8; o = (kap % 8) * 7168; lst = []
        for t in range(7):
            r = WF + 28 * s + 4 * t
            lst.append("ds_read_b64_tr_b16 v[%d:%d], v%d offset:%d" % (r, r + 1, base, o + 32 * t))
            lst.append("ds_read_b64_tr_b16 v[%d:%d], v%d offset:%d" % (r + 2, r + 3, base, o + 32 * t + 3584))
        return lst
    for r in wreads(0): i(r)
    def swaps(kap):
        r = HB + 8 * (kap % RING)
        return ["v_swap_b32 v%d, v%d" % (r + 2, r + 4), "v_swap_b32 v%d, v%d" % (r + 3, r + 5)]
    def wait_h(kap):
        idx = max(n for n, x in enumerate(vq) if x[0] == "h" and x[1] == kap)
        return "s_waitcnt vmcnt(%d)" % min(63, len(vq) - 1 - idx)
    slow = []
    def check_h(kap):
        r = HB + 8 * (kap % RING)
        bad, back = uid("HBAD"), uid("HOK")
        i("v_max3_u32 v6, v%d, v%d, v%d" % (r, r + 2, r + 4))
        i("v_max_u32 v6, v6, v%d" % (r + 6))
        i("v_cmp_eq_u32 vcc, -1, v6")
        i("s_cbranch_vccnz %s" % bad)
        lab(back)
        later = sorted(set(x[1] for x in vq if x[0] == "h" and x[1] > kap))
        slow.append((bad, back, kap, later))
    i(wait_h(0))
    check_h(0)
    stamp(12)
    for s_ in swaps(0): i(s_)
    w2pf = [(3, 0), (3, 1), (3, 2), (3, 3), (3, 4), (4, 0), (4, 1), (4, 2), (4, 3), (4, 4), (5, 0), (5, 1), (5, 2), (5, 3), (5, 4)]
    for kap in range(20):
        s = kap & 1
        nxt = wreads(kap + 1) if kap < 19 else []
        if kap == 15: lds_wait(M_EP, 1, 6)
        i("s_waitcnt lgkmcnt(0)")
        k = 0; n = 0
        for t in range(7):
            for par in range(2):
                a = ACC + 8 * t + 4 * par
                h = HB + 8 * (kap % RING) + 4 * par
                w = WF + 28 * s + 4 * t
                i("v_mfma_f32_16x16x32_bf16 v[%d:%d], v[%d:%d], v[%d:%d], %s" % (a, a + 3, w, w + 3, h, h + 3, "0" if kap == 0 else "v[%d:%d]" % (a, a + 3)))
                if k < len(nxt):
                    i(nxt[k]); k += 1
                if kap >= 1 and kap - 1 + RING < 20 and n in (2, 8):
                    hl(kap - 1 + RING, 0 if n == 2 else 1)
                if kap >= 14 and n in (4, 10) and w2pf and kap - 1 + RING >= 20 - 0:
                    st, dl = w2pf.pop(0)
                    i("s_add_u32 s13, s61, %d" % (st * 5120 + dl * 1024))
                    r = W2R + 20 * st + 4 * dl
                    i("buffer_load_dwordx4 v[%d:%d], v4, s[8:11], s13 offen sc1" % (r, r + 3))
                    vq.append(("w", st, dl))
                if n == 11 and kap < 19:
                    i(wait_h(kap + 1))
                    check_h(kap + 1)
                    for s_ in swaps(kap + 1): i(s_)
                n += 1
    while w2pf:
        st, dl = w2pf.pop(0)
        i("s_add_u32 s13, s61, %d" % (st * 5120 + dl * 1024))
        r = W2R + 20 * st + 4 * dl
        i("buffer_load_dwordx4 v[%d:%d], v4, s[8:11], s13 offen sc1" % (r, r + 3))
    stamp(8)
    lds_wait(M_EP + 4, 1, 6)
    stamp(14)
    i("v_lshlrev_b32 v6, 4, v2")
    i("s_lshl_b32 s13, s3, 8")
    i("s_add_u32 s13, s13, %d" % (MISC + M_STAT))
    i("v_add_u32 v6, s13, v6")
    i("ds_read_b128 v[12:15], v6")
    i("v_lshlrev_b32 v7, 4, v3")
    i("v_add_u32 v7, %d, v7" % MISC)
    for t in range(7):
        i("ds_read_b128 v[%d:%d], v7 offset:%d" % (120 + 4 * t, 123 + 4 * t, M_CS + 64 * t))
        i("ds_read_b128 v[%d:%d], v7 offset:%d" % (148 + 4 * t, 151 + 4 * t, M_B1 + 64 * t))
    i("s_lshl_b32 s27, s66, 3")
    i("s_lshl_b32 s28, s3, 1")
    i("s_add_u32 s27, s27, s28")
    i("s_lshl_b32 s27, s27, 10")
    i("s_add_u32 s27, s27, 0x%x" % WS_H1)
    i("s_mul_i32 s28, s67, 7")
    i("s_waitcnt lgkmcnt(0)")
    for t in range(7):
        for par in range(2):
            a = ACC + 8 * t + 4 * par
            st = 12 + 2 * par
            cs = 120 + 4 * t; b1 = 148 + 4 * t
            tmp = 48 + 4 * par
            for hh in range(2):
                i("v_pk_fma_f32 v[%d:%d], v[%d:%d], v[%d:%d], v[%d:%d] op_sel:[0,0,0] op_sel_hi:[1,0,1] neg_lo:[0,1,0] neg_hi:[0,1,0]" % (tmp + 2 * hh, tmp + 2 * hh + 1, cs + 2 * hh, cs + 2 * hh + 1, st, st + 1, b1 + 2 * hh, b1 + 2 * hh + 1))
            for hh in range(2):
                i("v_pk_fma_f32 v[%d:%d], v[%d:%d], v[%d:%d], v[%d:%d] op_sel:[0,1,0] op_sel_hi:[1,1,1]" % (tmp + 2 * hh, tmp + 2 * hh + 1, a + 2 * hh, a + 2 * hh + 1, st, st + 1, tmp + 2 * hh, tmp + 2 * hh + 1))
            for r in range(4): i("v_max_f32 v%d, 0, v%d" % (tmp + r, tmp + r))
            for hh in range(2):
                i("v_pk_mul_f32 v[%d:%d], v[%d:%d], v[%d:%d]" % (tmp + 2 * hh, tmp + 2 * hh + 1, tmp + 2 * hh, tmp + 2 * hh + 1, tmp + 2 * hh, tmp + 2 * hh + 1))
            o = 16 + 4 * t + 2 * par
            i("v_cvt_pk_bf16_f32 v%d, v%d, v%d" % (o, tmp, tmp + 1))
            i("v_cvt_pk_bf16_f32 v%d, v%d, v%d" % (o + 1, tmp + 2, tmp + 3))
    def st16(t, par, n):
        o = 64 + 4 * n
        i("v_mov_b32 v%d, v%d" % (o, 16 + 4 * t + 2 * par))
        i("v_mov_b32 v%d, v%d" % (o + 1, 17 + 4 * t + 2 * par))
        i("v_mov_b32 v%d, v%d" % (o + 2, 16 + 4 * (t + 1) + 2 * par))
        i("v_mov_b32 v%d, v%d" % (o + 3, 17 + 4 * (t + 1) + 2 * par))
        i("buffer_store_dwordx4 v[%d:%d], v4, s[8:11], s29 offen offset:%d sc1" % (o, o + 3, 1024 * par))
    def st8(t, par, half):
        o = 16 + 4 * t + 2 * par
        i("buffer_store_dwordx2 v[%d:%d], v4, s[8:11], s29 offen offset:%d sc1" % (o, o + 1, 1024 * par + 8 * half))
    def beta_off(t):
        i("s_add_u32 s29, s28, %d" % t)
        i("s_lshr_b32 s29, s29, 1")
        i("s_lshl_b32 s29, s29, 17")
        i("s_add_u32 s29, s29, s27")
    stamp(1)
    i("s_bitcmp1_b32 s67, 0")
    i("s_cbranch_scc1 L_B_ODD")
    n = 0
    for t in (0, 2, 4):
        beta_off(t)
        for par in range(2): st16(t, par, n); n += 1
    beta_off(6)
    for par in range(2): st8(6, par, 0)
    i("s_branch L_B_STD")
    lab("L_B_ODD")
    beta_off(0)
    for par in range(2): st8(0, par, 1)
    n = 0
    for t in (1, 3, 5):
        beta_off(t)
        for par in range(2): st16(t, par, n); n += 1
    lab("L_B_STD")
    stamp(9)
    w2_load([0, 1, 2], [0, 1, 2])
    i("s_branch L_PHASE_C")
    for (bad, back, kap, later) in slow:
        r = HB + 8 * (kap % RING)
        lab(bad)
        i("s_mov_b32 s47, 0")
        top = uid("HT")
        lab(top)
        i("s_sleep 4")
        i("s_mov_b32 s13, 0x%x" % (WS_H + kap * 8 * 16384))
        i("buffer_load_dwordx4 v[%d:%d], v5, s[8:11], s13 offen sc1" % (r, r + 3))
        i("s_mov_b32 s13, 0x%x" % (WS_H + kap * 8 * 16384 + 4 * 16384))
        i("buffer_load_dwordx4 v[%d:%d], v5, s[8:11], s13 offen sc1" % (r + 4, r + 7))
        i("s_waitcnt vmcnt(0)")
        i("v_max3_u32 v6, v%d, v%d, v%d" % (r, r + 2, r + 4))
        i("v_max_u32 v6, v6, v%d" % (r + 6))
        i("v_cmp_eq_u32 vcc, -1, v6")
        okl = uid("HR")
        i("s_cbranch_vccz %s" % okl)
        i("s_add_u32 s47, s47, 1")
        i("s_cmp_lt_u32 s47, %d" % SPIN_LIMIT)
        i("s_cbranch_scc1 %s" % top)
        lab(okl)
        for k2 in later:
            r2 = HB + 8 * (k2 % RING)
            i("s_mov_b32 s13, 0x%x" % (WS_H + k2 * 8 * 16384))
            i("buffer_load_dwordx4 v[%d:%d], v5, s[8:11], s13 offen sc1" % (r2, r2 + 3))
            i("s_mov_b32 s13, 0x%x" % (WS_H + k2 * 8 * 16384 + 4 * 16384))
            i("buffer_load_dwordx4 v[%d:%d], v5, s[8:11], s13 offen sc1" % (r2 + 4, r2 + 7))
        i("s_waitcnt vmcnt(0)")
        i("s_branch %s" % back)

    lab("L_B_LOAD")
    i("s_lshl_b32 s12, s66, 7")
    i("s_lshl_b32 s13, s67, 3")
    i("s_add_u32 s12, s12, s13")
    i("s_sub_u32 s14, s3, 4")
    i("s_mul_i32 s14, s14, 40")
    i("v_lshrrev_b32 v5, 2, v1")
    i("v_add_u32 v5, s14, v5")
    i("v_and_b32 v6, 3, v1")
    i("v_lshlrev_b32 v7, 14, v5")
    i("v_lshl_add_u32 v7, v6, 4, v7")
    i("s_lshl_b32 s13, s12, 3")
    i("s_add_u32 s13, s13, 0x%x" % WS_H)
    i("s_mov_b32 s15, s13")
    i("s_mov_b32 s47, 0")
    for r in range(4): i("v_mov_b32 v%d, 0" % (24 + r))
    lab("L_LS_TOP")
    i("s_mov_b32 s13, s15")
    for k in range(3):
        if k == 2: i("s_mov_b64 exec, 0xffffffff")
        i("buffer_load_dwordx4 v[%d:%d], v7, s[8:11], s13 offen sc1" % (16 + 4 * k, 19 + 4 * k))
        i("s_add_u32 s13, s13, %d" % (16 * 16384))
    i("s_mov_b64 exec, -1")
    i("s_waitcnt vmcnt(0)")
    i("v_max3_u32 v8, v16, v18, v20")
    i("v_max3_u32 v9, v22, v24, v26")
    i("v_max_u32 v8, v8, v9")
    i("v_cmp_eq_u32 vcc, -1, v8")
    i("s_cbranch_vccz L_LS_OK")
    i("s_sleep 8")
    i("s_add_u32 s47, s47, 1")
    i("s_cmp_lt_u32 s47, %d" % SPIN_LIMIT)
    i("s_cbranch_scc1 L_LS_TOP")
    lab("L_LS_OK")
    i("v_mov_b32 v7, 0x3f803f80")
    for r in range(8, 16): i("v_mov_b32 v%d, 0" % r)
    for k in range(3):
        for hf in range(2):
            for dw in range(2):
                x = 16 + 4 * k + 2 * hf + dw
                i("v_dot2_f32_bf16 v%d, v%d, v7, v%d" % (8 + 4 * dw + 2 * hf, x, 8 + 4 * dw + 2 * hf))
                i("v_dot2_f32_bf16 v%d, v%d, v%d, v%d" % (9 + 4 * dw + 2 * hf, x, x, 9 + 4 * dw + 2 * hf))
    nop(3)
    for r in range(4): i("v_add_f32 v%d, v%d, v%d" % (8 + r, 8 + r, 12 + r))
    for rr in (8, 4):
        nop(2)
        for r in range(4):
            i("v_add_f32_dpp v%d, v%d, v%d row_ror:%d row_mask:0xf bank_mask:0xf" % (8 + r, 8 + r, 8 + r, rr))
    for op in ("v_permlane16_swap_b32", "v_permlane32_swap_b32"):
        for r in range(4): i("v_mov_b32 v%d, v%d" % (12 + r, 8 + r))
        nop(1)
        for r in range(4): i("%s v%d, v%d" % (op, 12 + r, 8 + r))
        nop(1)
        for r in range(4): i("v_add_f32 v%d, v%d, v%d" % (8 + r, 8 + r, 12 + r))
    i("s_sub_u32 s13, s3, 4")
    i("s_lshl_b32 s13, s13, 6")
    i("s_add_u32 s13, s13, %d" % (MISC + 2304))
    i("v_lshlrev_b32 v5, 4, v1")
    i("v_add_u32 v5, s13, v5")
    i("s_mov_b64 exec, 0xf")
    i("ds_write_b128 v5, v[8:11]")
    i("s_mov_b64 exec, -1")
    i("s_waitcnt lgkmcnt(0)")
    lds_add(M_ST, 4, rtn=True)
    i("s_cmp_lg_u32 s13, 3")
    i("s_cbranch_scc1 L_B_LD1")
    i("s_mov_b64 exec, 0xf")
    i("v_lshlrev_b32 v5, 4, v1")
    i("v_add_u32 v5, %d, v5" % (MISC + 2304))
    for w in range(4):
        i("ds_read_b128 v[%d:%d], v5 offset:%d" % (16 + 4 * w, 19 + 4 * w, 64 * w))
    i("s_waitcnt lgkmcnt(0)")
    for w in range(1, 4):
        i("v_pk_add_f32 v[16:17], v[16:17], v[%d:%d]" % (16 + 4 * w, 17 + 4 * w))
        i("v_pk_add_f32 v[18:19], v[18:19], v[%d:%d]" % (18 + 4 * w, 19 + 4 * w))
    ln_finish(16, 17, True)
    ln_finish(18, 19, True)
    i("v_lshlrev_b32 v5, 4, v1")
    i("s_lshl_b32 s13, s12, 3")
    i("s_add_u32 s13, s13, 0x%x" % WS_ST2)
    i("buffer_store_dwordx4 v[16:19], v5, s[8:11], s13 offen sc1")
    i("s_mov_b64 exec, -1")
    poll_shards(FL_CP2, 24, sleep=2)
    i("s_mul_i32 s14, s67, 112")
    i("v_lshlrev_b32 v5, 2, v1")
    i("s_lshl_b32 s13, s14, 2")
    i("s_add_u32 s13, s13, 0x%x" % WS_CS)
    i("buffer_load_dword v20, v5, s[8:11], s13 offen sc1")
    i("buffer_load_dword v21, v5, s[8:11], s13 offen offset:256 sc1")
    srd(4, 38, F * 2)
    i("v_lshlrev_b32 v6, 1, v1")
    i("s_lshl_b32 s13, s14, 1")
    i("buffer_load_ushort v22, v6, s[4:7], s13 offen")
    i("buffer_load_ushort v23, v6, s[4:7], s13 offen offset:128")
    i("s_waitcnt vmcnt(0)")
    i("v_lshlrev_b32 v22, 16, v22")
    i("v_lshlrev_b32 v23, 16, v23")
    i("v_add_u32 v6, %d, v5" % MISC)
    i("ds_write_b32 v6, v20 offset:%d" % M_CS)
    i("ds_write_b32 v6, v21 offset:%d" % (M_CS + 256))
    i("ds_write_b32 v6, v22 offset:%d" % M_B1)
    i("ds_write_b32 v6, v23 offset:%d" % (M_B1 + 256))
    i("v_lshlrev_b32 v5, 4, v1")
    i("s_lshl_b32 s13, s66, 10")
    i("s_add_u32 s13, s13, 0x%x" % WS_ST2)
    i("s_mov_b32 s47, 0")
    lab("L_ST2_TOP")
    i("buffer_load_dwordx4 v[16:19], v5, s[8:11], s13 offen sc1")
    i("s_waitcnt vmcnt(0)")
    i("v_max_u32 v8, v17, v19")
    i("v_cmp_eq_u32 vcc, -1, v8")
    i("s_cbranch_vccz L_ST2_OK")
    i("s_sleep 4")
    i("s_add_u32 s47, s47, 1")
    i("s_cmp_lt_u32 s47, %d" % SPIN_LIMIT)
    i("s_cbranch_scc1 L_ST2_TOP")
    lab("L_ST2_OK")
    i("v_add_u32 v6, %d, v5" % (MISC + M_STAT))
    i("ds_write_b128 v6, v[16:19]")
    i("s_waitcnt lgkmcnt(0)")
    lds_add(M_EP + 4, 6)
    lab("L_B_LD1")
    i("s_mov_b32 s46, %d" % DBG_GOW)
    poll(56, "s46", 1, 1, 8, sleep=2)
    lds_add(M_EP, 8)
    i("v_lshlrev_b32 v4, 4, v1")
    w2_load(range(6), range(6))
    lds_wait(M_EP + 4, 1, 6, sleep=4)

    lab("L_PHASE_C")
    if STOP == "B": i("s_branch L_FIN")
    i("s_lshr_b32 s12, s64, 1")
    i("s_lshl_b32 s12, s12, 3")
    i("s_lshr_b32 s13, s65, 2")
    i("s_add_u32 s12, s12, s13")
    stamp(10)
    i("s_and_b32 s4, s3, 3")
    i("s_mul_i32 s5, s4, 7")
    i("s_lshr_b32 s6, s3, 2")
    i("s_mul_i32 s7, s6, 27")
    i("s_add_u32 s5, s5, s7")
    i("s_lshl_b32 s5, s5, 7")
    i("s_lshl_b32 s7, s12, 2")
    i("s_add_u32 s5, s5, s7")
    i("s_lshl_b32 s5, s5, 10")
    i("s_add_u32 s5, s5, 0x%x" % WS_H1)
    R2, ACC2 = 8, 40
    vq = [("old",)] * 15
    vq = []
    def h1l(st, lt):
        r = R2 + 16 * (st & 1) + 4 * lt
        i("s_add_u32 s13, s5, %d" % (st * 131072))
        i("buffer_load_dwordx4 v[%d:%d], v4, s[8:11], s13 offen offset:%d sc1" % (r, r + 3, 1024 * lt))
        vq.append(("h", st, lt))
    for st in range(2):
        for lt in range(4): h1l(st, lt)
    for r in range(80): i("v_mov_b32 v%d, 0" % (ACC2 + r))
    slow2 = []
    def wait_for(tag):
        idx = max(n for n, x in enumerate(vq) if x == tag)
        i("s_waitcnt vmcnt(%d)" % min(63, len(vq) - 1 - idx))
    for st in range(7):
        if st == 6:
            i("s_cmp_eq_u32 s4, 3")
            i("s_cbranch_scc1 L_C_RED")
            wait_for(("w", 6, 4))
        sl = st if st < 6 else 0
        for lt in range(4):
            wait_for(("h", st, lt))
            hr = R2 + 16 * (st & 1) + 4 * lt
            bad, back = uid("GBAD"), uid("GOK")
            i("v_max_u32 v5, v%d, v%d" % (hr, hr + 2))
            i("v_cmp_eq_u32 vcc, -1, v5")
            i("s_cbranch_vccnz %s" % bad)
            lab(back)
            later = [(x[1], x[2]) for x in vq if x[0] == "h" and (x[1], x[2]) > (st, lt)]
            slow2.append((bad, back, st, lt, later))
            if st == 0 and lt == 0: stamp(2)
            for dl in range(5):
                a = ACC2 + 16 * dl + 4 * lt
                w = W2R + 20 * sl + 4 * dl
                h = R2 + 16 * (st & 1) + 4 * lt
                i("v_mfma_f32_16x16x32_bf16 v[%d:%d], v[%d:%d], v[%d:%d], v[%d:%d]" % (a, a + 3, w, w + 3, h, h + 3, a, a + 3))
            if st + 2 < 7: h1l(st + 2, lt)
        if st == 0:
            i("s_add_u32 s46, s61, %d" % (6 * 5120))
            for dl in range(5):
                r = W2R + 4 * dl
                if dl == 4: i("s_add_u32 s46, s46, 4096")
                i("buffer_load_dwordx4 v[%d:%d], v4, s[8:11], s46 offen offset:%d sc1" % (r, r + 3, 1024 * (dl % 4)))
                vq.append(("w", 6, dl))
    lab("L_C_RED")
    stamp(11)
    i("s_waitcnt vmcnt(0)")
    i("s_barrier")
    nop(8)
    i("s_mul_i32 s13, s3, 10240")
    i("v_add_u32 v5, s13, v4")
    i("s_cmp_eq_u32 s6, 0")
    i("s_cbranch_scc0 L_C_R1B")
    for dl in range(5):
        for par in range(2):
            a = ACC2 + 16 * dl + 4 * (2 + par)
            i("ds_write_b128 v5, v[%d:%d] offset:%d" % (a, a + 3, 1024 * (2 * dl + par)))
    i("s_branch L_C_R1C")
    lab("L_C_R1B")
    for dl in range(5):
        for par in range(2):
            a = ACC2 + 16 * dl + 4 * par
            i("ds_write_b128 v5, v[%d:%d] offset:%d" % (a, a + 3, 1024 * (2 * dl + par)))
    for dl in range(5):
        for r in range(8):
            i("v_mov_b32 v%d, v%d" % (ACC2 + 16 * dl + r, ACC2 + 16 * dl + 8 + r))
    lab("L_C_R1C")
    srd(56, 42, D * 2)
    srd(48, 44, L * D * 2)
    i("s_lshl_b32 s15, s12, 6")
    i("s_lshl_b32 s13, s6, 5")
    i("s_add_u32 s15, s15, s13")
    i("v_lshlrev_b32 v6, 1, v2")
    i("v_add_u32 v6, s15, v6")
    i("s_mul_i32 s7, s60, 5")
    for j in range(3):
        i("s_add_u32 s13, s4, %d" % (4 * j))
        i("s_lshr_b32 s46, s13, 1")
        i("s_min_u32 s46, s46, 4")
        i("s_add_u32 s46, s46, s7")
        i("s_and_b32 s47, s13, 1")
        i("s_lshl_b32 s13, s46, 16")
        i("s_lshl_b32 s15, s47, 3")
        i("s_add_u32 s13, s13, s15")
        i("s_add_u32 s13, s13, 0x%x" % WS_H)
        i("v_lshlrev_b32 v7, 14, v3")
        i("v_lshl_add_u32 v7, v6, 3, v7")
        i("buffer_load_dwordx2 v[%d:%d], v7, s[8:11], s13 offen sc1" % (8 + 2 * j, 9 + 2 * j))
        i("s_lshl_b32 s13, s46, 5")
        i("v_lshlrev_b32 v7, 3, v3")
        i("buffer_load_dwordx2 v[%d:%d], v7, s[56:59], s13 offen" % (16 + 2 * j, 17 + 2 * j))
    i("s_waitcnt lgkmcnt(0)")
    i("s_barrier")
    i("s_xor_b32 s13, s3, 4")
    i("s_mul_i32 s13, s13, 10240")
    i("v_add_u32 v5, s13, v4")
    for tl in range(10):
        i("ds_read_b128 v[%d:%d], v5 offset:%d" % (120 + 4 * tl, 123 + 4 * tl, 1024 * tl))
    for tl in range(10):
        i("s_waitcnt lgkmcnt(%d)" % (9 - tl))
        dl, par = tl >> 1, tl & 1
        a = ACC2 + 16 * dl + 4 * par
        i("v_pk_add_f32 v[%d:%d], v[%d:%d], v[%d:%d]" % (a, a + 1, a, a + 1, 120 + 4 * tl, 121 + 4 * tl))
        i("v_pk_add_f32 v[%d:%d], v[%d:%d], v[%d:%d]" % (a + 2, a + 3, a + 2, a + 3, 122 + 4 * tl, 123 + 4 * tl))
    i("s_mul_i32 s13, s3, 10240")
    i("s_add_u32 s13, s13, 81920")
    i("v_add_u32 v5, s13, v4")
    for tl in range(10):
        dl, par = tl >> 1, tl & 1
        a = ACC2 + 16 * dl + 4 * par
        i("ds_write_b128 v5, v[%d:%d] offset:%d" % (a, a + 3, 1024 * tl))
    i("s_waitcnt lgkmcnt(0)")
    i("s_barrier")
    i("s_mul_i32 s13, s6, 40960")
    i("s_lshl_b32 s15, s4, 10")
    i("s_add_u32 s13, s13, s15")
    i("s_add_u32 s13, s13, 81920")
    i("v_add_u32 v5, s13, v4")
    for j in range(3):
        for src in range(4):
            r = 120 + 16 * j + 4 * src
            off = src * 10240 + 4096 * j
            if j == 2 and src == 3: off = 0
            i("ds_read_b128 v[%d:%d], v5 offset:%d" % (r, r + 3, off) if not (j == 2 and src == 3) else "ds_read_b128 v[%d:%d], v5 offset:%d" % (r, r + 3, src * 10240 + 4096 * j))
    i("s_waitcnt vmcnt(0) lgkmcnt(0)")
    for j in range(3):
        if j == 2:
            i("s_cmp_ge_u32 s4, 2")
            i("s_cbranch_scc1 L_FIN")
        r = 120 + 16 * j
        for src in range(1, 4):
            i("v_pk_add_f32 v[%d:%d], v[%d:%d], v[%d:%d]" % (r, r + 1, r, r + 1, r + 4 * src, r + 4 * src + 1))
            i("v_pk_add_f32 v[%d:%d], v[%d:%d], v[%d:%d]" % (r + 2, r + 3, r + 2, r + 3, r + 4 * src + 2, r + 4 * src + 3))
        i("v_cvt_pk_bf16_f32 v30, v%d, v%d" % (r, r + 1))
        i("v_cvt_pk_bf16_f32 v31, v%d, v%d" % (r + 2, r + 3))
        for (src, dst) in ((30, 32), (31, 34), (16 + 2 * j, 36), (17 + 2 * j, 38)):
            i("v_lshlrev_b32 v%d, 16, v%d" % (dst, src))
            i("v_and_b32 v%d, 0xffff0000, v%d" % (dst + 1, src))
        i("v_pk_add_f32 v[32:33], v[32:33], v[36:37]")
        i("v_pk_add_f32 v[34:35], v[34:35], v[38:39]")
        i("v_cvt_pk_bf16_f32 v30, v32, v33")
        i("v_cvt_pk_bf16_f32 v31, v34, v35")
        for (src, dst) in ((30, 32), (31, 34), (8 + 2 * j, 36), (9 + 2 * j, 38)):
            i("v_lshlrev_b32 v%d, 16, v%d" % (dst, src))
            i("v_and_b32 v%d, 0xffff0000, v%d" % (dst + 1, src))
        i("v_pk_add_f32 v[32:33], v[32:33], v[36:37]")
        i("v_pk_add_f32 v[34:35], v[34:35], v[38:39]")
        i("v_cvt_pk_bf16_f32 v%d, v32, v33" % (24 + 2 * j))
        i("v_cvt_pk_bf16_f32 v%d, v34, v35" % (25 + 2 * j))
        i("s_add_u32 s13, s4, %d" % (4 * j))
        i("s_lshr_b32 s46, s13, 1")
        i("s_add_u32 s46, s46, s7")
        i("s_and_b32 s47, s13, 1")
        i("s_mul_i32 s47, s47, 1280")
        i("s_lshl_b32 s46, s46, 5")
        i("s_add_u32 s46, s46, s47")
        i("v_mul_u32_u24 v7, 1280, v6")
        i("v_lshl_add_u32 v7, v3, 3, v7")
        i("buffer_store_dwordx2 v[%d:%d], v7, s[48:51], s46 offen" % (24 + 2 * j, 25 + 2 * j))
    lab("L_FIN")
    stamp_flush()
    lab("L_END")
    i("s_endpgm")
    for (bad, back, st, lt, later) in slow2:
        r = R2 + 16 * (st & 1) + 4 * lt
        lab(bad)
        i("s_mov_b32 s47, 0")
        top = uid("GT")
        lab(top)
        i("s_sleep 4")
        i("s_add_u32 s13, s5, %d" % (st * 131072))
        i("buffer_load_dwordx4 v[%d:%d], v4, s[8:11], s13 offen offset:%d sc1" % (r, r + 3, 1024 * lt))
        i("s_waitcnt vmcnt(0)")
        i("v_max_u32 v5, v%d, v%d" % (r, r + 2))
        i("v_cmp_eq_u32 vcc, -1, v5")
        okl = uid("GR")
        i("s_cbranch_vccz %s" % okl)
        i("s_add_u32 s47, s47, 1")
        i("s_cmp_lt_u32 s47, %d" % SPIN_LIMIT)
        i("s_cbranch_scc1 %s" % top)
        lab(okl)
        for (s2_, l2_) in later:
            r2 = R2 + 16 * (s2_ & 1) + 4 * l2_
            i("s_add_u32 s13, s5, %d" % (s2_ * 131072))
            i("buffer_load_dwordx4 v[%d:%d], v4, s[8:11], s13 offen offset:%d sc1" % (r2, r2 + 3, 1024 * l2_))
        i("s_waitcnt vmcnt(0)")
        i("s_branch %s" % back)
    lab("L_CODE_END")
    e('.section .rodata,"a"')
    e(".p2align 6")
    e(".amdhsa_kernel %s" % KNAME)
    e("  .amdhsa_next_free_vgpr 256")
    e("  .amdhsa_next_free_sgpr 102")
    e("  .amdhsa_accum_offset 256")
    e("  .amdhsa_group_segment_fixed_size 0")
    e("  .amdhsa_kernarg_size 120")
    e("  .amdhsa_user_sgpr_count 2")
    e("  .amdhsa_user_sgpr_kernarg_segment_ptr 1")
    e("  .amdhsa_system_sgpr_workgroup_id_x 1")
    e(".end_amdhsa_kernel")

if __name__ == "__main__":
    main()
    path = sys.argv[1] if len(sys.argv) > 1 else "cdna_kernels/%s.s" % NAME
    open(path, "w").write("\n".join(x for x in out if x is not None) + "\n")
    print("wrote", path, len(out), "lines")
```

```python
import sys, os, struct
NAME = "sequential_preLN__ssm_conv_s4d__dense_activation_squared_relu__prompt"
KNAME = NAME + "_kernel"
L, D, NS, F = 2048, 640, 128, 1728
STAMPS = os.environ.get("STAMPS", "0") == "1"
STOP = os.environ.get("STOP", "")

WS_ST1 = 0x000000
WS_CS  = 0x008000
WS_ST2 = 0x010000
WS_FL  = 0x020000
WS_H   = 0x100000
WS_H1  = 0x400000
WS_W1P = 0xC00000
WS_W2P = 0x1000000
WS_STAMP = 0x8000000
WS_SIZE = 0x10000000
FL_CP, FL_CP2, FL_HINT, FL_SIZE = 0, 1024, 2048, 3072
DBG_C1, DBG_CW, DBG_CP, DBG_CP2, DBG_GO1, DBG_GOW, DBG_GOP, DBG_GOP2 = 0, 4, 8, 12, 128, 132, 136, 140
XROW = 544
FAC_CH = 63 * XROW
KCH, KCP = FAC_CH, 4160
UL = 137216
XL = 50944
TL = 142336
MISC = 158720
M_CH, M_ST, M_S1, M_XT, M_TR, M_HS, M_EP, M_GP, M_MD = 0, 32, 64, 68, 72, 76, 80, 92, 96
M_STAT, M_CS, M_B1 = 256, 1280, 1792
LDS_TOTAL = 163840

out = []
def e(s=""): out.append(s)
def lab(s): out.append(s + ":")
def i(s): out.append("    " + s)
def f2u(f): return struct.unpack("<I", struct.pack("<f", f))[0]
def nop(n):
    while n > 0:
        k = min(n, 16); i("s_nop %d" % (k - 1)); n -= k
def srd(dst, ptr_lo, nbytes):
    i("s_mov_b32 s%d, s%d" % (dst, ptr_lo))
    i("s_mov_b32 s%d, s%d" % (dst + 1, ptr_lo + 1))
    i("s_mov_b32 s%d, 0x%x" % (dst + 2, nbytes))
    i("s_mov_b32 s%d, 0x00020000" % (dst + 3))
def round_bf16(dst, src):
    i("v_cvt_pk_bf16_f32 v%d, v%d, v%d" % (dst, src, src))
    i("v_lshlrev_b32 v%d, 16, v%d" % (dst, dst))
_uid = [0]
def uid(p):
    _uid[0] += 1
    return "%s_%d" % (p, _uid[0])
def stamp(k):
    if STAMPS:
        assert k < 15
        i("s_memrealtime s[%d:%d]" % (70 + 2 * k, 71 + 2 * k))
def stamp_flush():
    if not STAMPS: return
    i("s_memrealtime s[100:101]")
    i("s_waitcnt lgkmcnt(0)")
    i("s_mov_b64 exec, 1")
    i("s_lshl_b32 s46, s2, 3")
    i("s_add_u32 s46, s46, s3")
    i("s_lshl_b32 s46, s46, 7")
    i("s_add_u32 s46, s46, 0x%x" % WS_STAMP)
    i("v_mov_b32 v0, 0")
    for k in range(16):
        i("v_mov_b32 v2, s%d" % (70 + 2 * k))
        i("v_mov_b32 v3, s%d" % (71 + 2 * k))
        i("buffer_store_dwordx2 v[2:3], v0, s[8:11], s46 offen offset:%d" % (8 * k))
        i("s_nop 1")

LOG2E, NLOG2E, INV2PI = 0x3fb8aa3b, 0xbfb8aa3b, "0.15915494"
SEL_LO, SEL_HI = 0x05040100, 0x07060302
INV640, EPS = 0x3acccccd, 0x3727c5ac
SPIN_LIMIT = 1 << 18

def poll(srd_reg, soff, nlanes, ndw, vt, spread=False, sleep=2):
    top, done = uid("POLL"), uid("POLLD")
    i("s_mov_b64 s[68:69], exec")
    m = (1 << nlanes) - 1
    i("s_mov_b32 exec_lo, 0x%x" % (m & 0xffffffff))
    i("s_mov_b32 exec_hi, 0x%x" % (m >> 32))
    if spread:
        i("v_lshrrev_b32 v%d, 1, v1" % (vt + 4))
        i("v_lshlrev_b32 v%d, 7, v%d" % (vt + 4, vt + 4))
        i("v_and_b32 v%d, 1, v1" % (vt + 5))
        i("v_lshl_add_u32 v%d, v%d, 4, v%d" % (vt + 4, vt + 5, vt + 4))
    else:
        i("v_lshlrev_b32 v%d, %d, v1" % (vt + 4, {1: 2, 4: 4}[ndw]))
    i("s_mov_b32 s47, 0")
    lab(top)
    if ndw == 1:
        i("buffer_load_dword v%d, v%d, s[%d:%d], %s offen sc1" % (vt, vt + 4, srd_reg, srd_reg + 3, soff))
        i("s_waitcnt vmcnt(0)")
    else:
        i("buffer_load_dwordx4 v[%d:%d], v%d, s[%d:%d], %s offen sc1" % (vt, vt + 3, vt + 4, srd_reg, srd_reg + 3, soff))
        i("s_waitcnt vmcnt(0)")
        i("v_min_u32 v%d, v%d, v%d" % (vt, vt, vt + 1))
        i("v_min_u32 v%d, v%d, v%d" % (vt + 2, vt + 2, vt + 3))
        i("v_min_u32 v%d, v%d, v%d" % (vt, vt, vt + 2))
    i("v_cmp_ne_u32 vcc, 0, v%d" % vt)
    i("s_cmp_eq_u64 vcc, exec")
    i("s_cbranch_scc1 %s" % done)
    i("s_sleep %d" % sleep)
    i("s_add_u32 s47, s47, 1")
    i("s_cmp_lt_u32 s47, %d" % SPIN_LIMIT)
    i("s_cbranch_scc1 %s" % top)
    lab(done)
    i("s_mov_b64 exec, s[68:69]")

def set_flag(srd_reg, soff, va=4):
    i("s_mov_b64 s[68:69], exec")
    i("s_mov_b64 exec, 1")
    i("v_mov_b32 v%d, 0" % va)
    i("v_mov_b32 v%d, 1" % (va + 1))
    i("buffer_store_dword v%d, v%d, s[%d:%d], %s offen sc1" % (va + 1, va, srd_reg, srd_reg + 3, soff))
    i("s_mov_b64 exec, s[68:69]")

def arrive_last(cnt_off, total, go_off):
    lbl = uid("ARR")
    i("s_mov_b64 s[68:69], exec")
    i("s_mov_b64 exec, 1")
    i("v_mov_b32 v4, %d" % cnt_off)
    i("v_mov_b32 v5, 1")
    i("buffer_atomic_add v5, v4, s[56:59], 0 offen sc0 sc1")
    i("s_waitcnt vmcnt(0)")
    i("v_readfirstlane_b32 s13, v5")
    i("s_mov_b64 exec, s[68:69]")
    i("s_cmp_lg_u32 s13, %d" % (total - 1))
    i("s_cbranch_scc1 %s" % lbl)
    i("s_mov_b32 s13, %d" % go_off)
    set_flag(56, "s13")
    lab(lbl)

def arrive_shard(floff, va=4):
    i("s_mov_b64 s[68:69], exec")
    i("s_mov_b64 exec, 1")
    i("s_lshl_b32 s13, s64, 7")
    i("s_add_u32 s13, s13, 0x%x" % (WS_FL + floff))
    i("v_mov_b32 v%d, 0" % va)
    i("v_mov_b32 v%d, 1" % (va + 1))
    i("buffer_atomic_add v%d, v%d, s[8:11], s13 offen sc1" % (va + 1, va))
    i("s_mov_b64 exec, s[68:69]")
def poll_shards(floff, vt, sleep=4):
    top, done = uid("PS"), uid("PSD")
    i("s_mov_b64 s[68:69], exec")
    i("s_mov_b64 exec, 0xff")
    i("v_lshlrev_b32 v%d, 7, v1" % (vt + 1))
    i("s_mov_b32 s46, 0x%x" % (WS_FL + floff))
    i("s_mov_b32 s47, 0")
    lab(top)
    i("buffer_load_dword v%d, v%d, s[8:11], s46 offen sc1" % (vt, vt + 1))
    i("s_waitcnt vmcnt(0)")
    i("v_cmp_le_u32 vcc, 32, v%d" % vt)
    i("s_cmp_eq_u64 vcc, exec")
    i("s_cbranch_scc1 %s" % done)
    i("s_sleep %d" % sleep)
    i("s_add_u32 s47, s47, 1")
    i("s_cmp_lt_u32 s47, %d" % SPIN_LIMIT)
    i("s_cbranch_scc1 %s" % top)
    lab(done)
    i("s_mov_b64 exec, s[68:69]")
def h1_poison(v0=4):
    skip = uid("HPS")
    i("v_lshlrev_b32 v%d, 4, v1" % (v0 + 4))
    for r in range(4): i("v_mov_b32 v%d, -1" % (v0 + r))
    i("s_lshl_b32 s27, s66, 3")
    i("s_and_b32 s28, s3, 3")
    i("s_lshl_b32 s28, s28, 1")
    i("s_add_u32 s27, s27, s28")
    i("s_lshl_b32 s27, s27, 10")
    i("s_add_u32 s27, s27, 0x%x" % WS_H1)
    i("s_mul_i32 s28, s67, 7")
    i("s_lshr_b32 s28, s28, 1")
    i("s_lshl_b32 s28, s28, 17")
    i("s_add_u32 s29, s27, s28")
    i("s_bitcmp1_b32 s67, 0")
    i("s_cbranch_scc1 %s" % skip)
    for par in range(2): i("buffer_store_dwordx4 v[%d:%d], v%d, s[8:11], s29 offen offset:%d sc1" % (v0, v0 + 3, v0 + 4, 1024 * par))
    lab(skip)
    for b_ in range(1, 4):
        i("s_add_u32 s29, s29, 131072")
        for par in range(2): i("buffer_store_dwordx4 v[%d:%d], v%d, s[8:11], s29 offen offset:%d sc1" % (v0, v0 + 3, v0 + 4, 1024 * par))
def st2_poison():
    i("s_mov_b64 s[68:69], exec")
    i("s_mov_b64 exec, 0xf")
    for r in range(4): i("v_mov_b32 v%d, -1" % (4 + r))
    i("v_lshlrev_b32 v8, 4, v1")
    i("s_lshl_b32 s13, s66, 10")
    i("s_lshl_b32 s46, s67, 6")
    i("s_add_u32 s13, s13, s46")
    i("s_add_u32 s13, s13, 0x%x" % WS_ST2)
    i("buffer_store_dwordx4 v[4:7], v8, s[8:11], s13 offen sc1")
    i("s_mov_b64 exec, s[68:69]")

def lds_wait(off, target, vt=4, sleep=1):
    top, d = uid("LW"), uid("LWD")
    i("v_mov_b32 v%d, %d" % (vt, MISC + off))
    lab(top)
    i("ds_read_b32 v%d, v%d" % (vt + 1, vt))
    i("s_waitcnt lgkmcnt(0)")
    i("v_readfirstlane_b32 s13, v%d" % (vt + 1))
    i("s_cmp_ge_u32 s13, %d" % target)
    i("s_cbranch_scc1 %s" % d)
    i("s_sleep %d" % sleep)
    i("s_branch %s" % top)
    lab(d)

def lds_add(off, va=4, rtn=False):
    i("s_mov_b64 exec, 1")
    i("v_mov_b32 v%d, %d" % (va, MISC + off))
    i("v_mov_b32 v%d, 1" % (va + 1))
    if rtn:
        i("ds_add_rtn_u32 v%d, v%d, v%d" % (va + 1, va, va + 1))
        i("s_waitcnt lgkmcnt(0)")
        i("v_readfirstlane_b32 s13, v%d" % (va + 1))
    else:
        i("ds_add_u32 v%d, v%d" % (va, va + 1))
    i("s_mov_b64 exec, -1")

def ln_finish(m, v, mr):
    i("v_mul_f32 v%d, 0x%x, v%d" % (m, INV640, m))
    i("v_mul_f32 v%d, 0x%x, v%d" % (v, INV640, v))
    i("v_fma_f32 v%d, -v%d, v%d, v%d" % (v, m, m, v))
    i("v_max_f32 v%d, 0, v%d" % (v, v))
    round_bf16(m, m)
    round_bf16(v, v)
    i("v_add_f32 v%d, 0x%x, v%d" % (v, EPS, v))
    round_bf16(v, v)
    i("v_sqrt_f32 v%d, v%d" % (v, v))
    nop(1)
    round_bf16(v, v)
    i("v_rcp_f32 v%d, v%d" % (v, v))
    nop(1)
    if mr: i("v_mul_f32 v%d, v%d, v%d" % (m, m, v))

W1S, W2R = 8, 120
W1V = 240
def w1_prep():
    i("s_mul_i32 s46, s67, 224")
    i("s_mov_b32 s47, %d" % ((1 << 20) // 14 + 1))
    for k in range(7):
        i("v_add_u32 v4, %d, v1" % (64 * k))
        i("v_mul_lo_u32 v5, v4, s47")
        i("v_lshrrev_b32 v5, 20, v5")
        i("v_mul_u32_u24 v6, 14, v5")
        i("v_sub_u32 v6, v4, v6")
        i("v_mul_u32_u24 v5, 3456, v5")
        i("v_lshl_add_u32 v5, v6, 4, v5")
        i("v_add_u32 v%d, s46, v5" % (W1V + k))
def w1_load(cr):
    for (c, rb_) in cr:
        i("s_and_b32 s46, s3, 3")
        i("s_add_u32 s46, s46, %d" % (4 * c))
        i("s_mul_i32 s46, s46, %d" % (32 * 3456))
        for t in range(7):
            r = rb_ + 4 * t
            i("buffer_load_dwordx4 v[%d:%d], v%d, s[48:51], s46 offen" % (r, r + 3, W1V + t))
W1MAP = [(0, 24), (1, 52), (2, 80), (3, 108), (4, 200)]
def w1_dma(chunks):
    for c in chunks:
        i("s_and_b32 s46, s3, 3")
        i("s_add_u32 s46, s46, %d" % (4 * c))
        i("s_mul_i32 s47, s46, %d" % (32 * 3456))
        i("s_mul_i32 s46, s46, 7168")
        for t in range(7):
            i("s_add_u32 m0, s46, %d" % (1024 * t))
            i("s_nop 0")
            i("buffer_load_dwordx4 v%d, s[48:51], s47 offen lds" % (W1V + t))
def w1_write(cr):
    i("v_lshlrev_b32 v4, 4, v1")
    for (c, rb_) in cr:
        i("s_and_b32 s46, s3, 3")
        i("s_add_u32 s46, s46, %d" % (4 * c))
        i("s_mul_i32 s46, s46, 7168")
        i("v_add_u32 v5, s46, v4")
        for t in range(7):
            r = rb_ + 4 * t
            i("ds_write_b128 v5, v[%d:%d] offset:%d" % (r, r + 3, 1024 * t))
def w2_load(steps, slots):
    for st, sl in zip(steps, slots):
        i("s_add_u32 s46, s61, %d" % (st * 5120))
        for dl in range(5):
            r = W2R + 20 * sl + 4 * dl
            if dl < 4:
                i("buffer_load_dwordx4 v[%d:%d], v4, s[8:11], s46 offen offset:%d sc1" % (r, r + 3, 1024 * dl))
            else:
                i("s_add_u32 s46, s46, 4096")
                i("buffer_load_dwordx4 v[%d:%d], v4, s[8:11], s46 offen sc1" % (r, r + 3))

def main():
    ref = open("cdna_kernels/%s.s.ref" % NAME).read().splitlines()
    for ln in ref:
        if ln.startswith("; Override"): break
        e(ln)
    e("; @launch grid=(256,1,1) block=(512,1,1) lds=%d" % LDS_TOTAL)
    e('.amdgcn_target "amdgcn-amd-amdhsa--gfx950"')
    e(".text")
    e(".globl %s" % KNAME)
    e(".p2align 8")
    e(".type %s,@function" % KNAME)
    lab(KNAME)
    i("s_cmp_ge_u32 s2, 256")
    i("s_cbranch_scc1 L_END")
    stamp(0)
    i("s_load_dwordx16 s[16:31], s[0:1], 0")
    i("s_load_dwordx8 s[36:43], s[0:1], 64")
    i("s_load_dwordx2 s[44:45], s[0:1], 96")
    i("s_load_dwordx4 s[32:35], s[0:1], 104")
    i("v_lshrrev_b32 v4, 6, v0")
    i("v_and_b32 v1, 63, v0")
    i("v_and_b32 v2, 15, v1")
    i("v_readfirstlane_b32 s3, v4")
    i("v_lshrrev_b32 v3, 4, v1")
    i("s_and_b32 s64, s2, 7")
    i("s_lshr_b32 s65, s2, 3")
    i("s_lshr_b32 s66, s64, 1")
    i("s_lshl_b32 s66, s66, 2")
    i("s_lshr_b32 s46, s65, 3")
    i("s_add_u32 s66, s66, s46")
    i("s_and_b32 s67, s64, 1")
    i("s_lshl_b32 s67, s67, 3")
    i("s_and_b32 s46, s65, 7")
    i("s_add_u32 s67, s67, s46")
    i("s_and_b32 s46, s64, 1")
    i("s_lshl_b32 s46, s46, 2")
    i("s_and_b32 s47, s65, 3")
    i("s_add_u32 s60, s46, s47")
    i("s_mul_i32 s61, s60, 54")
    i("s_and_b32 s46, s3, 3")
    i("s_mul_i32 s46, s46, 7")
    i("s_add_u32 s61, s61, s46")
    i("s_lshr_b32 s46, s3, 2")
    i("s_mul_i32 s46, s46, 27")
    i("s_add_u32 s61, s61, s46")
    i("s_mul_i32 s61, s61, 5120")
    i("s_add_u32 s61, s61, 0x%x" % WS_W2P)
    i("s_waitcnt lgkmcnt(0)")
    srd(8, 34, WS_SIZE)
    srd(48, 36, D * F * 2)
    srd(52, 40, F * D * 2)
    srd(56, 32, 256)
    i("s_cmp_lg_u32 s3, 7")
    i("s_cbranch_scc1 L_NOST2")
    st2_poison()
    lab("L_NOST2")
    i("s_cmp_lt_u32 s65, 8")
    i("s_cbranch_scc1 L_STATS")
    i("s_cmp_lt_u32 s65, 28")
    i("s_cbranch_scc1 L_CONV")
    i("s_branch L_COLSUM")
    def rp_ids():
        i("s_sub_u32 s46, s65, 20")
        i("s_cmp_lt_u32 s65, 8")
        i("s_cselect_b32 s46, s65, s46")
        i("s_lshl_b32 s46, s46, 3")
        i("s_add_u32 s59x, s46, s64".replace("s59x", "s46"))
        i("s_mov_b32 s62, s46")
        i("s_mul_i32 s63, s3, 96")
        i("s_add_u32 s63, s63, s46")
    def rp_block():
        done = uid("RPD")
        i("s_cmp_ge_u32 s63, 432")
        i("s_cbranch_scc1 %s" % done)
        i("s_mul_i32 s14, s3, 5120")
        i("s_add_u32 s14, s14, 114688")
        i("s_mul_i32 s13, s63, 19419")
        i("s_lshr_b32 s13, s13, 20")
        i("s_mul_i32 s15, s13, 54")
        i("s_sub_u32 s15, s63, s15")
        i("s_mul_i32 s4, s15, %d" % (32 * 1280))
        i("s_mul_i32 s5, s13, 160")
        i("s_add_u32 s4, s4, s5")
        i("s_mov_b32 s47, %d" % ((1 << 20) // 10 + 1))
        for k in range(5):
            i("v_add_u32 v8, %d, v1" % (64 * k))
            i("v_mul_lo_u32 v9, v8, s47")
            i("v_lshrrev_b32 v9, 20, v9")
            i("v_mul_u32_u24 v10, 10, v9")
            i("v_sub_u32 v10, v8, v10")
            i("v_mul_u32_u24 v9, 1280, v9")
            i("v_lshl_add_u32 v9, v10, 4, v9")
            i("s_add_u32 m0, s14, %d" % (1024 * k))
            i("s_nop 0")
            i("buffer_load_dwordx4 v9, s[52:55], s4 offen lds")
        i("v_lshrrev_b32 v5, 2, v2")
        i("v_lshl_add_u32 v5, v3, 2, v5")
        i("v_and_b32 v6, 3, v2")
        i("v_lshlrev_b32 v6, 3, v6")
        i("v_mul_u32_u24 v5, 160, v5")
        i("v_add3_u32 v5, v5, v6, s14")
        i("v_lshlrev_b32 v7, 4, v1")
        i("s_mul_i32 s4, s63, 5120")
        i("s_add_u32 s4, s4, 0x%x" % WS_W2P)
        i("s_waitcnt vmcnt(0)")
        for t in range(5):
            i("ds_read_b64_tr_b16 v[%d:%d], v5 offset:%d" % (64 + 4 * t, 65 + 4 * t, 32 * t))
            i("ds_read_b64_tr_b16 v[%d:%d], v5 offset:%d" % (66 + 4 * t, 67 + 4 * t, 32 * t + 2560))
        for t in range(5):
            i("s_waitcnt lgkmcnt(%d)" % (8 - 2 * t))
            if t == 4: i("s_add_u32 s4, s4, 4096")
            i("buffer_store_dwordx4 v[%d:%d], v7, s[8:11], s4 offen offset:%d sc1" % (64 + 4 * t, 67 + 4 * t, 1024 * (t % 4)))
        lab(done)

    lab("L_STATS")
    i("s_lshl_b32 s46, s65, 3")
    i("s_add_u32 s12, s46, s64")
    i("s_lshl_b32 s13, s12, 5")
    i("s_lshl_b32 s14, s3, 2")
    i("s_add_u32 s13, s13, s14")
    i("v_add_u32 v4, s13, v3")
    i("v_mul_u32_u24 v5, 1280, v4")
    i("v_lshl_add_u32 v5, v2, 4, v5")
    for k in range(5):
        i("global_load_dwordx4 v[%d:%d], v5, s[16:17] offset:%d" % (32 + 4 * k, 35 + 4 * k, 256 * k))
    i("s_cmp_lg_u32 s12, 0")
    i("s_cbranch_scc1 L_NOZ")
    i("s_cmp_lg_u32 s3, 7")
    i("s_cbranch_scc1 L_NOZ")
    for r in range(4): i("v_mov_b32 v%d, 0" % (60 + r))
    i("v_lshlrev_b32 v6, 4, v1")
    i("s_mov_b32 s14, 0x%x" % WS_FL)
    for k in range(FL_SIZE // 1024):
        i("buffer_store_dwordx4 v[60:63], v6, s[8:11], s14 offen offset:%d sc1" % (1024 * k))
    lab("L_NOZ")
    i("v_mov_b32 v7, 0x3f803f80")
    for r in range(8, 16): i("v_mov_b32 v%d, 0" % r)
    i("s_waitcnt vmcnt(0)")
    for k in range(20):
        i("v_dot2_f32_bf16 v%d, v%d, v7, v%d" % (8 + (k & 3), 32 + k, 8 + (k & 3)))
        i("v_dot2_f32_bf16 v%d, v%d, v%d, v%d" % (12 + (k & 3), 32 + k, 32 + k, 12 + (k & 3)))
    nop(3)
    i("v_add_f32 v8, v8, v9")
    i("v_add_f32 v10, v10, v11")
    i("v_add_f32 v12, v12, v13")
    i("v_add_f32 v14, v14, v15")
    i("v_add_f32 v8, v8, v10")
    i("v_add_f32 v9, v12, v14")
    for r in (8, 4, 2, 1):
        nop(2)
        i("v_add_f32_dpp v8, v8, v8 row_ror:%d row_mask:0xf bank_mask:0xf" % r)
        i("v_add_f32_dpp v9, v9, v9 row_ror:%d row_mask:0xf bank_mask:0xf" % r)
    ln_finish(8, 9, False)
    i("v_lshlrev_b32 v4, 3, v4")
    i("v_cmp_eq_u32 vcc, 0, v2")
    i("s_and_saveexec_b64 s[68:69], vcc")
    i("s_mov_b32 s14, 0x%x" % WS_ST1)
    i("buffer_store_dwordx2 v[8:9], v4, s[8:11], s14 offen sc1")
    i("s_mov_b64 exec, s[68:69]")
    i("s_waitcnt vmcnt(0)")
    i("s_barrier")
    stamp(1)
    i("s_cmp_lg_u32 s3, 0")
    i("s_cbranch_scc1 L_NC1")
    arrive_last(DBG_C1, 64, DBG_GO1)
    i("s_branch L_NC1")
    lab("L_COLSUM")
    i("s_getpc_b64 s[46:47]")
    lab("L_PC")
    i("s_sub_u32 s46, s46, L_PC-%s" % KNAME)
    i("s_subb_u32 s47, s47, 0")
    i("v_lshlrev_b32 v4, 7, v0")
    i("v_cmp_gt_u32 vcc, L_CODE_END-%s, v4" % KNAME)
    i("s_and_saveexec_b64 s[68:69], vcc")
    i("s_cbranch_execz L_NOPF")
    i("global_load_dword v200, v4, s[46:47]")
    lab("L_NOPF")
    i("s_mov_b64 exec, s[68:69]")
    stamp(1)
    lab("L_NC1")
    rp_ids()
    i("s_cmp_lg_u32 s3, 7")
    i("s_cbranch_scc1 L_NC1A")
    i("v_lshlrev_b32 v8, 2, v1")
    i("v_add_u32 v8, %d, v8" % MISC)
    i("v_mov_b32 v9, 0")
    i("ds_write_b32 v8, v9")
    i("s_waitcnt lgkmcnt(0)")
    lab("L_NC1A")
    i("s_barrier")
    i("s_cmp_ge_u32 s3, 4")
    i("s_cbranch_scc1 L_NC_LD")
    rp_block()
    i("s_cmp_ge_u32 s62, 12")
    i("s_cbranch_scc1 L_NC2")
    i("s_lshl_b32 s63, s62, 2")
    i("s_add_u32 s63, s63, s3")
    i("s_add_u32 s63, s63, 384")
    i("s_waitcnt lgkmcnt(0)")
    rp_block()
    lab("L_NC2")
    i("s_waitcnt vmcnt(0)")
    stamp(4)
    lds_add(M_CH + 8, 4, rtn=True)
    i("s_cmp_lg_u32 s13, 3")
    i("s_cbranch_scc1 L_NC3")
    arrive_last(DBG_CW, 96, DBG_GOW)
    lab("L_NC3")
    i("s_cmp_lt_u32 s65, 28")
    i("s_cbranch_scc1 L_NC5")
    i("s_sub_u32 s46, s65, 28")
    i("s_lshl_b32 s46, s46, 3")
    i("s_add_u32 s12, s46, s64")
    i("s_cmp_ge_u32 s12, 27")
    i("s_cbranch_scc1 L_NC5")
    i("v_lshrrev_b32 v4, 3, v1")
    i("s_lshl_b32 s13, s3, 3")
    i("v_add_u32 v4, s13, v4")
    i("v_mul_u32_u24 v4, 3456, v4")
    i("v_and_b32 v5, 7, v1")
    i("v_lshl_add_u32 v4, v5, 4, v4")
    i("s_lshl_b32 s13, s12, 7")
    for it in range(20):
        i("buffer_load_dwordx4 v[%d:%d], v4, s[48:51], s13 offen" % (64 + 4 * it, 67 + 4 * it))
        i("s_add_u32 s13, s13, %d" % (32 * 3456))
    for r in range(8): i("v_mov_b32 v%d, 0" % (8 + r))
    for it in range(20):
        i("s_waitcnt vmcnt(%d)" % (19 - it))
        for dw in range(4):
            x = 64 + 4 * it + dw
            i("v_lshlrev_b32 v16, 16, v%d" % x)
            i("v_and_b32 v17, 0xffff0000, v%d" % x)
            i("v_pk_add_f32 v[%d:%d], v[%d:%d], v[16:17]" % (8 + 2 * dw, 9 + 2 * dw, 8 + 2 * dw, 9 + 2 * dw))
    nop(1)
    for r in range(8):
        i("v_add_f32_dpp v%d, v%d, v%d row_ror:8 row_mask:0xf bank_mask:0xf" % (8 + r, 8 + r, 8 + r))
    for op in ("v_permlane16_swap_b32", "v_permlane32_swap_b32"):
        for r in range(8): i("v_mov_b32 v%d, v%d" % (16 + r, 8 + r))
        nop(1)
        for r in range(8): i("%s v%d, v%d" % (op, 16 + r, 8 + r))
        nop(1)
        for r in range(8): i("v_add_f32 v%d, v%d, v%d" % (8 + r, 8 + r, 16 + r))
    i("v_lshlrev_b32 v4, 5, v1")
    i("s_lshl_b32 s13, s3, 8")
    i("s_add_u32 s13, s13, %d" % (MISC + 3072))
    i("v_add_u32 v4, s13, v4")
    i("s_mov_b64 exec, 0xff")
    i("ds_write_b128 v4, v[8:11]")
    i("ds_write_b128 v4, v[12:15] offset:16")
    i("s_mov_b64 exec, -1")
    i("s_waitcnt lgkmcnt(0)")
    lds_add(M_CH + 20, 4, rtn=True)
    i("s_cmp_lg_u32 s13, 3")
    i("s_cbranch_scc1 L_NC5")
    i("v_lshlrev_b32 v4, 2, v1")
    i("v_add_u32 v5, %d, v4" % (MISC + 3072))
    for w in range(4):
        i("ds_read_b32 v%d, v5 offset:%d" % (8 + w, 256 * w))
    i("s_waitcnt lgkmcnt(0)")
    for w in range(1, 4): i("v_add_f32 v8, v8, v%d" % (8 + w))
    i("s_lshl_b32 s13, s12, 8")
    i("s_add_u32 s13, s13, 0x%x" % WS_CS)
    i("buffer_store_dword v8, v4, s[8:11], s13 offen sc1")
    i("s_waitcnt vmcnt(0)")
    lds_add(M_CH + 24, 4)
    lab("L_NC5")
    stamp(3)
    i("s_branch L_PHASE_B")
    lab("L_NC_LD")
    i("s_cmp_lg_u32 s3, 7")
    i("s_cbranch_scc1 L_NC_L3")
    i("s_mov_b32 s46, %d" % DBG_GO1)
    poll(56, "s46", 1, 1, 8, sleep=2)
    lds_add(M_S1, 8)
    arrive_shard(FL_CP)
    lab("L_NC_L3")
    w1_prep()
    if os.environ.get("XLATE"):
        lds_wait(M_S1, 1, 4, sleep=4)
        i("s_cmp_lg_u32 s3, 7")
        lq = uid("XL")
        i("s_cbranch_scc1 %s" % lq)
        i("s_lshl_b32 s46, s64, 7")
        i("s_add_u32 s46, s46, 0x%x" % (WS_FL + FL_HINT))
        poll(8, "s46", 1, 1, 8, sleep=8)
        lds_add(M_CH + 28, 8)
        lab(lq)
        lds_wait(M_CH + 28, 1, 4, sleep=8)
    w1_dma([0, 1, 2, 3])
    lds_wait(M_CH + 8, 4, 4, sleep=4)
    w1_dma([4])
    h1_poison(248)
    i("s_waitcnt vmcnt(0)")
    lds_wait(M_S1, 1, 4, sleep=4)
    i("s_cmp_lt_u32 s65, 28")
    i("s_cbranch_scc1 L_NC_L4")
    i("s_sub_u32 s46, s65, 28")
    i("s_lshl_b32 s46, s46, 3")
    i("s_add_u32 s46, s46, s64")
    i("s_cmp_ge_u32 s46, 27")
    i("s_cbranch_scc1 L_NC_L4")
    lds_wait(M_CH + 24, 1, 4, sleep=4)
    lab("L_NC_L4")
    lds_add(M_CH + 12, 248, rtn=True)
    i("s_cmp_lg_u32 s13, 3")
    i("s_cbranch_scc1 L_PHASE_B")
    arrive_shard(FL_CP2, 248)
    i("s_branch L_PHASE_B")

    lab("L_CONV")
    i("s_mul_i32 s12, s64, 20")
    i("s_add_u32 s12, s12, s65")
    i("s_sub_u32 s12, s12, 8")
    i("s_lshl_b32 s13, s12, 2")
    i("s_and_b32 s14, s3, 3")
    i("s_add_u32 s15, s13, s14")
    i("s_lshr_b32 s46, s15, 1")
    i("s_lshl_b32 s46, s46, 2")
    i("s_load_dword s4, s[26:27], s46")
    i("s_load_dword s5, s[28:29], s46")
    i("s_lshr_b32 s6, s3, 2")
    i("s_lshl_b32 s46, s6, 6")
    i("v_add_u32 v4, s46, v1")
    i("s_lshl_b32 s47, s15, 8")
    i("v_lshl_add_u32 v5, v4, 1, s47")
    i("global_load_ushort v10, v5, s[18:19]")
    i("global_load_ushort v11, v5, s[20:21]")
    i("global_load_ushort v12, v5, s[22:23]")
    i("global_load_ushort v13, v5, s[24:25]")
    i("s_cmp_lt_u32 s3, 4")
    i("s_cbranch_scc1 L_CV_PH")
    i("v_subrev_u32 v6, 256, v0")
    i("v_mul_u32_u24 v6, %d, v6" % (8 * 1280))
    i("s_lshl_b32 s46, s13, 1")
    i("v_add_u32 v6, s46, v6")
    i("v_add_u32 v7, 5120, v6")
    for k in range(4):
        i("global_load_dwordx2 v[%d:%d], v6, s[16:17] offset:%d" % (100 + 2 * k, 101 + 2 * k, 1280 * k))
    i("s_branch L_CV_NOX")
    lab("L_CV_PH")
    for r in range(4): i("v_mov_b32 v%d, -1" % (60 + r))
    i("v_lshlrev_b32 v6, 4, v0")
    i("s_lshl_b32 s46, s12, 14")
    i("s_add_u32 s46, s46, 0x%x" % WS_H)
    for it in range(4):
        i("buffer_store_dwordx4 v[60:63], v6, s[8:11], s46 offen sc1")
        if it < 3: i("s_add_u32 s46, s46, 4096")
    lab("L_CV_NOX")
    i("s_mul_i32 s46, s14, %d" % FAC_CH)
    i("v_lshl_add_u32 v5, v4, 2, s46")
    i("s_waitcnt lgkmcnt(0)")
    i("s_and_b32 s46, s15, 1")
    i("s_lshl_b32 s46, s46, 4")
    i("s_lshr_b32 s4, s4, s46")
    i("s_lshl_b32 s4, s4, 16")
    i("s_lshr_b32 s5, s5, s46")
    i("s_lshl_b32 s5, s5, 16")
    i("v_mov_b32 v14, s4")
    i("v_mul_f32 v14, 0x%x, v14" % LOG2E)
    i("v_exp_f32 v14, v14")
    nop(1)
    round_bf16(14, 14)
    i("s_cmp_lt_u32 s3, 4")
    i("s_cbranch_scc1 L_CV_W0")
    i("s_waitcnt vmcnt(4)")
    i("s_branch L_CV_W1")
    lab("L_CV_W0")
    i("s_waitcnt vmcnt(4)")
    lab("L_CV_W1")
    stamp(1)
    if os.environ.get("TOUCH"):
        i("s_cmp_ge_u32 s3, 4")
        i("s_cbranch_scc1 L_CV_NT")
        i("s_lshl_b32 s46, s12, 2")
        i("s_add_u32 s46, s46, s3")
        i("s_cmp_lt_u32 s46, 320")
        i("s_cselect_b32 s4, s36, s40")
        i("s_cselect_b32 s6x, s37, s41".replace("s6x", "s7"))
        i("s_sub_u32 s47, s46, 320")
        i("s_cselect_b32 s46, s46, s47") if False else None
        i("s_cmp_lt_u32 s46, 320")
        i("s_cselect_b32 s46, s46, s47")
        i("s_mul_i32 s46, s46, %d" % (54 * 128))
        i("s_add_u32 s30, s4, s46")
        i("s_addc_u32 s31, s7, 0")
        i("v_lshlrev_b32 v200, 7, v1")
        i("s_mov_b32 exec_lo, -1")
        i("s_mov_b32 exec_hi, 0x3fffff")
        i("global_load_dword v201, v200, s[30:31]")
        i("s_mov_b64 exec, -1")
        lab("L_CV_NT")
    for r in (10, 11, 12, 13): i("v_lshlrev_b32 v%d, 16, v%d" % (r, r))
    i("v_mul_f32 v10, 0x%x, v10" % LOG2E)
    i("v_exp_f32 v10, v10")
    nop(1)
    round_bf16(10, 10)
    i("v_mul_f32 v10, v10, v14")
    i("v_mul_f32 v10, 0x%x, v10" % NLOG2E)
    i("v_mul_f32 v11, v11, v14")
    i("v_mul_f32 v11, %s, v11" % INV2PI)
    i("v_mul_f32 v12, v12, v14")
    i("v_mul_f32 v13, v13, v14")
    i("v_add_f32 v32, v12, v12")
    i("v_add_f32 v33, v13, v13")
    bases = [(20, 1), (22, 16), (24, 256), (26, 2), (28, 4), (30, 8)]
    for (dst, p) in bases:
        i("v_mul_f32 v%d, 0x%x, v10" % (dst, f2u(float(p))))
        i("v_mul_f32 v%d, 0x%x, v11" % (dst + 1, f2u(float(p))))
    for (dst, p) in bases:
        i("v_exp_f32 v%d, v%d" % (dst, dst))
        i("v_fract_f32 v%d, v%d" % (dst + 1, dst + 1))
    for n, (dst, p) in enumerate(bases):
        i("v_cos_f32 v%d, v%d" % (52 + n, dst + 1))
        i("v_sin_f32 v%d, v%d" % (dst + 1, dst + 1))
    nop(1)
    for n, (dst, p) in enumerate(bases):
        i("v_mul_f32 v%d, v%d, v%d" % (dst + 1, dst, dst + 1))
        i("v_mul_f32 v%d, v%d, v%d" % (dst, dst, 52 + n))
    i("v_mov_b32 v34, 1.0")
    i("v_mov_b32 v35, 0")
    i("v_mov_b32 v36, v32")
    i("v_mov_b32 v37, v33")
    chains = [dict(x=32, s=20, row=0, n=16, y=False, start=0), dict(x=34, s=22, row=47, n=16, y=True, start=0)]
    for (tau, s, row, n) in [(1, 26, 16, 9), (2, 28, 25, 5), (3, 28, 30, 5), (4, 30, 35, 3), (5, 30, 38, 3), (6, 30, 41, 3), (7, 30, 44, 3)]:
        chains.append(dict(x=36 + 2 * tau, s=s, row=row, n=n, y=False, start=tau))
    rnd = 0; pos = [0] * len(chains); tmpc = 0
    while any(pos[k] < c["n"] for k, c in enumerate(chains)):
        muls, fmas, cv, wr = [], [], [], []
        ti = 0
        if rnd < 7:
            t = 52 + 2 * ti; ti += 1
            x, d = 36 + 2 * rnd, 36 + 2 * (rnd + 1)
            muls.append("v_pk_mul_f32 v[%d:%d], v[%d:%d], v[24:25] op_sel:[0,0] op_sel_hi:[1,0]" % (t, t + 1, x, x + 1))
            fmas.append("v_pk_fma_f32 v[%d:%d], v[%d:%d], v[24:25], v[%d:%d] op_sel:[1,1,0] op_sel_hi:[0,1,1] neg_lo:[0,1,0]" % (d, d + 1, x, x + 1, t, t + 1))
        for k, c in enumerate(chains):
            if rnd >= c["start"] and pos[k] < c["n"]:
                x = c["x"]; p = 72 + (tmpc % 16); tmpc += 1
                cv.append("v_cvt_pk_bf16_f32 v%d, v%d, %sv%d" % (p, x, "" if c["y"] else "-", x + 1))
                wr.append("ds_write_b32 v5, v%d offset:%d" % (p, (c["row"] + pos[k]) * XROW))
                if pos[k] < c["n"] - 1:
                    t = 52 + 2 * ti; ti += 1
                    assert t + 1 < 72
                    muls.append("v_pk_mul_f32 v[%d:%d], v[%d:%d], v[%d:%d] op_sel:[0,0] op_sel_hi:[1,0]" % (t, t + 1, x, x + 1, c["s"], c["s"] + 1))
                    fmas.append("v_pk_fma_f32 v[%d:%d], v[%d:%d], v[%d:%d], v[%d:%d] op_sel:[1,1,0] op_sel_hi:[0,1,1] neg_lo:[0,1,0]" % (x, x + 1, x, x + 1, c["s"], c["s"] + 1, t, t + 1))
                pos[k] += 1
        if rnd in (1, 4, 7, 10):
            k = 4 + (rnd - 1) // 3
            lb = uid("XG")
            i("s_cmp_lt_u32 s3, 4")
            i("s_cbranch_scc1 %s" % lb)
            i("global_load_dwordx2 v[%d:%d], v7, s[16:17] offset:%d" % (100 + 2 * k, 101 + 2 * k, 1280 * (k & 3)))
            lab(lb)
        for s_ in cv + muls + wr + fmas: i(s_)
        rnd += 1
    stamp(2)
    i("s_cmp_lg_u32 s3, 4")
    i("s_cbranch_scc1 L_CV_B1")
    i("v_lshlrev_b32 v8, 2, v1")
    i("v_add_u32 v8, %d, v8" % MISC)
    i("v_mov_b32 v9, 0")
    i("ds_write_b32 v8, v9")
    lab("L_CV_B1")
    i("s_waitcnt lgkmcnt(0)")
    i("s_barrier")
    stamp(3)
    i("s_cmp_ge_u32 s3, 4")
    i("s_cbranch_scc1 L_CV_NORM")
    segp = {0: (0, 8, 4), 1: (16, 4, 2), 2: (25, 5, 2), 3: (35, 6, 3)}
    i("s_mul_i32 s46, s3, %d" % FAC_CH)
    i("v_lshrrev_b32 v8, 3, v2")
    i("v_bfe_u32 v9, v2, 2, 1")
    i("v_and_b32 v10, 3, v2")
    for t in range(4):
        b0, a0, c0 = segp[t]
        i("v_mul_u32_u24 v11, %d, v8" % a0)
        i("v_mul_u32_u24 v12, %d, v9" % c0)
        i("v_add3_u32 v11, v11, v12, v10")
        i("v_add_u32 v11, %d, v11" % b0)
        i("v_mul_u32_u24 v11, %d, v11" % XROW)
        i("v_lshl_add_u32 v11, v3, 4, v11")
        i("v_add_u32 v%d, s46, v11" % (16 + t))
    i("v_add_u32 v11, 47, v2")
    i("v_mul_u32_u24 v11, %d, v11" % XROW)
    i("v_lshl_add_u32 v11, v3, 4, v11")
    i("v_add_u32 v15, s46, v11")
    for mu in range(8):
        i("ds_read_b128 v[%d:%d], v15 offset:%d" % (32 + 4 * mu, 35 + 4 * mu, 64 * mu))
        i("ds_read_b128 v[%d:%d], v16 offset:%d" % (64 + 4 * mu, 67 + 4 * mu, 64 * mu))
    accs = [20, 24, 28, 192]
    for t in range(4):
        nxt = ["ds_read_b128 v[%d:%d], v%d offset:%d" % (64 + 32 * (t + 1) + 4 * mu, 67 + 32 * (t + 1) + 4 * mu, 17 + t, 64 * mu) for mu in range(8)] if t < 3 else []
        for s_ in nxt: i(s_)
        a0 = accs[t]
        for mu in range(8):
            if t == 0: i("s_waitcnt lgkmcnt(%d)" % min(15, 8 + 14 - 2 * mu))
            else: i("s_waitcnt lgkmcnt(%d)" % ((8 if nxt else 0) + 7 - mu))
            i("v_mfma_f32_16x16x32_bf16 v[%d:%d], v[%d:%d], v[%d:%d], %s" % (a0, a0 + 3, 64 + 32 * t + 4 * mu, 67 + 32 * t + 4 * mu, 32 + 4 * mu, 35 + 4 * mu, "0" if mu == 0 else "v[%d:%d]" % (a0, a0 + 3)))
    i("s_mul_i32 s46, s3, %d" % KCH)
    i("v_lshlrev_b32 v10, 5, v2")
    i("v_cmp_eq_u32 vcc, 0, v1")
    i("v_mov_b32 v11, s5")
    i("v_lshl_add_u32 v12, v3, 3, v10")
    i("v_cndmask_b32 v11, 0, v11, vcc")
    nop(4)
    i("v_add_f32 v20, v20, v11")
    i("v_cvt_pk_bf16_f32 v64, v23, v22")
    i("v_cvt_pk_bf16_f32 v65, v21, v20")
    i("v_sub_u32 v13, 4088, v12")
    i("v_add_u32 v13, s46, v13")
    i("ds_write_b64 v13, v[64:65]")
    i("v_cvt_pk_bf16_f32 v66, v26, v25")
    i("v_cvt_pk_bf16_f32 v67, v24, v24")
    i("v_sub_u32 v13, 3576, v12")
    i("v_add_u32 v13, s46, v13")
    i("ds_write_b64 v13, v[66:67]")
    i("v_cvt_pk_bf16_f32 v68, v30, v30")
    i("v_cvt_pk_bf16_f32 v69, v29, v29")
    i("v_cvt_pk_bf16_f32 v70, v29, v28")
    i("v_cvt_pk_bf16_f32 v71, v28, v28")
    i("v_lshrrev_b32 v11, 1, v3")
    i("v_lshl_add_u32 v12, v11, 9, v10")
    i("v_and_b32 v11, 1, v3")
    i("v_lshl_add_u32 v12, v11, 4, v12")
    i("v_sub_u32 v13, 3056, v12")
    i("v_add_u32 v13, s46, v13")
    i("ds_write_b128 v13, v[68:71]")
    i("v_cvt_pk_bf16_f32 v72, v194, v194")
    i("v_mov_b32 v73, v72")
    i("v_cvt_pk_bf16_f32 v74, v193, v193")
    i("v_mov_b32 v75, v74")
    i("v_mov_b32 v76, v74")
    i("v_cvt_pk_bf16_f32 v77, v193, v192")
    i("v_cvt_pk_bf16_f32 v78, v192, v192")
    i("v_mov_b32 v79, v78")
    i("v_lshl_add_u32 v12, v3, 9, v10")
    i("v_sub_u32 v13, 2016, v12")
    i("v_add_u32 v13, s46, v13")
    i("ds_write_b128 v13, v[72:75]")
    i("ds_write_b128 v13, v[76:79] offset:16")
    for r in range(4): i("v_mov_b32 v%d, 0" % (32 + r))
    i("v_bfe_u32 v8, v1, 2, 2")
    i("v_mul_u32_u24 v8, %d, v8" % KCP)
    i("v_and_b32 v9, 3, v1")
    i("v_lshl_add_u32 v8, v9, 4, v8")
    i("v_add_u32 v8, s46, v8")
    i("ds_write_b128 v8, v[32:35] offset:4096")
    i("v_lshl_add_u32 v8, v1, 3, s46")
    i("v_add_u32 v9, %d, v8" % KCP)
    i("v_add_u32 v10, %d, v8" % (2 * KCP))
    i("v_add_u32 v11, %d, v8" % (3 * KCP))
    i("s_waitcnt lgkmcnt(0)")
    for it in range(8):
        i("ds_read_b64 v[%d:%d], v8 offset:%d" % (32 + 4 * it, 33 + 4 * it, 512 * it))
        i("ds_read_b64 v[%d:%d], v8 offset:%d" % (34 + 4 * it, 35 + 4 * it, 512 * it + 8))
    for it in range(8):
        i("s_waitcnt lgkmcnt(%d)" % min(15, 14 - 2 * it + 3 * it))
        d = 32 + 4 * it; a = 64 + 4 * it
        i("v_alignbit_b32 v%d, v%d, v%d, 16" % (a, d + 1, d))
        i("v_alignbit_b32 v%d, v%d, v%d, 16" % (a + 1, d + 2, d + 1))
        i("v_alignbit_b32 v%d, v%d, v%d, 16" % (a + 2, d + 3, d + 2))
        o = 128 * it
        i("ds_write2_b32 v9, v%d, v%d offset0:%d offset1:%d" % (a, a + 1, o % 256, o % 256 + 1) if it < 2 else "ds_write2st64_b32 v9, v9, v9" ) if False else None
        if it and it % 1 == 0:
            i("v_add_u32 v9, 512, v9"); i("v_add_u32 v10, 512, v10"); i("v_add_u32 v11, 512, v11")
        i("ds_write2_b32 v9, v%d, v%d offset0:0 offset1:1" % (a, a + 1))
        i("ds_write2_b32 v10, v%d, v%d offset0:0 offset1:1" % (d + 1, d + 2))
        i("ds_write2_b32 v11, v%d, v%d offset0:0 offset1:1" % (a + 1, a + 2))
    i("s_waitcnt vmcnt(0)")
    i("s_branch L_CV_B2")
    lab("L_CV_NORM")
    w1_prep()
    i("s_cmp_lg_u32 s3, 4")
    i("s_cbranch_scc1 L_CV_NW")
    i("s_mov_b32 s46, %d" % DBG_GO1)
    poll(56, "s46", 1, 1, 8, sleep=1)
    lds_add(M_S1, 8)
    i("s_branch L_CV_NG")
    lab("L_CV_NW")
    lds_wait(M_S1, 1)
    lab("L_CV_NG")
    stamp(5)
    i("v_subrev_u32 v6, 256, v0")
    i("v_lshlrev_b32 v6, 6, v6")
    i("s_mov_b32 s46, 0x%x" % WS_ST1)
    for k in range(4):
        i("buffer_load_dwordx4 v[%d:%d], v6, s[8:11], s46 offen offset:%d sc1" % (120 + 4 * k, 123 + 4 * k, 16 * k))
    i("s_mov_b32 s46, 0x%x" % SEL_LO)
    i("s_mov_b32 s47, 0x%x" % SEL_HI)
    i("s_waitcnt vmcnt(4)")
    for ch in range(4):
        for ii in range(4):
            lo = 100 + 2 * (2 * ii) + (ch >> 1); hi = 100 + 2 * (2 * ii + 1) + (ch >> 1)
            i("v_perm_b32 v%d, v%d, v%d, s%d" % (136 + 4 * ch + ii, hi, lo, 46 + (ch & 1)))
    for k in range(8):
        for jj in range(2):
            x = 100 + 2 * k + jj
            i("v_lshlrev_b32 v%d, 16, v%d" % (168 + 4 * k + 2 * jj, x))
            i("v_and_b32 v%d, 0xffff0000, v%d" % (168 + 4 * k + 2 * jj + 1, x))
    i("s_waitcnt vmcnt(0)")
    stamp(8)
    for k in range(8):
        m = 120 + 2 * k; r = m + 1
        for jj in range(2):
            a = 168 + 4 * k + 2 * jj; b = a + 1
            i("v_sub_f32 v%d, v%d, v%d" % (a, a, m))
            i("v_sub_f32 v%d, v%d, v%d" % (b, b, m))
            i("v_cvt_pk_bf16_f32 v%d, v%d, v%d" % (8 + jj, a, b))
        for jj in range(2):
            a = 168 + 4 * k + 2 * jj; b = a + 1
            i("v_lshlrev_b32 v%d, 16, v%d" % (a, 8 + jj))
            i("v_and_b32 v%d, 0xffff0000, v%d" % (b, 8 + jj))
            i("v_mul_f32 v%d, v%d, v%d" % (a, a, r))
            i("v_mul_f32 v%d, v%d, v%d" % (b, b, r))
    for ch in range(4):
        for ii in range(4):
            i("v_cvt_pk_bf16_f32 v%d, v%d, v%d" % (152 + 4 * ch + ii, 168 + 4 * (2 * ii) + ch, 168 + 4 * (2 * ii + 1) + ch))
    i("v_subrev_u32 v6, 256, v0")
    i("v_bfe_u32 v7, v6, 2, 2")
    i("v_lshlrev_b32 v6, 6, v6")
    for ch in range(4):
        i("v_xor_b32 v8, %d, v7" % ch)
        i("v_lshl_add_u32 v%d, v8, 4, v6" % (20 + ch))
        i("v_add_u32 v9, %d, v%d" % (UL + 2048, 20 + ch))
        i("ds_write_b128 v9, v[%d:%d]" % (152 + 4 * ch, 155 + 4 * ch))
    i("v_mov_b32 v8, 0")
    i("v_mov_b32 v9, 0")
    i("v_subrev_u32 v6, 256, v0")
    i("v_lshlrev_b32 v6, 3, v6")
    i("v_add_u32 v6, %d, v6" % UL)
    i("ds_write_b64 v6, v[8:9]")
    lab("L_CV_B2")
    i("s_waitcnt lgkmcnt(0)")
    i("s_barrier")
    stamp(4)
    i("s_cmp_ge_u32 s3, 4")
    i("s_cbranch_scc1 L_CV_HELP")
    i("s_mul_i32 s15, s3, %d" % KCH)
    i("v_and_b32 v8, 3, v2")
    i("v_sub_u32 v8, 3, v8")
    i("v_mul_u32_u24 v8, %d, v8" % KCP)
    i("v_lshrrev_b32 v9, 2, v2")
    i("v_lshlrev_b32 v9, 3, v9")
    i("v_lshl_add_u32 v9, v3, 4, v9")
    i("v_sub_u32 v9, %d, v9" % (4104 - 4032))
    i("v_add3_u32 v10, v8, v9, s15")
    i("v_lshlrev_b32 v8, 1, v2")
    i("v_add_u32 v8, 1, v8")
    i("v_sub_u32 v8, v8, v3")
    i("v_ashrrev_i32 v9, 2, v8")
    i("v_lshlrev_b32 v8, 6, v8")
    i("v_add_u32 v8, %d, v8" % (UL + 256))
    for r in range(4):
        i("v_subrev_u32 v11, %d, v9" % r)
        i("v_and_b32 v11, 3, v11")
        i("v_xor_b32 v11, s3, v11")
        i("v_lshl_add_u32 v%d, v11, 4, v8" % (12 + r))
    def FR(s, ii): return 24 + 64 * s + 4 * ii
    def GR(s, jj): return 24 + 64 * s + 32 + 4 * jj
    ACC = 160
    def reads(rho):
        s = rho & 1; lst = []
        for ii in range(8):
            sig = rho + 8 * ii; off = 64 * (63 - sig)
            lst.append("ds_read_b64 v[%d:%d], v10 offset:%d" % (FR(s, ii), FR(s, ii) + 1, off))
            lst.append("ds_read_b64 v[%d:%d], v10 offset:%d" % (FR(s, ii) + 2, FR(s, ii) + 3, off + 8))
            lst.append("ds_read_b128 v[%d:%d], v%d offset:%d" % (GR(s, ii), GR(s, ii) + 3, 12 + (rho & 3), 2048 * ii + 256 * (7 - rho)))
        return lst
    for r in reads(0): i(r)
    i("v_lshrrev_b32 v16, 1, v3")
    i("v_lshl_add_u32 v16, v2, 1, v16")
    i("v_bfe_u32 v17, v16, 2, 2")
    i("v_xor_b32 v17, s3, v17")
    i("v_lshlrev_b32 v16, 6, v16")
    i("v_lshl_add_u32 v16, v17, 4, v16")
    i("v_and_b32 v17, 1, v3")
    i("v_lshl_add_u32 v16, v17, 3, v16")
    i("v_add_u32 v16, %d, v16" % XL)
    for rho in range(8):
        s = rho & 1
        nxt = reads(rho + 1) if rho < 7 else ["ds_read_b64 v[%d:%d], v16 offset:%d" % (200 + 2 * al, 201 + 2 * al, 2048 * al) for al in range(8)]
        if rho == 7: lds_wait(M_XT, 4, 18)
        i("s_waitcnt lgkmcnt(0)")
        mf = []
        for al in range(8):
            for ii in range(al + 1):
                jj = al - ii
                first = (rho == 0 and ii == 0)
                mf.append("v_mfma_f32_16x16x32_bf16 v[%d:%d], v[%d:%d], v[%d:%d], %s" % (
                    ACC + 4 * al, ACC + 4 * al + 3, FR(s, ii), FR(s, ii) + 3, GR(s, jj), GR(s, jj) + 3,
                    "0" if first else "v[%d:%d]" % (ACC + 4 * al, ACC + 4 * al + 3)))
        k = 0
        for n, m in enumerate(mf):
            i(m)
            if k < len(nxt) and n < 30:
                i(nxt[k]); k += 1
        while k < len(nxt):
            i(nxt[k]); k += 1
    stamp(5)
    i("s_waitcnt lgkmcnt(0)")
    lds_add(M_MD, 4)
    lds_wait(M_MD, 4, 4)
    i("v_lshlrev_b32 v8, 5, v2")
    i("v_lshl_add_u32 v8, v3, 3, v8")
    i("s_lshl_b32 s46, s3, 12")
    i("s_add_u32 s46, s46, %d" % TL)
    i("v_add_u32 v8, s46, v8")
    for al in range(8):
        x0, x1 = 200 + 2 * al, 201 + 2 * al
        a = ACC + 4 * al
        i("v_lshlrev_b32 v20, 16, v%d" % x0)
        i("v_and_b32 v21, 0xffff0000, v%d" % x0)
        i("v_lshlrev_b32 v22, 16, v%d" % x1)
        i("v_and_b32 v23, 0xffff0000, v%d" % x1)
        i("v_pk_add_f32 v[20:21], v[20:21], v[%d:%d]" % (a, a + 1))
        i("v_pk_add_f32 v[22:23], v[22:23], v[%d:%d]" % (a + 2, a + 3))
        i("v_cvt_pk_bf16_f32 v%d, v20, v21" % (24 + 2 * al))
        i("v_cvt_pk_bf16_f32 v%d, v22, v23" % (25 + 2 * al))
        i("ds_write_b64 v8, v[%d:%d] offset:%d" % (24 + 2 * al, 25 + 2 * al, 512 * al))
    i("s_waitcnt lgkmcnt(0)")
    lds_add(M_TR + 16, 4)
    lds_wait(M_TR + 16, 4)
    i("v_lshlrev_b32 v252, 2, v0")
    i("v_add_u32 v252, %d, v252" % TL)
    i("v_lshlrev_b32 v253, 4, v0")
    i("s_lshl_b32 s14, s12, 14")
    i("s_add_u32 s14, s14, 0x%x" % WS_H)
    i("s_mov_b32 s46, 0x%x" % SEL_LO)
    i("s_mov_b32 s47, 0x%x" % SEL_HI)
    for it in range(4):
        for ch in range(4):
            i("ds_read_b32 v%d, v252 offset:%d" % (8 + 4 * it + ch, ch * 4096 + it * 1024))
    for it in range(4):
        i("s_waitcnt lgkmcnt(%d)" % (12 - 4 * it))
        b = 8 + 4 * it; o = 32 + 4 * it
        i("v_perm_b32 v%d, v%d, v%d, s46" % (o, b + 1, b))
        i("v_perm_b32 v%d, v%d, v%d, s46" % (o + 1, b + 3, b + 2))
        i("v_perm_b32 v%d, v%d, v%d, s47" % (o + 2, b + 1, b))
        i("v_perm_b32 v%d, v%d, v%d, s47" % (o + 3, b + 3, b + 2))
        i("buffer_store_dwordx4 v[%d:%d], v253, s[8:11], s14 offen sc1" % (o, o + 3))
        if it < 3: i("s_add_u32 s14, s14, 4096")
    lds_add(M_TR, 4)
    i("s_cmp_lg_u32 s65, 8")
    i("s_cbranch_scc1 L_CV_NH")
    i("s_cmp_lg_u32 s3, 0")
    i("s_cbranch_scc1 L_CV_NH")
    i("s_lshl_b32 s13, s64, 7")
    i("s_add_u32 s13, s13, 0x%x" % (WS_FL + FL_HINT))
    set_flag(8, "s13", 4)
    lab("L_CV_NH")
    stamp(6)
    i("s_branch L_PHASE_B")
    lab("L_CV_HELP")
    for ch in range(4):
        i("v_add_u32 v9, %d, v%d" % (XL, 20 + ch))
        i("ds_write_b128 v9, v[%d:%d]" % (136 + 4 * ch, 139 + 4 * ch))
    i("s_waitcnt lgkmcnt(0)")
    lds_add(M_XT, 8)
    i("s_cmp_lg_u32 s3, 4")
    i("s_cbranch_scc1 L_CV_NCP")
    arrive_shard(FL_CP, 248)
    lab("L_CV_NCP")
    w1_load(W1MAP)
    stamp(12)
    h1_poison(248)
    stamp(9)
    lds_wait(M_MD, 4, 4, sleep=1)
    stamp(13)
    i("s_bitcmp1_b32 s67, 0")
    i("s_cbranch_scc1 L_CV_V6")
    i("s_waitcnt vmcnt(8)")
    i("s_branch L_CV_V8")
    lab("L_CV_V6")
    i("s_waitcnt vmcnt(6)")
    lab("L_CV_V8")
    stamp(14)
    w1_write(W1MAP[0:4])
    i("s_cmp_lg_u32 s3, 7")
    i("s_cbranch_scc1 L_CV_W4")
    lds_wait(M_TR, 4, 6, sleep=1)
    lab("L_CV_W4")
    w1_write(W1MAP[4:5])
    i("s_waitcnt vmcnt(0)")
    lds_add(M_GP, 248, rtn=True)
    i("s_cmp_lg_u32 s13, 3")
    i("s_cbranch_scc1 L_CV_NGP")
    arrive_shard(FL_CP2, 248)
    lab("L_CV_NGP")
    stamp(6)

    lab("L_PHASE_B")
    if STOP == "A": i("s_branch L_FIN")
    i("s_cmp_lg_u32 s3, 0")
    i("s_cbranch_scc1 L_B_W")
    lds_wait(M_S1, 1, 8)
    i("s_lshl_b32 s46, s64, 7")
    i("s_add_u32 s46, s46, 0x%x" % (WS_FL + FL_HINT))
    poll(8, "s46", 1, 1, 8, sleep=8)
    poll_shards(FL_CP, 8, sleep=16)
    lab("L_B_W")
    i("s_waitcnt lgkmcnt(0)")
    i("s_barrier")
    stamp(7)
    i("s_cmp_ge_u32 s3, 4")
    i("s_cbranch_scc1 L_B_LOAD")
    HB, RING, ACC, WF = 16, 13, 64, 120
    def HS(kap):
        j = kap % RING
        return 16 + 8 * j if j < 6 else 176 + 8 * (j - 6)
    i("s_lshl_b32 s12, s66, 7")
    i("s_lshl_b32 s13, s3, 5")
    i("s_add_u32 s12, s12, s13")
    i("v_lshlrev_b32 v5, 14, v3")
    i("v_lshl_add_u32 v5, v2, 4, v5")
    i("s_lshl_b32 s13, s12, 3")
    i("v_add_u32 v5, s13, v5")
    i("v_lshlrev_b32 v4, 4, v1")
    vq = []
    def hl(kap, half):
        r = HS(kap) + 4 * half
        i("s_mov_b32 s13, 0x%x" % (WS_H + kap * 8 * 16384 + half * 4 * 16384))
        i("buffer_load_dwordx4 v[%d:%d], v5, s[8:11], s13 offen sc1" % (r, r + 3))
        vq.append(("h", kap, half))
    for kap in range(RING):
        hl(kap, 0); hl(kap, 1)
    i("v_lshrrev_b32 v6, 2, v2")
    i("v_lshl_add_u32 v6, v3, 2, v6")
    i("v_mul_u32_u24 v6, 224, v6")
    i("v_and_b32 v7, 3, v2")
    i("v_lshl_add_u32 v8, v7, 3, v6")
    i("v_add_u32 v9, %d, v8" % (8 * 7168))
    i("v_add_u32 v10, %d, v8" % (16 * 7168))
    def wreads(kap):
        s = kap & 1; base = 8 + kap // 8; o = (kap % 8) * 7168; lst = []
        for t in range(7):
            r = WF + 28 * s + 4 * t
            lst.append("ds_read_b64_tr_b16 v[%d:%d], v%d offset:%d" % (r, r + 1, base, o + 32 * t))
            lst.append("ds_read_b64_tr_b16 v[%d:%d], v%d offset:%d" % (r + 2, r + 3, base, o + 32 * t + 3584))
        return lst
    i("v_mov_b32 v11, %d" % (MISC + M_CH + 16))
    i("v_mov_b32 v12, 1")
    for r in wreads(0): i(r)
    def swaps(kap):
        r = HS(kap)
        return ["v_swap_b32 v%d, v%d" % (r + 2, r + 4), "v_swap_b32 v%d, v%d" % (r + 3, r + 5)]
    def wait_h(kap):
        idx = max(n for n, x in enumerate(vq) if x[0] == "h" and x[1] == kap)
        return "s_waitcnt vmcnt(%d)" % min(63, len(vq) - 1 - idx)
    slow = []
    def check_h(kap):
        r = HS(kap)
        bad, back = uid("HBAD"), uid("HOK")
        i("v_max3_u32 v6, v%d, v%d, v%d" % (r, r + 2, r + 4))
        i("v_max_u32 v6, v6, v%d" % (r + 6))
        i("v_cmp_eq_u32 vcc, -1, v6")
        i("s_cbranch_vccnz %s" % bad)
        lab(back)
        later = sorted(set(x[1] for x in vq if x[0] == "h" and x[1] > kap))
        slow.append((bad, back, kap, later))
    i(wait_h(0))
    check_h(0)
    lds_add(M_CH + 28, 6)
    stamp(12)
    for s_ in swaps(0): i(s_)
    w2pf = [(3, 0), (3, 1), (3, 2), (3, 3), (3, 4), (4, 0), (4, 1), (4, 2), (4, 3), (4, 4), (5, 0), (5, 1), (5, 2), (5, 3), (5, 4)]
    for kap in range(20):
        s = kap & 1
        nxt = wreads(kap + 1) if kap < 19 else []
        i("s_waitcnt lgkmcnt(0)")
        k = 0; n = 0
        for t in range(7):
            for par in range(2):
                a = ACC + 8 * t + 4 * par
                h = HS(kap) + 4 * par
                w = WF + 28 * s + 4 * t
                i("v_mfma_f32_16x16x32_bf16 v[%d:%d], v[%d:%d], v[%d:%d], %s" % (a, a + 3, w, w + 3, h, h + 3, "0" if kap == 0 else "v[%d:%d]" % (a, a + 3)))
                if k < len(nxt):
                    i(nxt[k]); k += 1
                if kap >= 1 and kap - 1 + RING < 20 and n in (2, 8):
                    hl(kap - 1 + RING, 0 if n == 2 else 1)
                if kap == 21 - RING and n == 9:
                    i("s_mov_b64 exec, 1")
                    i("ds_add_u32 v11, v12")
                    i("s_mov_b64 exec, -1")
                if n == 11 and kap < 19:
                    i(wait_h(kap + 1))
                    check_h(kap + 1)
                    for s_ in swaps(kap + 1): i(s_)
                n += 1
    stamp(8)
    lds_wait(M_EP + 4, 1, 6)
    stamp(14)
    i("v_lshlrev_b32 v6, 4, v2")
    i("s_lshl_b32 s13, s3, 8")
    i("s_add_u32 s13, s13, %d" % (MISC + M_STAT))
    i("v_add_u32 v6, s13, v6")
    i("ds_read_b128 v[12:15], v6")
    i("v_lshlrev_b32 v7, 4, v3")
    i("v_add_u32 v7, %d, v7" % MISC)
    for t in range(7):
        i("ds_read_b128 v[%d:%d], v7 offset:%d" % (120 + 4 * t, 123 + 4 * t, M_CS + 64 * t))
        i("ds_read_b128 v[%d:%d], v7 offset:%d" % (148 + 4 * t, 151 + 4 * t, M_B1 + 64 * t))
    i("s_lshl_b32 s27, s66, 3")
    i("s_lshl_b32 s28, s3, 1")
    i("s_add_u32 s27, s27, s28")
    i("s_lshl_b32 s27, s27, 10")
    i("s_add_u32 s27, s27, 0x%x" % WS_H1)
    i("s_mul_i32 s28, s67, 7")
    i("s_waitcnt lgkmcnt(0)")
    for t in range(7):
        for par in range(2):
            a = ACC + 8 * t + 4 * par
            st = 12 + 2 * par
            cs = 120 + 4 * t; b1 = 148 + 4 * t
            tmp = 48 + 4 * par
            for hh in range(2):
                i("v_pk_fma_f32 v[%d:%d], v[%d:%d], v[%d:%d], v[%d:%d] op_sel:[0,0,0] op_sel_hi:[1,0,1] neg_lo:[0,1,0] neg_hi:[0,1,0]" % (tmp + 2 * hh, tmp + 2 * hh + 1, cs + 2 * hh, cs + 2 * hh + 1, st, st + 1, b1 + 2 * hh, b1 + 2 * hh + 1))
            for hh in range(2):
                i("v_pk_fma_f32 v[%d:%d], v[%d:%d], v[%d:%d], v[%d:%d] op_sel:[0,1,0] op_sel_hi:[1,1,1]" % (tmp + 2 * hh, tmp + 2 * hh + 1, a + 2 * hh, a + 2 * hh + 1, st, st + 1, tmp + 2 * hh, tmp + 2 * hh + 1))
            for r in range(4): i("v_max_f32 v%d, 0, v%d" % (tmp + r, tmp + r))
            for hh in range(2):
                i("v_pk_mul_f32 v[%d:%d], v[%d:%d], v[%d:%d]" % (tmp + 2 * hh, tmp + 2 * hh + 1, tmp + 2 * hh, tmp + 2 * hh + 1, tmp + 2 * hh, tmp + 2 * hh + 1))
            o = 16 + 4 * t + 2 * par
            i("v_cvt_pk_bf16_f32 v%d, v%d, v%d" % (o, tmp, tmp + 1))
            i("v_cvt_pk_bf16_f32 v%d, v%d, v%d" % (o + 1, tmp + 2, tmp + 3))
    def st16(t, par, n):
        o = 64 + 4 * n
        i("v_mov_b32 v%d, v%d" % (o, 16 + 4 * t + 2 * par))
        i("v_mov_b32 v%d, v%d" % (o + 1, 17 + 4 * t + 2 * par))
        i("v_mov_b32 v%d, v%d" % (o + 2, 16 + 4 * (t + 1) + 2 * par))
        i("v_mov_b32 v%d, v%d" % (o + 3, 17 + 4 * (t + 1) + 2 * par))
        i("buffer_store_dwordx4 v[%d:%d], v4, s[8:11], s29 offen offset:%d sc1" % (o, o + 3, 1024 * par))
    def st8(t, par, half):
        o = 16 + 4 * t + 2 * par
        i("buffer_store_dwordx2 v[%d:%d], v4, s[8:11], s29 offen offset:%d sc1" % (o, o + 1, 1024 * par + 8 * half))
    def beta_off(t):
        i("s_add_u32 s29, s28, %d" % t)
        i("s_lshr_b32 s29, s29, 1")
        i("s_lshl_b32 s29, s29, 17")
        i("s_add_u32 s29, s29, s27")
    stamp(1)
    i("s_bitcmp1_b32 s67, 0")
    i("s_cbranch_scc1 L_B_ODD")
    n = 0
    for t in (0, 2, 4):
        beta_off(t)
        for par in range(2): st16(t, par, n); n += 1
    beta_off(6)
    for par in range(2): st8(6, par, 0)
    i("s_branch L_B_STD")
    lab("L_B_ODD")
    beta_off(0)
    for par in range(2): st8(0, par, 1)
    n = 0
    for t in (1, 3, 5):
        beta_off(t)
        for par in range(2): st16(t, par, n); n += 1
    lab("L_B_STD")
    stamp(9)
    lds_wait(M_EP, 1, 6)
    i("s_branch L_PHASE_C")
    for (bad, back, kap, later) in slow:
        r = HS(kap)
        lab(bad)
        i("s_mov_b32 s47, 0")
        top = uid("HT")
        lab(top)
        i("s_sleep 4")
        i("s_mov_b32 s13, 0x%x" % (WS_H + kap * 8 * 16384))
        i("buffer_load_dwordx4 v[%d:%d], v5, s[8:11], s13 offen sc1" % (r, r + 3))
        i("s_mov_b32 s13, 0x%x" % (WS_H + kap * 8 * 16384 + 4 * 16384))
        i("buffer_load_dwordx4 v[%d:%d], v5, s[8:11], s13 offen sc1" % (r + 4, r + 7))
        i("s_waitcnt vmcnt(0)")
        i("v_max3_u32 v6, v%d, v%d, v%d" % (r, r + 2, r + 4))
        i("v_max_u32 v6, v6, v%d" % (r + 6))
        i("v_cmp_eq_u32 vcc, -1, v6")
        okl = uid("HR")
        i("s_cbranch_vccz %s" % okl)
        i("s_add_u32 s47, s47, 1")
        i("s_cmp_lt_u32 s47, %d" % SPIN_LIMIT)
        i("s_cbranch_scc1 %s" % top)
        lab(okl)
        for k2 in later:
            r2 = HS(k2)
            i("s_mov_b32 s13, 0x%x" % (WS_H + k2 * 8 * 16384))
            i("buffer_load_dwordx4 v[%d:%d], v5, s[8:11], s13 offen sc1" % (r2, r2 + 3))
            i("s_mov_b32 s13, 0x%x" % (WS_H + k2 * 8 * 16384 + 4 * 16384))
            i("buffer_load_dwordx4 v[%d:%d], v5, s[8:11], s13 offen sc1" % (r2 + 4, r2 + 7))
        i("s_waitcnt vmcnt(0)")
        i("s_branch %s" % back)

    lab("L_B_LOAD")
    lds_wait(M_CH + 28, 1, 4, sleep=4)
    i("s_lshl_b32 s12, s66, 7")
    i("s_lshl_b32 s13, s67, 3")
    i("s_add_u32 s12, s12, s13")
    i("s_sub_u32 s14, s3, 4")
    i("s_mul_i32 s14, s14, 40")
    i("v_lshrrev_b32 v5, 2, v1")
    i("v_add_u32 v5, s14, v5")
    i("v_and_b32 v6, 3, v1")
    i("v_lshlrev_b32 v7, 14, v5")
    i("v_lshl_add_u32 v7, v6, 4, v7")
    i("s_lshl_b32 s13, s12, 3")
    i("s_add_u32 s13, s13, 0x%x" % WS_H)
    i("s_mov_b32 s15, s13")
    i("s_mov_b32 s47, 0")
    for r in range(4): i("v_mov_b32 v%d, 0" % (24 + r))
    lab("L_LS_TOP")
    i("s_mov_b32 s13, s15")
    for k in range(3):
        if k == 2: i("s_mov_b64 exec, 0xffffffff")
        i("buffer_load_dwordx4 v[%d:%d], v7, s[8:11], s13 offen sc1" % (16 + 4 * k, 19 + 4 * k))
        i("s_add_u32 s13, s13, %d" % (16 * 16384))
    i("s_mov_b64 exec, -1")
    i("s_waitcnt vmcnt(0)")
    i("v_max3_u32 v8, v16, v18, v20")
    i("v_max3_u32 v9, v22, v24, v26")
    i("v_max_u32 v8, v8, v9")
    i("v_cmp_eq_u32 vcc, -1, v8")
    i("s_cbranch_vccz L_LS_OK")
    i("s_sleep 8")
    i("s_add_u32 s47, s47, 1")
    i("s_cmp_lt_u32 s47, %d" % SPIN_LIMIT)
    i("s_cbranch_scc1 L_LS_TOP")
    lab("L_LS_OK")
    i("v_mov_b32 v7, 0x3f803f80")
    for r in range(8, 16): i("v_mov_b32 v%d, 0" % r)
    for k in range(3):
        for hf in range(2):
            for dw in range(2):
                x = 16 + 4 * k + 2 * hf + dw
                i("v_dot2_f32_bf16 v%d, v%d, v7, v%d" % (8 + 4 * dw + 2 * hf, x, 8 + 4 * dw + 2 * hf))
                i("v_dot2_f32_bf16 v%d, v%d, v%d, v%d" % (9 + 4 * dw + 2 * hf, x, x, 9 + 4 * dw + 2 * hf))
    nop(3)
    for r in range(4): i("v_add_f32 v%d, v%d, v%d" % (8 + r, 8 + r, 12 + r))
    for rr in (8, 4):
        nop(2)
        for r in range(4):
            i("v_add_f32_dpp v%d, v%d, v%d row_ror:%d row_mask:0xf bank_mask:0xf" % (8 + r, 8 + r, 8 + r, rr))
    for op in ("v_permlane16_swap_b32", "v_permlane32_swap_b32"):
        for r in range(4): i("v_mov_b32 v%d, v%d" % (12 + r, 8 + r))
        nop(1)
        for r in range(4): i("%s v%d, v%d" % (op, 12 + r, 8 + r))
        nop(1)
        for r in range(4): i("v_add_f32 v%d, v%d, v%d" % (8 + r, 8 + r, 12 + r))
    i("s_sub_u32 s13, s3, 4")
    i("s_lshl_b32 s13, s13, 6")
    i("s_add_u32 s13, s13, %d" % (MISC + 2304))
    i("v_lshlrev_b32 v5, 4, v1")
    i("v_add_u32 v5, s13, v5")
    i("s_mov_b64 exec, 0xf")
    i("ds_write_b128 v5, v[8:11]")
    i("s_mov_b64 exec, -1")
    i("s_waitcnt lgkmcnt(0)")
    lds_add(M_ST, 4, rtn=True)
    i("s_cmp_lg_u32 s13, 3")
    i("s_cbranch_scc1 L_B_LD1")
    i("s_mov_b64 exec, 0xf")
    i("v_lshlrev_b32 v5, 4, v1")
    i("v_add_u32 v5, %d, v5" % (MISC + 2304))
    for w in range(4):
        i("ds_read_b128 v[%d:%d], v5 offset:%d" % (16 + 4 * w, 19 + 4 * w, 64 * w))
    i("s_waitcnt lgkmcnt(0)")
    for w in range(1, 4):
        i("v_pk_add_f32 v[16:17], v[16:17], v[%d:%d]" % (16 + 4 * w, 17 + 4 * w))
        i("v_pk_add_f32 v[18:19], v[18:19], v[%d:%d]" % (18 + 4 * w, 19 + 4 * w))
    ln_finish(16, 17, True)
    ln_finish(18, 19, True)
    i("v_lshlrev_b32 v5, 4, v1")
    i("s_lshl_b32 s13, s12, 3")
    i("s_add_u32 s13, s13, 0x%x" % WS_ST2)
    i("buffer_store_dwordx4 v[16:19], v5, s[8:11], s13 offen sc1")
    i("s_mov_b64 exec, -1")
    poll_shards(FL_CP2, 24, sleep=16)
    i("s_mul_i32 s14, s67, 112")
    i("v_lshlrev_b32 v5, 2, v1")
    i("s_lshl_b32 s13, s14, 2")
    i("s_add_u32 s13, s13, 0x%x" % WS_CS)
    i("buffer_load_dword v20, v5, s[8:11], s13 offen sc1")
    i("buffer_load_dword v21, v5, s[8:11], s13 offen offset:256 sc1")
    srd(4, 38, F * 2)
    i("v_lshlrev_b32 v6, 1, v1")
    i("s_lshl_b32 s13, s14, 1")
    i("buffer_load_ushort v22, v6, s[4:7], s13 offen")
    i("buffer_load_ushort v23, v6, s[4:7], s13 offen offset:128")
    i("s_waitcnt vmcnt(0)")
    i("v_lshlrev_b32 v22, 16, v22")
    i("v_lshlrev_b32 v23, 16, v23")
    i("v_add_u32 v6, %d, v5" % MISC)
    i("ds_write_b32 v6, v20 offset:%d" % M_CS)
    i("ds_write_b32 v6, v21 offset:%d" % (M_CS + 256))
    i("ds_write_b32 v6, v22 offset:%d" % M_B1)
    i("ds_write_b32 v6, v23 offset:%d" % (M_B1 + 256))
    i("v_lshlrev_b32 v5, 4, v1")
    i("s_lshl_b32 s13, s66, 10")
    i("s_add_u32 s13, s13, 0x%x" % WS_ST2)
    i("s_mov_b32 s47, 0")
    lab("L_ST2_TOP")
    i("buffer_load_dwordx4 v[16:19], v5, s[8:11], s13 offen sc1")
    i("s_waitcnt vmcnt(0)")
    i("v_max_u32 v8, v17, v19")
    i("v_cmp_eq_u32 vcc, -1, v8")
    i("s_cbranch_vccz L_ST2_OK")
    i("s_sleep 4")
    i("s_add_u32 s47, s47, 1")
    i("s_cmp_lt_u32 s47, %d" % SPIN_LIMIT)
    i("s_cbranch_scc1 L_ST2_TOP")
    lab("L_ST2_OK")
    i("v_add_u32 v6, %d, v5" % (MISC + M_STAT))
    i("ds_write_b128 v6, v[16:19]")
    i("s_waitcnt lgkmcnt(0)")
    lds_add(M_EP + 4, 6)
    lab("L_B_LD1")
    i("s_mov_b32 s46, %d" % DBG_GOW)
    poll(56, "s46", 1, 1, 8, sleep=2)
    lds_add(M_EP, 8)
    lds_wait(M_CH + 16, 4, 6, sleep=2)
    i("v_lshlrev_b32 v4, 4, v1")
    w2_load(range(6), range(6))
    lds_wait(M_EP + 4, 1, 6, sleep=4)

    lab("L_PHASE_C")
    if STOP == "B": i("s_branch L_FIN")
    i("s_lshr_b32 s12, s64, 1")
    i("s_lshl_b32 s12, s12, 3")
    i("s_lshr_b32 s13, s65, 2")
    i("s_add_u32 s12, s12, s13")
    stamp(10)
    i("s_and_b32 s4, s3, 3")
    i("s_mul_i32 s5, s4, 7")
    i("s_lshr_b32 s6, s3, 2")
    i("s_mul_i32 s7, s6, 27")
    i("s_add_u32 s5, s5, s7")
    i("s_lshl_b32 s5, s5, 7")
    i("s_lshl_b32 s7, s12, 2")
    i("s_add_u32 s5, s5, s7")
    i("s_lshl_b32 s5, s5, 10")
    i("s_add_u32 s5, s5, 0x%x" % WS_H1)
    R2, ACC2 = 8, 40
    vqa, vqb = [], []
    def h1l(st, lt):
        r = R2 + 16 * (st & 1) + 4 * lt
        i("s_add_u32 s13, s5, %d" % (st * 131072))
        i("buffer_load_dwordx4 v[%d:%d], v4, s[8:11], s13 offen offset:%d sc1" % (r, r + 3, 1024 * lt))
        vqa.append(("h", st, lt)); vqb.append(("h", st, lt))
    def w2l(st, sl, both=False):
        lb = uid("W2S")
        if not both:
            i("s_cmp_ge_u32 s3, 4")
            i("s_cbranch_scc1 %s" % lb)
        w2_load([st], [sl])
        lab(lb)
        for dl in range(5):
            vqa.append(("w", st, dl))
            if both: vqb.append(("w", st, dl))
    w2l(0, 0)
    for lt in range(4): h1l(0, lt)
    w2l(1, 1)
    for lt in range(4): h1l(1, lt)
    for r in range(80): i("v_mov_b32 v%d, 0" % (ACC2 + r))
    srd(56, 42, D * 2)
    srd(48, 44, L * D * 2)
    i("s_mul_i32 s7, s60, 5")
    i("s_lshl_b32 s15, s12, 6")
    i("s_and_b32 s14, s3, 3")
    i("s_lshr_b32 s13, s14, 1")
    i("s_lshl_b32 s13, s13, 5")
    i("s_add_u32 s15, s15, s13")
    i("s_and_b32 s13, s14, 1")
    i("s_add_u32 s15, s15, s13")
    i("v_lshlrev_b32 v6, 1, v2")
    i("v_add_u32 v6, s15, v6")
    slow2 = []
    def wait_for(tag):
        ns = []
        for q in (vqa, vqb):
            idxs = [n for n, x in enumerate(q) if x == tag]
            if idxs: ns.append(len(q) - 1 - max(idxs))
        i("s_waitcnt vmcnt(%d)" % min(63, min(ns)))
    for st in range(7):
        if st == 6:
            i("s_cmp_eq_u32 s4, 3")
            i("s_cbranch_scc1 L_C_RED")
            wait_for(("w", 6, 4))
        if st + 2 <= 5: w2l(st + 2, st + 2)
        sl = st if st < 6 else 0
        for lt in range(4):
            wait_for(("h", st, lt))
            hr = R2 + 16 * (st & 1) + 4 * lt
            bad, back = uid("GBAD"), uid("GOK")
            i("v_max_u32 v5, v%d, v%d" % (hr, hr + 2))
            i("v_cmp_eq_u32 vcc, -1, v5")
            i("s_cbranch_vccnz %s" % bad)
            lab(back)
            later = [(x[1], x[2]) for x in vqb if x[0] == "h" and (x[1], x[2]) > (st, lt)]
            slow2.append((bad, back, st, lt, later))
            if st == 0 and lt == 0: stamp(2)
            for dl in range(5):
                a = ACC2 + 16 * dl + 4 * lt
                w = W2R + 20 * sl + 4 * dl
                h = R2 + 16 * (st & 1) + 4 * lt
                i("v_mfma_f32_16x16x32_bf16 v[%d:%d], v[%d:%d], v[%d:%d], v[%d:%d]" % (a, a + 3, w, w + 3, h, h + 3, a, a + 3))
            if st + 2 < 7: h1l(st + 2, lt)
        if st == 0:
            w2l(6, 0, both=True)
        if st == 1:
            for j in range(3):
                i("s_lshr_b32 s46, s3, 2")
                i("s_add_u32 s46, s46, %d" % (2 * j))
                i("s_min_u32 s46, s46, 4")
                i("s_add_u32 s46, s46, s7")
                i("s_lshl_b32 s13, s46, 16")
                i("s_add_u32 s13, s13, 0x%x" % WS_H)
                i("v_lshlrev_b32 v7, 14, v3")
                i("v_lshl_add_u32 v7, v6, 3, v7")
                i("buffer_load_dwordx2 v[%d:%d], v7, s[8:11], s13 offen sc1" % (240 + 2 * j, 241 + 2 * j))
                i("s_lshl_b32 s13, s46, 5")
                i("v_lshlrev_b32 v7, 3, v3")
                i("buffer_load_dwordx2 v[%d:%d], v7, s[56:59], s13 offen" % (246 + 2 * j, 247 + 2 * j))
                for q in (vqa, vqb): q.append(("e", j, 0)); q.append(("e", j, 1))
    lab("L_C_RED")
    stamp(11)
    i("s_waitcnt vmcnt(0)")
    i("s_barrier")
    i("s_lshl_b32 s13, s3, 10")
    i("v_add_u32 v5, s13, v4")
    i("v_add_u32 v7, 65536, v5")
    i("v_add_u32 v8, 131072, v5")
    nop(4)
    for T in range(20):
        a = ACC2 + 4 * T
        base = (5, 7, 8)[T // 8]
        i("ds_write_b128 v%d, v[%d:%d] offset:%d" % (base, a, a + 3, (T % 8) * 8192))
    i("s_lshl_b32 s13, s3, 13")
    i("v_add_u32 v5, s13, v4")
    i("v_add_u32 v7, 65536, v5")
    i("v_add_u32 v8, 131072, v5")
    i("s_waitcnt lgkmcnt(0)")
    i("s_barrier")
    for j in range(3):
        if j == 2:
            i("s_cmp_ge_u32 s3, 4")
            i("s_cbranch_scc1 L_C_RD")
        for src in range(8):
            r = 120 + 32 * j + 4 * src
            i("ds_read_b128 v[%d:%d], v%d offset:%d" % (r, r + 3, (5, 7, 8)[j], src * 1024))
    lab("L_C_RD")
    i("s_waitcnt vmcnt(0)")
    for j in range(3):
        if j == 2:
            i("s_cmp_ge_u32 s3, 4")
            i("s_cbranch_scc1 L_FIN")
        i("s_waitcnt lgkmcnt(%d)" % (8 if j == 0 else 0))
        r = 120 + 32 * j
        for (x_, y_) in ((0, 4), (8, 12), (16, 20), (24, 28), (0, 8), (16, 24), (0, 16)):
            i("v_pk_add_f32 v[%d:%d], v[%d:%d], v[%d:%d]" % (r + x_, r + x_ + 1, r + x_, r + x_ + 1, r + y_, r + y_ + 1))
            i("v_pk_add_f32 v[%d:%d], v[%d:%d], v[%d:%d]" % (r + x_ + 2, r + x_ + 3, r + x_ + 2, r + x_ + 3, r + y_ + 2, r + y_ + 3))
        i("v_cvt_pk_bf16_f32 v30, v%d, v%d" % (r, r + 1))
        i("v_cvt_pk_bf16_f32 v31, v%d, v%d" % (r + 2, r + 3))
        for (src, dst) in ((30, 32), (31, 34), (246 + 2 * j, 36), (247 + 2 * j, 38)):
            i("v_lshlrev_b32 v%d, 16, v%d" % (dst, src))
            i("v_and_b32 v%d, 0xffff0000, v%d" % (dst + 1, src))
        i("v_pk_add_f32 v[32:33], v[32:33], v[36:37]")
        i("v_pk_add_f32 v[34:35], v[34:35], v[38:39]")
        i("v_cvt_pk_bf16_f32 v30, v32, v33")
        i("v_cvt_pk_bf16_f32 v31, v34, v35")
        for (src, dst) in ((30, 32), (31, 34), (240 + 2 * j, 36), (241 + 2 * j, 38)):
            i("v_lshlrev_b32 v%d, 16, v%d" % (dst, src))
            i("v_and_b32 v%d, 0xffff0000, v%d" % (dst + 1, src))
        i("v_pk_add_f32 v[32:33], v[32:33], v[36:37]")
        i("v_pk_add_f32 v[34:35], v[34:35], v[38:39]")
        i("v_cvt_pk_bf16_f32 v%d, v32, v33" % (24 + 2 * j))
        i("v_cvt_pk_bf16_f32 v%d, v34, v35" % (25 + 2 * j))
        i("s_lshr_b32 s46, s3, 2")
        i("s_add_u32 s46, s46, %d" % (2 * j))
        i("s_add_u32 s46, s46, s7")
        i("s_lshl_b32 s46, s46, 5")
        i("v_mul_u32_u24 v9, 1280, v6")
        i("v_lshl_add_u32 v9, v3, 3, v9")
        i("buffer_store_dwordx2 v[%d:%d], v9, s[48:51], s46 offen%s" % (24 + 2 * j, 25 + 2 * j, os.environ.get("OUTF", "")))
    lab("L_FIN")
    stamp_flush()
    lab("L_END")
    i("s_endpgm")
    for (bad, back, st, lt, later) in slow2:
        r = R2 + 16 * (st & 1) + 4 * lt
        lab(bad)
        i("s_mov_b32 s47, 0")
        top = uid("GT")
        lab(top)
        i("s_sleep 4")
        i("s_add_u32 s13, s5, %d" % (st * 131072))
        i("buffer_load_dwordx4 v[%d:%d], v4, s[8:11], s13 offen offset:%d sc1" % (r, r + 3, 1024 * lt))
        i("s_waitcnt vmcnt(0)")
        i("v_max_u32 v5, v%d, v%d" % (r, r + 2))
        i("v_cmp_eq_u32 vcc, -1, v5")
        okl = uid("GR")
        i("s_cbranch_vccz %s" % okl)
        i("s_add_u32 s47, s47, 1")
        i("s_cmp_lt_u32 s47, %d" % SPIN_LIMIT)
        i("s_cbranch_scc1 %s" % top)
        lab(okl)
        for (s2_, l2_) in later:
            r2 = R2 + 16 * (s2_ & 1) + 4 * l2_
            i("s_add_u32 s13, s5, %d" % (s2_ * 131072))
            i("buffer_load_dwordx4 v[%d:%d], v4, s[8:11], s13 offen offset:%d sc1" % (r2, r2 + 3, 1024 * l2_))
        i("s_waitcnt vmcnt(0)")
        i("s_branch %s" % back)
    lab("L_CODE_END")
    e('.section .rodata,"a"')
    e(".p2align 6")
    e(".amdhsa_kernel %s" % KNAME)
    e("  .amdhsa_next_free_vgpr 256")
    e("  .amdhsa_next_free_sgpr 102")
    e("  .amdhsa_accum_offset 256")
    e("  .amdhsa_group_segment_fixed_size 0")
    e("  .amdhsa_kernarg_size 120")
    e("  .amdhsa_user_sgpr_count 2")
    e("  .amdhsa_user_sgpr_kernarg_segment_ptr 1")
    e("  .amdhsa_system_sgpr_workgroup_id_x 1")
    e(".end_amdhsa_kernel")

if __name__ == "__main__":
    main()
    path = sys.argv[1] if len(sys.argv) > 1 else "cdna_kernels/%s.s" % NAME
    open(path, "w").write("\n".join(x for x in out if x is not None) + "\n")
    print("wrote", path, len(out), "lines")
```

```python
import sys, os, struct
NAME = "sequential_preLN__ssm_conv_s4d__dense_activation_squared_relu__prompt"
KNAME = NAME + "_kernel"
L, D, NS, F = 2048, 640, 128, 1728
STAMPS = os.environ.get("STAMPS", "0") == "1"
STOP = os.environ.get("STOP", "")

WS_ST1 = 0x000000
WS_CS  = 0x008000
WS_ST2 = 0x010000
WS_FL  = 0x020000
WS_H   = 0x100000
WS_H1  = 0x400000
WS_W1P = 0xC00000
WS_W2P = 0x1000000
WS_STAMP = 0x8000000
WS_SIZE = 0x10000000
FL_CP, FL_CP2, FL_HINT, FL_SIZE = 0, 1024, 2048, 3072
DBG_C1, DBG_CW, DBG_CP, DBG_CP2, DBG_GO1, DBG_GOW, DBG_GOP, DBG_GOP2 = 0, 4, 8, 12, 128, 132, 136, 140
XROW = 544
FAC_CH = 63 * XROW
KCH, KCP = FAC_CH, 4160
UL = 137216
XL = 50944
TL = 142336
MISC = 158720
M_CH, M_ST, M_S1, M_XT, M_TR, M_HS, M_EP, M_GP, M_MD = 0, 32, 64, 68, 72, 76, 80, 92, 96
M_STAT, M_CS, M_B1 = 256, 1280, 1792
LDS_TOTAL = 163840

out = []
def e(s=""): out.append(s)
def lab(s): out.append(s + ":")
def i(s): out.append("    " + s)
def f2u(f): return struct.unpack("<I", struct.pack("<f", f))[0]
def nop(n):
    while n > 0:
        k = min(n, 16); i("s_nop %d" % (k - 1)); n -= k
def srd(dst, ptr_lo, nbytes):
    i("s_mov_b32 s%d, s%d" % (dst, ptr_lo))
    i("s_mov_b32 s%d, s%d" % (dst + 1, ptr_lo + 1))
    i("s_mov_b32 s%d, 0x%x" % (dst + 2, nbytes))
    i("s_mov_b32 s%d, 0x00020000" % (dst + 3))
def round_bf16(dst, src):
    i("v_cvt_pk_bf16_f32 v%d, v%d, v%d" % (dst, src, src))
    i("v_lshlrev_b32 v%d, 16, v%d" % (dst, dst))
_uid = [0]
def uid(p):
    _uid[0] += 1
    return "%s_%d" % (p, _uid[0])
def stamp(k):
    if STAMPS:
        assert k < 15
        i("s_memrealtime s[%d:%d]" % (70 + 2 * k, 71 + 2 * k))
def stamp_flush():
    if not STAMPS: return
    i("s_memrealtime s[100:101]")
    i("s_waitcnt lgkmcnt(0)")
    i("s_mov_b64 exec, 1")
    i("s_lshl_b32 s46, s2, 3")
    i("s_add_u32 s46, s46, s3")
    i("s_lshl_b32 s46, s46, 7")
    i("s_add_u32 s46, s46, 0x%x" % WS_STAMP)
    i("v_mov_b32 v0, 0")
    for k in range(16):
        i("v_mov_b32 v2, s%d" % (70 + 2 * k))
        i("v_mov_b32 v3, s%d" % (71 + 2 * k))
        i("buffer_store_dwordx2 v[2:3], v0, s[8:11], s46 offen offset:%d" % (8 * k))
        i("s_nop 1")

LOG2E, NLOG2E, INV2PI = 0x3fb8aa3b, 0xbfb8aa3b, "0.15915494"
SEL_LO, SEL_HI = 0x05040100, 0x07060302
INV640, EPS = 0x3acccccd, 0x3727c5ac
SPIN_LIMIT = 1 << 18

def poll(srd_reg, soff, nlanes, ndw, vt, spread=False, sleep=2):
    top, done = uid("POLL"), uid("POLLD")
    i("s_mov_b64 s[68:69], exec")
    m = (1 << nlanes) - 1
    i("s_mov_b32 exec_lo, 0x%x" % (m & 0xffffffff))
    i("s_mov_b32 exec_hi, 0x%x" % (m >> 32))
    if spread:
        i("v_lshrrev_b32 v%d, 1, v1" % (vt + 4))
        i("v_lshlrev_b32 v%d, 7, v%d" % (vt + 4, vt + 4))
        i("v_and_b32 v%d, 1, v1" % (vt + 5))
        i("v_lshl_add_u32 v%d, v%d, 4, v%d" % (vt + 4, vt + 5, vt + 4))
    else:
        i("v_lshlrev_b32 v%d, %d, v1" % (vt + 4, {1: 2, 4: 4}[ndw]))
    i("s_mov_b32 s47, 0")
    lab(top)
    if ndw == 1:
        i("buffer_load_dword v%d, v%d, s[%d:%d], %s offen sc1" % (vt, vt + 4, srd_reg, srd_reg + 3, soff))
        i("s_waitcnt vmcnt(0)")
    else:
        i("buffer_load_dwordx4 v[%d:%d], v%d, s[%d:%d], %s offen sc1" % (vt, vt + 3, vt + 4, srd_reg, srd_reg + 3, soff))
        i("s_waitcnt vmcnt(0)")
        i("v_min_u32 v%d, v%d, v%d" % (vt, vt, vt + 1))
        i("v_min_u32 v%d, v%d, v%d" % (vt + 2, vt + 2, vt + 3))
        i("v_min_u32 v%d, v%d, v%d" % (vt, vt, vt + 2))
    i("v_cmp_ne_u32 vcc, 0, v%d" % vt)
    i("s_cmp_eq_u64 vcc, exec")
    i("s_cbranch_scc1 %s" % done)
    i("s_sleep %d" % sleep)
    i("s_add_u32 s47, s47, 1")
    i("s_cmp_lt_u32 s47, %d" % SPIN_LIMIT)
    i("s_cbranch_scc1 %s" % top)
    lab(done)
    i("s_mov_b64 exec, s[68:69]")

def set_flag(srd_reg, soff, va=4):
    i("s_mov_b64 s[68:69], exec")
    i("s_mov_b64 exec, 1")
    i("v_mov_b32 v%d, 0" % va)
    i("v_mov_b32 v%d, 1" % (va + 1))
    i("buffer_store_dword v%d, v%d, s[%d:%d], %s offen sc1" % (va + 1, va, srd_reg, srd_reg + 3, soff))
    i("s_mov_b64 exec, s[68:69]")

def arrive_last(cnt_off, total, go_off):
    lbl = uid("ARR")
    i("s_mov_b64 s[68:69], exec")
    i("s_mov_b64 exec, 1")
    i("v_mov_b32 v4, %d" % cnt_off)
    i("v_mov_b32 v5, 1")
    i("buffer_atomic_add v5, v4, s[56:59], 0 offen sc0 sc1")
    i("s_waitcnt vmcnt(0)")
    i("v_readfirstlane_b32 s13, v5")
    i("s_mov_b64 exec, s[68:69]")
    i("s_cmp_lg_u32 s13, %d" % (total - 1))
    i("s_cbranch_scc1 %s" % lbl)
    i("s_mov_b32 s13, %d" % go_off)
    set_flag(56, "s13")
    lab(lbl)

def arrive_shard(floff, va=4):
    i("s_mov_b64 s[68:69], exec")
    i("s_mov_b64 exec, 1")
    i("s_lshl_b32 s13, s64, 7")
    i("s_add_u32 s13, s13, 0x%x" % (WS_FL + floff))
    i("v_mov_b32 v%d, 0" % va)
    i("v_mov_b32 v%d, 1" % (va + 1))
    i("buffer_atomic_add v%d, v%d, s[8:11], s13 offen sc1" % (va + 1, va))
    i("s_mov_b64 exec, s[68:69]")
def poll_shards(floff, vt, sleep=4):
    top, done = uid("PS"), uid("PSD")
    i("s_mov_b64 s[68:69], exec")
    i("s_mov_b64 exec, 0xff")
    i("v_lshlrev_b32 v%d, 7, v1" % (vt + 1))
    i("s_mov_b32 s46, 0x%x" % (WS_FL + floff))
    i("s_mov_b32 s47, 0")
    lab(top)
    i("buffer_load_dword v%d, v%d, s[8:11], s46 offen sc1" % (vt, vt + 1))
    i("s_waitcnt vmcnt(0)")
    i("v_cmp_le_u32 vcc, 32, v%d" % vt)
    i("s_cmp_eq_u64 vcc, exec")
    i("s_cbranch_scc1 %s" % done)
    i("s_sleep %d" % sleep)
    i("s_add_u32 s47, s47, 1")
    i("s_cmp_lt_u32 s47, %d" % SPIN_LIMIT)
    i("s_cbranch_scc1 %s" % top)
    lab(done)
    i("s_mov_b64 exec, s[68:69]")
def h1_poison(v0=4):
    skip = uid("HPS")
    i("v_lshlrev_b32 v%d, 4, v1" % (v0 + 4))
    for r in range(4): i("v_mov_b32 v%d, -1" % (v0 + r))
    i("s_lshl_b32 s27, s66, 3")
    i("s_and_b32 s28, s3, 3")
    i("s_lshl_b32 s28, s28, 1")
    i("s_add_u32 s27, s27, s28")
    i("s_lshl_b32 s27, s27, 10")
    i("s_add_u32 s27, s27, 0x%x" % WS_H1)
    i("s_mul_i32 s28, s67, 7")
    i("s_lshr_b32 s28, s28, 1")
    i("s_lshl_b32 s28, s28, 17")
    i("s_add_u32 s29, s27, s28")
    i("s_bitcmp1_b32 s67, 0")
    i("s_cbranch_scc1 %s" % skip)
    for par in range(2): i("buffer_store_dwordx4 v[%d:%d], v%d, s[8:11], s29 offen offset:%d sc1" % (v0, v0 + 3, v0 + 4, 1024 * par))
    lab(skip)
    for b_ in range(1, 4):
        i("s_add_u32 s29, s29, 131072")
        for par in range(2): i("buffer_store_dwordx4 v[%d:%d], v%d, s[8:11], s29 offen offset:%d sc1" % (v0, v0 + 3, v0 + 4, 1024 * par))
def st2_poison():
    i("s_mov_b64 s[68:69], exec")
    i("s_mov_b64 exec, 0xf")
    for r in range(4): i("v_mov_b32 v%d, -1" % (4 + r))
    i("v_lshlrev_b32 v8, 4, v1")
    i("s_lshl_b32 s13, s66, 10")
    i("s_lshl_b32 s46, s67, 6")
    i("s_add_u32 s13, s13, s46")
    i("s_add_u32 s13, s13, 0x%x" % WS_ST2)
    i("buffer_store_dwordx4 v[4:7], v8, s[8:11], s13 offen sc1")
    i("s_mov_b64 exec, s[68:69]")

def lds_wait(off, target, vt=4, sleep=1):
    top, d = uid("LW"), uid("LWD")
    i("v_mov_b32 v%d, %d" % (vt, MISC + off))
    lab(top)
    i("ds_read_b32 v%d, v%d" % (vt + 1, vt))
    i("s_waitcnt lgkmcnt(0)")
    i("v_readfirstlane_b32 s13, v%d" % (vt + 1))
    i("s_cmp_ge_u32 s13, %d" % target)
    i("s_cbranch_scc1 %s" % d)
    i("s_sleep %d" % sleep)
    i("s_branch %s" % top)
    lab(d)

def lds_add(off, va=4, rtn=False):
    i("s_mov_b64 exec, 1")
    i("v_mov_b32 v%d, %d" % (va, MISC + off))
    i("v_mov_b32 v%d, 1" % (va + 1))
    if rtn:
        i("ds_add_rtn_u32 v%d, v%d, v%d" % (va + 1, va, va + 1))
        i("s_waitcnt lgkmcnt(0)")
        i("v_readfirstlane_b32 s13, v%d" % (va + 1))
    else:
        i("ds_add_u32 v%d, v%d" % (va, va + 1))
    i("s_mov_b64 exec, -1")

def ln_finish(m, v, mr):
    i("v_mul_f32 v%d, 0x%x, v%d" % (m, INV640, m))
    i("v_mul_f32 v%d, 0x%x, v%d" % (v, INV640, v))
    i("v_fma_f32 v%d, -v%d, v%d, v%d" % (v, m, m, v))
    i("v_max_f32 v%d, 0, v%d" % (v, v))
    round_bf16(m, m)
    round_bf16(v, v)
    i("v_add_f32 v%d, 0x%x, v%d" % (v, EPS, v))
    round_bf16(v, v)
    i("v_sqrt_f32 v%d, v%d" % (v, v))
    nop(1)
    round_bf16(v, v)
    i("v_rcp_f32 v%d, v%d" % (v, v))
    nop(1)
    if mr: i("v_mul_f32 v%d, v%d, v%d" % (m, m, v))

W1S, W2R = 8, 120
W1V = 240
def w1_prep():
    i("s_mul_i32 s46, s67, 224")
    i("s_mov_b32 s47, %d" % ((1 << 20) // 14 + 1))
    for k in range(7):
        i("v_add_u32 v4, %d, v1" % (64 * k))
        i("v_mul_lo_u32 v5, v4, s47")
        i("v_lshrrev_b32 v5, 20, v5")
        i("v_mul_u32_u24 v6, 14, v5")
        i("v_sub_u32 v6, v4, v6")
        i("v_mul_u32_u24 v5, 3456, v5")
        i("v_lshl_add_u32 v5, v6, 4, v5")
        i("v_add_u32 v%d, s46, v5" % (W1V + k))
def w1_load(cr):
    for (c, rb_) in cr:
        i("s_and_b32 s46, s3, 3")
        i("s_add_u32 s46, s46, %d" % (4 * c))
        i("s_mul_i32 s46, s46, %d" % (32 * 3456))
        for t in range(7):
            r = rb_ + 4 * t
            i("buffer_load_dwordx4 v[%d:%d], v%d, s[48:51], s46 offen" % (r, r + 3, W1V + t))
W1MAP = [(0, 24), (1, 52), (2, 80), (3, 108), (4, 200)]
def w1_dma(chunks):
    for c in chunks:
        i("s_and_b32 s46, s3, 3")
        i("s_add_u32 s46, s46, %d" % (4 * c))
        i("s_mul_i32 s47, s46, %d" % (32 * 3456))
        i("s_mul_i32 s46, s46, 7168")
        for t in range(7):
            i("s_add_u32 m0, s46, %d" % (1024 * t))
            i("s_nop 0")
            i("buffer_load_dwordx4 v%d, s[48:51], s47 offen lds" % (W1V + t))
def w1_write(cr):
    i("v_lshlrev_b32 v4, 4, v1")
    for (c, rb_) in cr:
        i("s_and_b32 s46, s3, 3")
        i("s_add_u32 s46, s46, %d" % (4 * c))
        i("s_mul_i32 s46, s46, 7168")
        i("v_add_u32 v5, s46, v4")
        for t in range(7):
            r = rb_ + 4 * t
            i("ds_write_b128 v5, v[%d:%d] offset:%d" % (r, r + 3, 1024 * t))
def w2_load(steps, slots):
    for st, sl in zip(steps, slots):
        i("s_add_u32 s46, s61, %d" % (st * 5120))
        for dl in range(5):
            r = W2R + 20 * sl + 4 * dl
            if dl < 4:
                i("buffer_load_dwordx4 v[%d:%d], v4, s[8:11], s46 offen offset:%d sc1" % (r, r + 3, 1024 * dl))
            else:
                i("s_add_u32 s46, s46, 4096")
                i("buffer_load_dwordx4 v[%d:%d], v4, s[8:11], s46 offen sc1" % (r, r + 3))

def main():
    ref = open("cdna_kernels/%s.s.ref" % NAME).read().splitlines()
    for ln in ref:
        if ln.startswith("; Override"): break
        e(ln)
    e("; @launch grid=(256,1,1) block=(512,1,1) lds=%d" % LDS_TOTAL)
    e('.amdgcn_target "amdgcn-amd-amdhsa--gfx950"')
    e(".text")
    e(".globl %s" % KNAME)
    e(".p2align 8")
    e(".type %s,@function" % KNAME)
    lab(KNAME)
    i("s_cmp_ge_u32 s2, 256")
    i("s_cbranch_scc1 L_END")
    stamp(0)
    i("s_load_dwordx16 s[16:31], s[0:1], 0")
    i("s_load_dwordx8 s[36:43], s[0:1], 64")
    i("s_load_dwordx2 s[44:45], s[0:1], 96")
    i("s_load_dwordx4 s[32:35], s[0:1], 104")
    i("v_lshrrev_b32 v4, 6, v0")
    i("v_and_b32 v1, 63, v0")
    i("v_and_b32 v2, 15, v1")
    i("v_readfirstlane_b32 s3, v4")
    i("v_lshrrev_b32 v3, 4, v1")
    for r in (5, 6, 7) + tuple(range(240, 247)): i("v_mov_b32 v%d, 0" % r)
    i("s_and_b32 s64, s2, 7")
    i("s_lshr_b32 s65, s2, 3")
    i("s_lshr_b32 s66, s64, 1")
    i("s_lshl_b32 s66, s66, 2")
    i("s_lshr_b32 s46, s65, 3")
    i("s_add_u32 s66, s66, s46")
    i("s_and_b32 s67, s64, 1")
    i("s_lshl_b32 s67, s67, 3")
    i("s_and_b32 s46, s65, 7")
    i("s_add_u32 s67, s67, s46")
    i("s_and_b32 s46, s64, 1")
    i("s_lshl_b32 s46, s46, 2")
    i("s_and_b32 s47, s65, 3")
    i("s_add_u32 s60, s46, s47")
    i("s_mul_i32 s61, s60, 54")
    i("s_and_b32 s46, s3, 3")
    i("s_mul_i32 s46, s46, 7")
    i("s_add_u32 s61, s61, s46")
    i("s_lshr_b32 s46, s3, 2")
    i("s_mul_i32 s46, s46, 27")
    i("s_add_u32 s61, s61, s46")
    i("s_mul_i32 s61, s61, 5120")
    i("s_add_u32 s61, s61, 0x%x" % WS_W2P)
    i("s_waitcnt lgkmcnt(0)")
    srd(8, 34, WS_SIZE)
    srd(48, 36, D * F * 2)
    srd(52, 40, F * D * 2)
    srd(56, 32, 256)
    i("s_cmp_lg_u32 s3, 7")
    i("s_cbranch_scc1 L_NOST2")
    st2_poison()
    lab("L_NOST2")
    i("s_cmp_lt_u32 s65, 8")
    i("s_cbranch_scc1 L_STATS")
    i("s_cmp_lt_u32 s65, 28")
    i("s_cbranch_scc1 L_CONV")
    i("s_branch L_COLSUM")
    def rp_ids():
        i("s_sub_u32 s46, s65, 20")
        i("s_cmp_lt_u32 s65, 8")
        i("s_cselect_b32 s46, s65, s46")
        i("s_lshl_b32 s46, s46, 3")
        i("s_add_u32 s59x, s46, s64".replace("s59x", "s46"))
        i("s_mov_b32 s62, s46")
        i("s_mul_i32 s63, s3, 96")
        i("s_add_u32 s63, s63, s46")
    def rp_block():
        done = uid("RPD")
        i("s_cmp_ge_u32 s63, 432")
        i("s_cbranch_scc1 %s" % done)
        i("s_mul_i32 s14, s3, 5120")
        i("s_add_u32 s14, s14, 114688")
        i("s_mul_i32 s13, s63, 19419")
        i("s_lshr_b32 s13, s13, 20")
        i("s_mul_i32 s15, s13, 54")
        i("s_sub_u32 s15, s63, s15")
        i("s_mul_i32 s4, s15, %d" % (32 * 1280))
        i("s_mul_i32 s5, s13, 160")
        i("s_add_u32 s4, s4, s5")
        i("s_mov_b32 s47, %d" % ((1 << 20) // 10 + 1))
        for k in range(5):
            i("v_add_u32 v8, %d, v1" % (64 * k))
            i("v_mul_lo_u32 v9, v8, s47")
            i("v_lshrrev_b32 v9, 20, v9")
            i("v_mul_u32_u24 v10, 10, v9")
            i("v_sub_u32 v10, v8, v10")
            i("v_mul_u32_u24 v9, 1280, v9")
            i("v_lshl_add_u32 v9, v10, 4, v9")
            i("s_add_u32 m0, s14, %d" % (1024 * k))
            i("s_nop 0")
            i("buffer_load_dwordx4 v9, s[52:55], s4 offen lds")
        i("v_lshrrev_b32 v5, 2, v2")
        i("v_lshl_add_u32 v5, v3, 2, v5")
        i("v_and_b32 v6, 3, v2")
        i("v_lshlrev_b32 v6, 3, v6")
        i("v_mul_u32_u24 v5, 160, v5")
        i("v_add3_u32 v5, v5, v6, s14")
        i("v_lshlrev_b32 v7, 4, v1")
        i("s_mul_i32 s4, s63, 5120")
        i("s_add_u32 s4, s4, 0x%x" % WS_W2P)
        i("s_waitcnt vmcnt(0)")
        for t in range(5):
            i("ds_read_b64_tr_b16 v[%d:%d], v5 offset:%d" % (64 + 4 * t, 65 + 4 * t, 32 * t))
            i("ds_read_b64_tr_b16 v[%d:%d], v5 offset:%d" % (66 + 4 * t, 67 + 4 * t, 32 * t + 2560))
        for t in range(5):
            i("s_waitcnt lgkmcnt(%d)" % (8 - 2 * t))
            if t == 4: i("s_add_u32 s4, s4, 4096")
            i("buffer_store_dwordx4 v[%d:%d], v7, s[8:11], s4 offen offset:%d sc1" % (64 + 4 * t, 67 + 4 * t, 1024 * (t % 4)))
        lab(done)

    lab("L_STATS")
    i("s_lshl_b32 s46, s65, 3")
    i("s_add_u32 s12, s46, s64")
    i("s_lshl_b32 s13, s12, 5")
    i("s_lshl_b32 s14, s3, 2")
    i("s_add_u32 s13, s13, s14")
    i("v_add_u32 v4, s13, v3")
    i("v_mul_u32_u24 v5, 1280, v4")
    i("v_lshl_add_u32 v5, v2, 4, v5")
    for k in range(5):
        i("global_load_dwordx4 v[%d:%d], v5, s[16:17] offset:%d" % (32 + 4 * k, 35 + 4 * k, 256 * k))
    i("s_cmp_lg_u32 s12, 0")
    i("s_cbranch_scc1 L_NOZ")
    i("s_cmp_lg_u32 s3, 7")
    i("s_cbranch_scc1 L_NOZ")
    for r in range(4): i("v_mov_b32 v%d, 0" % (60 + r))
    i("v_lshlrev_b32 v6, 4, v1")
    i("s_mov_b32 s14, 0x%x" % WS_FL)
    for k in range(FL_SIZE // 1024):
        i("buffer_store_dwordx4 v[60:63], v6, s[8:11], s14 offen offset:%d sc1" % (1024 * k))
    lab("L_NOZ")
    i("v_mov_b32 v7, 0x3f803f80")
    for r in range(8, 16): i("v_mov_b32 v%d, 0" % r)
    i("s_waitcnt vmcnt(0)")
    for k in range(20):
        i("v_dot2_f32_bf16 v%d, v%d, v7, v%d" % (8 + (k & 3), 32 + k, 8 + (k & 3)))
        i("v_dot2_f32_bf16 v%d, v%d, v%d, v%d" % (12 + (k & 3), 32 + k, 32 + k, 12 + (k & 3)))
    nop(3)
    i("v_add_f32 v8, v8, v9")
    i("v_add_f32 v10, v10, v11")
    i("v_add_f32 v12, v12, v13")
    i("v_add_f32 v14, v14, v15")
    i("v_add_f32 v8, v8, v10")
    i("v_add_f32 v9, v12, v14")
    for r in (8, 4, 2, 1):
        nop(2)
        i("v_add_f32_dpp v8, v8, v8 row_ror:%d row_mask:0xf bank_mask:0xf" % r)
        i("v_add_f32_dpp v9, v9, v9 row_ror:%d row_mask:0xf bank_mask:0xf" % r)
    ln_finish(8, 9, False)
    i("v_lshlrev_b32 v4, 3, v4")
    i("v_cmp_eq_u32 vcc, 0, v2")
    i("s_and_saveexec_b64 s[68:69], vcc")
    i("s_mov_b32 s14, 0x%x" % WS_ST1)
    i("buffer_store_dwordx2 v[8:9], v4, s[8:11], s14 offen sc1")
    i("s_mov_b64 exec, s[68:69]")
    i("s_waitcnt vmcnt(0)")
    i("s_barrier")
    stamp(1)
    i("s_cmp_lg_u32 s3, 0")
    i("s_cbranch_scc1 L_NC1")
    arrive_last(DBG_C1, 64, DBG_GO1)
    i("s_branch L_NC1")
    lab("L_COLSUM")
    i("s_getpc_b64 s[46:47]")
    lab("L_PC")
    i("s_sub_u32 s46, s46, L_PC-%s" % KNAME)
    i("s_subb_u32 s47, s47, 0")
    i("v_lshlrev_b32 v4, 7, v0")
    i("v_cmp_gt_u32 vcc, L_CODE_END-%s, v4" % KNAME)
    i("s_and_saveexec_b64 s[68:69], vcc")
    i("s_cbranch_execz L_NOPF")
    i("global_load_dword v200, v4, s[46:47]")
    lab("L_NOPF")
    i("s_mov_b64 exec, s[68:69]")
    stamp(1)
    lab("L_NC1")
    rp_ids()
    i("s_cmp_lg_u32 s3, 7")
    i("s_cbranch_scc1 L_NC1A")
    i("v_lshlrev_b32 v8, 2, v1")
    i("v_add_u32 v8, %d, v8" % MISC)
    i("v_mov_b32 v9, 0")
    i("ds_write_b32 v8, v9")
    i("s_waitcnt lgkmcnt(0)")
    lab("L_NC1A")
    i("s_barrier")
    i("s_cmp_ge_u32 s3, 4")
    i("s_cbranch_scc1 L_NC_LD")
    rp_block()
    i("s_cmp_ge_u32 s62, 12")
    i("s_cbranch_scc1 L_NC2")
    i("s_lshl_b32 s63, s62, 2")
    i("s_add_u32 s63, s63, s3")
    i("s_add_u32 s63, s63, 384")
    i("s_waitcnt lgkmcnt(0)")
    rp_block()
    lab("L_NC2")
    i("s_waitcnt vmcnt(0)")
    stamp(4)
    lds_add(M_CH + 8, 4, rtn=True)
    i("s_cmp_lg_u32 s13, 3")
    i("s_cbranch_scc1 L_NC3")
    arrive_last(DBG_CW, 96, DBG_GOW)
    lab("L_NC3")
    i("s_cmp_lt_u32 s65, 28")
    i("s_cbranch_scc1 L_NC5")
    i("s_sub_u32 s46, s65, 28")
    i("s_lshl_b32 s46, s46, 3")
    i("s_add_u32 s12, s46, s64")
    i("s_cmp_ge_u32 s12, 27")
    i("s_cbranch_scc1 L_NC5")
    i("v_lshrrev_b32 v4, 3, v1")
    i("s_lshl_b32 s13, s3, 3")
    i("v_add_u32 v4, s13, v4")
    i("v_mul_u32_u24 v4, 3456, v4")
    i("v_and_b32 v5, 7, v1")
    i("v_lshl_add_u32 v4, v5, 4, v4")
    i("s_lshl_b32 s13, s12, 7")
    for it in range(20):
        i("buffer_load_dwordx4 v[%d:%d], v4, s[48:51], s13 offen" % (64 + 4 * it, 67 + 4 * it))
        i("s_add_u32 s13, s13, %d" % (32 * 3456))
    for r in range(8): i("v_mov_b32 v%d, 0" % (8 + r))
    for it in range(20):
        i("s_waitcnt vmcnt(%d)" % (19 - it))
        for dw in range(4):
            x = 64 + 4 * it + dw
            i("v_lshlrev_b32 v16, 16, v%d" % x)
            i("v_and_b32 v17, 0xffff0000, v%d" % x)
            i("v_pk_add_f32 v[%d:%d], v[%d:%d], v[16:17]" % (8 + 2 * dw, 9 + 2 * dw, 8 + 2 * dw, 9 + 2 * dw))
    nop(1)
    for r in range(8):
        i("v_add_f32_dpp v%d, v%d, v%d row_ror:8 row_mask:0xf bank_mask:0xf" % (8 + r, 8 + r, 8 + r))
    for op in ("v_permlane16_swap_b32", "v_permlane32_swap_b32"):
        for r in range(8): i("v_mov_b32 v%d, v%d" % (16 + r, 8 + r))
        nop(1)
        for r in range(8): i("%s v%d, v%d" % (op, 16 + r, 8 + r))
        nop(1)
        for r in range(8): i("v_add_f32 v%d, v%d, v%d" % (8 + r, 8 + r, 16 + r))
    i("v_lshlrev_b32 v4, 5, v1")
    i("s_lshl_b32 s13, s3, 8")
    i("s_add_u32 s13, s13, %d" % (MISC + 3072))
    i("v_add_u32 v4, s13, v4")
    i("s_mov_b64 exec, 0xff")
    i("ds_write_b128 v4, v[8:11]")
    i("ds_write_b128 v4, v[12:15] offset:16")
    i("s_mov_b64 exec, -1")
    i("s_waitcnt lgkmcnt(0)")
    lds_add(M_CH + 20, 4, rtn=True)
    i("s_cmp_lg_u32 s13, 3")
    i("s_cbranch_scc1 L_NC5")
    i("v_lshlrev_b32 v4, 2, v1")
    i("v_add_u32 v5, %d, v4" % (MISC + 3072))
    for w in range(4):
        i("ds_read_b32 v%d, v5 offset:%d" % (8 + w, 256 * w))
    i("s_waitcnt lgkmcnt(0)")
    for w in range(1, 4): i("v_add_f32 v8, v8, v%d" % (8 + w))
    i("s_lshl_b32 s13, s12, 8")
    i("s_add_u32 s13, s13, 0x%x" % WS_CS)
    i("buffer_store_dword v8, v4, s[8:11], s13 offen sc1")
    i("s_waitcnt vmcnt(0)")
    lds_add(M_CH + 24, 4)
    lab("L_NC5")
    stamp(3)
    i("s_branch L_PHASE_B")
    lab("L_NC_LD")
    i("s_cmp_lg_u32 s3, 7")
    i("s_cbranch_scc1 L_NC_L3")
    i("s_mov_b32 s46, %d" % DBG_GO1)
    poll(56, "s46", 1, 1, 8, sleep=2)
    lds_add(M_S1, 8)
    arrive_shard(FL_CP)
    lab("L_NC_L3")
    w1_prep()
    if os.environ.get("XLATE"):
        lds_wait(M_S1, 1, 4, sleep=4)
        i("s_cmp_lg_u32 s3, 7")
        lq = uid("XL")
        i("s_cbranch_scc1 %s" % lq)
        i("s_lshl_b32 s46, s64, 7")
        i("s_add_u32 s46, s46, 0x%x" % (WS_FL + FL_HINT))
        poll(8, "s46", 1, 1, 8, sleep=8)
        lds_add(M_CH + 28, 8)
        lab(lq)
        lds_wait(M_CH + 28, 1, 4, sleep=8)
    w1_dma([0, 1, 2, 3])
    lds_wait(M_CH + 8, 4, 4, sleep=4)
    w1_dma([4])
    h1_poison(248)
    i("s_waitcnt vmcnt(0)")
    lds_wait(M_S1, 1, 4, sleep=4)
    i("s_cmp_lt_u32 s65, 28")
    i("s_cbranch_scc1 L_NC_L4")
    i("s_sub_u32 s46, s65, 28")
    i("s_lshl_b32 s46, s46, 3")
    i("s_add_u32 s46, s46, s64")
    i("s_cmp_ge_u32 s46, 27")
    i("s_cbranch_scc1 L_NC_L4")
    lds_wait(M_CH + 24, 1, 4, sleep=4)
    lab("L_NC_L4")
    lds_add(M_CH + 12, 248, rtn=True)
    i("s_cmp_lg_u32 s13, 3")
    i("s_cbranch_scc1 L_PHASE_B")
    arrive_shard(FL_CP2, 248)
    i("s_branch L_PHASE_B")

    lab("L_CONV")
    i("s_mul_i32 s12, s64, 20")
    i("s_add_u32 s12, s12, s65")
    i("s_sub_u32 s12, s12, 8")
    i("s_lshl_b32 s13, s12, 2")
    i("s_and_b32 s14, s3, 3")
    i("s_add_u32 s15, s13, s14")
    i("s_lshr_b32 s46, s15, 1")
    i("s_lshl_b32 s46, s46, 2")
    i("s_load_dword s4, s[26:27], s46")
    i("s_load_dword s5, s[28:29], s46")
    i("s_lshr_b32 s6, s3, 2")
    i("s_lshl_b32 s46, s6, 6")
    i("v_add_u32 v4, s46, v1")
    i("s_lshl_b32 s47, s15, 8")
    i("v_lshl_add_u32 v5, v4, 1, s47")
    i("global_load_ushort v10, v5, s[18:19]")
    i("global_load_ushort v11, v5, s[20:21]")
    i("global_load_ushort v12, v5, s[22:23]")
    i("global_load_ushort v13, v5, s[24:25]")
    i("s_cmp_lt_u32 s3, 4")
    i("s_cbranch_scc1 L_CV_PH")
    i("v_subrev_u32 v6, 256, v0")
    i("v_mul_u32_u24 v6, %d, v6" % (8 * 1280))
    i("s_lshl_b32 s46, s13, 1")
    i("v_add_u32 v6, s46, v6")
    i("v_add_u32 v7, 5120, v6")
    for k in range(4):
        i("global_load_dwordx2 v[%d:%d], v6, s[16:17] offset:%d" % (100 + 2 * k, 101 + 2 * k, 1280 * k))
    i("s_branch L_CV_NOX")
    lab("L_CV_PH")
    for r in range(4): i("v_mov_b32 v%d, -1" % (60 + r))
    i("v_lshlrev_b32 v6, 4, v0")
    i("s_lshl_b32 s46, s12, 14")
    i("s_add_u32 s46, s46, 0x%x" % WS_H)
    for it in range(4):
        i("buffer_store_dwordx4 v[60:63], v6, s[8:11], s46 offen sc1")
        if it < 3: i("s_add_u32 s46, s46, 4096")
    lab("L_CV_NOX")
    i("s_mul_i32 s46, s14, %d" % FAC_CH)
    i("v_lshl_add_u32 v5, v4, 2, s46")
    i("s_waitcnt lgkmcnt(0)")
    i("s_and_b32 s46, s15, 1")
    i("s_lshl_b32 s46, s46, 4")
    i("s_lshr_b32 s4, s4, s46")
    i("s_lshl_b32 s4, s4, 16")
    i("s_lshr_b32 s5, s5, s46")
    i("s_lshl_b32 s5, s5, 16")
    i("v_mov_b32 v14, s4")
    i("v_mul_f32 v14, 0x%x, v14" % LOG2E)
    i("v_exp_f32 v14, v14")
    nop(1)
    round_bf16(14, 14)
    i("s_cmp_lt_u32 s3, 4")
    i("s_cbranch_scc1 L_CV_W0")
    i("s_waitcnt vmcnt(4)")
    i("s_branch L_CV_W1")
    lab("L_CV_W0")
    i("s_waitcnt vmcnt(4)")
    lab("L_CV_W1")
    stamp(1)
    if os.environ.get("TOUCH"):
        i("s_cmp_ge_u32 s3, 4")
        i("s_cbranch_scc1 L_CV_NT")
        i("s_lshl_b32 s46, s12, 2")
        i("s_add_u32 s46, s46, s3")
        i("s_cmp_lt_u32 s46, 320")
        i("s_cselect_b32 s4, s36, s40")
        i("s_cselect_b32 s6x, s37, s41".replace("s6x", "s7"))
        i("s_sub_u32 s47, s46, 320")
        i("s_cselect_b32 s46, s46, s47") if False else None
        i("s_cmp_lt_u32 s46, 320")
        i("s_cselect_b32 s46, s46, s47")
        i("s_mul_i32 s46, s46, %d" % (54 * 128))
        i("s_add_u32 s30, s4, s46")
        i("s_addc_u32 s31, s7, 0")
        i("v_lshlrev_b32 v200, 7, v1")
        i("s_mov_b32 exec_lo, -1")
        i("s_mov_b32 exec_hi, 0x3fffff")
        i("global_load_dword v201, v200, s[30:31]")
        i("s_mov_b64 exec, -1")
        lab("L_CV_NT")
    for r in (10, 11, 12, 13): i("v_lshlrev_b32 v%d, 16, v%d" % (r, r))
    i("v_mul_f32 v10, 0x%x, v10" % LOG2E)
    i("v_exp_f32 v10, v10")
    nop(1)
    round_bf16(10, 10)
    i("v_mul_f32 v10, v10, v14")
    i("v_mul_f32 v10, 0x%x, v10" % NLOG2E)
    i("v_mul_f32 v11, v11, v14")
    i("v_mul_f32 v11, %s, v11" % INV2PI)
    i("v_mul_f32 v12, v12, v14")
    i("v_mul_f32 v13, v13, v14")
    i("v_add_f32 v32, v12, v12")
    i("v_add_f32 v33, v13, v13")
    bases = [(20, 1), (22, 16), (24, 256), (26, 2), (28, 4), (30, 8)]
    for (dst, p) in bases:
        i("v_mul_f32 v%d, 0x%x, v10" % (dst, f2u(float(p))))
        i("v_mul_f32 v%d, 0x%x, v11" % (dst + 1, f2u(float(p))))
    for (dst, p) in bases:
        i("v_exp_f32 v%d, v%d" % (dst, dst))
        i("v_fract_f32 v%d, v%d" % (dst + 1, dst + 1))
    for n, (dst, p) in enumerate(bases):
        i("v_cos_f32 v%d, v%d" % (52 + n, dst + 1))
        i("v_sin_f32 v%d, v%d" % (dst + 1, dst + 1))
    nop(1)
    for n, (dst, p) in enumerate(bases):
        i("v_mul_f32 v%d, v%d, v%d" % (dst + 1, dst, dst + 1))
        i("v_mul_f32 v%d, v%d, v%d" % (dst, dst, 52 + n))
    i("v_mov_b32 v34, 1.0")
    i("v_mov_b32 v35, 0")
    i("v_mov_b32 v36, v32")
    i("v_mov_b32 v37, v33")
    chains = [dict(x=32, s=20, row=0, n=16, y=False, start=0), dict(x=34, s=22, row=47, n=16, y=True, start=0)]
    for (tau, s, row, n) in [(1, 26, 16, 9), (2, 28, 25, 5), (3, 28, 30, 5), (4, 30, 35, 3), (5, 30, 38, 3), (6, 30, 41, 3), (7, 30, 44, 3)]:
        chains.append(dict(x=36 + 2 * tau, s=s, row=row, n=n, y=False, start=tau))
    rnd = 0; pos = [0] * len(chains); tmpc = 0
    while any(pos[k] < c["n"] for k, c in enumerate(chains)):
        muls, fmas, cv, wr = [], [], [], []
        ti = 0
        if rnd < 7:
            t = 52 + 2 * ti; ti += 1
            x, d = 36 + 2 * rnd, 36 + 2 * (rnd + 1)
            muls.append("v_pk_mul_f32 v[%d:%d], v[%d:%d], v[24:25] op_sel:[0,0] op_sel_hi:[1,0]" % (t, t + 1, x, x + 1))
            fmas.append("v_pk_fma_f32 v[%d:%d], v[%d:%d], v[24:25], v[%d:%d] op_sel:[1,1,0] op_sel_hi:[0,1,1] neg_lo:[0,1,0]" % (d, d + 1, x, x + 1, t, t + 1))
        for k, c in enumerate(chains):
            if rnd >= c["start"] and pos[k] < c["n"]:
                x = c["x"]; p = 72 + (tmpc % 16); tmpc += 1
                cv.append("v_cvt_pk_bf16_f32 v%d, v%d, %sv%d" % (p, x, "" if c["y"] else "-", x + 1))
                wr.append("ds_write_b32 v5, v%d offset:%d" % (p, (c["row"] + pos[k]) * XROW))
                if pos[k] < c["n"] - 1:
                    t = 52 + 2 * ti; ti += 1
                    assert t + 1 < 72
                    muls.append("v_pk_mul_f32 v[%d:%d], v[%d:%d], v[%d:%d] op_sel:[0,0] op_sel_hi:[1,0]" % (t, t + 1, x, x + 1, c["s"], c["s"] + 1))
                    fmas.append("v_pk_fma_f32 v[%d:%d], v[%d:%d], v[%d:%d], v[%d:%d] op_sel:[1,1,0] op_sel_hi:[0,1,1] neg_lo:[0,1,0]" % (x, x + 1, x, x + 1, c["s"], c["s"] + 1, t, t + 1))
                pos[k] += 1
        if rnd in (1, 4, 7, 10):
            k = 4 + (rnd - 1) // 3
            lb = uid("XG")
            i("s_cmp_lt_u32 s3, 4")
            i("s_cbranch_scc1 %s" % lb)
            i("global_load_dwordx2 v[%d:%d], v7, s[16:17] offset:%d" % (100 + 2 * k, 101 + 2 * k, 1280 * (k & 3)))
            lab(lb)
        for s_ in cv + muls + wr + fmas: i(s_)
        rnd += 1
    stamp(2)
    i("s_cmp_lg_u32 s3, 4")
    i("s_cbranch_scc1 L_CV_B1")
    i("v_lshlrev_b32 v8, 2, v1")
    i("v_add_u32 v8, %d, v8" % MISC)
    i("v_mov_b32 v9, 0")
    i("ds_write_b32 v8, v9")
    lab("L_CV_B1")
    i("s_waitcnt lgkmcnt(0)")
    i("s_barrier")
    stamp(3)
    i("s_cmp_ge_u32 s3, 4")
    i("s_cbranch_scc1 L_CV_NORM")
    segp = {0: (0, 8, 4), 1: (16, 4, 2), 2: (25, 5, 2), 3: (35, 6, 3)}
    i("s_mul_i32 s46, s3, %d" % FAC_CH)
    i("v_lshrrev_b32 v8, 3, v2")
    i("v_bfe_u32 v9, v2, 2, 1")
    i("v_and_b32 v10, 3, v2")
    for t in range(4):
        b0, a0, c0 = segp[t]
        i("v_mul_u32_u24 v11, %d, v8" % a0)
        i("v_mul_u32_u24 v12, %d, v9" % c0)
        i("v_add3_u32 v11, v11, v12, v10")
        i("v_add_u32 v11, %d, v11" % b0)
        i("v_mul_u32_u24 v11, %d, v11" % XROW)
        i("v_lshl_add_u32 v11, v3, 4, v11")
        i("v_add_u32 v%d, s46, v11" % (16 + t))
    i("v_add_u32 v11, 47, v2")
    i("v_mul_u32_u24 v11, %d, v11" % XROW)
    i("v_lshl_add_u32 v11, v3, 4, v11")
    i("v_add_u32 v15, s46, v11")
    for mu in range(8):
        i("ds_read_b128 v[%d:%d], v15 offset:%d" % (32 + 4 * mu, 35 + 4 * mu, 64 * mu))
        i("ds_read_b128 v[%d:%d], v16 offset:%d" % (64 + 4 * mu, 67 + 4 * mu, 64 * mu))
    accs = [20, 24, 28, 192]
    for t in range(4):
        nxt = ["ds_read_b128 v[%d:%d], v%d offset:%d" % (64 + 32 * (t + 1) + 4 * mu, 67 + 32 * (t + 1) + 4 * mu, 17 + t, 64 * mu) for mu in range(8)] if t < 3 else []
        for s_ in nxt: i(s_)
        a0 = accs[t]
        for mu in range(8):
            if t == 0: i("s_waitcnt lgkmcnt(%d)" % min(15, 8 + 14 - 2 * mu))
            else: i("s_waitcnt lgkmcnt(%d)" % ((8 if nxt else 0) + 7 - mu))
            i("v_mfma_f32_16x16x32_bf16 v[%d:%d], v[%d:%d], v[%d:%d], %s" % (a0, a0 + 3, 64 + 32 * t + 4 * mu, 67 + 32 * t + 4 * mu, 32 + 4 * mu, 35 + 4 * mu, "0" if mu == 0 else "v[%d:%d]" % (a0, a0 + 3)))
    i("s_mul_i32 s46, s3, %d" % KCH)
    i("v_lshlrev_b32 v10, 5, v2")
    i("v_cmp_eq_u32 vcc, 0, v1")
    i("v_mov_b32 v11, s5")
    i("v_lshl_add_u32 v12, v3, 3, v10")
    i("v_cndmask_b32 v11, 0, v11, vcc")
    nop(4)
    i("v_add_f32 v20, v20, v11")
    i("v_cvt_pk_bf16_f32 v64, v23, v22")
    i("v_cvt_pk_bf16_f32 v65, v21, v20")
    i("v_sub_u32 v13, 4088, v12")
    i("v_add_u32 v13, s46, v13")
    i("ds_write_b64 v13, v[64:65]")
    i("v_cvt_pk_bf16_f32 v66, v26, v25")
    i("v_cvt_pk_bf16_f32 v67, v24, v24")
    i("v_sub_u32 v13, 3576, v12")
    i("v_add_u32 v13, s46, v13")
    i("ds_write_b64 v13, v[66:67]")
    i("v_cvt_pk_bf16_f32 v68, v30, v30")
    i("v_cvt_pk_bf16_f32 v69, v29, v29")
    i("v_cvt_pk_bf16_f32 v70, v29, v28")
    i("v_cvt_pk_bf16_f32 v71, v28, v28")
    i("v_lshrrev_b32 v11, 1, v3")
    i("v_lshl_add_u32 v12, v11, 9, v10")
    i("v_and_b32 v11, 1, v3")
    i("v_lshl_add_u32 v12, v11, 4, v12")
    i("v_sub_u32 v13, 3056, v12")
    i("v_add_u32 v13, s46, v13")
    i("ds_write_b128 v13, v[68:71]")
    i("v_cvt_pk_bf16_f32 v72, v194, v194")
    i("v_mov_b32 v73, v72")
    i("v_cvt_pk_bf16_f32 v74, v193, v193")
    i("v_mov_b32 v75, v74")
    i("v_mov_b32 v76, v74")
    i("v_cvt_pk_bf16_f32 v77, v193, v192")
    i("v_cvt_pk_bf16_f32 v78, v192, v192")
    i("v_mov_b32 v79, v78")
    i("v_lshl_add_u32 v12, v3, 9, v10")
    i("v_sub_u32 v13, 2016, v12")
    i("v_add_u32 v13, s46, v13")
    i("ds_write_b128 v13, v[72:75]")
    i("ds_write_b128 v13, v[76:79] offset:16")
    for r in range(4): i("v_mov_b32 v%d, 0" % (32 + r))
    i("v_bfe_u32 v8, v1, 2, 2")
    i("v_mul_u32_u24 v8, %d, v8" % KCP)
    i("v_and_b32 v9, 3, v1")
    i("v_lshl_add_u32 v8, v9, 4, v8")
    i("v_add_u32 v8, s46, v8")
    i("ds_write_b128 v8, v[32:35] offset:4096")
    i("v_lshl_add_u32 v8, v1, 3, s46")
    i("v_add_u32 v9, %d, v8" % KCP)
    i("v_add_u32 v10, %d, v8" % (2 * KCP))
    i("v_add_u32 v11, %d, v8" % (3 * KCP))
    i("s_waitcnt lgkmcnt(0)")
    for it in range(8):
        i("ds_read_b64 v[%d:%d], v8 offset:%d" % (32 + 4 * it, 33 + 4 * it, 512 * it))
        i("ds_read_b64 v[%d:%d], v8 offset:%d" % (34 + 4 * it, 35 + 4 * it, 512 * it + 8))
    for it in range(8):
        i("s_waitcnt lgkmcnt(%d)" % min(15, 14 - 2 * it + 3 * it))
        d = 32 + 4 * it; a = 64 + 4 * it
        i("v_alignbit_b32 v%d, v%d, v%d, 16" % (a, d + 1, d))
        i("v_alignbit_b32 v%d, v%d, v%d, 16" % (a + 1, d + 2, d + 1))
        i("v_alignbit_b32 v%d, v%d, v%d, 16" % (a + 2, d + 3, d + 2))
        o = 128 * it
        i("ds_write2_b32 v9, v%d, v%d offset0:%d offset1:%d" % (a, a + 1, o % 256, o % 256 + 1) if it < 2 else "ds_write2st64_b32 v9, v9, v9" ) if False else None
        if it and it % 1 == 0:
            i("v_add_u32 v9, 512, v9"); i("v_add_u32 v10, 512, v10"); i("v_add_u32 v11, 512, v11")
        i("ds_write2_b32 v9, v%d, v%d offset0:0 offset1:1" % (a, a + 1))
        i("ds_write2_b32 v10, v%d, v%d offset0:0 offset1:1" % (d + 1, d + 2))
        i("ds_write2_b32 v11, v%d, v%d offset0:0 offset1:1" % (a + 1, a + 2))
    i("s_waitcnt vmcnt(0)")
    i("s_branch L_CV_B2")
    lab("L_CV_NORM")
    w1_prep()
    i("s_cmp_lg_u32 s3, 4")
    i("s_cbranch_scc1 L_CV_NW")
    i("s_mov_b32 s46, %d" % DBG_GO1)
    poll(56, "s46", 1, 1, 8, sleep=1)
    lds_add(M_S1, 8)
    i("s_branch L_CV_NG")
    lab("L_CV_NW")
    lds_wait(M_S1, 1)
    lab("L_CV_NG")
    stamp(5)
    i("v_subrev_u32 v6, 256, v0")
    i("v_lshlrev_b32 v6, 6, v6")
    i("s_mov_b32 s46, 0x%x" % WS_ST1)
    for k in range(4):
        i("buffer_load_dwordx4 v[%d:%d], v6, s[8:11], s46 offen offset:%d sc1" % (120 + 4 * k, 123 + 4 * k, 16 * k))
    i("s_mov_b32 s46, 0x%x" % SEL_LO)
    i("s_mov_b32 s47, 0x%x" % SEL_HI)
    i("s_waitcnt vmcnt(4)")
    for ch in range(4):
        for ii in range(4):
            lo = 100 + 2 * (2 * ii) + (ch >> 1); hi = 100 + 2 * (2 * ii + 1) + (ch >> 1)
            i("v_perm_b32 v%d, v%d, v%d, s%d" % (136 + 4 * ch + ii, hi, lo, 46 + (ch & 1)))
    for k in range(8):
        for jj in range(2):
            x = 100 + 2 * k + jj
            i("v_lshlrev_b32 v%d, 16, v%d" % (168 + 4 * k + 2 * jj, x))
            i("v_and_b32 v%d, 0xffff0000, v%d" % (168 + 4 * k + 2 * jj + 1, x))
    i("s_waitcnt vmcnt(0)")
    stamp(8)
    for k in range(8):
        m = 120 + 2 * k; r = m + 1
        for jj in range(2):
            a = 168 + 4 * k + 2 * jj; b = a + 1
            i("v_sub_f32 v%d, v%d, v%d" % (a, a, m))
            i("v_sub_f32 v%d, v%d, v%d" % (b, b, m))
            i("v_cvt_pk_bf16_f32 v%d, v%d, v%d" % (8 + jj, a, b))
        for jj in range(2):
            a = 168 + 4 * k + 2 * jj; b = a + 1
            i("v_lshlrev_b32 v%d, 16, v%d" % (a, 8 + jj))
            i("v_and_b32 v%d, 0xffff0000, v%d" % (b, 8 + jj))
            i("v_mul_f32 v%d, v%d, v%d" % (a, a, r))
            i("v_mul_f32 v%d, v%d, v%d" % (b, b, r))
    for ch in range(4):
        for ii in range(4):
            i("v_cvt_pk_bf16_f32 v%d, v%d, v%d" % (152 + 4 * ch + ii, 168 + 4 * (2 * ii) + ch, 168 + 4 * (2 * ii + 1) + ch))
    i("v_subrev_u32 v6, 256, v0")
    i("v_bfe_u32 v7, v6, 2, 2")
    i("v_lshlrev_b32 v6, 6, v6")
    for ch in range(4):
        i("v_xor_b32 v8, %d, v7" % ch)
        i("v_lshl_add_u32 v%d, v8, 4, v6" % (20 + ch))
        i("v_add_u32 v9, %d, v%d" % (UL + 2048, 20 + ch))
        i("ds_write_b128 v9, v[%d:%d]" % (152 + 4 * ch, 155 + 4 * ch))
    i("v_mov_b32 v8, 0")
    i("v_mov_b32 v9, 0")
    i("v_subrev_u32 v6, 256, v0")
    i("v_lshlrev_b32 v6, 3, v6")
    i("v_add_u32 v6, %d, v6" % UL)
    i("ds_write_b64 v6, v[8:9]")
    lab("L_CV_B2")
    i("s_waitcnt lgkmcnt(0)")
    i("s_barrier")
    stamp(4)
    i("s_cmp_ge_u32 s3, 4")
    i("s_cbranch_scc1 L_CV_HELP")
    i("s_mul_i32 s15, s3, %d" % KCH)
    i("v_and_b32 v8, 3, v2")
    i("v_sub_u32 v8, 3, v8")
    i("v_mul_u32_u24 v8, %d, v8" % KCP)
    i("v_lshrrev_b32 v9, 2, v2")
    i("v_lshlrev_b32 v9, 3, v9")
    i("v_lshl_add_u32 v9, v3, 4, v9")
    i("v_sub_u32 v9, %d, v9" % (4104 - 4032))
    i("v_add3_u32 v10, v8, v9, s15")
    i("v_lshlrev_b32 v8, 1, v2")
    i("v_add_u32 v8, 1, v8")
    i("v_sub_u32 v8, v8, v3")
    i("v_ashrrev_i32 v9, 2, v8")
    i("v_lshlrev_b32 v8, 6, v8")
    i("v_add_u32 v8, %d, v8" % (UL + 256))
    for r in range(4):
        i("v_subrev_u32 v11, %d, v9" % r)
        i("v_and_b32 v11, 3, v11")
        i("v_xor_b32 v11, s3, v11")
        i("v_lshl_add_u32 v%d, v11, 4, v8" % (12 + r))
    def FR(s, ii): return 24 + 64 * s + 4 * ii
    def GR(s, jj): return 24 + 64 * s + 32 + 4 * jj
    ACC = 160
    def reads(rho):
        s = rho & 1; lst = []
        for ii in range(8):
            sig = rho + 8 * ii; off = 64 * (63 - sig)
            lst.append("ds_read_b64 v[%d:%d], v10 offset:%d" % (FR(s, ii), FR(s, ii) + 1, off))
            lst.append("ds_read_b64 v[%d:%d], v10 offset:%d" % (FR(s, ii) + 2, FR(s, ii) + 3, off + 8))
            lst.append("ds_read_b128 v[%d:%d], v%d offset:%d" % (GR(s, ii), GR(s, ii) + 3, 12 + (rho & 3), 2048 * ii + 256 * (7 - rho)))
        return lst
    for r in reads(0): i(r)
    i("v_lshrrev_b32 v16, 1, v3")
    i("v_lshl_add_u32 v16, v2, 1, v16")
    i("v_bfe_u32 v17, v16, 2, 2")
    i("v_xor_b32 v17, s3, v17")
    i("v_lshlrev_b32 v16, 6, v16")
    i("v_lshl_add_u32 v16, v17, 4, v16")
    i("v_and_b32 v17, 1, v3")
    i("v_lshl_add_u32 v16, v17, 3, v16")
    i("v_add_u32 v16, %d, v16" % XL)
    for rho in range(8):
        s = rho & 1
        nxt = reads(rho + 1) if rho < 7 else ["ds_read_b64 v[%d:%d], v16 offset:%d" % (200 + 2 * al, 201 + 2 * al, 2048 * al) for al in range(8)]
        if rho == 7: lds_wait(M_XT, 4, 18)
        i("s_waitcnt lgkmcnt(0)")
        mf = []
        for al in range(8):
            for ii in range(al + 1):
                jj = al - ii
                first = (rho == 0 and ii == 0)
                mf.append("v_mfma_f32_16x16x32_bf16 v[%d:%d], v[%d:%d], v[%d:%d], %s" % (
                    ACC + 4 * al, ACC + 4 * al + 3, FR(s, ii), FR(s, ii) + 3, GR(s, jj), GR(s, jj) + 3,
                    "0" if first else "v[%d:%d]" % (ACC + 4 * al, ACC + 4 * al + 3)))
        k = 0
        for n, m in enumerate(mf):
            i(m)
            if k < len(nxt) and n < 30:
                i(nxt[k]); k += 1
        while k < len(nxt):
            i(nxt[k]); k += 1
    stamp(5)
    i("s_waitcnt lgkmcnt(0)")
    lds_add(M_MD, 4)
    lds_wait(M_MD, 4, 4)
    i("v_lshlrev_b32 v8, 5, v2")
    i("v_lshl_add_u32 v8, v3, 3, v8")
    i("s_lshl_b32 s46, s3, 12")
    i("s_add_u32 s46, s46, %d" % TL)
    i("v_add_u32 v8, s46, v8")
    for al in range(8):
        x0, x1 = 200 + 2 * al, 201 + 2 * al
        a = ACC + 4 * al
        i("v_lshlrev_b32 v20, 16, v%d" % x0)
        i("v_and_b32 v21, 0xffff0000, v%d" % x0)
        i("v_lshlrev_b32 v22, 16, v%d" % x1)
        i("v_and_b32 v23, 0xffff0000, v%d" % x1)
        i("v_pk_add_f32 v[20:21], v[20:21], v[%d:%d]" % (a, a + 1))
        i("v_pk_add_f32 v[22:23], v[22:23], v[%d:%d]" % (a + 2, a + 3))
        i("v_cvt_pk_bf16_f32 v%d, v20, v21" % (24 + 2 * al))
        i("v_cvt_pk_bf16_f32 v%d, v22, v23" % (25 + 2 * al))
        i("ds_write_b64 v8, v[%d:%d] offset:%d" % (24 + 2 * al, 25 + 2 * al, 512 * al))
    i("s_waitcnt lgkmcnt(0)")
    lds_add(M_TR + 16, 4)
    lds_wait(M_TR + 16, 4)
    i("v_lshlrev_b32 v252, 2, v0")
    i("v_add_u32 v252, %d, v252" % TL)
    i("v_lshlrev_b32 v253, 4, v0")
    i("s_lshl_b32 s14, s12, 14")
    i("s_add_u32 s14, s14, 0x%x" % WS_H)
    i("s_mov_b32 s46, 0x%x" % SEL_LO)
    i("s_mov_b32 s47, 0x%x" % SEL_HI)
    for it in range(4):
        for ch in range(4):
            i("ds_read_b32 v%d, v252 offset:%d" % (8 + 4 * it + ch, ch * 4096 + it * 1024))
    for it in range(4):
        i("s_waitcnt lgkmcnt(%d)" % (12 - 4 * it))
        b = 8 + 4 * it; o = 32 + 4 * it
        i("v_perm_b32 v%d, v%d, v%d, s46" % (o, b + 1, b))
        i("v_perm_b32 v%d, v%d, v%d, s46" % (o + 1, b + 3, b + 2))
        i("v_perm_b32 v%d, v%d, v%d, s47" % (o + 2, b + 1, b))
        i("v_perm_b32 v%d, v%d, v%d, s47" % (o + 3, b + 3, b + 2))
        i("buffer_store_dwordx4 v[%d:%d], v253, s[8:11], s14 offen sc1" % (o, o + 3))
        if it < 3: i("s_add_u32 s14, s14, 4096")
    lds_add(M_TR, 4)
    i("s_cmp_lg_u32 s65, 8")
    i("s_cbranch_scc1 L_CV_NH")
    i("s_cmp_lg_u32 s3, 0")
    i("s_cbranch_scc1 L_CV_NH")
    i("s_lshl_b32 s13, s64, 7")
    i("s_add_u32 s13, s13, 0x%x" % (WS_FL + FL_HINT))
    set_flag(8, "s13", 4)
    lab("L_CV_NH")
    stamp(6)
    i("s_branch L_PHASE_B")
    lab("L_CV_HELP")
    for ch in range(4):
        i("v_add_u32 v9, %d, v%d" % (XL, 20 + ch))
        i("ds_write_b128 v9, v[%d:%d]" % (136 + 4 * ch, 139 + 4 * ch))
    i("s_waitcnt lgkmcnt(0)")
    lds_add(M_XT, 8)
    i("s_cmp_lg_u32 s3, 4")
    i("s_cbranch_scc1 L_CV_NCP")
    arrive_shard(FL_CP, 248)
    lab("L_CV_NCP")
    w1_load(W1MAP)
    stamp(12)
    h1_poison(248)
    stamp(9)
    lds_wait(M_MD, 4, 4, sleep=1)
    stamp(13)
    i("s_bitcmp1_b32 s67, 0")
    i("s_cbranch_scc1 L_CV_V6")
    i("s_waitcnt vmcnt(8)")
    i("s_branch L_CV_V8")
    lab("L_CV_V6")
    i("s_waitcnt vmcnt(6)")
    lab("L_CV_V8")
    stamp(14)
    w1_write(W1MAP[0:4])
    i("s_cmp_lg_u32 s3, 7")
    i("s_cbranch_scc1 L_CV_W4")
    lds_wait(M_TR, 4, 6, sleep=1)
    lab("L_CV_W4")
    w1_write(W1MAP[4:5])
    i("s_waitcnt vmcnt(0)")
    lds_add(M_GP, 248, rtn=True)
    i("s_cmp_lg_u32 s13, 3")
    i("s_cbranch_scc1 L_CV_NGP")
    arrive_shard(FL_CP2, 248)
    lab("L_CV_NGP")
    stamp(6)

    lab("L_PHASE_B")
    if STOP == "A": i("s_branch L_FIN")
    i("s_cmp_lg_u32 s3, 0")
    i("s_cbranch_scc1 L_B_W")
    lds_wait(M_S1, 1, 8)
    i("s_lshl_b32 s46, s64, 7")
    i("s_add_u32 s46, s46, 0x%x" % (WS_FL + FL_HINT))
    poll(8, "s46", 1, 1, 8, sleep=8)
    poll_shards(FL_CP, 8, sleep=16)
    lab("L_B_W")
    i("s_waitcnt lgkmcnt(0)")
    i("s_barrier")
    stamp(7)
    i("s_cmp_ge_u32 s3, 4")
    i("s_cbranch_scc1 L_B_LOAD")
    HB, RING, ACC, WF = 16, 13, 64, 120
    def HS(kap):
        j = kap % RING
        return 16 + 8 * j if j < 6 else 176 + 8 * (j - 6)
    i("s_lshl_b32 s12, s66, 7")
    i("s_lshl_b32 s13, s3, 5")
    i("s_add_u32 s12, s12, s13")
    i("v_lshlrev_b32 v5, 14, v3")
    i("v_lshl_add_u32 v5, v2, 4, v5")
    i("s_lshl_b32 s13, s12, 3")
    i("v_add_u32 v5, s13, v5")
    i("v_lshlrev_b32 v4, 4, v1")
    vq = []
    def hl(kap, half):
        r = HS(kap) + 4 * half
        i("s_mov_b32 s13, 0x%x" % (WS_H + kap * 8 * 16384 + half * 4 * 16384))
        i("buffer_load_dwordx4 v[%d:%d], v5, s[8:11], s13 offen sc1" % (r, r + 3))
        vq.append(("h", kap, half))
    for kap in range(RING):
        hl(kap, 0); hl(kap, 1)
    i("v_lshrrev_b32 v6, 2, v2")
    i("v_lshl_add_u32 v6, v3, 2, v6")
    i("v_mul_u32_u24 v6, 224, v6")
    i("v_and_b32 v7, 3, v2")
    i("v_lshl_add_u32 v8, v7, 3, v6")
    i("v_add_u32 v9, %d, v8" % (8 * 7168))
    i("v_add_u32 v10, %d, v8" % (16 * 7168))
    def wreads(kap):
        s = kap & 1; base = 8 + kap // 8; o = (kap % 8) * 7168; lst = []
        for t in range(7):
            r = WF + 28 * s + 4 * t
            lst.append("ds_read_b64_tr_b16 v[%d:%d], v%d offset:%d" % (r, r + 1, base, o + 32 * t))
            lst.append("ds_read_b64_tr_b16 v[%d:%d], v%d offset:%d" % (r + 2, r + 3, base, o + 32 * t + 3584))
        return lst
    i("v_mov_b32 v11, %d" % (MISC + M_CH + 16))
    i("v_mov_b32 v12, 1")
    for r in wreads(0): i(r)
    def swaps(kap):
        r = HS(kap)
        return ["v_swap_b32 v%d, v%d" % (r + 2, r + 4), "v_swap_b32 v%d, v%d" % (r + 3, r + 5)]
    def wait_h(kap):
        idx = max(n for n, x in enumerate(vq) if x[0] == "h" and x[1] == kap)
        return "s_waitcnt vmcnt(%d)" % min(63, len(vq) - 1 - idx)
    slow = []
    EARLYCHK = os.environ.get("EARLYCHK", "1") == "1"
    def check_h(kap, part=0):
        r = HS(kap)
        if part in (0, 1):
            i("v_max3_u32 v6, v%d, v%d, v%d" % (r, r + 2, r + 4))
            i("v_max_u32 v6, v6, v%d" % (r + 6))
            i("v_cmp_eq_u32 vcc, -1, v6")
            if part == 1: return
        bad, back = uid("HBAD"), uid("HOK")
        i("s_cbranch_vccnz %s" % bad)
        lab(back)
        later = sorted(set(x[1] for x in vq if x[0] == "h" and x[1] > kap))
        slow.append((bad, back, kap, later))
    if os.environ.get("XMID"):
        i("s_mov_b32 s96, 0")
        i("s_mov_b32 s97, 0")
    i(wait_h(0))
    check_h(0)
    lds_add(M_CH + 28, 6)
    stamp(12)
    for s_ in swaps(0): i(s_)
    w2pf = [(3, 0), (3, 1), (3, 2), (3, 3), (3, 4), (4, 0), (4, 1), (4, 2), (4, 3), (4, 4), (5, 0), (5, 1), (5, 2), (5, 3), (5, 4)]
    for kap in range(20):
        s = kap & 1
        nxt = wreads(kap + 1) if kap < 19 else []
        if os.environ.get("XMID") and kap in (4, 8, 12, 16): stamp({4: 3, 8: 4, 12: 5, 16: 6}[kap])
        if os.environ.get("XCYC") and kap == 12: i("s_memtime s[90:91]")
        if os.environ.get("XCYC") and kap == 16: i("s_memtime s[92:93]")
        i("s_waitcnt lgkmcnt(0)")
        k = 0; n = 0
        for t in range(7):
            for par in range(2):
                a = ACC + 8 * t + 4 * par
                h = HS(kap) + 4 * par
                w = WF + 28 * s + 4 * t
                i("v_mfma_f32_16x16x32_bf16 v[%d:%d], v[%d:%d], v[%d:%d], %s" % (a, a + 3, w, w + 3, h, h + 3, "0" if kap == 0 else "v[%d:%d]" % (a, a + 3)))
                if k < len(nxt):
                    i(nxt[k]); k += 1
                if kap >= 1 and kap - 1 + RING < 20 and n in (2, 8):
                    hl(kap - 1 + RING, 0 if n == 2 else 1)
                if kap == 21 - RING and n == 9:
                    i("s_mov_b64 exec, 1")
                    i("ds_add_u32 v11, v12")
                    i("s_mov_b64 exec, -1")
                if EARLYCHK:
                    if n == 3 and kap < 19:
                        i(wait_h(kap + 1))
                        check_h(kap + 1, part=1)
                    if n == 9 and kap < 19:
                        check_h(kap + 1, part=2)
                    if n == 11 and kap < 19:
                        for s_ in swaps(kap + 1): i(s_)
                elif n == 11 and kap < 19:
                    i(wait_h(kap + 1))
                    check_h(kap + 1)
                    for s_ in swaps(kap + 1): i(s_)
                n += 1
    stamp(8)
    lds_wait(M_EP + 4, 1, 6)
    stamp(14)
    i("v_lshlrev_b32 v6, 4, v2")
    i("s_lshl_b32 s13, s3, 8")
    i("s_add_u32 s13, s13, %d" % (MISC + M_STAT))
    i("v_add_u32 v6, s13, v6")
    i("ds_read_b128 v[12:15], v6")
    i("v_lshlrev_b32 v7, 4, v3")
    i("v_add_u32 v7, %d, v7" % MISC)
    for t in range(7):
        i("ds_read_b128 v[%d:%d], v7 offset:%d" % (120 + 4 * t, 123 + 4 * t, M_CS + 64 * t))
        i("ds_read_b128 v[%d:%d], v7 offset:%d" % (148 + 4 * t, 151 + 4 * t, M_B1 + 64 * t))
    i("s_lshl_b32 s27, s66, 3")
    i("s_lshl_b32 s28, s3, 1")
    i("s_add_u32 s27, s27, s28")
    i("s_lshl_b32 s27, s27, 10")
    i("s_add_u32 s27, s27, 0x%x" % WS_H1)
    i("s_mul_i32 s28, s67, 7")
    i("s_waitcnt lgkmcnt(0)")
    for t in range(7):
        for par in range(2):
            a = ACC + 8 * t + 4 * par
            st = 12 + 2 * par
            cs = 120 + 4 * t; b1 = 148 + 4 * t
            tmp = 48 + 4 * par
            for hh in range(2):
                i("v_pk_fma_f32 v[%d:%d], v[%d:%d], v[%d:%d], v[%d:%d] op_sel:[0,0,0] op_sel_hi:[1,0,1] neg_lo:[0,1,0] neg_hi:[0,1,0]" % (tmp + 2 * hh, tmp + 2 * hh + 1, cs + 2 * hh, cs + 2 * hh + 1, st, st + 1, b1 + 2 * hh, b1 + 2 * hh + 1))
            for hh in range(2):
                i("v_pk_fma_f32 v[%d:%d], v[%d:%d], v[%d:%d], v[%d:%d] op_sel:[0,1,0] op_sel_hi:[1,1,1]" % (tmp + 2 * hh, tmp + 2 * hh + 1, a + 2 * hh, a + 2 * hh + 1, st, st + 1, tmp + 2 * hh, tmp + 2 * hh + 1))
            for r in range(4): i("v_max_f32 v%d, 0, v%d" % (tmp + r, tmp + r))
            for hh in range(2):
                i("v_pk_mul_f32 v[%d:%d], v[%d:%d], v[%d:%d]" % (tmp + 2 * hh, tmp + 2 * hh + 1, tmp + 2 * hh, tmp + 2 * hh + 1, tmp + 2 * hh, tmp + 2 * hh + 1))
            o = 16 + 4 * t + 2 * par
            i("v_cvt_pk_bf16_f32 v%d, v%d, v%d" % (o, tmp, tmp + 1))
            i("v_cvt_pk_bf16_f32 v%d, v%d, v%d" % (o + 1, tmp + 2, tmp + 3))
    def st16(t, par, n):
        o = 64 + 4 * n
        i("v_mov_b32 v%d, v%d" % (o, 16 + 4 * t + 2 * par))
        i("v_mov_b32 v%d, v%d" % (o + 1, 17 + 4 * t + 2 * par))
        i("v_mov_b32 v%d, v%d" % (o + 2, 16 + 4 * (t + 1) + 2 * par))
        i("v_mov_b32 v%d, v%d" % (o + 3, 17 + 4 * (t + 1) + 2 * par))
        i("buffer_store_dwordx4 v[%d:%d], v4, s[8:11], s29 offen offset:%d sc1" % (o, o + 3, 1024 * par))
    def st8(t, par, half):
        o = 16 + 4 * t + 2 * par
        i("buffer_store_dwordx2 v[%d:%d], v4, s[8:11], s29 offen offset:%d sc1" % (o, o + 1, 1024 * par + 8 * half))
    def beta_off(t):
        i("s_add_u32 s29, s28, %d" % t)
        i("s_lshr_b32 s29, s29, 1")
        i("s_lshl_b32 s29, s29, 17")
        i("s_add_u32 s29, s29, s27")
    stamp(1)
    i("s_bitcmp1_b32 s67, 0")
    i("s_cbranch_scc1 L_B_ODD")
    n = 0
    for t in (0, 2, 4):
        beta_off(t)
        for par in range(2): st16(t, par, n); n += 1
    beta_off(6)
    for par in range(2): st8(6, par, 0)
    i("s_branch L_B_STD")
    lab("L_B_ODD")
    beta_off(0)
    for par in range(2): st8(0, par, 1)
    n = 0
    for t in (1, 3, 5):
        beta_off(t)
        for par in range(2): st16(t, par, n); n += 1
    lab("L_B_STD")
    stamp(9)
    lds_wait(M_EP, 1, 6)
    i("s_branch L_PHASE_C")
    for (bad, back, kap, later) in slow:
        r = HS(kap)
        lab(bad)
        if os.environ.get("XMID"): i("s_add_u32 s96, s96, 1")
        i("s_mov_b32 s47, 0")
        top = uid("HT")
        lab(top)
        i("s_sleep 2")
        for k2 in [kap] + later:
            r2 = HS(k2)
            i("s_mov_b32 s13, 0x%x" % (WS_H + k2 * 8 * 16384))
            i("buffer_load_dwordx4 v[%d:%d], v5, s[8:11], s13 offen sc1" % (r2, r2 + 3))
            i("s_mov_b32 s13, 0x%x" % (WS_H + k2 * 8 * 16384 + 4 * 16384))
            i("buffer_load_dwordx4 v[%d:%d], v5, s[8:11], s13 offen sc1" % (r2 + 4, r2 + 7))
        i("s_waitcnt vmcnt(0)")
        i("v_max3_u32 v6, v%d, v%d, v%d" % (r, r + 2, r + 4))
        i("v_max_u32 v6, v6, v%d" % (r + 6))
        i("v_cmp_eq_u32 vcc, -1, v6")
        i("s_cbranch_vccz %s" % back)
        i("s_add_u32 s47, s47, 1")
        i("s_cmp_lt_u32 s47, %d" % SPIN_LIMIT)
        i("s_cbranch_scc1 %s" % top)
        i("s_branch %s" % back)

    lab("L_B_LOAD")
    lds_wait(M_CH + 28, 1, 4, sleep=4)
    i("s_lshl_b32 s12, s66, 7")
    i("s_lshl_b32 s13, s67, 3")
    i("s_add_u32 s12, s12, s13")
    i("s_sub_u32 s14, s3, 4")
    i("s_mul_i32 s14, s14, 40")
    i("v_lshrrev_b32 v5, 2, v1")
    i("v_add_u32 v5, s14, v5")
    i("v_and_b32 v6, 3, v1")
    i("v_lshlrev_b32 v7, 14, v5")
    i("v_lshl_add_u32 v7, v6, 4, v7")
    i("s_lshl_b32 s13, s12, 3")
    i("s_add_u32 s13, s13, 0x%x" % WS_H)
    i("s_mov_b32 s15, s13")
    i("s_mov_b32 s47, 0")
    for r in range(4): i("v_mov_b32 v%d, 0" % (24 + r))
    lab("L_LS_TOP")
    i("s_mov_b32 s13, s15")
    for k in range(3):
        if k == 2: i("s_mov_b64 exec, 0xffffffff")
        i("buffer_load_dwordx4 v[%d:%d], v7, s[8:11], s13 offen sc1" % (16 + 4 * k, 19 + 4 * k))
        i("s_add_u32 s13, s13, %d" % (16 * 16384))
    i("s_mov_b64 exec, -1")
    i("s_waitcnt vmcnt(0)")
    i("v_max3_u32 v8, v16, v18, v20")
    i("v_max3_u32 v9, v22, v24, v26")
    i("v_max_u32 v8, v8, v9")
    i("v_cmp_eq_u32 vcc, -1, v8")
    i("s_cbranch_vccz L_LS_OK")
    i("s_sleep 8")
    i("s_add_u32 s47, s47, 1")
    i("s_cmp_lt_u32 s47, %d" % SPIN_LIMIT)
    i("s_cbranch_scc1 L_LS_TOP")
    lab("L_LS_OK")
    i("v_mov_b32 v7, 0x3f803f80")
    for r in range(8, 16): i("v_mov_b32 v%d, 0" % r)
    for k in range(3):
        for hf in range(2):
            for dw in range(2):
                x = 16 + 4 * k + 2 * hf + dw
                i("v_dot2_f32_bf16 v%d, v%d, v7, v%d" % (8 + 4 * dw + 2 * hf, x, 8 + 4 * dw + 2 * hf))
                i("v_dot2_f32_bf16 v%d, v%d, v%d, v%d" % (9 + 4 * dw + 2 * hf, x, x, 9 + 4 * dw + 2 * hf))
    nop(3)
    for r in range(4): i("v_add_f32 v%d, v%d, v%d" % (8 + r, 8 + r, 12 + r))
    for rr in (8, 4):
        nop(2)
        for r in range(4):
            i("v_add_f32_dpp v%d, v%d, v%d row_ror:%d row_mask:0xf bank_mask:0xf" % (8 + r, 8 + r, 8 + r, rr))
    for op in ("v_permlane16_swap_b32", "v_permlane32_swap_b32"):
        for r in range(4): i("v_mov_b32 v%d, v%d" % (12 + r, 8 + r))
        nop(1)
        for r in range(4): i("%s v%d, v%d" % (op, 12 + r, 8 + r))
        nop(1)
        for r in range(4): i("v_add_f32 v%d, v%d, v%d" % (8 + r, 8 + r, 12 + r))
    i("s_sub_u32 s13, s3, 4")
    i("s_lshl_b32 s13, s13, 6")
    i("s_add_u32 s13, s13, %d" % (MISC + 2304))
    i("v_lshlrev_b32 v5, 4, v1")
    i("v_add_u32 v5, s13, v5")
    i("s_mov_b64 exec, 0xf")
    i("ds_write_b128 v5, v[8:11]")
    i("s_mov_b64 exec, -1")
    i("s_waitcnt lgkmcnt(0)")
    lds_add(M_ST, 4, rtn=True)
    i("s_cmp_lg_u32 s13, 3")
    i("s_cbranch_scc1 L_B_LD1")
    i("s_mov_b64 exec, 0xf")
    i("v_lshlrev_b32 v5, 4, v1")
    i("v_add_u32 v5, %d, v5" % (MISC + 2304))
    for w in range(4):
        i("ds_read_b128 v[%d:%d], v5 offset:%d" % (16 + 4 * w, 19 + 4 * w, 64 * w))
    i("s_waitcnt lgkmcnt(0)")
    for w in range(1, 4):
        i("v_pk_add_f32 v[16:17], v[16:17], v[%d:%d]" % (16 + 4 * w, 17 + 4 * w))
        i("v_pk_add_f32 v[18:19], v[18:19], v[%d:%d]" % (18 + 4 * w, 19 + 4 * w))
    ln_finish(16, 17, True)
    ln_finish(18, 19, True)
    i("v_lshlrev_b32 v5, 4, v1")
    i("s_lshl_b32 s13, s12, 3")
    i("s_add_u32 s13, s13, 0x%x" % WS_ST2)
    i("buffer_store_dwordx4 v[16:19], v5, s[8:11], s13 offen sc1")
    i("s_mov_b64 exec, -1")
    poll_shards(FL_CP2, 24, sleep=16)
    i("s_mul_i32 s14, s67, 112")
    i("v_lshlrev_b32 v5, 2, v1")
    i("s_lshl_b32 s13, s14, 2")
    i("s_add_u32 s13, s13, 0x%x" % WS_CS)
    i("buffer_load_dword v20, v5, s[8:11], s13 offen sc1")
    i("buffer_load_dword v21, v5, s[8:11], s13 offen offset:256 sc1")
    srd(4, 38, F * 2)
    i("v_lshlrev_b32 v6, 1, v1")
    i("s_lshl_b32 s13, s14, 1")
    i("buffer_load_ushort v22, v6, s[4:7], s13 offen")
    i("buffer_load_ushort v23, v6, s[4:7], s13 offen offset:128")
    i("s_waitcnt vmcnt(0)")
    i("v_lshlrev_b32 v22, 16, v22")
    i("v_lshlrev_b32 v23, 16, v23")
    i("v_add_u32 v6, %d, v5" % MISC)
    i("ds_write_b32 v6, v20 offset:%d" % M_CS)
    i("ds_write_b32 v6, v21 offset:%d" % (M_CS + 256))
    i("ds_write_b32 v6, v22 offset:%d" % M_B1)
    i("ds_write_b32 v6, v23 offset:%d" % (M_B1 + 256))
    i("v_lshlrev_b32 v5, 4, v1")
    i("s_lshl_b32 s13, s66, 10")
    i("s_add_u32 s13, s13, 0x%x" % WS_ST2)
    i("s_mov_b32 s47, 0")
    lab("L_ST2_TOP")
    i("buffer_load_dwordx4 v[16:19], v5, s[8:11], s13 offen sc1")
    i("s_waitcnt vmcnt(0)")
    i("v_max_u32 v8, v17, v19")
    i("v_cmp_eq_u32 vcc, -1, v8")
    i("s_cbranch_vccz L_ST2_OK")
    i("s_sleep 4")
    i("s_add_u32 s47, s47, 1")
    i("s_cmp_lt_u32 s47, %d" % SPIN_LIMIT)
    i("s_cbranch_scc1 L_ST2_TOP")
    lab("L_ST2_OK")
    i("v_add_u32 v6, %d, v5" % (MISC + M_STAT))
    i("ds_write_b128 v6, v[16:19]")
    i("s_waitcnt lgkmcnt(0)")
    lds_add(M_EP + 4, 6)
    lab("L_B_LD1")
    i("s_mov_b32 s46, %d" % DBG_GOW)
    poll(56, "s46", 1, 1, 8, sleep=2)
    lds_add(M_EP, 8)
    lds_wait(M_CH + 16, 4, 6, sleep=2)
    i("v_lshlrev_b32 v4, 4, v1")
    if not os.environ.get("XNOW2"): w2_load(range(6), range(6))
    lds_wait(M_EP + 4, 1, 6, sleep=4)

    lab("L_PHASE_C")
    if STOP == "B": i("s_branch L_FIN")
    i("s_lshr_b32 s12, s64, 1")
    i("s_lshl_b32 s12, s12, 3")
    i("s_lshr_b32 s13, s65, 2")
    i("s_add_u32 s12, s12, s13")
    stamp(10)
    i("s_and_b32 s4, s3, 3")
    i("s_mul_i32 s5, s4, 7")
    i("s_lshr_b32 s6, s3, 2")
    i("s_mul_i32 s7, s6, 27")
    i("s_add_u32 s5, s5, s7")
    i("s_lshl_b32 s5, s5, 7")
    i("s_lshl_b32 s7, s12, 2")
    i("s_add_u32 s5, s5, s7")
    i("s_lshl_b32 s5, s5, 10")
    i("s_add_u32 s5, s5, 0x%x" % WS_H1)
    R2, ACC2 = 8, 40
    vqa, vqb = [], []
    def h1l(st, lt):
        r = R2 + 16 * (st & 1) + 4 * lt
        i("s_add_u32 s13, s5, %d" % (st * 131072))
        i("buffer_load_dwordx4 v[%d:%d], v4, s[8:11], s13 offen offset:%d sc1" % (r, r + 3, 1024 * lt))
        vqa.append(("h", st, lt)); vqb.append(("h", st, lt))
    def w2l(st, sl, both=False):
        lb = uid("W2S")
        if not both:
            i("s_cmp_ge_u32 s3, 4")
            i("s_cbranch_scc1 %s" % lb)
        w2_load([st], [sl])
        lab(lb)
        for dl in range(5):
            vqa.append(("w", st, dl))
            if both: vqb.append(("w", st, dl))
    w2l(0, 0)
    for lt in range(4): h1l(0, lt)
    w2l(1, 1)
    for lt in range(4): h1l(1, lt)
    for r in range(80): i("v_mov_b32 v%d, 0" % (ACC2 + r))
    srd(56, 42, D * 2)
    srd(48, 44, L * D * 2)
    i("s_mul_i32 s7, s60, 5")
    i("s_lshl_b32 s15, s12, 6")
    i("s_and_b32 s14, s3, 3")
    i("s_lshr_b32 s13, s14, 1")
    i("s_lshl_b32 s13, s13, 5")
    i("s_add_u32 s15, s15, s13")
    i("s_and_b32 s13, s14, 1")
    i("s_add_u32 s15, s15, s13")
    i("v_lshlrev_b32 v6, 1, v2")
    i("v_add_u32 v6, s15, v6")
    slow2 = []
    def wait_for(tag):
        ns = []
        for q in (vqa, vqb):
            idxs = [n for n, x in enumerate(q) if x == tag]
            if idxs: ns.append(len(q) - 1 - max(idxs))
        i("s_waitcnt vmcnt(%d)" % min(63, min(ns)))
    for st in range(7):
        if st == 6:
            i("s_cmp_eq_u32 s4, 3")
            i("s_cbranch_scc1 L_C_RED")
            wait_for(("w", 6, 4))
        if st + 2 <= 5: w2l(st + 2, st + 2)
        sl = st if st < 6 else 0
        for lt in range(4):
            hr = R2 + 16 * (st & 1) + 4 * lt
            if (st, lt) == (0, 0):
                wait_for(("h", st, lt))
                i("v_max_u32 v5, v%d, v%d" % (hr, hr + 2))
                i("v_cmp_eq_u32 vcc, -1, v5")
            bad, back = uid("GBAD"), uid("GOK")
            i("s_cbranch_vccnz %s" % bad)
            lab(back)
            later = [(x[1], x[2]) for x in vqb if x[0] == "h" and (x[1], x[2]) > (st, lt)]
            slow2.append((bad, back, st, lt, later))
            if st == 0 and lt == 0: stamp(2)
            nx = (st, lt + 1) if lt < 3 else (st + 1, 0)
            for dl in range(5):
                a = ACC2 + 16 * dl + 4 * lt
                w = W2R + 20 * sl + 4 * dl
                h = R2 + 16 * (st & 1) + 4 * lt
                i("v_mfma_f32_16x16x32_bf16 v[%d:%d], v[%d:%d], v[%d:%d], v[%d:%d]" % (a, a + 3, w, w + 3, h, h + 3, a, a + 3))
                if dl == 1 and nx[0] < 7:
                    nr = R2 + 16 * (nx[0] & 1) + 4 * nx[1]
                    wait_for(("h",) + nx)
                    i("v_max_u32 v5, v%d, v%d" % (nr, nr + 2))
                    i("v_cmp_eq_u32 vcc, -1, v5")
            if st + 2 < 7: h1l(st + 2, lt)
        if st == 0:
            w2l(6, 0, both=True)
        if st == 1:
            for j in range(3):
                i("s_lshr_b32 s46, s3, 2")
                i("s_add_u32 s46, s46, %d" % (2 * j))
                i("s_min_u32 s46, s46, 4")
                i("s_add_u32 s46, s46, s7")
                i("s_lshl_b32 s13, s46, 16")
                i("s_add_u32 s13, s13, 0x%x" % WS_H)
                i("v_lshlrev_b32 v7, 14, v3")
                i("v_lshl_add_u32 v7, v6, 3, v7")
                i("buffer_load_dwordx2 v[%d:%d], v7, s[8:11], s13 offen sc1" % (240 + 2 * j, 241 + 2 * j))
                i("s_lshl_b32 s13, s46, 5")
                i("v_lshlrev_b32 v7, 3, v3")
                i("buffer_load_dwordx2 v[%d:%d], v7, s[56:59], s13 offen" % (246 + 2 * j, 247 + 2 * j))
                for q in (vqa, vqb): q.append(("e", j, 0)); q.append(("e", j, 1))
    lab("L_C_RED")
    stamp(11)
    i("s_waitcnt vmcnt(0)")
    i("s_barrier")
    i("s_lshl_b32 s13, s3, 10")
    i("v_add_u32 v5, s13, v4")
    i("v_add_u32 v7, 65536, v5")
    i("v_add_u32 v8, 131072, v5")
    nop(4)
    for T in range(20):
        a = ACC2 + 4 * T
        base = (5, 7, 8)[T // 8]
        i("ds_write_b128 v%d, v[%d:%d] offset:%d" % (base, a, a + 3, (T % 8) * 8192))
    i("s_lshl_b32 s13, s3, 13")
    i("v_add_u32 v5, s13, v4")
    i("v_add_u32 v7, 65536, v5")
    i("v_add_u32 v8, 131072, v5")
    i("s_waitcnt lgkmcnt(0)")
    i("s_barrier")
    for j in range(3):
        if j == 2:
            i("s_cmp_ge_u32 s3, 4")
            i("s_cbranch_scc1 L_C_RD")
        for src in range(8):
            r = 120 + 32 * j + 4 * src
            i("ds_read_b128 v[%d:%d], v%d offset:%d" % (r, r + 3, (5, 7, 8)[j], src * 1024))
    lab("L_C_RD")
    i("s_waitcnt vmcnt(0)")
    for j in range(3):
        if j == 2:
            i("s_cmp_ge_u32 s3, 4")
            i("s_cbranch_scc1 L_FIN")
        i("s_waitcnt lgkmcnt(%d)" % (8 if j == 0 else 0))
        r = 120 + 32 * j
        for (x_, y_) in ((0, 4), (8, 12), (16, 20), (24, 28), (0, 8), (16, 24), (0, 16)):
            i("v_pk_add_f32 v[%d:%d], v[%d:%d], v[%d:%d]" % (r + x_, r + x_ + 1, r + x_, r + x_ + 1, r + y_, r + y_ + 1))
            i("v_pk_add_f32 v[%d:%d], v[%d:%d], v[%d:%d]" % (r + x_ + 2, r + x_ + 3, r + x_ + 2, r + x_ + 3, r + y_ + 2, r + y_ + 3))
        i("v_cvt_pk_bf16_f32 v30, v%d, v%d" % (r, r + 1))
        i("v_cvt_pk_bf16_f32 v31, v%d, v%d" % (r + 2, r + 3))
        for (src, dst) in ((30, 32), (31, 34), (246 + 2 * j, 36), (247 + 2 * j, 38)):
            i("v_lshlrev_b32 v%d, 16, v%d" % (dst, src))
            i("v_and_b32 v%d, 0xffff0000, v%d" % (dst + 1, src))
        i("v_pk_add_f32 v[32:33], v[32:33], v[36:37]")
        i("v_pk_add_f32 v[34:35], v[34:35], v[38:39]")
        i("v_cvt_pk_bf16_f32 v30, v32, v33")
        i("v_cvt_pk_bf16_f32 v31, v34, v35")
        for (src, dst) in ((30, 32), (31, 34), (240 + 2 * j, 36), (241 + 2 * j, 38)):
            i("v_lshlrev_b32 v%d, 16, v%d" % (dst, src))
            i("v_and_b32 v%d, 0xffff0000, v%d" % (dst + 1, src))
        i("v_pk_add_f32 v[32:33], v[32:33], v[36:37]")
        i("v_pk_add_f32 v[34:35], v[34:35], v[38:39]")
        i("v_cvt_pk_bf16_f32 v%d, v32, v33" % (24 + 2 * j))
        i("v_cvt_pk_bf16_f32 v%d, v34, v35" % (25 + 2 * j))
        i("s_lshr_b32 s46, s3, 2")
        i("s_add_u32 s46, s46, %d" % (2 * j))
        i("s_add_u32 s46, s46, s7")
        i("s_lshl_b32 s46, s46, 5")
        i("v_mul_u32_u24 v9, 1280, v6")
        i("v_lshl_add_u32 v9, v3, 3, v9")
        i("buffer_store_dwordx2 v[%d:%d], v9, s[48:51], s46 offen%s" % (24 + 2 * j, 25 + 2 * j, os.environ.get("OUTF", "")))
    lab("L_FIN")
    stamp_flush()
    lab("L_END")
    i("s_endpgm")
    for (bad, back, st, lt, later) in slow2:
        r = R2 + 16 * (st & 1) + 4 * lt
        lab(bad)
        i("s_mov_b32 s47, 0")
        top = uid("GT")
        lab(top)
        i("s_sleep 2")
        for (s2_, l2_) in [(st, lt)] + later:
            r2 = R2 + 16 * (s2_ & 1) + 4 * l2_
            i("s_add_u32 s13, s5, %d" % (s2_ * 131072))
            i("buffer_load_dwordx4 v[%d:%d], v4, s[8:11], s13 offen offset:%d sc1" % (r2, r2 + 3, 1024 * l2_))
        i("s_waitcnt vmcnt(0)")
        i("v_max_u32 v5, v%d, v%d" % (r, r + 2))
        i("v_cmp_eq_u32 vcc, -1, v5")
        i("s_cbranch_vccz %s" % back)
        i("s_add_u32 s47, s47, 1")
        i("s_cmp_lt_u32 s47, %d" % SPIN_LIMIT)
        i("s_cbranch_scc1 %s" % top)
        i("s_branch %s" % back)
    lab("L_CODE_END")
    e('.section .rodata,"a"')
    e(".p2align 6")
    e(".amdhsa_kernel %s" % KNAME)
    e("  .amdhsa_next_free_vgpr 256")
    e("  .amdhsa_next_free_sgpr 102")
    e("  .amdhsa_accum_offset 256")
    e("  .amdhsa_group_segment_fixed_size 0")
    e("  .amdhsa_kernarg_size 120")
    e("  .amdhsa_user_sgpr_count 2")
    e("  .amdhsa_user_sgpr_kernarg_segment_ptr 1")
    e("  .amdhsa_system_sgpr_workgroup_id_x 1")
    e(".end_amdhsa_kernel")

if __name__ == "__main__":
    main()
    path = sys.argv[1] if len(sys.argv) > 1 else "cdna_kernels/%s.s" % NAME
    open(path, "w").write("\n".join(x for x in out if x is not None) + "\n")
    print("wrote", path, len(out), "lines")
```

```python
import sys, os, struct
NAME = "sequential_preLN__ssm_conv_s4d__dense_activation_squared_relu__prompt"
KNAME = NAME + "_kernel"
L, D, NS, F = 2048, 640, 128, 1728
STAMPS = os.environ.get("STAMPS", "0") == "1"
STOP = os.environ.get("STOP", "")

WS_ST1 = 0x000000
WS_CS  = 0x008000
WS_ST2 = 0x010000
WS_FL  = 0x020000
WS_H   = 0x100000
WS_H1  = 0x400000
WS_W1P = 0xC00000
WS_W2P = 0x1000000
WS_STAMP = 0x8000000
WS_SIZE = 0x10000000
FL_CP, FL_CP2, FL_HINT, FL_SIZE = 0, 1024, 2048, 3072
DBG_C1, DBG_CW, DBG_CP, DBG_CP2, DBG_GO1, DBG_GOW, DBG_GOP, DBG_GOP2 = 0, 4, 8, 12, 128, 132, 136, 140
XROW = 544
FAC_CH = 63 * XROW
KCH, KCP = FAC_CH, 4160
UL = 137216
XL = 50944
TL = 142336
MISC = 158720
M_CH, M_ST, M_S1, M_XT, M_TR, M_HS, M_EP, M_GP, M_MD = 0, 32, 64, 68, 72, 76, 80, 92, 96
M_STAT, M_CS, M_B1 = 256, 1280, 1792
LDS_TOTAL = 163840

out = []
def e(s=""): out.append(s)
def lab(s): out.append(s + ":")
def i(s): out.append("    " + s)
def f2u(f): return struct.unpack("<I", struct.pack("<f", f))[0]
def nop(n):
    while n > 0:
        k = min(n, 16); i("s_nop %d" % (k - 1)); n -= k
def srd(dst, ptr_lo, nbytes):
    i("s_mov_b32 s%d, s%d" % (dst, ptr_lo))
    i("s_mov_b32 s%d, s%d" % (dst + 1, ptr_lo + 1))
    i("s_mov_b32 s%d, 0x%x" % (dst + 2, nbytes))
    i("s_mov_b32 s%d, 0x00020000" % (dst + 3))
def round_bf16(dst, src):
    i("v_cvt_pk_bf16_f32 v%d, v%d, v%d" % (dst, src, src))
    i("v_lshlrev_b32 v%d, 16, v%d" % (dst, dst))
_uid = [0]
def uid(p):
    _uid[0] += 1
    return "%s_%d" % (p, _uid[0])
def stamp(k):
    if STAMPS:
        assert k < 15
        i("s_memrealtime s[%d:%d]" % (70 + 2 * k, 71 + 2 * k))
def stamp_flush():
    if not STAMPS: return
    i("s_memrealtime s[100:101]")
    i("s_waitcnt lgkmcnt(0)")
    i("s_mov_b64 exec, 1")
    i("s_lshl_b32 s46, s2, 3")
    i("s_add_u32 s46, s46, s3")
    i("s_lshl_b32 s46, s46, 7")
    i("s_add_u32 s46, s46, 0x%x" % WS_STAMP)
    i("v_mov_b32 v0, 0")
    for k in range(16):
        i("v_mov_b32 v2, s%d" % (70 + 2 * k))
        i("v_mov_b32 v3, s%d" % (71 + 2 * k))
        i("buffer_store_dwordx2 v[2:3], v0, s[8:11], s46 offen offset:%d" % (8 * k))
        i("s_nop 1")

LOG2E, NLOG2E, INV2PI = 0x3fb8aa3b, 0xbfb8aa3b, "0.15915494"
SEL_LO, SEL_HI = 0x05040100, 0x07060302
INV640, EPS = 0x3acccccd, 0x3727c5ac
SPIN_LIMIT = 1 << 18

def poll(srd_reg, soff, nlanes, ndw, vt, spread=False, sleep=2):
    top, done = uid("POLL"), uid("POLLD")
    i("s_mov_b64 s[68:69], exec")
    m = (1 << nlanes) - 1
    i("s_mov_b32 exec_lo, 0x%x" % (m & 0xffffffff))
    i("s_mov_b32 exec_hi, 0x%x" % (m >> 32))
    if spread:
        i("v_lshrrev_b32 v%d, 1, v1" % (vt + 4))
        i("v_lshlrev_b32 v%d, 7, v%d" % (vt + 4, vt + 4))
        i("v_and_b32 v%d, 1, v1" % (vt + 5))
        i("v_lshl_add_u32 v%d, v%d, 4, v%d" % (vt + 4, vt + 5, vt + 4))
    else:
        i("v_lshlrev_b32 v%d, %d, v1" % (vt + 4, {1: 2, 4: 4}[ndw]))
    i("s_mov_b32 s47, 0")
    lab(top)
    if ndw == 1:
        i("buffer_load_dword v%d, v%d, s[%d:%d], %s offen sc1" % (vt, vt + 4, srd_reg, srd_reg + 3, soff))
        i("s_waitcnt vmcnt(0)")
    else:
        i("buffer_load_dwordx4 v[%d:%d], v%d, s[%d:%d], %s offen sc1" % (vt, vt + 3, vt + 4, srd_reg, srd_reg + 3, soff))
        i("s_waitcnt vmcnt(0)")
        i("v_min_u32 v%d, v%d, v%d" % (vt, vt, vt + 1))
        i("v_min_u32 v%d, v%d, v%d" % (vt + 2, vt + 2, vt + 3))
        i("v_min_u32 v%d, v%d, v%d" % (vt, vt, vt + 2))
    i("v_cmp_ne_u32 vcc, 0, v%d" % vt)
    i("s_cmp_eq_u64 vcc, exec")
    i("s_cbranch_scc1 %s" % done)
    i("s_sleep %d" % sleep)
    i("s_add_u32 s47, s47, 1")
    i("s_cmp_lt_u32 s47, %d" % SPIN_LIMIT)
    i("s_cbranch_scc1 %s" % top)
    lab(done)
    i("s_mov_b64 exec, s[68:69]")

def set_flag(srd_reg, soff, va=4):
    i("s_mov_b64 s[68:69], exec")
    i("s_mov_b64 exec, 1")
    i("v_mov_b32 v%d, 0" % va)
    i("v_mov_b32 v%d, 1" % (va + 1))
    i("buffer_store_dword v%d, v%d, s[%d:%d], %s offen sc1" % (va + 1, va, srd_reg, srd_reg + 3, soff))
    i("s_mov_b64 exec, s[68:69]")

def arrive_last(cnt_off, total, go_off):
    lbl = uid("ARR")
    i("s_mov_b64 s[68:69], exec")
    i("s_mov_b64 exec, 1")
    i("v_mov_b32 v4, %d" % cnt_off)
    i("v_mov_b32 v5, 1")
    i("buffer_atomic_add v5, v4, s[56:59], 0 offen sc0 sc1")
    i("s_waitcnt vmcnt(0)")
    i("v_readfirstlane_b32 s13, v5")
    i("s_mov_b64 exec, s[68:69]")
    i("s_cmp_lg_u32 s13, %d" % (total - 1))
    i("s_cbranch_scc1 %s" % lbl)
    i("s_mov_b32 s13, %d" % go_off)
    set_flag(56, "s13")
    lab(lbl)

def arrive_shard(floff, va=4):
    i("s_mov_b64 s[68:69], exec")
    i("s_mov_b64 exec, 1")
    i("s_lshl_b32 s13, s64, 7")
    i("s_add_u32 s13, s13, 0x%x" % (WS_FL + floff))
    i("v_mov_b32 v%d, 0" % va)
    i("v_mov_b32 v%d, 1" % (va + 1))
    i("buffer_atomic_add v%d, v%d, s[8:11], s13 offen sc1" % (va + 1, va))
    i("s_mov_b64 exec, s[68:69]")
def poll_shards(floff, vt, sleep=4):
    top, done = uid("PS"), uid("PSD")
    i("s_mov_b64 s[68:69], exec")
    i("s_mov_b64 exec, 0xff")
    i("v_lshlrev_b32 v%d, 7, v1" % (vt + 1))
    i("s_mov_b32 s46, 0x%x" % (WS_FL + floff))
    i("s_mov_b32 s47, 0")
    lab(top)
    i("buffer_load_dword v%d, v%d, s[8:11], s46 offen sc1" % (vt, vt + 1))
    i("s_waitcnt vmcnt(0)")
    i("v_cmp_le_u32 vcc, 32, v%d" % vt)
    i("s_cmp_eq_u64 vcc, exec")
    i("s_cbranch_scc1 %s" % done)
    i("s_sleep %d" % sleep)
    i("s_add_u32 s47, s47, 1")
    i("s_cmp_lt_u32 s47, %d" % SPIN_LIMIT)
    i("s_cbranch_scc1 %s" % top)
    lab(done)
    i("s_mov_b64 exec, s[68:69]")
def h1_poison(v0=4):
    skip = uid("HPS")
    i("v_lshlrev_b32 v%d, 4, v1" % (v0 + 4))
    for r in range(4): i("v_mov_b32 v%d, -1" % (v0 + r))
    i("s_lshl_b32 s27, s66, 3")
    i("s_and_b32 s28, s3, 3")
    i("s_lshl_b32 s28, s28, 1")
    i("s_add_u32 s27, s27, s28")
    i("s_lshl_b32 s27, s27, 10")
    i("s_add_u32 s27, s27, 0x%x" % WS_H1)
    i("s_mul_i32 s28, s67, 7")
    i("s_lshr_b32 s28, s28, 1")
    i("s_lshl_b32 s28, s28, 17")
    i("s_add_u32 s29, s27, s28")
    i("s_bitcmp1_b32 s67, 0")
    i("s_cbranch_scc1 %s" % skip)
    for par in range(2): i("buffer_store_dwordx4 v[%d:%d], v%d, s[8:11], s29 offen offset:%d sc1" % (v0, v0 + 3, v0 + 4, 1024 * par))
    lab(skip)
    for b_ in range(1, 4):
        i("s_add_u32 s29, s29, 131072")
        for par in range(2): i("buffer_store_dwordx4 v[%d:%d], v%d, s[8:11], s29 offen offset:%d sc1" % (v0, v0 + 3, v0 + 4, 1024 * par))
def st2_poison():
    i("s_mov_b64 s[68:69], exec")
    i("s_mov_b64 exec, 0xf")
    for r in range(4): i("v_mov_b32 v%d, -1" % (4 + r))
    i("v_lshlrev_b32 v8, 4, v1")
    i("s_lshl_b32 s13, s66, 10")
    i("s_lshl_b32 s46, s67, 6")
    i("s_add_u32 s13, s13, s46")
    i("s_add_u32 s13, s13, 0x%x" % WS_ST2)
    i("buffer_store_dwordx4 v[4:7], v8, s[8:11], s13 offen sc1")
    i("s_mov_b64 exec, s[68:69]")

def lds_wait(off, target, vt=4, sleep=1):
    top, d = uid("LW"), uid("LWD")
    i("v_mov_b32 v%d, %d" % (vt, MISC + off))
    lab(top)
    i("ds_read_b32 v%d, v%d" % (vt + 1, vt))
    i("s_waitcnt lgkmcnt(0)")
    i("v_readfirstlane_b32 s13, v%d" % (vt + 1))
    i("s_cmp_ge_u32 s13, %d" % target)
    i("s_cbranch_scc1 %s" % d)
    i("s_sleep %d" % sleep)
    i("s_branch %s" % top)
    lab(d)

def lds_add(off, va=4, rtn=False):
    i("s_mov_b64 exec, 1")
    i("v_mov_b32 v%d, %d" % (va, MISC + off))
    i("v_mov_b32 v%d, 1" % (va + 1))
    if rtn:
        i("ds_add_rtn_u32 v%d, v%d, v%d" % (va + 1, va, va + 1))
        i("s_waitcnt lgkmcnt(0)")
        i("v_readfirstlane_b32 s13, v%d" % (va + 1))
    else:
        i("ds_add_u32 v%d, v%d" % (va, va + 1))
    i("s_mov_b64 exec, -1")

def ln_finish(m, v, mr):
    i("v_mul_f32 v%d, 0x%x, v%d" % (m, INV640, m))
    i("v_mul_f32 v%d, 0x%x, v%d" % (v, INV640, v))
    i("v_fma_f32 v%d, -v%d, v%d, v%d" % (v, m, m, v))
    i("v_max_f32 v%d, 0, v%d" % (v, v))
    round_bf16(m, m)
    round_bf16(v, v)
    i("v_add_f32 v%d, 0x%x, v%d" % (v, EPS, v))
    round_bf16(v, v)
    i("v_sqrt_f32 v%d, v%d" % (v, v))
    nop(1)
    round_bf16(v, v)
    i("v_rcp_f32 v%d, v%d" % (v, v))
    nop(1)
    if mr: i("v_mul_f32 v%d, v%d, v%d" % (m, m, v))

W1S, W2R = 8, 120
W1V = 240
def w1_prep():
    i("s_mul_i32 s46, s67, 224")
    i("s_mov_b32 s47, %d" % ((1 << 20) // 14 + 1))
    for k in range(7):
        i("v_add_u32 v4, %d, v1" % (64 * k))
        i("v_mul_lo_u32 v5, v4, s47")
        i("v_lshrrev_b32 v5, 20, v5")
        i("v_mul_u32_u24 v6, 14, v5")
        i("v_sub_u32 v6, v4, v6")
        i("v_mul_u32_u24 v5, 3456, v5")
        i("v_lshl_add_u32 v5, v6, 4, v5")
        i("v_add_u32 v%d, s46, v5" % (W1V + k))
def w1_load(cr):
    for (c, rb_) in cr:
        i("s_and_b32 s46, s3, 3")
        i("s_add_u32 s46, s46, %d" % (4 * c))
        i("s_mul_i32 s46, s46, %d" % (32 * 3456))
        for t in range(7):
            r = rb_ + 4 * t
            i("buffer_load_dwordx4 v[%d:%d], v%d, s[48:51], s46 offen" % (r, r + 3, W1V + t))
W1MAP = [(0, 24), (1, 52), (2, 80), (3, 108), (4, 200)]
def w1_dma(chunks):
    for c in chunks:
        i("s_and_b32 s46, s3, 3")
        i("s_add_u32 s46, s46, %d" % (4 * c))
        i("s_mul_i32 s47, s46, %d" % (32 * 3456))
        i("s_mul_i32 s46, s46, 7168")
        for t in range(7):
            i("s_add_u32 m0, s46, %d" % (1024 * t))
            i("s_nop 0")
            i("buffer_load_dwordx4 v%d, s[48:51], s47 offen lds" % (W1V + t))
def w1_write(cr):
    i("v_lshlrev_b32 v4, 4, v1")
    for (c, rb_) in cr:
        i("s_and_b32 s46, s3, 3")
        i("s_add_u32 s46, s46, %d" % (4 * c))
        i("s_mul_i32 s46, s46, 7168")
        i("v_add_u32 v5, s46, v4")
        for t in range(7):
            r = rb_ + 4 * t
            i("ds_write_b128 v5, v[%d:%d] offset:%d" % (r, r + 3, 1024 * t))
def w2_load(steps, slots):
    for st, sl in zip(steps, slots):
        i("s_add_u32 s46, s61, %d" % (st * 5120))
        for dl in range(5):
            r = W2R + 20 * sl + 4 * dl
            if dl < 4:
                i("buffer_load_dwordx4 v[%d:%d], v4, s[8:11], s46 offen offset:%d sc1" % (r, r + 3, 1024 * dl))
            else:
                i("s_add_u32 s46, s46, 4096")
                i("buffer_load_dwordx4 v[%d:%d], v4, s[8:11], s46 offen sc1" % (r, r + 3))

def main():
    ref = open("cdna_kernels/%s.s.ref" % NAME).read().splitlines()
    for ln in ref:
        if ln.startswith("; Override"): break
        e(ln)
    e("; @launch grid=(256,1,1) block=(512,1,1) lds=%d" % LDS_TOTAL)
    e('.amdgcn_target "amdgcn-amd-amdhsa--gfx950"')
    e(".text")
    e(".globl %s" % KNAME)
    e(".p2align 8")
    e(".type %s,@function" % KNAME)
    lab(KNAME)
    i("s_cmp_ge_u32 s2, 256")
    i("s_cbranch_scc1 L_END")
    stamp(0)
    PFS = os.environ.get("PFS", "8")
    i("s_lshr_b32 s65, s2, 3")
    i("s_sub_u32 s46, s65, %s" % PFS)
    i("s_cmp_ge_u32 s46, 2")
    i("s_cbranch_scc1 L_NOPF")
    i("s_getpc_b64 s[46:47]")
    lab("L_PC")
    i("s_sub_u32 s46, s46, L_PC-%s" % KNAME)
    i("s_subb_u32 s47, s47, 0")
    i("v_lshlrev_b32 v4, 7, v0")
    i("v_cmp_gt_u32 vcc, L_CODE_END-%s, v4" % KNAME)
    i("s_and_saveexec_b64 s[68:69], vcc")
    i("s_cbranch_execz L_NOPF2")
    i("global_load_dword v253, v4, s[46:47]")
    lab("L_NOPF2")
    i("s_mov_b64 exec, s[68:69]")
    lab("L_NOPF")
    i("s_load_dwordx16 s[16:31], s[0:1], 0")
    i("s_load_dwordx8 s[36:43], s[0:1], 64")
    i("s_load_dwordx2 s[44:45], s[0:1], 96")
    i("s_load_dwordx4 s[32:35], s[0:1], 104")
    i("v_lshrrev_b32 v4, 6, v0")
    i("v_and_b32 v1, 63, v0")
    i("v_and_b32 v2, 15, v1")
    i("v_readfirstlane_b32 s3, v4")
    i("v_lshrrev_b32 v3, 4, v1")
    for r in (5, 6, 7) + tuple(range(240, 247)): i("v_mov_b32 v%d, 0" % r)
    i("s_and_b32 s64, s2, 7")
    i("s_lshr_b32 s65, s2, 3")
    i("s_lshr_b32 s66, s64, 1")
    i("s_lshl_b32 s66, s66, 2")
    i("s_lshr_b32 s46, s65, 3")
    i("s_add_u32 s66, s66, s46")
    i("s_and_b32 s67, s64, 1")
    i("s_lshl_b32 s67, s67, 3")
    i("s_and_b32 s46, s65, 7")
    i("s_add_u32 s67, s67, s46")
    i("s_and_b32 s46, s64, 1")
    i("s_lshl_b32 s46, s46, 2")
    i("s_and_b32 s47, s65, 3")
    i("s_add_u32 s60, s46, s47")
    i("s_mul_i32 s61, s60, 54")
    i("s_and_b32 s46, s3, 3")
    i("s_mul_i32 s46, s46, 7")
    i("s_add_u32 s61, s61, s46")
    i("s_lshr_b32 s46, s3, 2")
    i("s_mul_i32 s46, s46, 27")
    i("s_add_u32 s61, s61, s46")
    i("s_mul_i32 s61, s61, 5120")
    i("s_add_u32 s61, s61, 0x%x" % WS_W2P)
    i("s_waitcnt lgkmcnt(0)")
    srd(8, 34, WS_SIZE)
    srd(48, 36, D * F * 2)
    srd(52, 40, F * D * 2)
    srd(56, 32, 256)
    i("s_cmp_lg_u32 s3, 7")
    i("s_cbranch_scc1 L_NOST2")
    st2_poison()
    lab("L_NOST2")
    i("s_cmp_lt_u32 s65, 8")
    i("s_cbranch_scc1 L_STATS")
    i("s_cmp_lt_u32 s65, 28")
    i("s_cbranch_scc1 L_CONV")
    i("s_branch L_COLSUM")
    def rp_ids():
        i("s_sub_u32 s46, s65, 20")
        i("s_cmp_lt_u32 s65, 8")
        i("s_cselect_b32 s46, s65, s46")
        i("s_lshl_b32 s46, s46, 3")
        i("s_add_u32 s59x, s46, s64".replace("s59x", "s46"))
        i("s_mov_b32 s62, s46")
        i("s_mul_i32 s63, s3, 96")
        i("s_add_u32 s63, s63, s46")
    def rp_block():
        done = uid("RPD")
        i("s_cmp_ge_u32 s63, 432")
        i("s_cbranch_scc1 %s" % done)
        i("s_mul_i32 s14, s3, 5120")
        i("s_add_u32 s14, s14, 114688")
        i("s_mul_i32 s13, s63, 19419")
        i("s_lshr_b32 s13, s13, 20")
        i("s_mul_i32 s15, s13, 54")
        i("s_sub_u32 s15, s63, s15")
        i("s_mul_i32 s4, s15, %d" % (32 * 1280))
        i("s_mul_i32 s5, s13, 160")
        i("s_add_u32 s4, s4, s5")
        i("s_mov_b32 s47, %d" % ((1 << 20) // 10 + 1))
        for k in range(5):
            i("v_add_u32 v8, %d, v1" % (64 * k))
            i("v_mul_lo_u32 v9, v8, s47")
            i("v_lshrrev_b32 v9, 20, v9")
            i("v_mul_u32_u24 v10, 10, v9")
            i("v_sub_u32 v10, v8, v10")
            i("v_mul_u32_u24 v9, 1280, v9")
            i("v_lshl_add_u32 v9, v10, 4, v9")
            i("s_add_u32 m0, s14, %d" % (1024 * k))
            i("s_nop 0")
            i("buffer_load_dwordx4 v9, s[52:55], s4 offen lds")
        i("v_lshrrev_b32 v5, 2, v2")
        i("v_lshl_add_u32 v5, v3, 2, v5")
        i("v_and_b32 v6, 3, v2")
        i("v_lshlrev_b32 v6, 3, v6")
        i("v_mul_u32_u24 v5, 160, v5")
        i("v_add3_u32 v5, v5, v6, s14")
        i("v_lshlrev_b32 v7, 4, v1")
        i("s_mul_i32 s4, s63, 5120")
        i("s_add_u32 s4, s4, 0x%x" % WS_W2P)
        i("s_waitcnt vmcnt(0)")
        for t in range(5):
            i("ds_read_b64_tr_b16 v[%d:%d], v5 offset:%d" % (64 + 4 * t, 65 + 4 * t, 32 * t))
            i("ds_read_b64_tr_b16 v[%d:%d], v5 offset:%d" % (66 + 4 * t, 67 + 4 * t, 32 * t + 2560))
        for t in range(5):
            i("s_waitcnt lgkmcnt(%d)" % (8 - 2 * t))
            if t == 4: i("s_add_u32 s4, s4, 4096")
            i("buffer_store_dwordx4 v[%d:%d], v7, s[8:11], s4 offen offset:%d sc1" % (64 + 4 * t, 67 + 4 * t, 1024 * (t % 4)))
        lab(done)

    lab("L_STATS")
    i("s_lshl_b32 s46, s65, 3")
    i("s_add_u32 s12, s46, s64")
    i("s_lshl_b32 s13, s12, 5")
    i("s_lshl_b32 s14, s3, 2")
    i("s_add_u32 s13, s13, s14")
    i("v_add_u32 v4, s13, v3")
    i("v_mul_u32_u24 v5, 1280, v4")
    i("v_lshl_add_u32 v5, v2, 4, v5")
    for k in range(5):
        i("global_load_dwordx4 v[%d:%d], v5, s[16:17] offset:%d" % (32 + 4 * k, 35 + 4 * k, 256 * k))
    i("s_cmp_lg_u32 s12, 0")
    i("s_cbranch_scc1 L_NOZ")
    i("s_cmp_lg_u32 s3, 7")
    i("s_cbranch_scc1 L_NOZ")
    for r in range(4): i("v_mov_b32 v%d, 0" % (60 + r))
    i("v_lshlrev_b32 v6, 4, v1")
    i("s_mov_b32 s14, 0x%x" % WS_FL)
    for k in range(FL_SIZE // 1024):
        i("buffer_store_dwordx4 v[60:63], v6, s[8:11], s14 offen offset:%d sc1" % (1024 * k))
    lab("L_NOZ")
    i("v_mov_b32 v7, 0x3f803f80")
    for r in range(8, 16): i("v_mov_b32 v%d, 0" % r)
    i("s_waitcnt vmcnt(0)")
    for k in range(20):
        i("v_dot2_f32_bf16 v%d, v%d, v7, v%d" % (8 + (k & 3), 32 + k, 8 + (k & 3)))
        i("v_dot2_f32_bf16 v%d, v%d, v%d, v%d" % (12 + (k & 3), 32 + k, 32 + k, 12 + (k & 3)))
    nop(3)
    i("v_add_f32 v8, v8, v9")
    i("v_add_f32 v10, v10, v11")
    i("v_add_f32 v12, v12, v13")
    i("v_add_f32 v14, v14, v15")
    i("v_add_f32 v8, v8, v10")
    i("v_add_f32 v9, v12, v14")
    for r in (8, 4, 2, 1):
        nop(2)
        i("v_add_f32_dpp v8, v8, v8 row_ror:%d row_mask:0xf bank_mask:0xf" % r)
        i("v_add_f32_dpp v9, v9, v9 row_ror:%d row_mask:0xf bank_mask:0xf" % r)
    ln_finish(8, 9, False)
    i("v_lshlrev_b32 v4, 3, v4")
    i("v_cmp_eq_u32 vcc, 0, v2")
    i("s_and_saveexec_b64 s[68:69], vcc")
    i("s_mov_b32 s14, 0x%x" % WS_ST1)
    i("buffer_store_dwordx2 v[8:9], v4, s[8:11], s14 offen sc1")
    i("s_mov_b64 exec, s[68:69]")
    i("s_waitcnt vmcnt(0)")
    i("s_barrier")
    stamp(1)
    i("s_cmp_lg_u32 s3, 0")
    i("s_cbranch_scc1 L_NC1")
    arrive_last(DBG_C1, 64, DBG_GO1)
    i("s_branch L_NC1")
    lab("L_COLSUM")
    stamp(1)
    lab("L_NC1")
    rp_ids()
    i("s_cmp_lg_u32 s3, 7")
    i("s_cbranch_scc1 L_NC1A")
    i("v_lshlrev_b32 v8, 2, v1")
    i("v_add_u32 v8, %d, v8" % MISC)
    i("v_mov_b32 v9, 0")
    i("ds_write_b32 v8, v9")
    i("s_waitcnt lgkmcnt(0)")
    lab("L_NC1A")
    i("s_barrier")
    i("s_cmp_ge_u32 s3, 4")
    i("s_cbranch_scc1 L_NC_LD")
    rp_block()
    i("s_cmp_ge_u32 s62, 12")
    i("s_cbranch_scc1 L_NC2")
    i("s_lshl_b32 s63, s62, 2")
    i("s_add_u32 s63, s63, s3")
    i("s_add_u32 s63, s63, 384")
    i("s_waitcnt lgkmcnt(0)")
    rp_block()
    lab("L_NC2")
    i("s_waitcnt vmcnt(0)")
    stamp(4)
    lds_add(M_CH + 8, 4, rtn=True)
    i("s_cmp_lg_u32 s13, 3")
    i("s_cbranch_scc1 L_NC3")
    arrive_last(DBG_CW, 96, DBG_GOW)
    lab("L_NC3")
    i("s_cmp_lt_u32 s65, 28")
    i("s_cbranch_scc1 L_NC5")
    i("s_sub_u32 s46, s65, 28")
    i("s_lshl_b32 s46, s46, 3")
    i("s_add_u32 s12, s46, s64")
    i("s_cmp_ge_u32 s12, 27")
    i("s_cbranch_scc1 L_NC5")
    i("v_lshrrev_b32 v4, 3, v1")
    i("s_lshl_b32 s13, s3, 3")
    i("v_add_u32 v4, s13, v4")
    i("v_mul_u32_u24 v4, 3456, v4")
    i("v_and_b32 v5, 7, v1")
    i("v_lshl_add_u32 v4, v5, 4, v4")
    i("s_lshl_b32 s13, s12, 7")
    for it in range(20):
        i("buffer_load_dwordx4 v[%d:%d], v4, s[48:51], s13 offen" % (64 + 4 * it, 67 + 4 * it))
        i("s_add_u32 s13, s13, %d" % (32 * 3456))
    for r in range(8): i("v_mov_b32 v%d, 0" % (8 + r))
    for it in range(20):
        i("s_waitcnt vmcnt(%d)" % (19 - it))
        for dw in range(4):
            x = 64 + 4 * it + dw
            i("v_lshlrev_b32 v16, 16, v%d" % x)
            i("v_and_b32 v17, 0xffff0000, v%d" % x)
            i("v_pk_add_f32 v[%d:%d], v[%d:%d], v[16:17]" % (8 + 2 * dw, 9 + 2 * dw, 8 + 2 * dw, 9 + 2 * dw))
    nop(1)
    for r in range(8):
        i("v_add_f32_dpp v%d, v%d, v%d row_ror:8 row_mask:0xf bank_mask:0xf" % (8 + r, 8 + r, 8 + r))
    for op in ("v_permlane16_swap_b32", "v_permlane32_swap_b32"):
        for r in range(8): i("v_mov_b32 v%d, v%d" % (16 + r, 8 + r))
        nop(1)
        for r in range(8): i("%s v%d, v%d" % (op, 16 + r, 8 + r))
        nop(1)
        for r in range(8): i("v_add_f32 v%d, v%d, v%d" % (8 + r, 8 + r, 16 + r))
    i("v_lshlrev_b32 v4, 5, v1")
    i("s_lshl_b32 s13, s3, 8")
    i("s_add_u32 s13, s13, %d" % (MISC + 3072))
    i("v_add_u32 v4, s13, v4")
    i("s_mov_b64 exec, 0xff")
    i("ds_write_b128 v4, v[8:11]")
    i("ds_write_b128 v4, v[12:15] offset:16")
    i("s_mov_b64 exec, -1")
    i("s_waitcnt lgkmcnt(0)")
    lds_add(M_CH + 20, 4, rtn=True)
    i("s_cmp_lg_u32 s13, 3")
    i("s_cbranch_scc1 L_NC5")
    i("v_lshlrev_b32 v4, 2, v1")
    i("v_add_u32 v5, %d, v4" % (MISC + 3072))
    for w in range(4):
        i("ds_read_b32 v%d, v5 offset:%d" % (8 + w, 256 * w))
    i("s_waitcnt lgkmcnt(0)")
    for w in range(1, 4): i("v_add_f32 v8, v8, v%d" % (8 + w))
    i("s_lshl_b32 s13, s12, 8")
    i("s_add_u32 s13, s13, 0x%x" % WS_CS)
    i("buffer_store_dword v8, v4, s[8:11], s13 offen sc1")
    i("s_waitcnt vmcnt(0)")
    lds_add(M_CH + 24, 4)
    lab("L_NC5")
    stamp(3)
    i("s_branch L_PHASE_B")
    lab("L_NC_LD")
    i("s_cmp_lg_u32 s3, 7")
    i("s_cbranch_scc1 L_NC_L3")
    i("s_mov_b32 s46, %d" % DBG_GO1)
    poll(56, "s46", 1, 1, 8, sleep=2)
    lds_add(M_S1, 8)
    arrive_shard(FL_CP)
    lab("L_NC_L3")
    w1_prep()
    if os.environ.get("XLATE"):
        lds_wait(M_S1, 1, 4, sleep=4)
        i("s_cmp_lg_u32 s3, 7")
        lq = uid("XL")
        i("s_cbranch_scc1 %s" % lq)
        i("s_lshl_b32 s46, s64, 7")
        i("s_add_u32 s46, s46, 0x%x" % (WS_FL + FL_HINT))
        poll(8, "s46", 1, 1, 8, sleep=8)
        lds_add(M_CH + 28, 8)
        lab(lq)
        lds_wait(M_CH + 28, 1, 4, sleep=8)
    w1_dma([0, 1, 2, 3])
    lds_wait(M_CH + 8, 4, 4, sleep=4)
    w1_dma([4])
    h1_poison(248)
    i("s_waitcnt vmcnt(0)")
    lds_wait(M_S1, 1, 4, sleep=4)
    i("s_cmp_lt_u32 s65, 28")
    i("s_cbranch_scc1 L_NC_L4")
    i("s_sub_u32 s46, s65, 28")
    i("s_lshl_b32 s46, s46, 3")
    i("s_add_u32 s46, s46, s64")
    i("s_cmp_ge_u32 s46, 27")
    i("s_cbranch_scc1 L_NC_L4")
    lds_wait(M_CH + 24, 1, 4, sleep=4)
    lab("L_NC_L4")
    lds_add(M_CH + 12, 248, rtn=True)
    i("s_cmp_lg_u32 s13, 3")
    i("s_cbranch_scc1 L_PHASE_B")
    arrive_shard(FL_CP2, 248)
    i("s_branch L_PHASE_B")

    lab("L_CONV")
    i("s_mul_i32 s12, s64, 20")
    i("s_add_u32 s12, s12, s65")
    i("s_sub_u32 s12, s12, 8")
    i("s_lshl_b32 s13, s12, 2")
    i("s_and_b32 s14, s3, 3")
    i("s_add_u32 s15, s13, s14")
    i("s_lshr_b32 s46, s15, 1")
    i("s_lshl_b32 s46, s46, 2")
    i("s_load_dword s4, s[26:27], s46")
    i("s_load_dword s5, s[28:29], s46")
    i("s_lshr_b32 s6, s3, 2")
    i("s_lshl_b32 s46, s6, 6")
    i("v_add_u32 v4, s46, v1")
    i("s_lshl_b32 s47, s15, 8")
    i("v_lshl_add_u32 v5, v4, 1, s47")
    i("global_load_ushort v10, v5, s[18:19]")
    i("global_load_ushort v11, v5, s[20:21]")
    i("global_load_ushort v12, v5, s[22:23]")
    i("global_load_ushort v13, v5, s[24:25]")
    i("s_cmp_lt_u32 s3, 4")
    i("s_cbranch_scc1 L_CV_PH")
    i("v_subrev_u32 v6, 256, v0")
    i("v_mul_u32_u24 v6, %d, v6" % (8 * 1280))
    i("s_lshl_b32 s46, s13, 1")
    i("v_add_u32 v6, s46, v6")
    i("v_add_u32 v7, 5120, v6")
    for k in range(4):
        i("global_load_dwordx2 v[%d:%d], v6, s[16:17] offset:%d" % (100 + 2 * k, 101 + 2 * k, 1280 * k))
    i("s_branch L_CV_NOX")
    lab("L_CV_PH")
    for r in range(4): i("v_mov_b32 v%d, -1" % (60 + r))
    i("v_lshlrev_b32 v6, 4, v0")
    i("s_lshl_b32 s46, s12, 14")
    i("s_add_u32 s46, s46, 0x%x" % WS_H)
    for it in range(4):
        i("buffer_store_dwordx4 v[60:63], v6, s[8:11], s46 offen sc1")
        if it < 3: i("s_add_u32 s46, s46, 4096")
    lab("L_CV_NOX")
    i("s_mul_i32 s46, s14, %d" % FAC_CH)
    i("v_lshl_add_u32 v5, v4, 2, s46")
    i("s_waitcnt lgkmcnt(0)")
    i("s_and_b32 s46, s15, 1")
    i("s_lshl_b32 s46, s46, 4")
    i("s_lshr_b32 s4, s4, s46")
    i("s_lshl_b32 s4, s4, 16")
    i("s_lshr_b32 s5, s5, s46")
    i("s_lshl_b32 s5, s5, 16")
    i("v_mov_b32 v14, s4")
    i("v_mul_f32 v14, 0x%x, v14" % LOG2E)
    i("v_exp_f32 v14, v14")
    nop(1)
    round_bf16(14, 14)
    i("s_cmp_lt_u32 s3, 4")
    i("s_cbranch_scc1 L_CV_W0")
    i("s_waitcnt vmcnt(4)")
    i("s_branch L_CV_W1")
    lab("L_CV_W0")
    i("s_waitcnt vmcnt(4)")
    lab("L_CV_W1")
    stamp(1)
    if os.environ.get("TOUCH"):
        i("s_cmp_ge_u32 s3, 4")
        i("s_cbranch_scc1 L_CV_NT")
        i("s_lshl_b32 s46, s12, 2")
        i("s_add_u32 s46, s46, s3")
        i("s_cmp_lt_u32 s46, 320")
        i("s_cselect_b32 s4, s36, s40")
        i("s_cselect_b32 s6x, s37, s41".replace("s6x", "s7"))
        i("s_sub_u32 s47, s46, 320")
        i("s_cselect_b32 s46, s46, s47") if False else None
        i("s_cmp_lt_u32 s46, 320")
        i("s_cselect_b32 s46, s46, s47")
        i("s_mul_i32 s46, s46, %d" % (54 * 128))
        i("s_add_u32 s30, s4, s46")
        i("s_addc_u32 s31, s7, 0")
        i("v_lshlrev_b32 v200, 7, v1")
        i("s_mov_b32 exec_lo, -1")
        i("s_mov_b32 exec_hi, 0x3fffff")
        i("global_load_dword v201, v200, s[30:31]")
        i("s_mov_b64 exec, -1")
        lab("L_CV_NT")
    for r in (10, 11, 12, 13): i("v_lshlrev_b32 v%d, 16, v%d" % (r, r))
    i("v_mul_f32 v10, 0x%x, v10" % LOG2E)
    i("v_exp_f32 v10, v10")
    nop(1)
    round_bf16(10, 10)
    i("v_mul_f32 v10, v10, v14")
    i("v_mul_f32 v10, 0x%x, v10" % NLOG2E)
    i("v_mul_f32 v11, v11, v14")
    i("v_mul_f32 v11, %s, v11" % INV2PI)
    i("v_mul_f32 v12, v12, v14")
    i("v_mul_f32 v13, v13, v14")
    i("v_add_f32 v32, v12, v12")
    i("v_add_f32 v33, v13, v13")
    bases = [(20, 1), (22, 16), (24, 256), (26, 2), (28, 4), (30, 8)]
    for (dst, p) in bases:
        i("v_mul_f32 v%d, 0x%x, v10" % (dst, f2u(float(p))))
        i("v_mul_f32 v%d, 0x%x, v11" % (dst + 1, f2u(float(p))))
    for (dst, p) in bases:
        i("v_exp_f32 v%d, v%d" % (dst, dst))
        i("v_fract_f32 v%d, v%d" % (dst + 1, dst + 1))
    for n, (dst, p) in enumerate(bases):
        i("v_cos_f32 v%d, v%d" % (52 + n, dst + 1))
        i("v_sin_f32 v%d, v%d" % (dst + 1, dst + 1))
    nop(1)
    for n, (dst, p) in enumerate(bases):
        i("v_mul_f32 v%d, v%d, v%d" % (dst + 1, dst, dst + 1))
        i("v_mul_f32 v%d, v%d, v%d" % (dst, dst, 52 + n))
    i("v_mov_b32 v34, 1.0")
    i("v_mov_b32 v35, 0")
    i("v_mov_b32 v36, v32")
    i("v_mov_b32 v37, v33")
    chains = [dict(x=32, s=20, row=0, n=16, y=False, start=0), dict(x=34, s=22, row=47, n=16, y=True, start=0)]
    for (tau, s, row, n) in [(1, 26, 16, 9), (2, 28, 25, 5), (3, 28, 30, 5), (4, 30, 35, 3), (5, 30, 38, 3), (6, 30, 41, 3), (7, 30, 44, 3)]:
        chains.append(dict(x=36 + 2 * tau, s=s, row=row, n=n, y=False, start=tau))
    rnd = 0; pos = [0] * len(chains); tmpc = 0
    while any(pos[k] < c["n"] for k, c in enumerate(chains)):
        muls, fmas, cv, wr = [], [], [], []
        ti = 0
        if rnd < 7:
            t = 52 + 2 * ti; ti += 1
            x, d = 36 + 2 * rnd, 36 + 2 * (rnd + 1)
            muls.append("v_pk_mul_f32 v[%d:%d], v[%d:%d], v[24:25] op_sel:[0,0] op_sel_hi:[1,0]" % (t, t + 1, x, x + 1))
            fmas.append("v_pk_fma_f32 v[%d:%d], v[%d:%d], v[24:25], v[%d:%d] op_sel:[1,1,0] op_sel_hi:[0,1,1] neg_lo:[0,1,0]" % (d, d + 1, x, x + 1, t, t + 1))
        for k, c in enumerate(chains):
            if rnd >= c["start"] and pos[k] < c["n"]:
                x = c["x"]; p = 72 + (tmpc % 16); tmpc += 1
                cv.append("v_cvt_pk_bf16_f32 v%d, v%d, %sv%d" % (p, x, "" if c["y"] else "-", x + 1))
                wr.append("ds_write_b32 v5, v%d offset:%d" % (p, (c["row"] + pos[k]) * XROW))
                if pos[k] < c["n"] - 1:
                    t = 52 + 2 * ti; ti += 1
                    assert t + 1 < 72
                    muls.append("v_pk_mul_f32 v[%d:%d], v[%d:%d], v[%d:%d] op_sel:[0,0] op_sel_hi:[1,0]" % (t, t + 1, x, x + 1, c["s"], c["s"] + 1))
                    fmas.append("v_pk_fma_f32 v[%d:%d], v[%d:%d], v[%d:%d], v[%d:%d] op_sel:[1,1,0] op_sel_hi:[0,1,1] neg_lo:[0,1,0]" % (x, x + 1, x, x + 1, c["s"], c["s"] + 1, t, t + 1))
                pos[k] += 1
        if rnd in (1, 4, 7, 10):
            k = 4 + (rnd - 1) // 3
            lb = uid("XG")
            i("s_cmp_lt_u32 s3, 4")
            i("s_cbranch_scc1 %s" % lb)
            i("global_load_dwordx2 v[%d:%d], v7, s[16:17] offset:%d" % (100 + 2 * k, 101 + 2 * k, 1280 * (k & 3)))
            lab(lb)
        for s_ in cv + muls + wr + fmas: i(s_)
        rnd += 1
    stamp(2)
    i("s_cmp_lg_u32 s3, 4")
    i("s_cbranch_scc1 L_CV_B1")
    i("v_lshlrev_b32 v8, 2, v1")
    i("v_add_u32 v8, %d, v8" % MISC)
    i("v_mov_b32 v9, 0")
    i("ds_write_b32 v8, v9")
    lab("L_CV_B1")
    i("s_waitcnt lgkmcnt(0)")
    i("s_barrier")
    stamp(3)
    i("s_cmp_ge_u32 s3, 4")
    i("s_cbranch_scc1 L_CV_NORM")
    segp = {0: (0, 8, 4), 1: (16, 4, 2), 2: (25, 5, 2), 3: (35, 6, 3)}
    i("s_mul_i32 s46, s3, %d" % FAC_CH)
    i("v_lshrrev_b32 v8, 3, v2")
    i("v_bfe_u32 v9, v2, 2, 1")
    i("v_and_b32 v10, 3, v2")
    for t in range(4):
        b0, a0, c0 = segp[t]
        i("v_mul_u32_u24 v11, %d, v8" % a0)
        i("v_mul_u32_u24 v12, %d, v9" % c0)
        i("v_add3_u32 v11, v11, v12, v10")
        i("v_add_u32 v11, %d, v11" % b0)
        i("v_mul_u32_u24 v11, %d, v11" % XROW)
        i("v_lshl_add_u32 v11, v3, 4, v11")
        i("v_add_u32 v%d, s46, v11" % (16 + t))
    i("v_add_u32 v11, 47, v2")
    i("v_mul_u32_u24 v11, %d, v11" % XROW)
    i("v_lshl_add_u32 v11, v3, 4, v11")
    i("v_add_u32 v15, s46, v11")
    for mu in range(8):
        i("ds_read_b128 v[%d:%d], v15 offset:%d" % (32 + 4 * mu, 35 + 4 * mu, 64 * mu))
        i("ds_read_b128 v[%d:%d], v16 offset:%d" % (64 + 4 * mu, 67 + 4 * mu, 64 * mu))
    accs = [20, 24, 28, 192]
    for t in range(4):
        nxt = ["ds_read_b128 v[%d:%d], v%d offset:%d" % (64 + 32 * (t + 1) + 4 * mu, 67 + 32 * (t + 1) + 4 * mu, 17 + t, 64 * mu) for mu in range(8)] if t < 3 else []
        for s_ in nxt: i(s_)
        a0 = accs[t]
        for mu in range(8):
            if t == 0: i("s_waitcnt lgkmcnt(%d)" % min(15, 8 + 14 - 2 * mu))
            else: i("s_waitcnt lgkmcnt(%d)" % ((8 if nxt else 0) + 7 - mu))
            i("v_mfma_f32_16x16x32_bf16 v[%d:%d], v[%d:%d], v[%d:%d], %s" % (a0, a0 + 3, 64 + 32 * t + 4 * mu, 67 + 32 * t + 4 * mu, 32 + 4 * mu, 35 + 4 * mu, "0" if mu == 0 else "v[%d:%d]" % (a0, a0 + 3)))
    i("s_mul_i32 s46, s3, %d" % KCH)
    i("v_lshlrev_b32 v10, 5, v2")
    i("v_cmp_eq_u32 vcc, 0, v1")
    i("v_mov_b32 v11, s5")
    i("v_lshl_add_u32 v12, v3, 3, v10")
    i("v_cndmask_b32 v11, 0, v11, vcc")
    nop(4)
    i("v_add_f32 v20, v20, v11")
    i("v_cvt_pk_bf16_f32 v64, v23, v22")
    i("v_cvt_pk_bf16_f32 v65, v21, v20")
    i("v_sub_u32 v13, 4088, v12")
    i("v_add_u32 v13, s46, v13")
    i("ds_write_b64 v13, v[64:65]")
    i("v_cvt_pk_bf16_f32 v66, v26, v25")
    i("v_cvt_pk_bf16_f32 v67, v24, v24")
    i("v_sub_u32 v13, 3576, v12")
    i("v_add_u32 v13, s46, v13")
    i("ds_write_b64 v13, v[66:67]")
    i("v_cvt_pk_bf16_f32 v68, v30, v30")
    i("v_cvt_pk_bf16_f32 v69, v29, v29")
    i("v_cvt_pk_bf16_f32 v70, v29, v28")
    i("v_cvt_pk_bf16_f32 v71, v28, v28")
    i("v_lshrrev_b32 v11, 1, v3")
    i("v_lshl_add_u32 v12, v11, 9, v10")
    i("v_and_b32 v11, 1, v3")
    i("v_lshl_add_u32 v12, v11, 4, v12")
    i("v_sub_u32 v13, 3056, v12")
    i("v_add_u32 v13, s46, v13")
    i("ds_write_b128 v13, v[68:71]")
    i("v_cvt_pk_bf16_f32 v72, v194, v194")
    i("v_mov_b32 v73, v72")
    i("v_cvt_pk_bf16_f32 v74, v193, v193")
    i("v_mov_b32 v75, v74")
    i("v_mov_b32 v76, v74")
    i("v_cvt_pk_bf16_f32 v77, v193, v192")
    i("v_cvt_pk_bf16_f32 v78, v192, v192")
    i("v_mov_b32 v79, v78")
    i("v_lshl_add_u32 v12, v3, 9, v10")
    i("v_sub_u32 v13, 2016, v12")
    i("v_add_u32 v13, s46, v13")
    i("ds_write_b128 v13, v[72:75]")
    i("ds_write_b128 v13, v[76:79] offset:16")
    for r in range(4): i("v_mov_b32 v%d, 0" % (32 + r))
    i("v_bfe_u32 v8, v1, 2, 2")
    i("v_mul_u32_u24 v8, %d, v8" % KCP)
    i("v_and_b32 v9, 3, v1")
    i("v_lshl_add_u32 v8, v9, 4, v8")
    i("v_add_u32 v8, s46, v8")
    i("ds_write_b128 v8, v[32:35] offset:4096")
    i("v_lshl_add_u32 v8, v1, 3, s46")
    i("v_add_u32 v9, %d, v8" % KCP)
    i("v_add_u32 v10, %d, v8" % (2 * KCP))
    i("v_add_u32 v11, %d, v8" % (3 * KCP))
    i("s_waitcnt lgkmcnt(0)")
    for it in range(8):
        i("ds_read_b64 v[%d:%d], v8 offset:%d" % (32 + 4 * it, 33 + 4 * it, 512 * it))
        i("ds_read_b64 v[%d:%d], v8 offset:%d" % (34 + 4 * it, 35 + 4 * it, 512 * it + 8))
    for it in range(8):
        i("s_waitcnt lgkmcnt(%d)" % min(15, 14 - 2 * it + 3 * it))
        d = 32 + 4 * it; a = 64 + 4 * it
        i("v_alignbit_b32 v%d, v%d, v%d, 16" % (a, d + 1, d))
        i("v_alignbit_b32 v%d, v%d, v%d, 16" % (a + 1, d + 2, d + 1))
        i("v_alignbit_b32 v%d, v%d, v%d, 16" % (a + 2, d + 3, d + 2))
        o = 128 * it
        i("ds_write2_b32 v9, v%d, v%d offset0:%d offset1:%d" % (a, a + 1, o % 256, o % 256 + 1) if it < 2 else "ds_write2st64_b32 v9, v9, v9" ) if False else None
        if it and it % 1 == 0:
            i("v_add_u32 v9, 512, v9"); i("v_add_u32 v10, 512, v10"); i("v_add_u32 v11, 512, v11")
        i("ds_write2_b32 v9, v%d, v%d offset0:0 offset1:1" % (a, a + 1))
        i("ds_write2_b32 v10, v%d, v%d offset0:0 offset1:1" % (d + 1, d + 2))
        i("ds_write2_b32 v11, v%d, v%d offset0:0 offset1:1" % (a + 1, a + 2))
    i("s_waitcnt vmcnt(0)")
    i("s_branch L_CV_B2")
    lab("L_CV_NORM")
    w1_prep()
    i("s_cmp_lg_u32 s3, 4")
    i("s_cbranch_scc1 L_CV_NW")
    i("s_mov_b32 s46, %d" % DBG_GO1)
    poll(56, "s46", 1, 1, 8, sleep=1)
    lds_add(M_S1, 8)
    i("s_branch L_CV_NG")
    lab("L_CV_NW")
    lds_wait(M_S1, 1)
    lab("L_CV_NG")
    stamp(5)
    i("v_subrev_u32 v6, 256, v0")
    i("v_lshlrev_b32 v6, 6, v6")
    i("s_mov_b32 s46, 0x%x" % WS_ST1)
    for k in range(4):
        i("buffer_load_dwordx4 v[%d:%d], v6, s[8:11], s46 offen offset:%d sc1" % (120 + 4 * k, 123 + 4 * k, 16 * k))
    i("s_mov_b32 s46, 0x%x" % SEL_LO)
    i("s_mov_b32 s47, 0x%x" % SEL_HI)
    i("s_waitcnt vmcnt(4)")
    for ch in range(4):
        for ii in range(4):
            lo = 100 + 2 * (2 * ii) + (ch >> 1); hi = 100 + 2 * (2 * ii + 1) + (ch >> 1)
            i("v_perm_b32 v%d, v%d, v%d, s%d" % (136 + 4 * ch + ii, hi, lo, 46 + (ch & 1)))
    for k in range(8):
        for jj in range(2):
            x = 100 + 2 * k + jj
            i("v_lshlrev_b32 v%d, 16, v%d" % (168 + 4 * k + 2 * jj, x))
            i("v_and_b32 v%d, 0xffff0000, v%d" % (168 + 4 * k + 2 * jj + 1, x))
    i("s_waitcnt vmcnt(0)")
    stamp(8)
    for k in range(8):
        m = 120 + 2 * k; r = m + 1
        for jj in range(2):
            a = 168 + 4 * k + 2 * jj; b = a + 1
            i("v_sub_f32 v%d, v%d, v%d" % (a, a, m))
            i("v_sub_f32 v%d, v%d, v%d" % (b, b, m))
            i("v_cvt_pk_bf16_f32 v%d, v%d, v%d" % (8 + jj, a, b))
        for jj in range(2):
            a = 168 + 4 * k + 2 * jj; b = a + 1
            i("v_lshlrev_b32 v%d, 16, v%d" % (a, 8 + jj))
            i("v_and_b32 v%d, 0xffff0000, v%d" % (b, 8 + jj))
            i("v_mul_f32 v%d, v%d, v%d" % (a, a, r))
            i("v_mul_f32 v%d, v%d, v%d" % (b, b, r))
    for ch in range(4):
        for ii in range(4):
            i("v_cvt_pk_bf16_f32 v%d, v%d, v%d" % (152 + 4 * ch + ii, 168 + 4 * (2 * ii) + ch, 168 + 4 * (2 * ii + 1) + ch))
    i("v_subrev_u32 v6, 256, v0")
    i("v_bfe_u32 v7, v6, 2, 2")
    i("v_lshlrev_b32 v6, 6, v6")
    for ch in range(4):
        i("v_xor_b32 v8, %d, v7" % ch)
        i("v_lshl_add_u32 v%d, v8, 4, v6" % (20 + ch))
        i("v_add_u32 v9, %d, v%d" % (UL + 2048, 20 + ch))
        i("ds_write_b128 v9, v[%d:%d]" % (152 + 4 * ch, 155 + 4 * ch))
    i("v_mov_b32 v8, 0")
    i("v_mov_b32 v9, 0")
    i("v_subrev_u32 v6, 256, v0")
    i("v_lshlrev_b32 v6, 3, v6")
    i("v_add_u32 v6, %d, v6" % UL)
    i("ds_write_b64 v6, v[8:9]")
    lab("L_CV_B2")
    i("s_waitcnt lgkmcnt(0)")
    i("s_barrier")
    stamp(4)
    i("s_cmp_ge_u32 s3, 4")
    i("s_cbranch_scc1 L_CV_HELP")
    i("s_mul_i32 s15, s3, %d" % KCH)
    i("v_and_b32 v8, 3, v2")
    i("v_sub_u32 v8, 3, v8")
    i("v_mul_u32_u24 v8, %d, v8" % KCP)
    i("v_lshrrev_b32 v9, 2, v2")
    i("v_lshlrev_b32 v9, 3, v9")
    i("v_lshl_add_u32 v9, v3, 4, v9")
    i("v_sub_u32 v9, %d, v9" % (4104 - 4032))
    i("v_add3_u32 v10, v8, v9, s15")
    i("v_lshlrev_b32 v8, 1, v2")
    i("v_add_u32 v8, 1, v8")
    i("v_sub_u32 v8, v8, v3")
    i("v_ashrrev_i32 v9, 2, v8")
    i("v_lshlrev_b32 v8, 6, v8")
    i("v_add_u32 v8, %d, v8" % (UL + 256))
    for r in range(4):
        i("v_subrev_u32 v11, %d, v9" % r)
        i("v_and_b32 v11, 3, v11")
        i("v_xor_b32 v11, s3, v11")
        i("v_lshl_add_u32 v%d, v11, 4, v8" % (12 + r))
    def FR(s, ii): return 24 + 64 * s + 4 * ii
    def GR(s, jj): return 24 + 64 * s + 32 + 4 * jj
    ACC = 160
    def reads(rho):
        s = rho & 1; lst = []
        for ii in range(8):
            sig = rho + 8 * ii; off = 64 * (63 - sig)
            lst.append("ds_read_b64 v[%d:%d], v10 offset:%d" % (FR(s, ii), FR(s, ii) + 1, off))
            lst.append("ds_read_b64 v[%d:%d], v10 offset:%d" % (FR(s, ii) + 2, FR(s, ii) + 3, off + 8))
            lst.append("ds_read_b128 v[%d:%d], v%d offset:%d" % (GR(s, ii), GR(s, ii) + 3, 12 + (rho & 3), 2048 * ii + 256 * (7 - rho)))
        return lst
    for r in reads(0): i(r)
    i("v_lshrrev_b32 v16, 1, v3")
    i("v_lshl_add_u32 v16, v2, 1, v16")
    i("v_bfe_u32 v17, v16, 2, 2")
    i("v_xor_b32 v17, s3, v17")
    i("v_lshlrev_b32 v16, 6, v16")
    i("v_lshl_add_u32 v16, v17, 4, v16")
    i("v_and_b32 v17, 1, v3")
    i("v_lshl_add_u32 v16, v17, 3, v16")
    i("v_add_u32 v16, %d, v16" % XL)
    for rho in range(8):
        s = rho & 1
        nxt = reads(rho + 1) if rho < 7 else ["ds_read_b64 v[%d:%d], v16 offset:%d" % (200 + 2 * al, 201 + 2 * al, 2048 * al) for al in range(8)]
        if rho == 7: lds_wait(M_XT, 4, 18)
        i("s_waitcnt lgkmcnt(0)")
        mf = []
        for al in range(8):
            for ii in range(al + 1):
                jj = al - ii
                first = (rho == 0 and ii == 0)
                mf.append("v_mfma_f32_16x16x32_bf16 v[%d:%d], v[%d:%d], v[%d:%d], %s" % (
                    ACC + 4 * al, ACC + 4 * al + 3, FR(s, ii), FR(s, ii) + 3, GR(s, jj), GR(s, jj) + 3,
                    "0" if first else "v[%d:%d]" % (ACC + 4 * al, ACC + 4 * al + 3)))
        k = 0
        for n, m in enumerate(mf):
            i(m)
            if k < len(nxt) and n < 30:
                i(nxt[k]); k += 1
        while k < len(nxt):
            i(nxt[k]); k += 1
    stamp(5)
    i("s_waitcnt lgkmcnt(0)")
    lds_add(M_MD, 4)
    lds_wait(M_MD, 4, 4)
    i("v_lshlrev_b32 v8, 5, v2")
    i("v_lshl_add_u32 v8, v3, 3, v8")
    i("s_lshl_b32 s46, s3, 12")
    i("s_add_u32 s46, s46, %d" % TL)
    i("v_add_u32 v8, s46, v8")
    for al in range(8):
        x0, x1 = 200 + 2 * al, 201 + 2 * al
        a = ACC + 4 * al
        i("v_lshlrev_b32 v20, 16, v%d" % x0)
        i("v_and_b32 v21, 0xffff0000, v%d" % x0)
        i("v_lshlrev_b32 v22, 16, v%d" % x1)
        i("v_and_b32 v23, 0xffff0000, v%d" % x1)
        i("v_pk_add_f32 v[20:21], v[20:21], v[%d:%d]" % (a, a + 1))
        i("v_pk_add_f32 v[22:23], v[22:23], v[%d:%d]" % (a + 2, a + 3))
        i("v_cvt_pk_bf16_f32 v%d, v20, v21" % (24 + 2 * al))
        i("v_cvt_pk_bf16_f32 v%d, v22, v23" % (25 + 2 * al))
        i("ds_write_b64 v8, v[%d:%d] offset:%d" % (24 + 2 * al, 25 + 2 * al, 512 * al))
    i("s_waitcnt lgkmcnt(0)")
    lds_add(M_TR + 16, 4)
    lds_wait(M_TR + 16, 4)
    i("v_lshlrev_b32 v252, 2, v0")
    i("v_add_u32 v252, %d, v252" % TL)
    i("v_lshlrev_b32 v253, 4, v0")
    i("s_lshl_b32 s14, s12, 14")
    i("s_add_u32 s14, s14, 0x%x" % WS_H)
    i("s_mov_b32 s46, 0x%x" % SEL_LO)
    i("s_mov_b32 s47, 0x%x" % SEL_HI)
    for it in range(4):
        for ch in range(4):
            i("ds_read_b32 v%d, v252 offset:%d" % (8 + 4 * it + ch, ch * 4096 + it * 1024))
    for it in range(4):
        i("s_waitcnt lgkmcnt(%d)" % (12 - 4 * it))
        b = 8 + 4 * it; o = 32 + 4 * it
        i("v_perm_b32 v%d, v%d, v%d, s46" % (o, b + 1, b))
        i("v_perm_b32 v%d, v%d, v%d, s46" % (o + 1, b + 3, b + 2))
        i("v_perm_b32 v%d, v%d, v%d, s47" % (o + 2, b + 1, b))
        i("v_perm_b32 v%d, v%d, v%d, s47" % (o + 3, b + 3, b + 2))
        i("buffer_store_dwordx4 v[%d:%d], v253, s[8:11], s14 offen sc1" % (o, o + 3))
        if it < 3: i("s_add_u32 s14, s14, 4096")
    lds_add(M_TR, 4)
    i("s_cmp_lg_u32 s65, 8")
    i("s_cbranch_scc1 L_CV_NH")
    i("s_cmp_lg_u32 s3, 0")
    i("s_cbranch_scc1 L_CV_NH")
    i("s_lshl_b32 s13, s64, 7")
    i("s_add_u32 s13, s13, 0x%x" % (WS_FL + FL_HINT))
    set_flag(8, "s13", 4)
    lab("L_CV_NH")
    stamp(6)
    i("s_branch L_PHASE_B")
    lab("L_CV_HELP")
    for ch in range(4):
        i("v_add_u32 v9, %d, v%d" % (XL, 20 + ch))
        i("ds_write_b128 v9, v[%d:%d]" % (136 + 4 * ch, 139 + 4 * ch))
    i("s_waitcnt lgkmcnt(0)")
    lds_add(M_XT, 8)
    i("s_cmp_lg_u32 s3, 4")
    i("s_cbranch_scc1 L_CV_NCP")
    arrive_shard(FL_CP, 248)
    lab("L_CV_NCP")
    w1_load(W1MAP)
    stamp(12)
    h1_poison(248)
    stamp(9)
    lds_wait(M_MD, 4, 4, sleep=1)
    stamp(13)
    i("s_bitcmp1_b32 s67, 0")
    i("s_cbranch_scc1 L_CV_V6")
    i("s_waitcnt vmcnt(8)")
    i("s_branch L_CV_V8")
    lab("L_CV_V6")
    i("s_waitcnt vmcnt(6)")
    lab("L_CV_V8")
    stamp(14)
    w1_write(W1MAP[0:4])
    i("s_cmp_lg_u32 s3, 7")
    i("s_cbranch_scc1 L_CV_W4")
    lds_wait(M_TR, 4, 6, sleep=1)
    lab("L_CV_W4")
    w1_write(W1MAP[4:5])
    i("s_waitcnt vmcnt(0)")
    lds_add(M_GP, 248, rtn=True)
    i("s_cmp_lg_u32 s13, 3")
    i("s_cbranch_scc1 L_CV_NGP")
    arrive_shard(FL_CP2, 248)
    lab("L_CV_NGP")
    stamp(6)

    lab("L_PHASE_B")
    if STOP == "A": i("s_branch L_FIN")
    i("s_cmp_lg_u32 s3, 0")
    i("s_cbranch_scc1 L_B_W")
    lds_wait(M_S1, 1, 8)
    i("s_lshl_b32 s46, s64, 7")
    i("s_add_u32 s46, s46, 0x%x" % (WS_FL + FL_HINT))
    poll(8, "s46", 1, 1, 8, sleep=8)
    poll_shards(FL_CP, 8, sleep=16)
    lab("L_B_W")
    i("s_waitcnt lgkmcnt(0)")
    i("s_barrier")
    stamp(7)
    i("s_cmp_ge_u32 s3, 4")
    i("s_cbranch_scc1 L_B_LOAD")
    HB, RING, ACC, WF = 16, 13, 64, 120
    def HS(kap):
        j = kap % RING
        return 16 + 8 * j if j < 6 else 176 + 8 * (j - 6)
    i("s_lshl_b32 s12, s66, 7")
    i("s_lshl_b32 s13, s3, 5")
    i("s_add_u32 s12, s12, s13")
    i("v_lshlrev_b32 v5, 14, v3")
    i("v_lshl_add_u32 v5, v2, 4, v5")
    i("s_lshl_b32 s13, s12, 3")
    i("v_add_u32 v5, s13, v5")
    i("v_lshlrev_b32 v4, 4, v1")
    vq = []
    def hl(kap, half):
        r = HS(kap) + 4 * half
        i("s_mov_b32 s13, 0x%x" % (WS_H + kap * 8 * 16384 + half * 4 * 16384))
        i("buffer_load_dwordx4 v[%d:%d], v5, s[8:11], s13 offen sc1" % (r, r + 3))
        vq.append(("h", kap, half))
    INIT = int(os.environ.get("INIT", "6"))
    pend = [(k_, h_) for k_ in range(20) for h_ in range(2)]
    for _ in range(2 * INIT):
        hl(*pend.pop(0))
    i("v_lshrrev_b32 v6, 2, v2")
    i("v_lshl_add_u32 v6, v3, 2, v6")
    i("v_mul_u32_u24 v6, 224, v6")
    i("v_and_b32 v7, 3, v2")
    i("v_lshl_add_u32 v8, v7, 3, v6")
    i("v_add_u32 v9, %d, v8" % (8 * 7168))
    i("v_add_u32 v10, %d, v8" % (16 * 7168))
    def wreads(kap):
        s = kap & 1; base = 8 + kap // 8; o = (kap % 8) * 7168; lst = []
        for t in range(7):
            r = WF + 28 * s + 4 * t
            lst.append("ds_read_b64_tr_b16 v[%d:%d], v%d offset:%d" % (r, r + 1, base, o + 32 * t))
            lst.append("ds_read_b64_tr_b16 v[%d:%d], v%d offset:%d" % (r + 2, r + 3, base, o + 32 * t + 3584))
        return lst
    i("v_mov_b32 v11, %d" % (MISC + M_CH + 16))
    i("v_mov_b32 v12, 1")
    for r in wreads(0): i(r)
    def swaps(kap):
        r = HS(kap)
        return ["v_swap_b32 v%d, v%d" % (r + 2, r + 4), "v_swap_b32 v%d, v%d" % (r + 3, r + 5)]
    def wait_h(kap):
        idx = max(n for n, x in enumerate(vq) if x[0] == "h" and x[1] == kap)
        return "s_waitcnt vmcnt(%d)" % min(63, len(vq) - 1 - idx)
    slow = []
    EARLYCHK = os.environ.get("EARLYCHK", "1") == "1"
    def check_h(kap, part=0):
        r = HS(kap)
        if part in (0, 1):
            i("v_max3_u32 v6, v%d, v%d, v%d" % (r, r + 2, r + 4))
            i("v_max_u32 v6, v6, v%d" % (r + 6))
            i("v_cmp_eq_u32 vcc, -1, v6")
            if part == 1: return
        bad, back = uid("HBAD"), uid("HOK")
        i("s_cbranch_vccnz %s" % bad)
        lab(back)
        later = sorted(set(x[1] for x in vq if x[0] == "h" and x[1] > kap))
        slow.append((bad, back, kap, later))
    if os.environ.get("XMID"):
        i("s_mov_b32 s96, 0")
        i("s_mov_b32 s97, 0")
    i(wait_h(0))
    check_h(0)
    lds_add(M_CH + 28, 6)
    stamp(12)
    for s_ in swaps(0): i(s_)
    w2pf = [(3, 0), (3, 1), (3, 2), (3, 3), (3, 4), (4, 0), (4, 1), (4, 2), (4, 3), (4, 4), (5, 0), (5, 1), (5, 2), (5, 3), (5, 4)]
    for kap in range(20):
        s = kap & 1
        nxt = wreads(kap + 1) if kap < 19 else []
        if os.environ.get("XMID") and kap in (4, 8, 12, 16): stamp({4: 3, 8: 4, 12: 5, 16: 6}[kap])
        if os.environ.get("XCYC") and kap == 12: i("s_memtime s[90:91]")
        if os.environ.get("XCYC") and kap == 16: i("s_memtime s[92:93]")
        i("s_waitcnt lgkmcnt(0)")
        k = 0; n = 0
        for t in range(7):
            for par in range(2):
                a = ACC + 8 * t + 4 * par
                h = HS(kap) + 4 * par
                w = WF + 28 * s + 4 * t
                i("v_mfma_f32_16x16x32_bf16 v[%d:%d], v[%d:%d], v[%d:%d], %s" % (a, a + 3, w, w + 3, h, h + 3, "0" if kap == 0 else "v[%d:%d]" % (a, a + 3)))
                if k < len(nxt):
                    i(nxt[k]); k += 1
                if n in (1, 5, 8, 12) and pend and pend[0][0] <= kap - 1 + RING:
                    hl(*pend.pop(0))
                    if not pend:
                        i("s_mov_b64 exec, 1")
                        i("ds_add_u32 v11, v12")
                        i("s_mov_b64 exec, -1")
                if EARLYCHK:
                    if n == 3 and kap < 19:
                        i(wait_h(kap + 1))
                        check_h(kap + 1, part=1)
                    if n == 9 and kap < 19:
                        check_h(kap + 1, part=2)
                    if n == 11 and kap < 19:
                        for s_ in swaps(kap + 1): i(s_)
                elif n == 11 and kap < 19:
                    i(wait_h(kap + 1))
                    check_h(kap + 1)
                    for s_ in swaps(kap + 1): i(s_)
                n += 1
    stamp(8)
    lds_wait(M_EP + 4, 2, 6)
    stamp(14)
    i("v_lshlrev_b32 v6, 4, v2")
    i("s_lshl_b32 s13, s3, 8")
    i("s_add_u32 s13, s13, %d" % (MISC + M_STAT))
    i("v_add_u32 v6, s13, v6")
    i("ds_read_b128 v[12:15], v6")
    i("v_lshlrev_b32 v7, 4, v3")
    i("v_add_u32 v7, %d, v7" % MISC)
    for t in range(7):
        i("ds_read_b128 v[%d:%d], v7 offset:%d" % (120 + 4 * t, 123 + 4 * t, M_CS + 64 * t))
        i("ds_read_b128 v[%d:%d], v7 offset:%d" % (148 + 4 * t, 151 + 4 * t, M_B1 + 64 * t))
    i("s_lshl_b32 s27, s66, 3")
    i("s_lshl_b32 s28, s3, 1")
    i("s_add_u32 s27, s27, s28")
    i("s_lshl_b32 s27, s27, 10")
    i("s_add_u32 s27, s27, 0x%x" % WS_H1)
    i("s_mul_i32 s28, s67, 7")
    i("s_waitcnt lgkmcnt(0)")
    def tile(t, par, o):
        a = ACC + 8 * t + 4 * par
        st = 12 + 2 * par
        cs = 120 + 4 * t; b1 = 148 + 4 * t
        tmp = 232 + 4 * ((t + par) & 1) + 8 * par
        for hh in range(2):
            i("v_pk_fma_f32 v[%d:%d], v[%d:%d], v[%d:%d], v[%d:%d] op_sel:[0,0,0] op_sel_hi:[1,0,1] neg_lo:[0,1,0] neg_hi:[0,1,0]" % (tmp + 2 * hh, tmp + 2 * hh + 1, cs + 2 * hh, cs + 2 * hh + 1, st, st + 1, b1 + 2 * hh, b1 + 2 * hh + 1))
        for hh in range(2):
            i("v_pk_fma_f32 v[%d:%d], v[%d:%d], v[%d:%d], v[%d:%d] op_sel:[0,1,0] op_sel_hi:[1,1,1]" % (tmp + 2 * hh, tmp + 2 * hh + 1, a + 2 * hh, a + 2 * hh + 1, st, st + 1, tmp + 2 * hh, tmp + 2 * hh + 1))
        for r in range(4): i("v_max_f32 v%d, 0, v%d" % (tmp + r, tmp + r))
        for hh in range(2):
            i("v_pk_mul_f32 v[%d:%d], v[%d:%d], v[%d:%d]" % (tmp + 2 * hh, tmp + 2 * hh + 1, tmp + 2 * hh, tmp + 2 * hh + 1, tmp + 2 * hh, tmp + 2 * hh + 1))
        i("v_cvt_pk_bf16_f32 v%d, v%d, v%d" % (o, tmp, tmp + 1))
        i("v_cvt_pk_bf16_f32 v%d, v%d, v%d" % (o + 1, tmp + 2, tmp + 3))
    def beta_off(t):
        i("s_add_u32 s29, s28, %d" % t)
        i("s_lshr_b32 s29, s29, 1")
        i("s_lshl_b32 s29, s29, 17")
        i("s_add_u32 s29, s29, s27")
    def epi(pairs, single, half):
        o = 16
        def do_single():
            nonlocal o
            beta_off(single)
            for par in range(2):
                tile(single, par, o)
                i("buffer_store_dwordx2 v[%d:%d], v4, s[8:11], s29 offen offset:%d sc1" % (o, o + 1, 1024 * par + 8 * half))
                o += 4
        if half == 1: do_single()
        for t in pairs:
            beta_off(t)
            for par in range(2):
                tile(t, par, o)
                tile(t + 1, par, o + 2)
                i("buffer_store_dwordx4 v[%d:%d], v4, s[8:11], s29 offen offset:%d sc1" % (o, o + 3, 1024 * par))
                o += 4
        if half == 0: do_single()
    stamp(1)
    i("s_bitcmp1_b32 s67, 0")
    i("s_cbranch_scc1 L_B_ODD")
    epi((0, 2, 4), 6, 0)
    i("s_branch L_B_STD")
    lab("L_B_ODD")
    epi((1, 3, 5), 0, 1)
    lab("L_B_STD")
    stamp(9)
    lds_add(M_CH + 40, 6)
    lds_wait(M_EP, 1, 6)
    i("s_branch L_PHASE_C")
    for (bad, back, kap, later) in slow:
        r = HS(kap)
        lab(bad)
        if os.environ.get("XMID"): i("s_add_u32 s96, s96, 1")
        i("s_mov_b32 s47, 0")
        top = uid("HT")
        lab(top)
        i("s_sleep 2")
        for k2 in [kap] + later:
            r2 = HS(k2)
            i("s_mov_b32 s13, 0x%x" % (WS_H + k2 * 8 * 16384))
            i("buffer_load_dwordx4 v[%d:%d], v5, s[8:11], s13 offen sc1" % (r2, r2 + 3))
            i("s_mov_b32 s13, 0x%x" % (WS_H + k2 * 8 * 16384 + 4 * 16384))
            i("buffer_load_dwordx4 v[%d:%d], v5, s[8:11], s13 offen sc1" % (r2 + 4, r2 + 7))
        i("s_waitcnt vmcnt(0)")
        i("v_max3_u32 v6, v%d, v%d, v%d" % (r, r + 2, r + 4))
        i("v_max_u32 v6, v6, v%d" % (r + 6))
        i("v_cmp_eq_u32 vcc, -1, v6")
        i("s_cbranch_vccz %s" % back)
        i("s_add_u32 s47, s47, 1")
        i("s_cmp_lt_u32 s47, %d" % SPIN_LIMIT)
        i("s_cbranch_scc1 %s" % top)
        i("s_branch %s" % back)

    lab("L_B_LOAD")
    lds_wait(M_CH + 28, 1, 4, sleep=4)
    i("s_lshl_b32 s12, s66, 7")
    i("s_lshl_b32 s13, s67, 3")
    i("s_add_u32 s12, s12, s13")
    i("s_sub_u32 s14, s3, 4")
    i("s_mul_i32 s14, s14, 40")
    i("v_lshrrev_b32 v5, 2, v1")
    i("v_add_u32 v5, s14, v5")
    i("v_and_b32 v6, 3, v1")
    i("v_lshlrev_b32 v7, 14, v5")
    i("v_lshl_add_u32 v7, v6, 4, v7")
    i("s_lshl_b32 s13, s12, 3")
    i("s_add_u32 s13, s13, 0x%x" % WS_H)
    i("s_mov_b32 s15, s13")
    i("s_mov_b32 s47, 0")
    for r in range(4): i("v_mov_b32 v%d, 0" % (24 + r))
    lab("L_LS_TOP")
    i("s_mov_b32 s13, s15")
    for k in range(3):
        if k == 2: i("s_mov_b64 exec, 0xffffffff")
        i("buffer_load_dwordx4 v[%d:%d], v7, s[8:11], s13 offen sc1" % (16 + 4 * k, 19 + 4 * k))
        i("s_add_u32 s13, s13, %d" % (16 * 16384))
    i("s_mov_b64 exec, -1")
    i("s_waitcnt vmcnt(0)")
    i("v_max3_u32 v8, v16, v18, v20")
    i("v_max3_u32 v9, v22, v24, v26")
    i("v_max_u32 v8, v8, v9")
    i("v_cmp_eq_u32 vcc, -1, v8")
    i("s_cbranch_vccz L_LS_OK")
    i("s_sleep 8")
    i("s_add_u32 s47, s47, 1")
    i("s_cmp_lt_u32 s47, %d" % SPIN_LIMIT)
    i("s_cbranch_scc1 L_LS_TOP")
    lab("L_LS_OK")
    i("v_mov_b32 v7, 0x3f803f80")
    for r in range(8, 16): i("v_mov_b32 v%d, 0" % r)
    for k in range(3):
        for hf in range(2):
            for dw in range(2):
                x = 16 + 4 * k + 2 * hf + dw
                i("v_dot2_f32_bf16 v%d, v%d, v7, v%d" % (8 + 4 * dw + 2 * hf, x, 8 + 4 * dw + 2 * hf))
                i("v_dot2_f32_bf16 v%d, v%d, v%d, v%d" % (9 + 4 * dw + 2 * hf, x, x, 9 + 4 * dw + 2 * hf))
    nop(3)
    for r in range(4): i("v_add_f32 v%d, v%d, v%d" % (8 + r, 8 + r, 12 + r))
    for rr in (8, 4):
        nop(2)
        for r in range(4):
            i("v_add_f32_dpp v%d, v%d, v%d row_ror:%d row_mask:0xf bank_mask:0xf" % (8 + r, 8 + r, 8 + r, rr))
    for op in ("v_permlane16_swap_b32", "v_permlane32_swap_b32"):
        for r in range(4): i("v_mov_b32 v%d, v%d" % (12 + r, 8 + r))
        nop(1)
        for r in range(4): i("%s v%d, v%d" % (op, 12 + r, 8 + r))
        nop(1)
        for r in range(4): i("v_add_f32 v%d, v%d, v%d" % (8 + r, 8 + r, 12 + r))
    i("s_sub_u32 s13, s3, 4")
    i("s_lshl_b32 s13, s13, 6")
    i("s_add_u32 s13, s13, %d" % (MISC + 2304))
    i("v_lshlrev_b32 v5, 4, v1")
    i("v_add_u32 v5, s13, v5")
    i("s_mov_b64 exec, 0xf")
    i("ds_write_b128 v5, v[8:11]")
    i("s_mov_b64 exec, -1")
    i("s_waitcnt lgkmcnt(0)")
    lds_add(M_ST, 4, rtn=True)
    i("s_cmp_eq_u32 s13, 0")
    i("s_cbranch_scc1 L_B_CSP")
    i("s_cmp_lg_u32 s13, 3")
    i("s_cbranch_scc1 L_B_LD1")
    i("s_mov_b64 exec, 0xf")
    i("v_lshlrev_b32 v5, 4, v1")
    i("v_add_u32 v5, %d, v5" % (MISC + 2304))
    for w in range(4):
        i("ds_read_b128 v[%d:%d], v5 offset:%d" % (16 + 4 * w, 19 + 4 * w, 64 * w))
    i("s_waitcnt lgkmcnt(0)")
    for w in range(1, 4):
        i("v_pk_add_f32 v[16:17], v[16:17], v[%d:%d]" % (16 + 4 * w, 17 + 4 * w))
        i("v_pk_add_f32 v[18:19], v[18:19], v[%d:%d]" % (18 + 4 * w, 19 + 4 * w))
    ln_finish(16, 17, True)
    ln_finish(18, 19, True)
    i("v_lshlrev_b32 v5, 4, v1")
    i("s_lshl_b32 s13, s12, 3")
    i("s_add_u32 s13, s13, 0x%x" % WS_ST2)
    i("buffer_store_dwordx4 v[16:19], v5, s[8:11], s13 offen sc1")
    i("s_mov_b64 exec, -1")
    i("v_lshlrev_b32 v5, 4, v1")
    i("s_lshl_b32 s13, s66, 10")
    i("s_add_u32 s13, s13, 0x%x" % WS_ST2)
    i("s_mov_b32 s47, 0")
    lab("L_ST2_TOP")
    i("buffer_load_dwordx4 v[16:19], v5, s[8:11], s13 offen sc1")
    i("s_waitcnt vmcnt(0)")
    i("v_max_u32 v8, v17, v19")
    i("v_cmp_eq_u32 vcc, -1, v8")
    i("s_cbranch_vccz L_ST2_OK")
    i("s_sleep 4")
    i("s_add_u32 s47, s47, 1")
    i("s_cmp_lt_u32 s47, %d" % SPIN_LIMIT)
    i("s_cbranch_scc1 L_ST2_TOP")
    lab("L_ST2_OK")
    i("v_add_u32 v6, %d, v5" % (MISC + M_STAT))
    i("ds_write_b128 v6, v[16:19]")
    i("s_waitcnt lgkmcnt(0)")
    lds_add(M_EP + 4, 6)
    i("s_branch L_B_LD1")
    lab("L_B_CSP")
    poll_shards(FL_CP2, 24, sleep=16)
    i("s_mul_i32 s14, s67, 112")
    i("v_lshlrev_b32 v5, 2, v1")
    i("s_lshl_b32 s13, s14, 2")
    i("s_add_u32 s13, s13, 0x%x" % WS_CS)
    i("buffer_load_dword v20, v5, s[8:11], s13 offen sc1")
    i("buffer_load_dword v21, v5, s[8:11], s13 offen offset:256 sc1")
    srd(4, 38, F * 2)
    i("v_lshlrev_b32 v6, 1, v1")
    i("s_lshl_b32 s13, s14, 1")
    i("buffer_load_ushort v22, v6, s[4:7], s13 offen")
    i("buffer_load_ushort v23, v6, s[4:7], s13 offen offset:128")
    i("s_waitcnt vmcnt(0)")
    i("v_lshlrev_b32 v22, 16, v22")
    i("v_lshlrev_b32 v23, 16, v23")
    i("v_add_u32 v6, %d, v5" % MISC)
    i("ds_write_b32 v6, v20 offset:%d" % M_CS)
    i("ds_write_b32 v6, v21 offset:%d" % (M_CS + 256))
    i("ds_write_b32 v6, v22 offset:%d" % M_B1)
    i("ds_write_b32 v6, v23 offset:%d" % (M_B1 + 256))
    i("s_waitcnt lgkmcnt(0)")
    lds_add(M_EP + 4, 6)
    lab("L_B_LD1")
    i("s_mov_b32 s46, %d" % DBG_GOW)
    poll(56, "s46", 1, 1, 8, sleep=2)
    lds_add(M_EP, 8)
    lds_wait(M_CH + 16, 4, 6, sleep=2)
    i("v_lshlrev_b32 v4, 4, v1")
    if not os.environ.get("XNOW2"): w2_load(range(6), range(6))
    lds_wait(M_EP + 4, 2, 6, sleep=4)
    if os.environ.get("GATEC", "1") == "1": lds_wait(M_CH + 40, 4, 6, sleep=4)

    lab("L_PHASE_C")
    if STOP == "B": i("s_branch L_FIN")
    i("s_lshr_b32 s12, s64, 1")
    i("s_lshl_b32 s12, s12, 3")
    i("s_lshr_b32 s13, s65, 2")
    i("s_add_u32 s12, s12, s13")
    stamp(10)
    i("s_and_b32 s4, s3, 3")
    i("s_mul_i32 s5, s4, 7")
    i("s_lshr_b32 s6, s3, 2")
    i("s_mul_i32 s7, s6, 27")
    i("s_add_u32 s5, s5, s7")
    i("s_lshl_b32 s5, s5, 7")
    i("s_lshl_b32 s7, s12, 2")
    i("s_add_u32 s5, s5, s7")
    i("s_lshl_b32 s5, s5, 10")
    i("s_add_u32 s5, s5, 0x%x" % WS_H1)
    R2, ACC2 = 8, 40
    vqa, vqb = [], []
    def h1l(st, lt):
        r = R2 + 16 * (st & 1) + 4 * lt
        i("s_add_u32 s13, s5, %d" % (st * 131072))
        i("buffer_load_dwordx4 v[%d:%d], v4, s[8:11], s13 offen offset:%d sc1" % (r, r + 3, 1024 * lt))
        vqa.append(("h", st, lt)); vqb.append(("h", st, lt))
    def w2l(st, sl, both=False):
        lb = uid("W2S")
        if not both:
            i("s_cmp_ge_u32 s3, 4")
            i("s_cbranch_scc1 %s" % lb)
        w2_load([st], [sl])
        lab(lb)
        for dl in range(5):
            vqa.append(("w", st, dl))
            if both: vqb.append(("w", st, dl))
    w2l(0, 0)
    for lt in range(4): h1l(0, lt)
    w2l(1, 1)
    for lt in range(4): h1l(1, lt)
    for r in range(80): i("v_mov_b32 v%d, 0" % (ACC2 + r))
    srd(56, 42, D * 2)
    srd(48, 44, L * D * 2)
    i("s_mul_i32 s7, s60, 5")
    i("s_lshl_b32 s15, s12, 6")
    i("s_and_b32 s14, s3, 3")
    i("s_lshr_b32 s13, s14, 1")
    i("s_lshl_b32 s13, s13, 5")
    i("s_add_u32 s15, s15, s13")
    i("s_and_b32 s13, s14, 1")
    i("s_add_u32 s15, s15, s13")
    i("v_lshlrev_b32 v6, 1, v2")
    i("v_add_u32 v6, s15, v6")
    slow2 = []
    def wait_for(tag):
        ns = []
        for q in (vqa, vqb):
            idxs = [n for n, x in enumerate(q) if x == tag]
            if idxs: ns.append(len(q) - 1 - max(idxs))
        i("s_waitcnt vmcnt(%d)" % min(63, min(ns)))
    for st in range(7):
        if st == 6:
            i("s_cmp_eq_u32 s4, 3")
            i("s_cbranch_scc1 L_C_RED")
            wait_for(("w", 6, 4))
        if st + 2 <= 5: w2l(st + 2, st + 2)
        sl = st if st < 6 else 0
        for lt in range(4):
            hr = R2 + 16 * (st & 1) + 4 * lt
            if (st, lt) == (0, 0):
                wait_for(("h", st, lt))
                i("v_max_u32 v5, v%d, v%d" % (hr, hr + 2))
                i("v_cmp_eq_u32 vcc, -1, v5")
            bad, back = uid("GBAD"), uid("GOK")
            i("s_cbranch_vccnz %s" % bad)
            lab(back)
            later = [(x[1], x[2]) for x in vqb if x[0] == "h" and (x[1], x[2]) > (st, lt)]
            slow2.append((bad, back, st, lt, later))
            if st == 0 and lt == 0: stamp(2)
            nx = (st, lt + 1) if lt < 3 else (st + 1, 0)
            for dl in range(5):
                a = ACC2 + 16 * dl + 4 * lt
                w = W2R + 20 * sl + 4 * dl
                h = R2 + 16 * (st & 1) + 4 * lt
                i("v_mfma_f32_16x16x32_bf16 v[%d:%d], v[%d:%d], v[%d:%d], v[%d:%d]" % (a, a + 3, w, w + 3, h, h + 3, a, a + 3))
                if dl == 1 and nx[0] < 7:
                    nr = R2 + 16 * (nx[0] & 1) + 4 * nx[1]
                    wait_for(("h",) + nx)
                    i("v_max_u32 v5, v%d, v%d" % (nr, nr + 2))
                    i("v_cmp_eq_u32 vcc, -1, v5")
            if st + 2 < 7: h1l(st + 2, lt)
        if st == 0:
            w2l(6, 0, both=True)
        if st == 1:
            for j in range(3):
                i("s_lshr_b32 s46, s3, 2")
                i("s_add_u32 s46, s46, %d" % (2 * j))
                i("s_min_u32 s46, s46, 4")
                i("s_add_u32 s46, s46, s7")
                i("s_lshl_b32 s13, s46, 16")
                i("s_add_u32 s13, s13, 0x%x" % WS_H)
                i("v_lshlrev_b32 v7, 14, v3")
                i("v_lshl_add_u32 v7, v6, 3, v7")
                i("buffer_load_dwordx2 v[%d:%d], v7, s[8:11], s13 offen sc1" % (240 + 2 * j, 241 + 2 * j))
                i("s_lshl_b32 s13, s46, 5")
                i("v_lshlrev_b32 v7, 3, v3")
                i("buffer_load_dwordx2 v[%d:%d], v7, s[56:59], s13 offen" % (246 + 2 * j, 247 + 2 * j))
                for q in (vqa, vqb): q.append(("e", j, 0)); q.append(("e", j, 1))
    lab("L_C_RED")
    stamp(11)
    i("s_waitcnt vmcnt(0)")
    i("s_barrier")
    i("s_lshl_b32 s13, s3, 10")
    i("v_add_u32 v5, s13, v4")
    i("v_add_u32 v7, 65536, v5")
    i("v_add_u32 v8, 131072, v5")
    nop(4)
    for T in range(20):
        a = ACC2 + 4 * T
        base = (5, 7, 8)[T // 8]
        i("ds_write_b128 v%d, v[%d:%d] offset:%d" % (base, a, a + 3, (T % 8) * 8192))
    i("s_lshl_b32 s13, s3, 13")
    i("v_add_u32 v5, s13, v4")
    i("v_add_u32 v7, 65536, v5")
    i("v_add_u32 v8, 131072, v5")
    i("s_waitcnt lgkmcnt(0)")
    i("s_barrier")
    for j in range(3):
        if j == 2:
            i("s_cmp_ge_u32 s3, 4")
            i("s_cbranch_scc1 L_C_RD")
        for src in range(8):
            r = 120 + 32 * j + 4 * src
            i("ds_read_b128 v[%d:%d], v%d offset:%d" % (r, r + 3, (5, 7, 8)[j], src * 1024))
    lab("L_C_RD")
    i("s_waitcnt vmcnt(0)")
    for j in range(3):
        if j == 2:
            i("s_cmp_ge_u32 s3, 4")
            i("s_cbranch_scc1 L_FIN")
        i("s_waitcnt lgkmcnt(%d)" % (8 if j == 0 else 0))
        r = 120 + 32 * j
        for (x_, y_) in ((0, 4), (8, 12), (16, 20), (24, 28), (0, 8), (16, 24), (0, 16)):
            i("v_pk_add_f32 v[%d:%d], v[%d:%d], v[%d:%d]" % (r + x_, r + x_ + 1, r + x_, r + x_ + 1, r + y_, r + y_ + 1))
            i("v_pk_add_f32 v[%d:%d], v[%d:%d], v[%d:%d]" % (r + x_ + 2, r + x_ + 3, r + x_ + 2, r + x_ + 3, r + y_ + 2, r + y_ + 3))
        i("v_cvt_pk_bf16_f32 v30, v%d, v%d" % (r, r + 1))
        i("v_cvt_pk_bf16_f32 v31, v%d, v%d" % (r + 2, r + 3))
        for (src, dst) in ((30, 32), (31, 34), (246 + 2 * j, 36), (247 + 2 * j, 38)):
            i("v_lshlrev_b32 v%d, 16, v%d" % (dst, src))
            i("v_and_b32 v%d, 0xffff0000, v%d" % (dst + 1, src))
        i("v_pk_add_f32 v[32:33], v[32:33], v[36:37]")
        i("v_pk_add_f32 v[34:35], v[34:35], v[38:39]")
        i("v_cvt_pk_bf16_f32 v30, v32, v33")
        i("v_cvt_pk_bf16_f32 v31, v34, v35")
        for (src, dst) in ((30, 32), (31, 34), (240 + 2 * j, 36), (241 + 2 * j, 38)):
            i("v_lshlrev_b32 v%d, 16, v%d" % (dst, src))
            i("v_and_b32 v%d, 0xffff0000, v%d" % (dst + 1, src))
        i("v_pk_add_f32 v[32:33], v[32:33], v[36:37]")
        i("v_pk_add_f32 v[34:35], v[34:35], v[38:39]")
        i("v_cvt_pk_bf16_f32 v%d, v32, v33" % (24 + 2 * j))
        i("v_cvt_pk_bf16_f32 v%d, v34, v35" % (25 + 2 * j))
        i("s_lshr_b32 s46, s3, 2")
        i("s_add_u32 s46, s46, %d" % (2 * j))
        i("s_add_u32 s46, s46, s7")
        i("s_lshl_b32 s46, s46, 5")
        i("v_mul_u32_u24 v9, 1280, v6")
        i("v_lshl_add_u32 v9, v3, 3, v9")
        i("buffer_store_dwordx2 v[%d:%d], v9, s[48:51], s46 offen%s" % (24 + 2 * j, 25 + 2 * j, os.environ.get("OUTF", "")))
    lab("L_FIN")
    stamp_flush()
    lab("L_END")
    i("s_endpgm")
    for (bad, back, st, lt, later) in slow2:
        r = R2 + 16 * (st & 1) + 4 * lt
        lab(bad)
        i("s_mov_b32 s47, 0")
        top = uid("GT")
        lab(top)
        i("s_sleep 1")
        i("s_add_u32 s13, s5, %d" % (st * 131072))
        i("buffer_load_dwordx4 v[%d:%d], v4, s[8:11], s13 offen offset:%d sc1" % (r, r + 3, 1024 * lt))
        i("s_waitcnt vmcnt(0)")
        i("v_max_u32 v5, v%d, v%d" % (r, r + 2))
        i("v_cmp_eq_u32 vcc, -1, v5")
        okl = uid("GR")
        i("s_cbranch_vccz %s" % okl)
        i("s_add_u32 s47, s47, 1")
        i("s_cmp_lt_u32 s47, %d" % SPIN_LIMIT)
        i("s_cbranch_scc1 %s" % top)
        lab(okl)
        for (s2_, l2_) in later:
            r2 = R2 + 16 * (s2_ & 1) + 4 * l2_
            i("s_add_u32 s13, s5, %d" % (s2_ * 131072))
            i("buffer_load_dwordx4 v[%d:%d], v4, s[8:11], s13 offen offset:%d sc1" % (r2, r2 + 3, 1024 * l2_))
        i("s_waitcnt vmcnt(0)")
        i("s_branch %s" % back)
    lab("L_CODE_END")
    e('.section .rodata,"a"')
    e(".p2align 6")
    e(".amdhsa_kernel %s" % KNAME)
    e("  .amdhsa_next_free_vgpr 256")
    e("  .amdhsa_next_free_sgpr 102")
    e("  .amdhsa_accum_offset 256")
    e("  .amdhsa_group_segment_fixed_size 0")
    e("  .amdhsa_kernarg_size 120")
    e("  .amdhsa_user_sgpr_count 2")
    e("  .amdhsa_user_sgpr_kernarg_segment_ptr 1")
    e("  .amdhsa_system_sgpr_workgroup_id_x 1")
    e(".end_amdhsa_kernel")

if __name__ == "__main__":
    main()
    path = sys.argv[1] if len(sys.argv) > 1 else "cdna_kernels/%s.s" % NAME
    open(path, "w").write("\n".join(x for x in out if x is not None) + "\n")
    print("wrote", path, len(out), "lines")
```

```python
import sys, os, struct
NAME = "sequential_preLN__ssm_conv_s4d__dense_activation_squared_relu__prompt"
KNAME = NAME + "_kernel"
L, D, NS, F = 2048, 640, 128, 1728
STAMPS = os.environ.get("STAMPS", "0") == "1"
STOP = os.environ.get("STOP", "")

WS_ST1 = 0x000000
WS_CS  = 0x008000
WS_ST2 = 0x010000
WS_FL  = 0x020000
WS_H   = 0x100000
WS_H1  = 0x400000
WS_W1P = 0xC00000
WS_W2P = 0x1000000
WS_STAMP = 0x8000000
WS_SIZE = 0x10000000
FL_CP, FL_CP2, FL_HINT, FL_SIZE = 0, 1024, 2048, 3072
DBG_C1, DBG_CW, DBG_CP, DBG_CP2, DBG_GO1, DBG_GOW, DBG_GOP, DBG_GOP2 = 0, 4, 8, 12, 128, 132, 136, 140
XROW = 544
FAC_CH = 63 * XROW
KCH, KCP = FAC_CH, 4160
UL = 137216
XL = 50944
TL = 142336
MISC = 158720
M_CH, M_ST, M_S1, M_XT, M_TR, M_HS, M_EP, M_GP, M_MD = 0, 32, 64, 68, 72, 76, 80, 92, 96
M_STAT, M_CS, M_B1 = 256, 1280, 1792
LDS_TOTAL = 163840

out = []
def e(s=""): out.append(s)
def lab(s): out.append(s + ":")
def i(s): out.append("    " + s)
def f2u(f): return struct.unpack("<I", struct.pack("<f", f))[0]
def nop(n):
    while n > 0:
        k = min(n, 16); i("s_nop %d" % (k - 1)); n -= k
def srd(dst, ptr_lo, nbytes):
    i("s_mov_b32 s%d, s%d" % (dst, ptr_lo))
    i("s_mov_b32 s%d, s%d" % (dst + 1, ptr_lo + 1))
    i("s_mov_b32 s%d, 0x%x" % (dst + 2, nbytes))
    i("s_mov_b32 s%d, 0x00020000" % (dst + 3))
def round_bf16(dst, src):
    i("v_cvt_pk_bf16_f32 v%d, v%d, v%d" % (dst, src, src))
    i("v_lshlrev_b32 v%d, 16, v%d" % (dst, dst))
_uid = [0]
def uid(p):
    _uid[0] += 1
    return "%s_%d" % (p, _uid[0])
def stamp(k):
    if STAMPS:
        assert k < 15
        i("s_memrealtime s[%d:%d]" % (70 + 2 * k, 71 + 2 * k))
def stamp_flush():
    if not STAMPS: return
    i("s_memrealtime s[100:101]")
    i("s_waitcnt lgkmcnt(0)")
    i("s_mov_b64 exec, 1")
    i("s_lshl_b32 s46, s2, 3")
    i("s_add_u32 s46, s46, s3")
    i("s_lshl_b32 s46, s46, 7")
    i("s_add_u32 s46, s46, 0x%x" % WS_STAMP)
    i("v_mov_b32 v0, 0")
    for k in range(16):
        i("v_mov_b32 v2, s%d" % (70 + 2 * k))
        i("v_mov_b32 v3, s%d" % (71 + 2 * k))
        i("buffer_store_dwordx2 v[2:3], v0, s[8:11], s46 offen offset:%d" % (8 * k))
        i("s_nop 1")

LOG2E, NLOG2E, INV2PI = 0x3fb8aa3b, 0xbfb8aa3b, "0.15915494"
SEL_LO, SEL_HI = 0x05040100, 0x07060302
INV640, EPS = 0x3acccccd, 0x3727c5ac
SPIN_LIMIT = 1 << 18

def poll(srd_reg, soff, nlanes, ndw, vt, spread=False, sleep=2):
    top, done = uid("POLL"), uid("POLLD")
    i("s_mov_b64 s[68:69], exec")
    m = (1 << nlanes) - 1
    i("s_mov_b32 exec_lo, 0x%x" % (m & 0xffffffff))
    i("s_mov_b32 exec_hi, 0x%x" % (m >> 32))
    if spread:
        i("v_lshrrev_b32 v%d, 1, v1" % (vt + 4))
        i("v_lshlrev_b32 v%d, 7, v%d" % (vt + 4, vt + 4))
        i("v_and_b32 v%d, 1, v1" % (vt + 5))
        i("v_lshl_add_u32 v%d, v%d, 4, v%d" % (vt + 4, vt + 5, vt + 4))
    else:
        i("v_lshlrev_b32 v%d, %d, v1" % (vt + 4, {1: 2, 4: 4}[ndw]))
    i("s_mov_b32 s47, 0")
    lab(top)
    if ndw == 1:
        i("buffer_load_dword v%d, v%d, s[%d:%d], %s offen sc1" % (vt, vt + 4, srd_reg, srd_reg + 3, soff))
        i("s_waitcnt vmcnt(0)")
    else:
        i("buffer_load_dwordx4 v[%d:%d], v%d, s[%d:%d], %s offen sc1" % (vt, vt + 3, vt + 4, srd_reg, srd_reg + 3, soff))
        i("s_waitcnt vmcnt(0)")
        i("v_min_u32 v%d, v%d, v%d" % (vt, vt, vt + 1))
        i("v_min_u32 v%d, v%d, v%d" % (vt + 2, vt + 2, vt + 3))
        i("v_min_u32 v%d, v%d, v%d" % (vt, vt, vt + 2))
    i("v_cmp_ne_u32 vcc, 0, v%d" % vt)
    i("s_cmp_eq_u64 vcc, exec")
    i("s_cbranch_scc1 %s" % done)
    i("s_sleep %d" % sleep)
    i("s_add_u32 s47, s47, 1")
    i("s_cmp_lt_u32 s47, %d" % SPIN_LIMIT)
    i("s_cbranch_scc1 %s" % top)
    lab(done)
    i("s_mov_b64 exec, s[68:69]")

def set_flag(srd_reg, soff, va=4):
    i("s_mov_b64 s[68:69], exec")
    i("s_mov_b64 exec, 1")
    i("v_mov_b32 v%d, 0" % va)
    i("v_mov_b32 v%d, 1" % (va + 1))
    i("buffer_store_dword v%d, v%d, s[%d:%d], %s offen sc1" % (va + 1, va, srd_reg, srd_reg + 3, soff))
    i("s_mov_b64 exec, s[68:69]")

def arrive_last(cnt_off, total, go_off):
    lbl = uid("ARR")
    i("s_mov_b64 s[68:69], exec")
    i("s_mov_b64 exec, 1")
    i("v_mov_b32 v4, %d" % cnt_off)
    i("v_mov_b32 v5, 1")
    i("buffer_atomic_add v5, v4, s[56:59], 0 offen sc0 sc1")
    i("s_waitcnt vmcnt(0)")
    i("v_readfirstlane_b32 s13, v5")
    i("s_mov_b64 exec, s[68:69]")
    i("s_cmp_lg_u32 s13, %d" % (total - 1))
    i("s_cbranch_scc1 %s" % lbl)
    i("s_mov_b32 s13, %d" % go_off)
    set_flag(56, "s13")
    lab(lbl)

def arrive_shard(floff, va=4):
    i("s_mov_b64 s[68:69], exec")
    i("s_mov_b64 exec, 1")
    i("s_lshl_b32 s13, s64, 7")
    i("s_add_u32 s13, s13, 0x%x" % (WS_FL + floff))
    i("v_mov_b32 v%d, 0" % va)
    i("v_mov_b32 v%d, 1" % (va + 1))
    i("buffer_atomic_add v%d, v%d, s[8:11], s13 offen sc1" % (va + 1, va))
    i("s_mov_b64 exec, s[68:69]")
def poll_shards(floff, vt, sleep=4):
    top, done = uid("PS"), uid("PSD")
    i("s_mov_b64 s[68:69], exec")
    i("s_mov_b64 exec, 0xff")
    i("v_lshlrev_b32 v%d, 7, v1" % (vt + 1))
    i("s_mov_b32 s46, 0x%x" % (WS_FL + floff))
    i("s_mov_b32 s47, 0")
    lab(top)
    i("buffer_load_dword v%d, v%d, s[8:11], s46 offen sc1" % (vt, vt + 1))
    i("s_waitcnt vmcnt(0)")
    i("v_cmp_le_u32 vcc, 32, v%d" % vt)
    i("s_cmp_eq_u64 vcc, exec")
    i("s_cbranch_scc1 %s" % done)
    i("s_sleep %d" % sleep)
    i("s_add_u32 s47, s47, 1")
    i("s_cmp_lt_u32 s47, %d" % SPIN_LIMIT)
    i("s_cbranch_scc1 %s" % top)
    lab(done)
    i("s_mov_b64 exec, s[68:69]")
def h1_poison(v0=4):
    skip = uid("HPS")
    i("v_lshlrev_b32 v%d, 4, v1" % (v0 + 4))
    for r in range(4): i("v_mov_b32 v%d, -1" % (v0 + r))
    i("s_lshl_b32 s27, s66, 3")
    i("s_and_b32 s28, s3, 3")
    i("s_lshl_b32 s28, s28, 1")
    i("s_add_u32 s27, s27, s28")
    i("s_lshl_b32 s27, s27, 10")
    i("s_add_u32 s27, s27, 0x%x" % WS_H1)
    i("s_mul_i32 s28, s67, 7")
    i("s_lshr_b32 s28, s28, 1")
    i("s_lshl_b32 s28, s28, 17")
    i("s_add_u32 s29, s27, s28")
    i("s_bitcmp1_b32 s67, 0")
    i("s_cbranch_scc1 %s" % skip)
    for par in range(2): i("buffer_store_dwordx4 v[%d:%d], v%d, s[8:11], s29 offen offset:%d sc1" % (v0, v0 + 3, v0 + 4, 1024 * par))
    lab(skip)
    for b_ in range(1, 4):
        i("s_add_u32 s29, s29, 131072")
        for par in range(2): i("buffer_store_dwordx4 v[%d:%d], v%d, s[8:11], s29 offen offset:%d sc1" % (v0, v0 + 3, v0 + 4, 1024 * par))
def st2_poison():
    i("s_mov_b64 s[68:69], exec")
    i("s_mov_b64 exec, 0xf")
    for r in range(4): i("v_mov_b32 v%d, -1" % (4 + r))
    i("v_lshlrev_b32 v8, 4, v1")
    i("s_lshl_b32 s13, s66, 10")
    i("s_lshl_b32 s46, s67, 6")
    i("s_add_u32 s13, s13, s46")
    i("s_add_u32 s13, s13, 0x%x" % WS_ST2)
    i("buffer_store_dwordx4 v[4:7], v8, s[8:11], s13 offen sc1")
    i("s_mov_b64 exec, s[68:69]")

def lds_wait(off, target, vt=4, sleep=1):
    top, d = uid("LW"), uid("LWD")
    i("v_mov_b32 v%d, %d" % (vt, MISC + off))
    lab(top)
    i("ds_read_b32 v%d, v%d" % (vt + 1, vt))
    i("s_waitcnt lgkmcnt(0)")
    i("v_readfirstlane_b32 s13, v%d" % (vt + 1))
    i("s_cmp_ge_u32 s13, %d" % target)
    i("s_cbranch_scc1 %s" % d)
    i("s_sleep %d" % sleep)
    i("s_branch %s" % top)
    lab(d)

def lds_add(off, va=4, rtn=False):
    i("s_mov_b64 exec, 1")
    i("v_mov_b32 v%d, %d" % (va, MISC + off))
    i("v_mov_b32 v%d, 1" % (va + 1))
    if rtn:
        i("ds_add_rtn_u32 v%d, v%d, v%d" % (va + 1, va, va + 1))
        i("s_waitcnt lgkmcnt(0)")
        i("v_readfirstlane_b32 s13, v%d" % (va + 1))
    else:
        i("ds_add_u32 v%d, v%d" % (va, va + 1))
    i("s_mov_b64 exec, -1")

def ln_finish(m, v, mr):
    i("v_mul_f32 v%d, 0x%x, v%d" % (m, INV640, m))
    i("v_mul_f32 v%d, 0x%x, v%d" % (v, INV640, v))
    i("v_fma_f32 v%d, -v%d, v%d, v%d" % (v, m, m, v))
    i("v_max_f32 v%d, 0, v%d" % (v, v))
    round_bf16(m, m)
    round_bf16(v, v)
    i("v_add_f32 v%d, 0x%x, v%d" % (v, EPS, v))
    round_bf16(v, v)
    i("v_sqrt_f32 v%d, v%d" % (v, v))
    nop(1)
    round_bf16(v, v)
    i("v_rcp_f32 v%d, v%d" % (v, v))
    nop(1)
    if mr: i("v_mul_f32 v%d, v%d, v%d" % (m, m, v))

W1S, W2R = 8, 120
W1V = 240
def w1_prep():
    i("s_mul_i32 s46, s67, 224")
    i("s_mov_b32 s47, %d" % ((1 << 20) // 14 + 1))
    for k in range(7):
        i("v_add_u32 v4, %d, v1" % (64 * k))
        i("v_mul_lo_u32 v5, v4, s47")
        i("v_lshrrev_b32 v5, 20, v5")
        i("v_mul_u32_u24 v6, 14, v5")
        i("v_sub_u32 v6, v4, v6")
        i("v_mul_u32_u24 v5, 3456, v5")
        i("v_lshl_add_u32 v5, v6, 4, v5")
        i("v_add_u32 v%d, s46, v5" % (W1V + k))
def w1_load(cr):
    for (c, rb_) in cr:
        i("s_and_b32 s46, s3, 3")
        i("s_add_u32 s46, s46, %d" % (4 * c))
        i("s_mul_i32 s46, s46, %d" % (32 * 3456))
        for t in range(7):
            r = rb_ + 4 * t
            i("buffer_load_dwordx4 v[%d:%d], v%d, s[48:51], s46 offen" % (r, r + 3, W1V + t))
W1MAP = [(0, 24), (1, 52), (2, 80), (3, 108), (4, 200)]
def w1_dma(chunks):
    for c in chunks:
        i("s_and_b32 s46, s3, 3")
        i("s_add_u32 s46, s46, %d" % (4 * c))
        i("s_mul_i32 s47, s46, %d" % (32 * 3456))
        i("s_mul_i32 s46, s46, 7168")
        for t in range(7):
            i("s_add_u32 m0, s46, %d" % (1024 * t))
            i("s_nop 0")
            i("buffer_load_dwordx4 v%d, s[48:51], s47 offen lds" % (W1V + t))
def w1_write(cr):
    i("v_lshlrev_b32 v4, 4, v1")
    for (c, rb_) in cr:
        i("s_and_b32 s46, s3, 3")
        i("s_add_u32 s46, s46, %d" % (4 * c))
        i("s_mul_i32 s46, s46, 7168")
        i("v_add_u32 v5, s46, v4")
        for t in range(7):
            r = rb_ + 4 * t
            i("ds_write_b128 v5, v[%d:%d] offset:%d" % (r, r + 3, 1024 * t))
def w2_load(steps, slots):
    for st, sl in zip(steps, slots):
        i("s_add_u32 s46, s61, %d" % (st * 5120))
        for dl in range(5):
            r = W2R + 20 * sl + 4 * dl
            if dl < 4:
                i("buffer_load_dwordx4 v[%d:%d], v4, s[8:11], s46 offen offset:%d sc1" % (r, r + 3, 1024 * dl))
            else:
                i("s_add_u32 s46, s46, 4096")
                i("buffer_load_dwordx4 v[%d:%d], v4, s[8:11], s46 offen sc1" % (r, r + 3))

def main():
    ref = open("cdna_kernels/%s.s.ref" % NAME).read().splitlines()
    for ln in ref:
        if ln.startswith("; Override"): break
        e(ln)
    e("; @launch grid=(256,1,1) block=(512,1,1) lds=%d" % LDS_TOTAL)
    e('.amdgcn_target "amdgcn-amd-amdhsa--gfx950"')
    e(".text")
    e(".globl %s" % KNAME)
    e(".p2align 8")
    e(".type %s,@function" % KNAME)
    lab(KNAME)
    i("s_cmp_ge_u32 s2, 256")
    i("s_cbranch_scc1 L_END")
    stamp(0)
    PFS = os.environ.get("PFS", "8")
    i("s_lshr_b32 s65, s2, 3")
    i("s_sub_u32 s46, s65, %s" % PFS)
    i("s_cmp_ge_u32 s46, 2")
    i("s_cbranch_scc1 L_NOPF")
    i("s_getpc_b64 s[46:47]")
    lab("L_PC")
    i("s_sub_u32 s46, s46, L_PC-%s" % KNAME)
    i("s_subb_u32 s47, s47, 0")
    i("v_lshlrev_b32 v4, 7, v0")
    i("v_cmp_gt_u32 vcc, L_CODE_END-%s, v4" % KNAME)
    i("s_and_saveexec_b64 s[68:69], vcc")
    i("s_cbranch_execz L_NOPF2")
    i("global_load_dword v253, v4, s[46:47]")
    lab("L_NOPF2")
    i("s_mov_b64 exec, s[68:69]")
    lab("L_NOPF")
    i("s_load_dwordx16 s[16:31], s[0:1], 0")
    i("s_load_dwordx8 s[36:43], s[0:1], 64")
    i("s_load_dwordx2 s[44:45], s[0:1], 96")
    i("s_load_dwordx4 s[32:35], s[0:1], 104")
    i("v_lshrrev_b32 v4, 6, v0")
    i("v_and_b32 v1, 63, v0")
    i("v_and_b32 v2, 15, v1")
    i("v_readfirstlane_b32 s3, v4")
    i("v_lshrrev_b32 v3, 4, v1")
    for r in (5, 6, 7) + tuple(range(240, 247)): i("v_mov_b32 v%d, 0" % r)
    i("s_and_b32 s64, s2, 7")
    i("s_lshr_b32 s65, s2, 3")
    i("s_lshr_b32 s66, s64, 1")
    i("s_lshl_b32 s66, s66, 2")
    i("s_lshr_b32 s46, s65, 3")
    i("s_add_u32 s66, s66, s46")
    i("s_and_b32 s67, s64, 1")
    i("s_lshl_b32 s67, s67, 3")
    i("s_and_b32 s46, s65, 7")
    i("s_add_u32 s67, s67, s46")
    i("s_and_b32 s46, s64, 1")
    i("s_lshl_b32 s46, s46, 2")
    i("s_and_b32 s47, s65, 3")
    i("s_add_u32 s60, s46, s47")
    i("s_mul_i32 s61, s60, 54")
    i("s_and_b32 s46, s3, 3")
    i("s_mul_i32 s46, s46, 7")
    i("s_add_u32 s61, s61, s46")
    i("s_lshr_b32 s46, s3, 2")
    i("s_mul_i32 s46, s46, 27")
    i("s_add_u32 s61, s61, s46")
    i("s_mul_i32 s61, s61, 5120")
    i("s_add_u32 s61, s61, 0x%x" % WS_W2P)
    i("s_waitcnt lgkmcnt(0)")
    srd(8, 34, WS_SIZE)
    srd(48, 36, D * F * 2)
    srd(52, 40, F * D * 2)
    srd(56, 32, 256)
    i("s_cmp_lg_u32 s3, 7")
    i("s_cbranch_scc1 L_NOST2")
    st2_poison()
    lab("L_NOST2")
    i("s_cmp_lt_u32 s65, 8")
    i("s_cbranch_scc1 L_STATS")
    i("s_cmp_lt_u32 s65, 28")
    i("s_cbranch_scc1 L_CONV")
    i("s_branch L_COLSUM")
    def rp_ids():
        i("s_sub_u32 s46, s65, 20")
        i("s_cmp_lt_u32 s65, 8")
        i("s_cselect_b32 s46, s65, s46")
        i("s_lshl_b32 s46, s46, 3")
        i("s_add_u32 s59x, s46, s64".replace("s59x", "s46"))
        i("s_mov_b32 s62, s46")
        i("s_mul_i32 s63, s3, 96")
        i("s_add_u32 s63, s63, s46")
    def rp_block():
        done = uid("RPD")
        i("s_cmp_ge_u32 s63, 432")
        i("s_cbranch_scc1 %s" % done)
        i("s_mul_i32 s14, s3, 5120")
        i("s_add_u32 s14, s14, 114688")
        i("s_mul_i32 s13, s63, 19419")
        i("s_lshr_b32 s13, s13, 20")
        i("s_mul_i32 s15, s13, 54")
        i("s_sub_u32 s15, s63, s15")
        i("s_mul_i32 s4, s15, %d" % (32 * 1280))
        i("s_mul_i32 s5, s13, 160")
        i("s_add_u32 s4, s4, s5")
        i("s_mov_b32 s47, %d" % ((1 << 20) // 10 + 1))
        for k in range(5):
            i("v_add_u32 v8, %d, v1" % (64 * k))
            i("v_mul_lo_u32 v9, v8, s47")
            i("v_lshrrev_b32 v9, 20, v9")
            i("v_mul_u32_u24 v10, 10, v9")
            i("v_sub_u32 v10, v8, v10")
            i("v_mul_u32_u24 v9, 1280, v9")
            i("v_lshl_add_u32 v9, v10, 4, v9")
            i("s_add_u32 m0, s14, %d" % (1024 * k))
            i("s_nop 0")
            i("buffer_load_dwordx4 v9, s[52:55], s4 offen lds")
        i("v_lshrrev_b32 v5, 2, v2")
        i("v_lshl_add_u32 v5, v3, 2, v5")
        i("v_and_b32 v6, 3, v2")
        i("v_lshlrev_b32 v6, 3, v6")
        i("v_mul_u32_u24 v5, 160, v5")
        i("v_add3_u32 v5, v5, v6, s14")
        i("v_lshlrev_b32 v7, 4, v1")
        i("s_mul_i32 s4, s63, 5120")
        i("s_add_u32 s4, s4, 0x%x" % WS_W2P)
        i("s_waitcnt vmcnt(0)")
        for t in range(5):
            i("ds_read_b64_tr_b16 v[%d:%d], v5 offset:%d" % (64 + 4 * t, 65 + 4 * t, 32 * t))
            i("ds_read_b64_tr_b16 v[%d:%d], v5 offset:%d" % (66 + 4 * t, 67 + 4 * t, 32 * t + 2560))
        for t in range(5):
            i("s_waitcnt lgkmcnt(%d)" % (8 - 2 * t))
            if t == 4: i("s_add_u32 s4, s4, 4096")
            i("buffer_store_dwordx4 v[%d:%d], v7, s[8:11], s4 offen offset:%d sc1" % (64 + 4 * t, 67 + 4 * t, 1024 * (t % 4)))
        lab(done)

    lab("L_STATS")
    i("s_lshl_b32 s46, s65, 3")
    i("s_add_u32 s12, s46, s64")
    i("s_lshl_b32 s13, s12, 5")
    i("s_lshl_b32 s14, s3, 2")
    i("s_add_u32 s13, s13, s14")
    i("v_add_u32 v4, s13, v3")
    i("v_mul_u32_u24 v5, 1280, v4")
    i("v_lshl_add_u32 v5, v2, 4, v5")
    for k in range(5):
        i("global_load_dwordx4 v[%d:%d], v5, s[16:17] offset:%d" % (32 + 4 * k, 35 + 4 * k, 256 * k))
    i("s_cmp_lg_u32 s12, 0")
    i("s_cbranch_scc1 L_NOZ")
    i("s_cmp_lg_u32 s3, 7")
    i("s_cbranch_scc1 L_NOZ")
    for r in range(4): i("v_mov_b32 v%d, 0" % (60 + r))
    i("v_lshlrev_b32 v6, 4, v1")
    i("s_mov_b32 s14, 0x%x" % WS_FL)
    for k in range(FL_SIZE // 1024):
        i("buffer_store_dwordx4 v[60:63], v6, s[8:11], s14 offen offset:%d sc1" % (1024 * k))
    lab("L_NOZ")
    i("v_mov_b32 v7, 0x3f803f80")
    for r in range(8, 16): i("v_mov_b32 v%d, 0" % r)
    i("s_waitcnt vmcnt(0)")
    for k in range(20):
        i("v_dot2_f32_bf16 v%d, v%d, v7, v%d" % (8 + (k & 3), 32 + k, 8 + (k & 3)))
        i("v_dot2_f32_bf16 v%d, v%d, v%d, v%d" % (12 + (k & 3), 32 + k, 32 + k, 12 + (k & 3)))
    nop(3)
    i("v_add_f32 v8, v8, v9")
    i("v_add_f32 v10, v10, v11")
    i("v_add_f32 v12, v12, v13")
    i("v_add_f32 v14, v14, v15")
    i("v_add_f32 v8, v8, v10")
    i("v_add_f32 v9, v12, v14")
    for r in (8, 4, 2, 1):
        nop(2)
        i("v_add_f32_dpp v8, v8, v8 row_ror:%d row_mask:0xf bank_mask:0xf" % r)
        i("v_add_f32_dpp v9, v9, v9 row_ror:%d row_mask:0xf bank_mask:0xf" % r)
    ln_finish(8, 9, False)
    i("v_lshlrev_b32 v4, 3, v4")
    i("v_cmp_eq_u32 vcc, 0, v2")
    i("s_and_saveexec_b64 s[68:69], vcc")
    i("s_mov_b32 s14, 0x%x" % WS_ST1)
    i("buffer_store_dwordx2 v[8:9], v4, s[8:11], s14 offen sc1")
    i("s_mov_b64 exec, s[68:69]")
    i("s_waitcnt vmcnt(0)")
    i("s_barrier")
    stamp(1)
    i("s_cmp_lg_u32 s3, 0")
    i("s_cbranch_scc1 L_NC1")
    arrive_last(DBG_C1, 64, DBG_GO1)
    i("s_branch L_NC1")
    lab("L_COLSUM")
    stamp(1)
    lab("L_NC1")
    rp_ids()
    i("s_cmp_lg_u32 s3, 7")
    i("s_cbranch_scc1 L_NC1A")
    i("v_lshlrev_b32 v8, 2, v1")
    i("v_add_u32 v8, %d, v8" % MISC)
    i("v_mov_b32 v9, 0")
    i("ds_write_b32 v8, v9")
    i("s_waitcnt lgkmcnt(0)")
    lab("L_NC1A")
    i("s_barrier")
    i("s_cmp_ge_u32 s3, 4")
    i("s_cbranch_scc1 L_NC_LD")
    rp_block()
    i("s_cmp_ge_u32 s62, 12")
    i("s_cbranch_scc1 L_NC2")
    i("s_lshl_b32 s63, s62, 2")
    i("s_add_u32 s63, s63, s3")
    i("s_add_u32 s63, s63, 384")
    i("s_waitcnt lgkmcnt(0)")
    rp_block()
    lab("L_NC2")
    i("s_waitcnt vmcnt(0)")
    stamp(4)
    lds_add(M_CH + 8, 4, rtn=True)
    i("s_cmp_lg_u32 s13, 3")
    i("s_cbranch_scc1 L_NC3")
    arrive_last(DBG_CW, 96, DBG_GOW)
    lab("L_NC3")
    i("s_cmp_lt_u32 s65, 28")
    i("s_cbranch_scc1 L_NC5")
    i("s_sub_u32 s46, s65, 28")
    i("s_lshl_b32 s46, s46, 3")
    i("s_add_u32 s12, s46, s64")
    i("s_cmp_ge_u32 s12, 27")
    i("s_cbranch_scc1 L_NC5")
    i("v_lshrrev_b32 v4, 3, v1")
    i("s_lshl_b32 s13, s3, 3")
    i("v_add_u32 v4, s13, v4")
    i("v_mul_u32_u24 v4, 3456, v4")
    i("v_and_b32 v5, 7, v1")
    i("v_lshl_add_u32 v4, v5, 4, v4")
    i("s_lshl_b32 s13, s12, 7")
    for it in range(20):
        i("buffer_load_dwordx4 v[%d:%d], v4, s[48:51], s13 offen" % (64 + 4 * it, 67 + 4 * it))
        i("s_add_u32 s13, s13, %d" % (32 * 3456))
    for r in range(8): i("v_mov_b32 v%d, 0" % (8 + r))
    for it in range(20):
        i("s_waitcnt vmcnt(%d)" % (19 - it))
        for dw in range(4):
            x = 64 + 4 * it + dw
            i("v_lshlrev_b32 v16, 16, v%d" % x)
            i("v_and_b32 v17, 0xffff0000, v%d" % x)
            i("v_pk_add_f32 v[%d:%d], v[%d:%d], v[16:17]" % (8 + 2 * dw, 9 + 2 * dw, 8 + 2 * dw, 9 + 2 * dw))
    nop(1)
    for r in range(8):
        i("v_add_f32_dpp v%d, v%d, v%d row_ror:8 row_mask:0xf bank_mask:0xf" % (8 + r, 8 + r, 8 + r))
    for op in ("v_permlane16_swap_b32", "v_permlane32_swap_b32"):
        for r in range(8): i("v_mov_b32 v%d, v%d" % (16 + r, 8 + r))
        nop(1)
        for r in range(8): i("%s v%d, v%d" % (op, 16 + r, 8 + r))
        nop(1)
        for r in range(8): i("v_add_f32 v%d, v%d, v%d" % (8 + r, 8 + r, 16 + r))
    i("v_lshlrev_b32 v4, 5, v1")
    i("s_lshl_b32 s13, s3, 8")
    i("s_add_u32 s13, s13, %d" % (MISC + 3072))
    i("v_add_u32 v4, s13, v4")
    i("s_mov_b64 exec, 0xff")
    i("ds_write_b128 v4, v[8:11]")
    i("ds_write_b128 v4, v[12:15] offset:16")
    i("s_mov_b64 exec, -1")
    i("s_waitcnt lgkmcnt(0)")
    lds_add(M_CH + 20, 4, rtn=True)
    i("s_cmp_lg_u32 s13, 3")
    i("s_cbranch_scc1 L_NC5")
    i("v_lshlrev_b32 v4, 2, v1")
    i("v_add_u32 v5, %d, v4" % (MISC + 3072))
    for w in range(4):
        i("ds_read_b32 v%d, v5 offset:%d" % (8 + w, 256 * w))
    i("s_waitcnt lgkmcnt(0)")
    for w in range(1, 4): i("v_add_f32 v8, v8, v%d" % (8 + w))
    i("s_lshl_b32 s13, s12, 8")
    i("s_add_u32 s13, s13, 0x%x" % WS_CS)
    i("buffer_store_dword v8, v4, s[8:11], s13 offen sc1")
    i("s_waitcnt vmcnt(0)")
    lds_add(M_CH + 24, 4)
    lab("L_NC5")
    stamp(3)
    i("s_branch L_PHASE_B")
    lab("L_NC_LD")
    i("s_cmp_lg_u32 s3, 7")
    i("s_cbranch_scc1 L_NC_L3")
    i("s_mov_b32 s46, %d" % DBG_GO1)
    poll(56, "s46", 1, 1, 8, sleep=2)
    lds_add(M_S1, 8)
    arrive_shard(FL_CP)
    lab("L_NC_L3")
    w1_prep()
    if os.environ.get("XLATE"):
        lds_wait(M_S1, 1, 4, sleep=4)
        i("s_cmp_lg_u32 s3, 7")
        lq = uid("XL")
        i("s_cbranch_scc1 %s" % lq)
        i("s_lshl_b32 s46, s64, 7")
        i("s_add_u32 s46, s46, 0x%x" % (WS_FL + FL_HINT))
        poll(8, "s46", 1, 1, 8, sleep=8)
        lds_add(M_CH + 28, 8)
        lab(lq)
        lds_wait(M_CH + 28, 1, 4, sleep=8)
    w1_dma([0, 1, 2, 3])
    lds_wait(M_CH + 8, 4, 4, sleep=4)
    w1_dma([4])
    h1_poison(248)
    i("s_waitcnt vmcnt(0)")
    lds_wait(M_S1, 1, 4, sleep=4)
    i("s_cmp_lt_u32 s65, 28")
    i("s_cbranch_scc1 L_NC_L4")
    i("s_sub_u32 s46, s65, 28")
    i("s_lshl_b32 s46, s46, 3")
    i("s_add_u32 s46, s46, s64")
    i("s_cmp_ge_u32 s46, 27")
    i("s_cbranch_scc1 L_NC_L4")
    lds_wait(M_CH + 24, 1, 4, sleep=4)
    lab("L_NC_L4")
    lds_add(M_CH + 12, 248, rtn=True)
    i("s_cmp_lg_u32 s13, 3")
    i("s_cbranch_scc1 L_PHASE_B")
    arrive_shard(FL_CP2, 248)
    i("s_branch L_PHASE_B")

    lab("L_CONV")
    i("s_mul_i32 s12, s64, 20")
    i("s_add_u32 s12, s12, s65")
    i("s_sub_u32 s12, s12, 8")
    i("s_lshl_b32 s13, s12, 2")
    i("s_and_b32 s14, s3, 3")
    i("s_add_u32 s15, s13, s14")
    i("s_lshr_b32 s46, s15, 1")
    i("s_lshl_b32 s46, s46, 2")
    i("s_load_dword s4, s[26:27], s46")
    i("s_load_dword s5, s[28:29], s46")
    i("s_lshr_b32 s6, s3, 2")
    i("s_lshl_b32 s46, s6, 6")
    i("v_add_u32 v4, s46, v1")
    i("s_lshl_b32 s47, s15, 8")
    i("v_lshl_add_u32 v5, v4, 1, s47")
    i("global_load_ushort v10, v5, s[18:19]")
    i("global_load_ushort v11, v5, s[20:21]")
    i("global_load_ushort v12, v5, s[22:23]")
    i("global_load_ushort v13, v5, s[24:25]")
    i("s_cmp_lt_u32 s3, 4")
    i("s_cbranch_scc1 L_CV_PH")
    i("v_subrev_u32 v6, 256, v0")
    i("v_mul_u32_u24 v6, %d, v6" % (8 * 1280))
    i("s_lshl_b32 s46, s13, 1")
    i("v_add_u32 v6, s46, v6")
    i("v_add_u32 v7, 5120, v6")
    for k in range(4):
        i("global_load_dwordx2 v[%d:%d], v6, s[16:17] offset:%d" % (100 + 2 * k, 101 + 2 * k, 1280 * k))
    i("s_branch L_CV_NOX")
    lab("L_CV_PH")
    for r in range(4): i("v_mov_b32 v%d, -1" % (60 + r))
    i("v_lshlrev_b32 v6, 4, v0")
    i("s_lshl_b32 s46, s12, 14")
    i("s_add_u32 s46, s46, 0x%x" % WS_H)
    for it in range(4):
        i("buffer_store_dwordx4 v[60:63], v6, s[8:11], s46 offen sc1")
        if it < 3: i("s_add_u32 s46, s46, 4096")
    lab("L_CV_NOX")
    i("s_mul_i32 s46, s14, %d" % FAC_CH)
    i("v_lshl_add_u32 v5, v4, 2, s46")
    i("s_waitcnt lgkmcnt(0)")
    i("s_and_b32 s46, s15, 1")
    i("s_lshl_b32 s46, s46, 4")
    i("s_lshr_b32 s4, s4, s46")
    i("s_lshl_b32 s4, s4, 16")
    i("s_lshr_b32 s5, s5, s46")
    i("s_lshl_b32 s5, s5, 16")
    i("v_mov_b32 v14, s4")
    i("v_mul_f32 v14, 0x%x, v14" % LOG2E)
    i("v_exp_f32 v14, v14")
    nop(1)
    round_bf16(14, 14)
    i("s_cmp_lt_u32 s3, 4")
    i("s_cbranch_scc1 L_CV_W0")
    i("s_waitcnt vmcnt(4)")
    i("s_branch L_CV_W1")
    lab("L_CV_W0")
    i("s_waitcnt vmcnt(4)")
    lab("L_CV_W1")
    stamp(1)
    if os.environ.get("TOUCH"):
        i("s_cmp_ge_u32 s3, 4")
        i("s_cbranch_scc1 L_CV_NT")
        i("s_lshl_b32 s46, s12, 2")
        i("s_add_u32 s46, s46, s3")
        i("s_cmp_lt_u32 s46, 320")
        i("s_cselect_b32 s4, s36, s40")
        i("s_cselect_b32 s6x, s37, s41".replace("s6x", "s7"))
        i("s_sub_u32 s47, s46, 320")
        i("s_cselect_b32 s46, s46, s47") if False else None
        i("s_cmp_lt_u32 s46, 320")
        i("s_cselect_b32 s46, s46, s47")
        i("s_mul_i32 s46, s46, %d" % (54 * 128))
        i("s_add_u32 s30, s4, s46")
        i("s_addc_u32 s31, s7, 0")
        i("v_lshlrev_b32 v200, 7, v1")
        i("s_mov_b32 exec_lo, -1")
        i("s_mov_b32 exec_hi, 0x3fffff")
        i("global_load_dword v201, v200, s[30:31]")
        i("s_mov_b64 exec, -1")
        lab("L_CV_NT")
    for r in (10, 11, 12, 13): i("v_lshlrev_b32 v%d, 16, v%d" % (r, r))
    i("v_mul_f32 v10, 0x%x, v10" % LOG2E)
    i("v_exp_f32 v10, v10")
    nop(1)
    round_bf16(10, 10)
    i("v_mul_f32 v10, v10, v14")
    i("v_mul_f32 v10, 0x%x, v10" % NLOG2E)
    i("v_mul_f32 v11, v11, v14")
    i("v_mul_f32 v11, %s, v11" % INV2PI)
    i("v_mul_f32 v12, v12, v14")
    i("v_mul_f32 v13, v13, v14")
    i("v_add_f32 v32, v12, v12")
    i("v_add_f32 v33, v13, v13")
    bases = [(20, 1), (22, 16), (24, 256), (26, 2), (28, 4), (30, 8)]
    for (dst, p) in bases:
        i("v_mul_f32 v%d, 0x%x, v10" % (dst, f2u(float(p))))
        i("v_mul_f32 v%d, 0x%x, v11" % (dst + 1, f2u(float(p))))
    for (dst, p) in bases:
        i("v_exp_f32 v%d, v%d" % (dst, dst))
        i("v_fract_f32 v%d, v%d" % (dst + 1, dst + 1))
    for n, (dst, p) in enumerate(bases):
        i("v_cos_f32 v%d, v%d" % (52 + n, dst + 1))
        i("v_sin_f32 v%d, v%d" % (dst + 1, dst + 1))
    nop(1)
    for n, (dst, p) in enumerate(bases):
        i("v_mul_f32 v%d, v%d, v%d" % (dst + 1, dst, dst + 1))
        i("v_mul_f32 v%d, v%d, v%d" % (dst, dst, 52 + n))
    i("v_mov_b32 v34, 1.0")
    i("v_mov_b32 v35, 0")
    i("v_mov_b32 v36, v32")
    i("v_mov_b32 v37, v33")
    chains = [dict(x=32, s=20, row=0, n=16, y=False, start=0), dict(x=34, s=22, row=47, n=16, y=True, start=0)]
    for (tau, s, row, n) in [(1, 26, 16, 9), (2, 28, 25, 5), (3, 28, 30, 5), (4, 30, 35, 3), (5, 30, 38, 3), (6, 30, 41, 3), (7, 30, 44, 3)]:
        chains.append(dict(x=36 + 2 * tau, s=s, row=row, n=n, y=False, start=tau))
    rnd = 0; pos = [0] * len(chains); tmpc = 0
    while any(pos[k] < c["n"] for k, c in enumerate(chains)):
        muls, fmas, cv, wr = [], [], [], []
        ti = 0
        if rnd < 7:
            t = 52 + 2 * ti; ti += 1
            x, d = 36 + 2 * rnd, 36 + 2 * (rnd + 1)
            muls.append("v_pk_mul_f32 v[%d:%d], v[%d:%d], v[24:25] op_sel:[0,0] op_sel_hi:[1,0]" % (t, t + 1, x, x + 1))
            fmas.append("v_pk_fma_f32 v[%d:%d], v[%d:%d], v[24:25], v[%d:%d] op_sel:[1,1,0] op_sel_hi:[0,1,1] neg_lo:[0,1,0]" % (d, d + 1, x, x + 1, t, t + 1))
        for k, c in enumerate(chains):
            if rnd >= c["start"] and pos[k] < c["n"]:
                x = c["x"]; p = 72 + (tmpc % 16); tmpc += 1
                cv.append("v_cvt_pk_bf16_f32 v%d, v%d, %sv%d" % (p, x, "" if c["y"] else "-", x + 1))
                wr.append("ds_write_b32 v5, v%d offset:%d" % (p, (c["row"] + pos[k]) * XROW))
                if pos[k] < c["n"] - 1:
                    t = 52 + 2 * ti; ti += 1
                    assert t + 1 < 72
                    muls.append("v_pk_mul_f32 v[%d:%d], v[%d:%d], v[%d:%d] op_sel:[0,0] op_sel_hi:[1,0]" % (t, t + 1, x, x + 1, c["s"], c["s"] + 1))
                    fmas.append("v_pk_fma_f32 v[%d:%d], v[%d:%d], v[%d:%d], v[%d:%d] op_sel:[1,1,0] op_sel_hi:[0,1,1] neg_lo:[0,1,0]" % (x, x + 1, x, x + 1, c["s"], c["s"] + 1, t, t + 1))
                pos[k] += 1
        if rnd in (1, 4, 7, 10):
            k = 4 + (rnd - 1) // 3
            lb = uid("XG")
            i("s_cmp_lt_u32 s3, 4")
            i("s_cbranch_scc1 %s" % lb)
            i("global_load_dwordx2 v[%d:%d], v7, s[16:17] offset:%d" % (100 + 2 * k, 101 + 2 * k, 1280 * (k & 3)))
            lab(lb)
        for s_ in cv + muls + wr + fmas: i(s_)
        rnd += 1
    stamp(2)
    i("s_cmp_lg_u32 s3, 4")
    i("s_cbranch_scc1 L_CV_B1")
    i("v_lshlrev_b32 v8, 2, v1")
    i("v_add_u32 v8, %d, v8" % MISC)
    i("v_mov_b32 v9, 0")
    i("ds_write_b32 v8, v9")
    lab("L_CV_B1")
    i("s_waitcnt lgkmcnt(0)")
    i("s_barrier")
    stamp(3)
    i("s_cmp_ge_u32 s3, 4")
    i("s_cbranch_scc1 L_CV_NORM")
    segp = {0: (0, 8, 4), 1: (16, 4, 2), 2: (25, 5, 2), 3: (35, 6, 3)}
    i("s_mul_i32 s46, s3, %d" % FAC_CH)
    i("v_lshrrev_b32 v8, 3, v2")
    i("v_bfe_u32 v9, v2, 2, 1")
    i("v_and_b32 v10, 3, v2")
    for t in range(4):
        b0, a0, c0 = segp[t]
        i("v_mul_u32_u24 v11, %d, v8" % a0)
        i("v_mul_u32_u24 v12, %d, v9" % c0)
        i("v_add3_u32 v11, v11, v12, v10")
        i("v_add_u32 v11, %d, v11" % b0)
        i("v_mul_u32_u24 v11, %d, v11" % XROW)
        i("v_lshl_add_u32 v11, v3, 4, v11")
        i("v_add_u32 v%d, s46, v11" % (16 + t))
    i("v_add_u32 v11, 47, v2")
    i("v_mul_u32_u24 v11, %d, v11" % XROW)
    i("v_lshl_add_u32 v11, v3, 4, v11")
    i("v_add_u32 v15, s46, v11")
    for mu in range(8):
        i("ds_read_b128 v[%d:%d], v15 offset:%d" % (32 + 4 * mu, 35 + 4 * mu, 64 * mu))
        i("ds_read_b128 v[%d:%d], v16 offset:%d" % (64 + 4 * mu, 67 + 4 * mu, 64 * mu))
    accs = [20, 24, 28, 192]
    for t in range(4):
        nxt = ["ds_read_b128 v[%d:%d], v%d offset:%d" % (64 + 32 * (t + 1) + 4 * mu, 67 + 32 * (t + 1) + 4 * mu, 17 + t, 64 * mu) for mu in range(8)] if t < 3 else []
        for s_ in nxt: i(s_)
        a0 = accs[t]
        for mu in range(8):
            if t == 0: i("s_waitcnt lgkmcnt(%d)" % min(15, 8 + 14 - 2 * mu))
            else: i("s_waitcnt lgkmcnt(%d)" % ((8 if nxt else 0) + 7 - mu))
            i("v_mfma_f32_16x16x32_bf16 v[%d:%d], v[%d:%d], v[%d:%d], %s" % (a0, a0 + 3, 64 + 32 * t + 4 * mu, 67 + 32 * t + 4 * mu, 32 + 4 * mu, 35 + 4 * mu, "0" if mu == 0 else "v[%d:%d]" % (a0, a0 + 3)))
    i("s_mul_i32 s46, s3, %d" % KCH)
    i("v_lshlrev_b32 v10, 5, v2")
    i("v_cmp_eq_u32 vcc, 0, v1")
    i("v_mov_b32 v11, s5")
    i("v_lshl_add_u32 v12, v3, 3, v10")
    i("v_cndmask_b32 v11, 0, v11, vcc")
    nop(4)
    i("v_add_f32 v20, v20, v11")
    i("v_cvt_pk_bf16_f32 v64, v23, v22")
    i("v_cvt_pk_bf16_f32 v65, v21, v20")
    i("v_sub_u32 v13, 4088, v12")
    i("v_add_u32 v13, s46, v13")
    i("ds_write_b64 v13, v[64:65]")
    i("v_cvt_pk_bf16_f32 v66, v26, v25")
    i("v_cvt_pk_bf16_f32 v67, v24, v24")
    i("v_sub_u32 v13, 3576, v12")
    i("v_add_u32 v13, s46, v13")
    i("ds_write_b64 v13, v[66:67]")
    i("v_cvt_pk_bf16_f32 v68, v30, v30")
    i("v_cvt_pk_bf16_f32 v69, v29, v29")
    i("v_cvt_pk_bf16_f32 v70, v29, v28")
    i("v_cvt_pk_bf16_f32 v71, v28, v28")
    i("v_lshrrev_b32 v11, 1, v3")
    i("v_lshl_add_u32 v12, v11, 9, v10")
    i("v_and_b32 v11, 1, v3")
    i("v_lshl_add_u32 v12, v11, 4, v12")
    i("v_sub_u32 v13, 3056, v12")
    i("v_add_u32 v13, s46, v13")
    i("ds_write_b128 v13, v[68:71]")
    i("v_cvt_pk_bf16_f32 v72, v194, v194")
    i("v_mov_b32 v73, v72")
    i("v_cvt_pk_bf16_f32 v74, v193, v193")
    i("v_mov_b32 v75, v74")
    i("v_mov_b32 v76, v74")
    i("v_cvt_pk_bf16_f32 v77, v193, v192")
    i("v_cvt_pk_bf16_f32 v78, v192, v192")
    i("v_mov_b32 v79, v78")
    i("v_lshl_add_u32 v12, v3, 9, v10")
    i("v_sub_u32 v13, 2016, v12")
    i("v_add_u32 v13, s46, v13")
    i("ds_write_b128 v13, v[72:75]")
    i("ds_write_b128 v13, v[76:79] offset:16")
    for r in range(4): i("v_mov_b32 v%d, 0" % (32 + r))
    i("v_bfe_u32 v8, v1, 2, 2")
    i("v_mul_u32_u24 v8, %d, v8" % KCP)
    i("v_and_b32 v9, 3, v1")
    i("v_lshl_add_u32 v8, v9, 4, v8")
    i("v_add_u32 v8, s46, v8")
    i("ds_write_b128 v8, v[32:35] offset:4096")
    i("v_lshl_add_u32 v8, v1, 3, s46")
    i("v_add_u32 v9, %d, v8" % KCP)
    i("v_add_u32 v10, %d, v8" % (2 * KCP))
    i("v_add_u32 v11, %d, v8" % (3 * KCP))
    i("s_waitcnt lgkmcnt(0)")
    for it in range(8):
        i("ds_read_b64 v[%d:%d], v8 offset:%d" % (32 + 4 * it, 33 + 4 * it, 512 * it))
        i("ds_read_b64 v[%d:%d], v8 offset:%d" % (34 + 4 * it, 35 + 4 * it, 512 * it + 8))
    for it in range(8):
        i("s_waitcnt lgkmcnt(%d)" % min(15, 14 - 2 * it + 3 * it))
        d = 32 + 4 * it; a = 64 + 4 * it
        i("v_alignbit_b32 v%d, v%d, v%d, 16" % (a, d + 1, d))
        i("v_alignbit_b32 v%d, v%d, v%d, 16" % (a + 1, d + 2, d + 1))
        i("v_alignbit_b32 v%d, v%d, v%d, 16" % (a + 2, d + 3, d + 2))
        o = 128 * it
        i("ds_write2_b32 v9, v%d, v%d offset0:%d offset1:%d" % (a, a + 1, o % 256, o % 256 + 1) if it < 2 else "ds_write2st64_b32 v9, v9, v9" ) if False else None
        if it and it % 1 == 0:
            i("v_add_u32 v9, 512, v9"); i("v_add_u32 v10, 512, v10"); i("v_add_u32 v11, 512, v11")
        i("ds_write2_b32 v9, v%d, v%d offset0:0 offset1:1" % (a, a + 1))
        i("ds_write2_b32 v10, v%d, v%d offset0:0 offset1:1" % (d + 1, d + 2))
        i("ds_write2_b32 v11, v%d, v%d offset0:0 offset1:1" % (a + 1, a + 2))
    i("s_waitcnt vmcnt(0)")
    i("s_branch L_CV_B2")
    lab("L_CV_NORM")
    w1_prep()
    i("s_cmp_lg_u32 s3, 4")
    i("s_cbranch_scc1 L_CV_NW")
    i("s_mov_b32 s46, %d" % DBG_GO1)
    poll(56, "s46", 1, 1, 8, sleep=1)
    lds_add(M_S1, 8)
    i("s_branch L_CV_NG")
    lab("L_CV_NW")
    lds_wait(M_S1, 1)
    lab("L_CV_NG")
    stamp(5)
    i("v_subrev_u32 v6, 256, v0")
    i("v_lshlrev_b32 v6, 6, v6")
    i("s_mov_b32 s46, 0x%x" % WS_ST1)
    for k in range(4):
        i("buffer_load_dwordx4 v[%d:%d], v6, s[8:11], s46 offen offset:%d sc1" % (120 + 4 * k, 123 + 4 * k, 16 * k))
    i("s_mov_b32 s46, 0x%x" % SEL_LO)
    i("s_mov_b32 s47, 0x%x" % SEL_HI)
    i("s_waitcnt vmcnt(4)")
    for ch in range(4):
        for ii in range(4):
            lo = 100 + 2 * (2 * ii) + (ch >> 1); hi = 100 + 2 * (2 * ii + 1) + (ch >> 1)
            i("v_perm_b32 v%d, v%d, v%d, s%d" % (136 + 4 * ch + ii, hi, lo, 46 + (ch & 1)))
    for k in range(8):
        for jj in range(2):
            x = 100 + 2 * k + jj
            i("v_lshlrev_b32 v%d, 16, v%d" % (168 + 4 * k + 2 * jj, x))
            i("v_and_b32 v%d, 0xffff0000, v%d" % (168 + 4 * k + 2 * jj + 1, x))
    i("s_waitcnt vmcnt(0)")
    stamp(8)
    for k in range(8):
        m = 120 + 2 * k; r = m + 1
        for jj in range(2):
            a = 168 + 4 * k + 2 * jj; b = a + 1
            i("v_sub_f32 v%d, v%d, v%d" % (a, a, m))
            i("v_sub_f32 v%d, v%d, v%d" % (b, b, m))
            i("v_cvt_pk_bf16_f32 v%d, v%d, v%d" % (8 + jj, a, b))
        for jj in range(2):
            a = 168 + 4 * k + 2 * jj; b = a + 1
            i("v_lshlrev_b32 v%d, 16, v%d" % (a, 8 + jj))
            i("v_and_b32 v%d, 0xffff0000, v%d" % (b, 8 + jj))
            i("v_mul_f32 v%d, v%d, v%d" % (a, a, r))
            i("v_mul_f32 v%d, v%d, v%d" % (b, b, r))
    for ch in range(4):
        for ii in range(4):
            i("v_cvt_pk_bf16_f32 v%d, v%d, v%d" % (152 + 4 * ch + ii, 168 + 4 * (2 * ii) + ch, 168 + 4 * (2 * ii + 1) + ch))
    i("v_subrev_u32 v6, 256, v0")
    i("v_bfe_u32 v7, v6, 2, 2")
    i("v_lshlrev_b32 v6, 6, v6")
    for ch in range(4):
        i("v_xor_b32 v8, %d, v7" % ch)
        i("v_lshl_add_u32 v%d, v8, 4, v6" % (20 + ch))
        i("v_add_u32 v9, %d, v%d" % (UL + 2048, 20 + ch))
        i("ds_write_b128 v9, v[%d:%d]" % (152 + 4 * ch, 155 + 4 * ch))
    i("v_mov_b32 v8, 0")
    i("v_mov_b32 v9, 0")
    i("v_subrev_u32 v6, 256, v0")
    i("v_lshlrev_b32 v6, 3, v6")
    i("v_add_u32 v6, %d, v6" % UL)
    i("ds_write_b64 v6, v[8:9]")
    lab("L_CV_B2")
    i("s_waitcnt lgkmcnt(0)")
    i("s_barrier")
    stamp(4)
    i("s_cmp_ge_u32 s3, 4")
    i("s_cbranch_scc1 L_CV_HELP")
    i("s_mul_i32 s15, s3, %d" % KCH)
    i("v_and_b32 v8, 3, v2")
    i("v_sub_u32 v8, 3, v8")
    i("v_mul_u32_u24 v8, %d, v8" % KCP)
    i("v_lshrrev_b32 v9, 2, v2")
    i("v_lshlrev_b32 v9, 3, v9")
    i("v_lshl_add_u32 v9, v3, 4, v9")
    i("v_sub_u32 v9, %d, v9" % (4104 - 4032))
    i("v_add3_u32 v10, v8, v9, s15")
    i("v_lshlrev_b32 v8, 1, v2")
    i("v_add_u32 v8, 1, v8")
    i("v_sub_u32 v8, v8, v3")
    i("v_ashrrev_i32 v9, 2, v8")
    i("v_lshlrev_b32 v8, 6, v8")
    i("v_add_u32 v8, %d, v8" % (UL + 256))
    for r in range(4):
        i("v_subrev_u32 v11, %d, v9" % r)
        i("v_and_b32 v11, 3, v11")
        i("v_xor_b32 v11, s3, v11")
        i("v_lshl_add_u32 v%d, v11, 4, v8" % (12 + r))
    def FR(s, ii): return 24 + 64 * s + 4 * ii
    def GR(s, jj): return 24 + 64 * s + 32 + 4 * jj
    ACC = 160
    def reads(rho):
        s = rho & 1; lst = []
        for ii in range(8):
            sig = rho + 8 * ii; off = 64 * (63 - sig)
            lst.append("ds_read_b64 v[%d:%d], v10 offset:%d" % (FR(s, ii), FR(s, ii) + 1, off))
            lst.append("ds_read_b64 v[%d:%d], v10 offset:%d" % (FR(s, ii) + 2, FR(s, ii) + 3, off + 8))
            lst.append("ds_read_b128 v[%d:%d], v%d offset:%d" % (GR(s, ii), GR(s, ii) + 3, 12 + (rho & 3), 2048 * ii + 256 * (7 - rho)))
        return lst
    for r in reads(0): i(r)
    i("v_lshrrev_b32 v16, 1, v3")
    i("v_lshl_add_u32 v16, v2, 1, v16")
    i("v_bfe_u32 v17, v16, 2, 2")
    i("v_xor_b32 v17, s3, v17")
    i("v_lshlrev_b32 v16, 6, v16")
    i("v_lshl_add_u32 v16, v17, 4, v16")
    i("v_and_b32 v17, 1, v3")
    i("v_lshl_add_u32 v16, v17, 3, v16")
    i("v_add_u32 v16, %d, v16" % XL)
    for rho in range(8):
        s = rho & 1
        nxt = reads(rho + 1) if rho < 7 else ["ds_read_b64 v[%d:%d], v16 offset:%d" % (200 + 2 * al, 201 + 2 * al, 2048 * al) for al in range(8)]
        if rho == 7: lds_wait(M_XT, 4, 18)
        i("s_waitcnt lgkmcnt(0)")
        mf = []
        for al in range(8):
            for ii in range(al + 1):
                jj = al - ii
                first = (rho == 0 and ii == 0)
                mf.append("v_mfma_f32_16x16x32_bf16 v[%d:%d], v[%d:%d], v[%d:%d], %s" % (
                    ACC + 4 * al, ACC + 4 * al + 3, FR(s, ii), FR(s, ii) + 3, GR(s, jj), GR(s, jj) + 3,
                    "0" if first else "v[%d:%d]" % (ACC + 4 * al, ACC + 4 * al + 3)))
        k = 0
        for n, m in enumerate(mf):
            i(m)
            if k < len(nxt) and n < 30:
                i(nxt[k]); k += 1
        while k < len(nxt):
            i(nxt[k]); k += 1
    stamp(5)
    i("s_waitcnt lgkmcnt(0)")
    lds_add(M_MD, 4)
    nop(2)
    for al in range(8):
        x0, x1 = 200 + 2 * al, 201 + 2 * al
        a = ACC + 4 * al
        i("v_lshlrev_b32 v20, 16, v%d" % x0)
        i("v_and_b32 v21, 0xffff0000, v%d" % x0)
        i("v_lshlrev_b32 v22, 16, v%d" % x1)
        i("v_and_b32 v23, 0xffff0000, v%d" % x1)
        i("v_pk_add_f32 v[20:21], v[20:21], v[%d:%d]" % (a, a + 1))
        i("v_pk_add_f32 v[22:23], v[22:23], v[%d:%d]" % (a + 2, a + 3))
        i("v_cvt_pk_bf16_f32 v%d, v20, v21" % (24 + 2 * al))
        i("v_cvt_pk_bf16_f32 v%d, v22, v23" % (25 + 2 * al))
    i("v_lshlrev_b32 v8, 5, v2")
    i("v_lshl_add_u32 v8, v3, 3, v8")
    i("s_lshl_b32 s46, s3, 12")
    i("s_add_u32 s46, s46, %d" % TL)
    i("v_add_u32 v8, s46, v8")
    lds_wait(M_MD, 4, 4)
    for al in range(8):
        i("ds_write_b64 v8, v[%d:%d] offset:%d" % (24 + 2 * al, 25 + 2 * al, 512 * al))
    i("s_waitcnt lgkmcnt(0)")
    lds_add(M_TR + 16, 4)
    lds_wait(M_TR + 16, 4)
    i("v_lshlrev_b32 v252, 2, v0")
    i("v_add_u32 v252, %d, v252" % TL)
    i("v_lshlrev_b32 v253, 4, v0")
    i("s_lshl_b32 s14, s12, 14")
    i("s_add_u32 s14, s14, 0x%x" % WS_H)
    i("s_mov_b32 s46, 0x%x" % SEL_LO)
    i("s_mov_b32 s47, 0x%x" % SEL_HI)
    for it in range(4):
        for ch in range(4):
            i("ds_read_b32 v%d, v252 offset:%d" % (8 + 4 * it + ch, ch * 4096 + it * 1024))
    for it in range(4):
        i("s_waitcnt lgkmcnt(%d)" % (12 - 4 * it))
        b = 8 + 4 * it; o = 32 + 4 * it
        i("v_perm_b32 v%d, v%d, v%d, s46" % (o, b + 1, b))
        i("v_perm_b32 v%d, v%d, v%d, s46" % (o + 1, b + 3, b + 2))
        i("v_perm_b32 v%d, v%d, v%d, s47" % (o + 2, b + 1, b))
        i("v_perm_b32 v%d, v%d, v%d, s47" % (o + 3, b + 3, b + 2))
        i("buffer_store_dwordx4 v[%d:%d], v253, s[8:11], s14 offen sc1" % (o, o + 3))
        if it < 3: i("s_add_u32 s14, s14, 4096")
    lds_add(M_TR, 4)
    i("s_cmp_lg_u32 s65, 8")
    i("s_cbranch_scc1 L_CV_NH")
    i("s_cmp_lg_u32 s3, 0")
    i("s_cbranch_scc1 L_CV_NH")
    i("s_lshl_b32 s13, s64, 7")
    i("s_add_u32 s13, s13, 0x%x" % (WS_FL + FL_HINT))
    set_flag(8, "s13", 4)
    lab("L_CV_NH")
    stamp(6)
    i("s_branch L_PHASE_B")
    lab("L_CV_HELP")
    for ch in range(4):
        i("v_add_u32 v9, %d, v%d" % (XL, 20 + ch))
        i("ds_write_b128 v9, v[%d:%d]" % (136 + 4 * ch, 139 + 4 * ch))
    i("s_waitcnt lgkmcnt(0)")
    lds_add(M_XT, 8)
    i("s_cmp_lg_u32 s3, 4")
    i("s_cbranch_scc1 L_CV_NCP")
    arrive_shard(FL_CP, 248)
    lab("L_CV_NCP")
    w1_load(W1MAP)
    stamp(12)
    h1_poison(248)
    stamp(9)
    lds_wait(M_MD, 4, 4, sleep=1)
    stamp(13)
    i("s_bitcmp1_b32 s67, 0")
    i("s_cbranch_scc1 L_CV_V6")
    i("s_waitcnt vmcnt(8)")
    i("s_branch L_CV_V8")
    lab("L_CV_V6")
    i("s_waitcnt vmcnt(6)")
    lab("L_CV_V8")
    stamp(14)
    w1_write(W1MAP[0:4])
    i("s_cmp_lg_u32 s3, 7")
    i("s_cbranch_scc1 L_CV_W4")
    lds_wait(M_TR, 4, 6, sleep=1)
    lab("L_CV_W4")
    w1_write(W1MAP[4:5])
    i("s_waitcnt vmcnt(0)")
    lds_add(M_GP, 248, rtn=True)
    i("s_cmp_lg_u32 s13, 3")
    i("s_cbranch_scc1 L_CV_NGP")
    arrive_shard(FL_CP2, 248)
    lab("L_CV_NGP")
    stamp(6)

    lab("L_PHASE_B")
    if STOP == "A": i("s_branch L_FIN")
    i("s_cmp_lg_u32 s3, 0")
    i("s_cbranch_scc1 L_B_W")
    lds_wait(M_S1, 1, 8)
    i("s_lshl_b32 s46, s64, 7")
    i("s_add_u32 s46, s46, 0x%x" % (WS_FL + FL_HINT))
    poll(8, "s46", 1, 1, 8, sleep=8)
    poll_shards(FL_CP, 8, sleep=16)
    lab("L_B_W")
    i("s_waitcnt lgkmcnt(0)")
    i("s_barrier")
    stamp(7)
    i("s_cmp_ge_u32 s3, 4")
    i("s_cbranch_scc1 L_B_LOAD")
    HB, RING, ACC, WF = 16, 13, 64, 120
    def HS(kap):
        j = kap % RING
        return 16 + 8 * j if j < 6 else 176 + 8 * (j - 6)
    i("s_lshl_b32 s12, s66, 7")
    i("s_lshl_b32 s13, s3, 5")
    i("s_add_u32 s12, s12, s13")
    i("v_lshlrev_b32 v5, 14, v3")
    i("v_lshl_add_u32 v5, v2, 4, v5")
    i("s_lshl_b32 s13, s12, 3")
    i("v_add_u32 v5, s13, v5")
    i("v_lshlrev_b32 v4, 4, v1")
    vq = []
    def hl(kap, half):
        r = HS(kap) + 4 * half
        i("s_mov_b32 s13, 0x%x" % (WS_H + kap * 8 * 16384 + half * 4 * 16384))
        i("buffer_load_dwordx4 v[%d:%d], v5, s[8:11], s13 offen sc1" % (r, r + 3))
        vq.append(("h", kap, half))
    INIT = int(os.environ.get("INIT", "4"))
    pend = [(k_, h_) for k_ in range(20) for h_ in range(2)]
    for _ in range(2 * INIT):
        hl(*pend.pop(0))
    i("v_lshrrev_b32 v6, 2, v2")
    i("v_lshl_add_u32 v6, v3, 2, v6")
    i("v_mul_u32_u24 v6, 224, v6")
    i("v_and_b32 v7, 3, v2")
    i("v_lshl_add_u32 v8, v7, 3, v6")
    i("v_add_u32 v9, %d, v8" % (8 * 7168))
    i("v_add_u32 v10, %d, v8" % (16 * 7168))
    def wreads(kap):
        s = kap & 1; base = 8 + kap // 8; o = (kap % 8) * 7168; lst = []
        for t in range(7):
            r = WF + 28 * s + 4 * t
            lst.append("ds_read_b64_tr_b16 v[%d:%d], v%d offset:%d" % (r, r + 1, base, o + 32 * t))
            lst.append("ds_read_b64_tr_b16 v[%d:%d], v%d offset:%d" % (r + 2, r + 3, base, o + 32 * t + 3584))
        return lst
    i("v_mov_b32 v11, %d" % (MISC + M_CH + 16))
    i("v_mov_b32 v12, 1")
    for r in wreads(0): i(r)
    def swaps(kap):
        r = HS(kap)
        return ["v_swap_b32 v%d, v%d" % (r + 2, r + 4), "v_swap_b32 v%d, v%d" % (r + 3, r + 5)]
    def wait_h(kap):
        idx = max(n for n, x in enumerate(vq) if x[0] == "h" and x[1] == kap)
        return "s_waitcnt vmcnt(%d)" % min(63, len(vq) - 1 - idx)
    slow = []
    EARLYCHK = os.environ.get("EARLYCHK", "1") == "1"
    def check_h(kap, part=0):
        r = HS(kap)
        if part in (0, 1):
            i("v_max3_u32 v6, v%d, v%d, v%d" % (r, r + 2, r + 4))
            i("v_max_u32 v6, v6, v%d" % (r + 6))
            i("v_cmp_eq_u32 vcc, -1, v6")
            if part == 1: return
        bad, back = uid("HBAD"), uid("HOK")
        i("s_cbranch_vccnz %s" % bad)
        lab(back)
        later = sorted(set(x[1] for x in vq if x[0] == "h" and x[1] > kap))
        slow.append((bad, back, kap, later))
    if os.environ.get("XMID"):
        i("s_mov_b32 s96, 0")
        i("s_mov_b32 s97, 0")
    i(wait_h(0))
    check_h(0)
    lds_add(M_CH + 28, 6)
    stamp(12)
    for s_ in swaps(0): i(s_)
    w2pf = [(3, 0), (3, 1), (3, 2), (3, 3), (3, 4), (4, 0), (4, 1), (4, 2), (4, 3), (4, 4), (5, 0), (5, 1), (5, 2), (5, 3), (5, 4)]
    for kap in range(20):
        s = kap & 1
        nxt = wreads(kap + 1) if kap < 19 else []
        if os.environ.get("XMID") and kap in (4, 8, 12, 16): stamp({4: 3, 8: 4, 12: 5, 16: 6}[kap])
        if os.environ.get("XCYC") and kap == 12: i("s_memtime s[90:91]")
        if os.environ.get("XCYC") and kap == 16: i("s_memtime s[92:93]")
        i("s_waitcnt lgkmcnt(0)")
        k = 0; n = 0
        for t in range(7):
            for par in range(2):
                a = ACC + 8 * t + 4 * par
                h = HS(kap) + 4 * par
                w = WF + 28 * s + 4 * t
                i("v_mfma_f32_16x16x32_bf16 v[%d:%d], v[%d:%d], v[%d:%d], %s" % (a, a + 3, w, w + 3, h, h + 3, "0" if kap == 0 else "v[%d:%d]" % (a, a + 3)))
                if k < len(nxt):
                    i(nxt[k]); k += 1
                if n in (1, 5, 8, 12) and pend and pend[0][0] <= kap - 1 + RING:
                    hl(*pend.pop(0))
                    if not pend:
                        i("s_mov_b64 exec, 1")
                        i("ds_add_u32 v11, v12")
                        i("s_mov_b64 exec, -1")
                if EARLYCHK:
                    if n == 3 and kap < 19:
                        i(wait_h(kap + 1))
                        check_h(kap + 1, part=1)
                    if n == 9 and kap < 19:
                        check_h(kap + 1, part=2)
                    if n == 11 and kap < 19:
                        for s_ in swaps(kap + 1): i(s_)
                elif n == 11 and kap < 19:
                    i(wait_h(kap + 1))
                    check_h(kap + 1)
                    for s_ in swaps(kap + 1): i(s_)
                n += 1
    stamp(8)
    lds_wait(M_EP + 4, 2, 6)
    stamp(14)
    i("v_lshlrev_b32 v6, 4, v2")
    i("s_lshl_b32 s13, s3, 8")
    i("s_add_u32 s13, s13, %d" % (MISC + M_STAT))
    i("v_add_u32 v6, s13, v6")
    i("ds_read_b128 v[12:15], v6")
    i("v_lshlrev_b32 v7, 4, v3")
    i("v_add_u32 v7, %d, v7" % MISC)
    for t in range(7):
        i("ds_read_b128 v[%d:%d], v7 offset:%d" % (120 + 4 * t, 123 + 4 * t, M_CS + 64 * t))
        i("ds_read_b128 v[%d:%d], v7 offset:%d" % (148 + 4 * t, 151 + 4 * t, M_B1 + 64 * t))
    i("s_lshl_b32 s27, s66, 3")
    i("s_lshl_b32 s28, s3, 1")
    i("s_add_u32 s27, s27, s28")
    i("s_lshl_b32 s27, s27, 10")
    i("s_add_u32 s27, s27, 0x%x" % WS_H1)
    i("s_mul_i32 s28, s67, 7")
    i("s_waitcnt lgkmcnt(0)")
    def tile(t, par, o):
        a = ACC + 8 * t + 4 * par
        st = 12 + 2 * par
        cs = 120 + 4 * t; b1 = 148 + 4 * t
        tmp = 232 + 4 * ((t + par) & 1) + 8 * par
        for hh in range(2):
            i("v_pk_fma_f32 v[%d:%d], v[%d:%d], v[%d:%d], v[%d:%d] op_sel:[0,0,0] op_sel_hi:[1,0,1] neg_lo:[0,1,0] neg_hi:[0,1,0]" % (tmp + 2 * hh, tmp + 2 * hh + 1, cs + 2 * hh, cs + 2 * hh + 1, st, st + 1, b1 + 2 * hh, b1 + 2 * hh + 1))
        for hh in range(2):
            i("v_pk_fma_f32 v[%d:%d], v[%d:%d], v[%d:%d], v[%d:%d] op_sel:[0,1,0] op_sel_hi:[1,1,1]" % (tmp + 2 * hh, tmp + 2 * hh + 1, a + 2 * hh, a + 2 * hh + 1, st, st + 1, tmp + 2 * hh, tmp + 2 * hh + 1))
        for r in range(4): i("v_max_f32 v%d, 0, v%d" % (tmp + r, tmp + r))
        for hh in range(2):
            i("v_pk_mul_f32 v[%d:%d], v[%d:%d], v[%d:%d]" % (tmp + 2 * hh, tmp + 2 * hh + 1, tmp + 2 * hh, tmp + 2 * hh + 1, tmp + 2 * hh, tmp + 2 * hh + 1))
        i("v_cvt_pk_bf16_f32 v%d, v%d, v%d" % (o, tmp, tmp + 1))
        i("v_cvt_pk_bf16_f32 v%d, v%d, v%d" % (o + 1, tmp + 2, tmp + 3))
    def beta_off(t):
        i("s_add_u32 s29, s28, %d" % t)
        i("s_lshr_b32 s29, s29, 1")
        i("s_lshl_b32 s29, s29, 17")
        i("s_add_u32 s29, s29, s27")
    def epi(pairs, single, half):
        o = 16
        def do_single():
            nonlocal o
            beta_off(single)
            for par in range(2):
                tile(single, par, o)
                i("buffer_store_dwordx2 v[%d:%d], v4, s[8:11], s29 offen offset:%d sc1" % (o, o + 1, 1024 * par + 8 * half))
                o += 4
        if half == 1: do_single()
        for t in pairs:
            beta_off(t)
            for par in range(2):
                tile(t, par, o)
                tile(t + 1, par, o + 2)
                i("buffer_store_dwordx4 v[%d:%d], v4, s[8:11], s29 offen offset:%d sc1" % (o, o + 3, 1024 * par))
                o += 4
        if half == 0: do_single()
    stamp(1)
    i("s_bitcmp1_b32 s67, 0")
    i("s_cbranch_scc1 L_B_ODD")
    epi((0, 2, 4), 6, 0)
    i("s_branch L_B_STD")
    lab("L_B_ODD")
    epi((1, 3, 5), 0, 1)
    lab("L_B_STD")
    stamp(9)
    lds_add(M_CH + 40, 6)
    lds_wait(M_EP, 1, 6)
    i("s_branch L_PHASE_C")
    for (bad, back, kap, later) in slow:
        r = HS(kap)
        lab(bad)
        i("s_mov_b32 s47, 0")
        top = uid("HT")
        lab(top)
        i("s_sleep 2")
        i("s_mov_b32 s13, 0x%x" % (WS_H + kap * 8 * 16384))
        i("buffer_load_dwordx4 v[%d:%d], v5, s[8:11], s13 offen sc1" % (r, r + 3))
        i("s_mov_b32 s13, 0x%x" % (WS_H + kap * 8 * 16384 + 4 * 16384))
        i("buffer_load_dwordx4 v[%d:%d], v5, s[8:11], s13 offen sc1" % (r + 4, r + 7))
        i("s_waitcnt vmcnt(0)")
        i("v_max3_u32 v6, v%d, v%d, v%d" % (r, r + 2, r + 4))
        i("v_max_u32 v6, v6, v%d" % (r + 6))
        i("v_cmp_eq_u32 vcc, -1, v6")
        okl = uid("HR")
        i("s_cbranch_vccz %s" % okl)
        i("s_add_u32 s47, s47, 1")
        i("s_cmp_lt_u32 s47, %d" % SPIN_LIMIT)
        i("s_cbranch_scc1 %s" % top)
        lab(okl)
        for k2 in later:
            r2 = HS(k2)
            i("s_mov_b32 s13, 0x%x" % (WS_H + k2 * 8 * 16384))
            i("buffer_load_dwordx4 v[%d:%d], v5, s[8:11], s13 offen sc1" % (r2, r2 + 3))
            i("s_mov_b32 s13, 0x%x" % (WS_H + k2 * 8 * 16384 + 4 * 16384))
            i("buffer_load_dwordx4 v[%d:%d], v5, s[8:11], s13 offen sc1" % (r2 + 4, r2 + 7))
        i("s_waitcnt vmcnt(0)")
        i("s_branch %s" % back)

    lab("L_B_LOAD")
    lds_wait(M_CH + 28, 1, 4, sleep=4)
    i("s_lshl_b32 s12, s66, 7")
    i("s_lshl_b32 s13, s67, 3")
    i("s_add_u32 s12, s12, s13")
    i("s_sub_u32 s14, s3, 4")
    i("s_mul_i32 s14, s14, 40")
    i("v_lshrrev_b32 v5, 2, v1")
    i("v_add_u32 v5, s14, v5")
    i("v_and_b32 v6, 3, v1")
    i("v_lshlrev_b32 v7, 14, v5")
    i("v_lshl_add_u32 v7, v6, 4, v7")
    i("s_lshl_b32 s13, s12, 3")
    i("s_add_u32 s13, s13, 0x%x" % WS_H)
    i("s_mov_b32 s15, s13")
    i("s_mov_b32 s47, 0")
    for r in range(4): i("v_mov_b32 v%d, 0" % (24 + r))
    lab("L_LS_TOP")
    i("s_mov_b32 s13, s15")
    for k in range(3):
        if k == 2: i("s_mov_b64 exec, 0xffffffff")
        i("buffer_load_dwordx4 v[%d:%d], v7, s[8:11], s13 offen sc1" % (16 + 4 * k, 19 + 4 * k))
        i("s_add_u32 s13, s13, %d" % (16 * 16384))
    i("s_mov_b64 exec, -1")
    i("s_waitcnt vmcnt(0)")
    i("v_max3_u32 v8, v16, v18, v20")
    i("v_max3_u32 v9, v22, v24, v26")
    i("v_max_u32 v8, v8, v9")
    i("v_cmp_eq_u32 vcc, -1, v8")
    i("s_cbranch_vccz L_LS_OK")
    i("s_sleep 8")
    i("s_add_u32 s47, s47, 1")
    i("s_cmp_lt_u32 s47, %d" % SPIN_LIMIT)
    i("s_cbranch_scc1 L_LS_TOP")
    lab("L_LS_OK")
    i("v_mov_b32 v7, 0x3f803f80")
    for r in range(8, 16): i("v_mov_b32 v%d, 0" % r)
    for k in range(3):
        for hf in range(2):
            for dw in range(2):
                x = 16 + 4 * k + 2 * hf + dw
                i("v_dot2_f32_bf16 v%d, v%d, v7, v%d" % (8 + 4 * dw + 2 * hf, x, 8 + 4 * dw + 2 * hf))
                i("v_dot2_f32_bf16 v%d, v%d, v%d, v%d" % (9 + 4 * dw + 2 * hf, x, x, 9 + 4 * dw + 2 * hf))
    nop(3)
    for r in range(4): i("v_add_f32 v%d, v%d, v%d" % (8 + r, 8 + r, 12 + r))
    for rr in (8, 4):
        nop(2)
        for r in range(4):
            i("v_add_f32_dpp v%d, v%d, v%d row_ror:%d row_mask:0xf bank_mask:0xf" % (8 + r, 8 + r, 8 + r, rr))
    for op in ("v_permlane16_swap_b32", "v_permlane32_swap_b32"):
        for r in range(4): i("v_mov_b32 v%d, v%d" % (12 + r, 8 + r))
        nop(1)
        for r in range(4): i("%s v%d, v%d" % (op, 12 + r, 8 + r))
        nop(1)
        for r in range(4): i("v_add_f32 v%d, v%d, v%d" % (8 + r, 8 + r, 12 + r))
    i("s_sub_u32 s13, s3, 4")
    i("s_lshl_b32 s13, s13, 6")
    i("s_add_u32 s13, s13, %d" % (MISC + 2304))
    i("v_lshlrev_b32 v5, 4, v1")
    i("v_add_u32 v5, s13, v5")
    i("s_mov_b64 exec, 0xf")
    i("ds_write_b128 v5, v[8:11]")
    i("s_mov_b64 exec, -1")
    i("s_waitcnt lgkmcnt(0)")
    lds_add(M_ST, 4, rtn=True)
    i("s_cmp_eq_u32 s13, 0")
    i("s_cbranch_scc1 L_B_CSP")
    i("s_cmp_lg_u32 s13, 3")
    i("s_cbranch_scc1 L_B_LD1")
    i("s_mov_b64 exec, 0xf")
    i("v_lshlrev_b32 v5, 4, v1")
    i("v_add_u32 v5, %d, v5" % (MISC + 2304))
    for w in range(4):
        i("ds_read_b128 v[%d:%d], v5 offset:%d" % (16 + 4 * w, 19 + 4 * w, 64 * w))
    i("s_waitcnt lgkmcnt(0)")
    for w in range(1, 4):
        i("v_pk_add_f32 v[16:17], v[16:17], v[%d:%d]" % (16 + 4 * w, 17 + 4 * w))
        i("v_pk_add_f32 v[18:19], v[18:19], v[%d:%d]" % (18 + 4 * w, 19 + 4 * w))
    ln_finish(16, 17, True)
    ln_finish(18, 19, True)
    i("v_lshlrev_b32 v5, 4, v1")
    i("s_lshl_b32 s13, s12, 3")
    i("s_add_u32 s13, s13, 0x%x" % WS_ST2)
    i("buffer_store_dwordx4 v[16:19], v5, s[8:11], s13 offen sc1")
    i("s_mov_b64 exec, -1")
    i("v_lshlrev_b32 v5, 4, v1")
    i("s_lshl_b32 s13, s66, 10")
    i("s_add_u32 s13, s13, 0x%x" % WS_ST2)
    i("s_mov_b32 s47, 0")
    lab("L_ST2_TOP")
    i("buffer_load_dwordx4 v[16:19], v5, s[8:11], s13 offen sc1")
    i("s_waitcnt vmcnt(0)")
    i("v_max_u32 v8, v17, v19")
    i("v_cmp_eq_u32 vcc, -1, v8")
    i("s_cbranch_vccz L_ST2_OK")
    i("s_sleep 1")
    i("s_add_u32 s47, s47, 1")
    i("s_cmp_lt_u32 s47, %d" % SPIN_LIMIT)
    i("s_cbranch_scc1 L_ST2_TOP")
    lab("L_ST2_OK")
    i("v_add_u32 v6, %d, v5" % (MISC + M_STAT))
    i("ds_write_b128 v6, v[16:19]")
    i("s_waitcnt lgkmcnt(0)")
    lds_add(M_EP + 4, 6)
    i("s_branch L_B_LD1")
    lab("L_B_CSP")
    poll_shards(FL_CP2, 24, sleep=16)
    i("s_mul_i32 s14, s67, 112")
    i("v_lshlrev_b32 v5, 2, v1")
    i("s_lshl_b32 s13, s14, 2")
    i("s_add_u32 s13, s13, 0x%x" % WS_CS)
    i("buffer_load_dword v20, v5, s[8:11], s13 offen sc1")
    i("buffer_load_dword v21, v5, s[8:11], s13 offen offset:256 sc1")
    srd(4, 38, F * 2)
    i("v_lshlrev_b32 v6, 1, v1")
    i("s_lshl_b32 s13, s14, 1")
    i("buffer_load_ushort v22, v6, s[4:7], s13 offen")
    i("buffer_load_ushort v23, v6, s[4:7], s13 offen offset:128")
    i("s_waitcnt vmcnt(0)")
    i("v_lshlrev_b32 v22, 16, v22")
    i("v_lshlrev_b32 v23, 16, v23")
    i("v_add_u32 v6, %d, v5" % MISC)
    i("ds_write_b32 v6, v20 offset:%d" % M_CS)
    i("ds_write_b32 v6, v21 offset:%d" % (M_CS + 256))
    i("ds_write_b32 v6, v22 offset:%d" % M_B1)
    i("ds_write_b32 v6, v23 offset:%d" % (M_B1 + 256))
    i("s_waitcnt lgkmcnt(0)")
    lds_add(M_EP + 4, 6)
    lab("L_B_LD1")
    i("s_mov_b32 s46, %d" % DBG_GOW)
    poll(56, "s46", 1, 1, 8, sleep=2)
    lds_add(M_EP, 8)
    lds_wait(M_CH + 16, 4, 6, sleep=2)
    if os.environ.get("W2GATE", "0") == "1": lds_wait(M_EP + 4, 2, 6, sleep=2)
    i("v_lshlrev_b32 v4, 4, v1")
    if not os.environ.get("XNOW2"): w2_load(range(6), range(6))
    lds_wait(M_EP + 4, 2, 6, sleep=4)
    if os.environ.get("GATEC", "1") == "1": lds_wait(M_CH + 40, 4, 6, sleep=4)

    lab("L_PHASE_C")
    if STOP == "B": i("s_branch L_FIN")
    i("s_lshr_b32 s12, s64, 1")
    i("s_lshl_b32 s12, s12, 3")
    i("s_lshr_b32 s13, s65, 2")
    i("s_add_u32 s12, s12, s13")
    stamp(10)
    i("s_and_b32 s4, s3, 3")
    i("s_mul_i32 s5, s4, 7")
    i("s_lshr_b32 s6, s3, 2")
    i("s_mul_i32 s7, s6, 27")
    i("s_add_u32 s5, s5, s7")
    i("s_lshl_b32 s5, s5, 7")
    i("s_lshl_b32 s7, s12, 2")
    i("s_add_u32 s5, s5, s7")
    i("s_lshl_b32 s5, s5, 10")
    i("s_add_u32 s5, s5, 0x%x" % WS_H1)
    R2, ACC2 = 8, 40
    vqa, vqb = [], []
    def h1l(st, lt):
        r = R2 + 16 * (st & 1) + 4 * lt
        i("s_add_u32 s13, s5, %d" % (st * 131072))
        i("buffer_load_dwordx4 v[%d:%d], v4, s[8:11], s13 offen offset:%d sc1" % (r, r + 3, 1024 * lt))
        vqa.append(("h", st, lt)); vqb.append(("h", st, lt))
    def w2l(st, sl, both=False):
        lb = uid("W2S")
        if not both:
            i("s_cmp_ge_u32 s3, 4")
            i("s_cbranch_scc1 %s" % lb)
        w2_load([st], [sl])
        lab(lb)
        for dl in range(5):
            vqa.append(("w", st, dl))
            if both: vqb.append(("w", st, dl))
    W2PRE = int(os.environ.get("W2PRE", "6"))
    for st_ in range(max(1, W2PRE)): w2l(st_, st_)
    for lt in range(4): h1l(0, lt)
    if W2PRE < 2: w2l(1, 1)
    for lt in range(4): h1l(1, lt)
    for r in range(80): i("v_mov_b32 v%d, 0" % (ACC2 + r))
    srd(56, 42, D * 2)
    srd(48, 44, L * D * 2)
    i("s_mul_i32 s7, s60, 5")
    i("s_lshl_b32 s15, s12, 6")
    i("s_and_b32 s14, s3, 3")
    i("s_lshr_b32 s13, s14, 1")
    i("s_lshl_b32 s13, s13, 5")
    i("s_add_u32 s15, s15, s13")
    i("s_and_b32 s13, s14, 1")
    i("s_add_u32 s15, s15, s13")
    i("v_lshlrev_b32 v6, 1, v2")
    i("v_add_u32 v6, s15, v6")
    slow2 = []
    def wait_for(tag):
        ns = []
        for q in (vqa, vqb):
            idxs = [n for n, x in enumerate(q) if x == tag]
            if idxs: ns.append(len(q) - 1 - max(idxs))
        i("s_waitcnt vmcnt(%d)" % min(63, min(ns)))
    for st in range(7):
        if st == 6:
            i("s_cmp_eq_u32 s4, 3")
            i("s_cbranch_scc1 L_C_RED")
            wait_for(("w", 6, 4))
        if st + 2 <= 5 and st + 2 >= max(2, W2PRE): w2l(st + 2, st + 2)
        sl = st if st < 6 else 0
        for lt in range(4):
            hr = R2 + 16 * (st & 1) + 4 * lt
            if (st, lt) == (0, 0):
                wait_for(("h", st, lt))
                i("v_max_u32 v5, v%d, v%d" % (hr, hr + 2))
                i("v_cmp_eq_u32 vcc, -1, v5")
            bad, back = uid("GBAD"), uid("GOK")
            i("s_cbranch_vccnz %s" % bad)
            lab(back)
            later = [(x[1], x[2]) for x in vqb if x[0] == "h" and (x[1], x[2]) > (st, lt)]
            slow2.append((bad, back, st, lt, later))
            if st == 0 and lt == 0: stamp(2)
            nx = (st, lt + 1) if lt < 3 else (st + 1, 0)
            for dl in range(5):
                a = ACC2 + 16 * dl + 4 * lt
                w = W2R + 20 * sl + 4 * dl
                h = R2 + 16 * (st & 1) + 4 * lt
                i("v_mfma_f32_16x16x32_bf16 v[%d:%d], v[%d:%d], v[%d:%d], v[%d:%d]" % (a, a + 3, w, w + 3, h, h + 3, a, a + 3))
                if dl == 1 and nx[0] < 7:
                    nr = R2 + 16 * (nx[0] & 1) + 4 * nx[1]
                    wait_for(("h",) + nx)
                    i("v_max_u32 v5, v%d, v%d" % (nr, nr + 2))
                    i("v_cmp_eq_u32 vcc, -1, v5")
            if st + 2 < 7: h1l(st + 2, lt)
        if st == 0:
            w2l(6, 0, both=True)
        if st == 1:
            for j in range(3):
                i("s_lshr_b32 s46, s3, 2")
                i("s_add_u32 s46, s46, %d" % (2 * j))
                i("s_min_u32 s46, s46, 4")
                i("s_add_u32 s46, s46, s7")
                i("s_lshl_b32 s13, s46, 16")
                i("s_add_u32 s13, s13, 0x%x" % WS_H)
                i("v_lshlrev_b32 v7, 14, v3")
                i("v_lshl_add_u32 v7, v6, 3, v7")
                i("buffer_load_dwordx2 v[%d:%d], v7, s[8:11], s13 offen sc1" % (240 + 2 * j, 241 + 2 * j))
                i("s_lshl_b32 s13, s46, 5")
                i("v_lshlrev_b32 v7, 3, v3")
                i("buffer_load_dwordx2 v[%d:%d], v7, s[56:59], s13 offen" % (246 + 2 * j, 247 + 2 * j))
                for q in (vqa, vqb): q.append(("e", j, 0)); q.append(("e", j, 1))
    lab("L_C_RED")
    stamp(11)
    i("s_waitcnt vmcnt(0)")
    i("s_barrier")
    i("s_lshl_b32 s13, s3, 10")
    i("v_add_u32 v5, s13, v4")
    i("v_add_u32 v7, 65536, v5")
    i("v_add_u32 v8, 131072, v5")
    nop(4)
    for T in range(20):
        a = ACC2 + 4 * T
        base = (5, 7, 8)[T // 8]
        i("ds_write_b128 v%d, v[%d:%d] offset:%d" % (base, a, a + 3, (T % 8) * 8192))
    i("s_lshl_b32 s13, s3, 13")
    i("v_add_u32 v5, s13, v4")
    i("v_add_u32 v7, 65536, v5")
    i("v_add_u32 v8, 131072, v5")
    i("s_waitcnt lgkmcnt(0)")
    i("s_barrier")
    for j in range(3):
        if j == 2:
            i("s_cmp_ge_u32 s3, 4")
            i("s_cbranch_scc1 L_C_RD")
        for src in range(8):
            r = 120 + 32 * j + 4 * src
            i("ds_read_b128 v[%d:%d], v%d offset:%d" % (r, r + 3, (5, 7, 8)[j], src * 1024))
    lab("L_C_RD")
    i("s_waitcnt vmcnt(0)")
    for j in range(3):
        if j == 2:
            i("s_cmp_ge_u32 s3, 4")
            i("s_cbranch_scc1 L_FIN")
        i("s_waitcnt lgkmcnt(%d)" % (8 if j == 0 else 0))
        r = 120 + 32 * j
        for (x_, y_) in ((0, 4), (8, 12), (16, 20), (24, 28), (0, 8), (16, 24), (0, 16)):
            i("v_pk_add_f32 v[%d:%d], v[%d:%d], v[%d:%d]" % (r + x_, r + x_ + 1, r + x_, r + x_ + 1, r + y_, r + y_ + 1))
            i("v_pk_add_f32 v[%d:%d], v[%d:%d], v[%d:%d]" % (r + x_ + 2, r + x_ + 3, r + x_ + 2, r + x_ + 3, r + y_ + 2, r + y_ + 3))
        i("v_cvt_pk_bf16_f32 v30, v%d, v%d" % (r, r + 1))
        i("v_cvt_pk_bf16_f32 v31, v%d, v%d" % (r + 2, r + 3))
        for (src, dst) in ((30, 32), (31, 34), (246 + 2 * j, 36), (247 + 2 * j, 38)):
            i("v_lshlrev_b32 v%d, 16, v%d" % (dst, src))
            i("v_and_b32 v%d, 0xffff0000, v%d" % (dst + 1, src))
        i("v_pk_add_f32 v[32:33], v[32:33], v[36:37]")
        i("v_pk_add_f32 v[34:35], v[34:35], v[38:39]")
        i("v_cvt_pk_bf16_f32 v30, v32, v33")
        i("v_cvt_pk_bf16_f32 v31, v34, v35")
        for (src, dst) in ((30, 32), (31, 34), (240 + 2 * j, 36), (241 + 2 * j, 38)):
            i("v_lshlrev_b32 v%d, 16, v%d" % (dst, src))
            i("v_and_b32 v%d, 0xffff0000, v%d" % (dst + 1, src))
        i("v_pk_add_f32 v[32:33], v[32:33], v[36:37]")
        i("v_pk_add_f32 v[34:35], v[34:35], v[38:39]")
        i("v_cvt_pk_bf16_f32 v%d, v32, v33" % (24 + 2 * j))
        i("v_cvt_pk_bf16_f32 v%d, v34, v35" % (25 + 2 * j))
        i("s_lshr_b32 s46, s3, 2")
        i("s_add_u32 s46, s46, %d" % (2 * j))
        i("s_add_u32 s46, s46, s7")
        i("s_lshl_b32 s46, s46, 5")
        i("v_mul_u32_u24 v9, 1280, v6")
        i("v_lshl_add_u32 v9, v3, 3, v9")
        i("buffer_store_dwordx2 v[%d:%d], v9, s[48:51], s46 offen%s" % (24 + 2 * j, 25 + 2 * j, os.environ.get("OUTF", "")))
    lab("L_FIN")
    stamp_flush()
    lab("L_END")
    i("s_endpgm")
    for (bad, back, st, lt, later) in slow2:
        r = R2 + 16 * (st & 1) + 4 * lt
        lab(bad)
        i("s_mov_b32 s47, 0")
        top = uid("GT")
        lab(top)
        i("s_sleep 1")
        i("s_add_u32 s13, s5, %d" % (st * 131072))
        i("buffer_load_dwordx4 v[%d:%d], v4, s[8:11], s13 offen offset:%d sc1" % (r, r + 3, 1024 * lt))
        i("s_waitcnt vmcnt(0)")
        i("v_max_u32 v5, v%d, v%d" % (r, r + 2))
        i("v_cmp_eq_u32 vcc, -1, v5")
        okl = uid("GR")
        i("s_cbranch_vccz %s" % okl)
        i("s_add_u32 s47, s47, 1")
        i("s_cmp_lt_u32 s47, %d" % SPIN_LIMIT)
        i("s_cbranch_scc1 %s" % top)
        lab(okl)
        for (s2_, l2_) in later:
            r2 = R2 + 16 * (s2_ & 1) + 4 * l2_
            i("s_add_u32 s13, s5, %d" % (s2_ * 131072))
            i("buffer_load_dwordx4 v[%d:%d], v4, s[8:11], s13 offen offset:%d sc1" % (r2, r2 + 3, 1024 * l2_))
        i("s_waitcnt vmcnt(0)")
        i("s_branch %s" % back)
    lab("L_CODE_END")
    e('.section .rodata,"a"')
    e(".p2align 6")
    e(".amdhsa_kernel %s" % KNAME)
    e("  .amdhsa_next_free_vgpr 256")
    e("  .amdhsa_next_free_sgpr 102")
    e("  .amdhsa_accum_offset 256")
    e("  .amdhsa_group_segment_fixed_size 0")
    e("  .amdhsa_kernarg_size 120")
    e("  .amdhsa_user_sgpr_count 2")
    e("  .amdhsa_user_sgpr_kernarg_segment_ptr 1")
    e("  .amdhsa_system_sgpr_workgroup_id_x 1")
    e(".end_amdhsa_kernel")

if __name__ == "__main__":
    main()
    path = sys.argv[1] if len(sys.argv) > 1 else "cdna_kernels/%s.s" % NAME
    open(path, "w").write("\n".join(x for x in out if x is not None) + "\n")
    print("wrote", path, len(out), "lines")
```

```python
import sys, os, struct
NAME = "sequential_preLN__ssm_conv_s4d__dense_activation_squared_relu__prompt"
KNAME = NAME + "_kernel"
L, D, NS, F = 2048, 640, 128, 1728
STAMPS = os.environ.get("STAMPS", "0") == "1"
STOP = os.environ.get("STOP", "")

WS_ST1 = 0x000000
WS_CS  = 0x008000
WS_ST2 = 0x010000
WS_FL  = 0x020000
WS_H   = 0x100000
WS_H1  = 0x400000
WS_W1P = 0xC00000
WS_W2P = 0x1000000
WS_STAMP = 0x8000000
WS_SIZE = 0x10000000
FL_CP, FL_CP2, FL_HINT, FL_SIZE = 0, 1024, 2048, 3072
DBG_C1, DBG_CW, DBG_CP, DBG_CP2, DBG_GO1, DBG_GOW, DBG_GOP, DBG_GOP2 = 0, 4, 8, 12, 128, 132, 136, 140
XROW = 544
FAC_CH = 63 * XROW
KCH, KCP = FAC_CH, 4160
UL = 137216
XL = 50944
TL = 142336
MISC = 158720
M_CH, M_ST, M_S1, M_XT, M_TR, M_HS, M_EP, M_GP, M_MD = 0, 32, 64, 68, 72, 76, 80, 92, 96
M_STAT, M_CS, M_B1 = 256, 1280, 1792
LDS_TOTAL = 163840

out = []
def e(s=""): out.append(s)
def lab(s): out.append(s + ":")
def i(s): out.append("    " + s)
def f2u(f): return struct.unpack("<I", struct.pack("<f", f))[0]
def nop(n):
    while n > 0:
        k = min(n, 16); i("s_nop %d" % (k - 1)); n -= k
def srd(dst, ptr_lo, nbytes):
    i("s_mov_b32 s%d, s%d" % (dst, ptr_lo))
    i("s_mov_b32 s%d, s%d" % (dst + 1, ptr_lo + 1))
    i("s_mov_b32 s%d, 0x%x" % (dst + 2, nbytes))
    i("s_mov_b32 s%d, 0x00020000" % (dst + 3))
def round_bf16(dst, src):
    i("v_cvt_pk_bf16_f32 v%d, v%d, v%d" % (dst, src, src))
    i("v_lshlrev_b32 v%d, 16, v%d" % (dst, dst))
_uid = [0]
def uid(p):
    _uid[0] += 1
    return "%s_%d" % (p, _uid[0])
def stamp(k):
    if STAMPS:
        assert k < 15
        i("s_memrealtime s[%d:%d]" % (70 + 2 * k, 71 + 2 * k))
def stamp_flush():
    if not STAMPS: return
    i("s_memrealtime s[100:101]")
    i("s_waitcnt lgkmcnt(0)")
    i("s_mov_b64 exec, 1")
    i("s_lshl_b32 s46, s2, 3")
    i("s_add_u32 s46, s46, s3")
    i("s_lshl_b32 s46, s46, 7")
    i("s_add_u32 s46, s46, 0x%x" % WS_STAMP)
    i("v_mov_b32 v0, 0")
    for k in range(16):
        i("v_mov_b32 v2, s%d" % (70 + 2 * k))
        i("v_mov_b32 v3, s%d" % (71 + 2 * k))
        i("buffer_store_dwordx2 v[2:3], v0, s[8:11], s46 offen offset:%d" % (8 * k))
        i("s_nop 1")

LOG2E, NLOG2E, INV2PI = 0x3fb8aa3b, 0xbfb8aa3b, "0.15915494"
SEL_LO, SEL_HI = 0x05040100, 0x07060302
INV640, EPS = 0x3acccccd, 0x3727c5ac
SPIN_LIMIT = 1 << 18

def poll(srd_reg, soff, nlanes, ndw, vt, spread=False, sleep=2):
    top, done = uid("POLL"), uid("POLLD")
    i("s_mov_b64 s[68:69], exec")
    m = (1 << nlanes) - 1
    i("s_mov_b32 exec_lo, 0x%x" % (m & 0xffffffff))
    i("s_mov_b32 exec_hi, 0x%x" % (m >> 32))
    if spread:
        i("v_lshrrev_b32 v%d, 1, v1" % (vt + 4))
        i("v_lshlrev_b32 v%d, 7, v%d" % (vt + 4, vt + 4))
        i("v_and_b32 v%d, 1, v1" % (vt + 5))
        i("v_lshl_add_u32 v%d, v%d, 4, v%d" % (vt + 4, vt + 5, vt + 4))
    else:
        i("v_lshlrev_b32 v%d, %d, v1" % (vt + 4, {1: 2, 4: 4}[ndw]))
    i("s_mov_b32 s47, 0")
    lab(top)
    if ndw == 1:
        i("buffer_load_dword v%d, v%d, s[%d:%d], %s offen sc1" % (vt, vt + 4, srd_reg, srd_reg + 3, soff))
        i("s_waitcnt vmcnt(0)")
    else:
        i("buffer_load_dwordx4 v[%d:%d], v%d, s[%d:%d], %s offen sc1" % (vt, vt + 3, vt + 4, srd_reg, srd_reg + 3, soff))
        i("s_waitcnt vmcnt(0)")
        i("v_min_u32 v%d, v%d, v%d" % (vt, vt, vt + 1))
        i("v_min_u32 v%d, v%d, v%d" % (vt + 2, vt + 2, vt + 3))
        i("v_min_u32 v%d, v%d, v%d" % (vt, vt, vt + 2))
    i("v_cmp_ne_u32 vcc, 0, v%d" % vt)
    i("s_cmp_eq_u64 vcc, exec")
    i("s_cbranch_scc1 %s" % done)
    i("s_sleep %d" % sleep)
    i("s_add_u32 s47, s47, 1")
    i("s_cmp_lt_u32 s47, %d" % SPIN_LIMIT)
    i("s_cbranch_scc1 %s" % top)
    lab(done)
    i("s_mov_b64 exec, s[68:69]")

def set_flag(srd_reg, soff, va=4):
    i("s_mov_b64 s[68:69], exec")
    i("s_mov_b64 exec, 1")
    i("v_mov_b32 v%d, 0" % va)
    i("v_mov_b32 v%d, 1" % (va + 1))
    i("buffer_store_dword v%d, v%d, s[%d:%d], %s offen sc1" % (va + 1, va, srd_reg, srd_reg + 3, soff))
    i("s_mov_b64 exec, s[68:69]")

def arrive_last(cnt_off, total, go_off):
    lbl = uid("ARR")
    i("s_mov_b64 s[68:69], exec")
    i("s_mov_b64 exec, 1")
    i("v_mov_b32 v4, %d" % cnt_off)
    i("v_mov_b32 v5, 1")
    i("buffer_atomic_add v5, v4, s[56:59], 0 offen sc0 sc1")
    i("s_waitcnt vmcnt(0)")
    i("v_readfirstlane_b32 s13, v5")
    i("s_mov_b64 exec, s[68:69]")
    i("s_cmp_lg_u32 s13, %d" % (total - 1))
    i("s_cbranch_scc1 %s" % lbl)
    i("s_mov_b32 s13, %d" % go_off)
    set_flag(56, "s13")
    lab(lbl)

def arrive_shard(floff, va=4):
    i("s_mov_b64 s[68:69], exec")
    i("s_mov_b64 exec, 1")
    i("s_lshl_b32 s13, s64, 7")
    i("s_add_u32 s13, s13, 0x%x" % (WS_FL + floff))
    i("v_mov_b32 v%d, 0" % va)
    i("v_mov_b32 v%d, 1" % (va + 1))
    i("buffer_atomic_add v%d, v%d, s[8:11], s13 offen sc1" % (va + 1, va))
    i("s_mov_b64 exec, s[68:69]")
def poll_shards(floff, vt, sleep=4):
    top, done = uid("PS"), uid("PSD")
    i("s_mov_b64 s[68:69], exec")
    i("s_mov_b64 exec, 0xff")
    i("v_lshlrev_b32 v%d, 7, v1" % (vt + 1))
    i("s_mov_b32 s46, 0x%x" % (WS_FL + floff))
    i("s_mov_b32 s47, 0")
    lab(top)
    i("buffer_load_dword v%d, v%d, s[8:11], s46 offen sc1" % (vt, vt + 1))
    i("s_waitcnt vmcnt(0)")
    i("v_cmp_le_u32 vcc, 32, v%d" % vt)
    i("s_cmp_eq_u64 vcc, exec")
    i("s_cbranch_scc1 %s" % done)
    i("s_sleep %d" % sleep)
    i("s_add_u32 s47, s47, 1")
    i("s_cmp_lt_u32 s47, %d" % SPIN_LIMIT)
    i("s_cbranch_scc1 %s" % top)
    lab(done)
    i("s_mov_b64 exec, s[68:69]")
def h1_poison(v0=4):
    skip = uid("HPS")
    i("v_lshlrev_b32 v%d, 4, v1" % (v0 + 4))
    for r in range(4): i("v_mov_b32 v%d, -1" % (v0 + r))
    i("s_lshl_b32 s27, s66, 3")
    i("s_and_b32 s28, s3, 3")
    i("s_lshl_b32 s28, s28, 1")
    i("s_add_u32 s27, s27, s28")
    i("s_lshl_b32 s27, s27, 10")
    i("s_add_u32 s27, s27, 0x%x" % WS_H1)
    i("s_mul_i32 s28, s67, 7")
    i("s_lshr_b32 s28, s28, 1")
    i("s_lshl_b32 s28, s28, 17")
    i("s_add_u32 s29, s27, s28")
    i("s_bitcmp1_b32 s67, 0")
    i("s_cbranch_scc1 %s" % skip)
    for par in range(2): i("buffer_store_dwordx4 v[%d:%d], v%d, s[8:11], s29 offen offset:%d sc1" % (v0, v0 + 3, v0 + 4, 1024 * par))
    lab(skip)
    for b_ in range(1, 4):
        i("s_add_u32 s29, s29, 131072")
        for par in range(2): i("buffer_store_dwordx4 v[%d:%d], v%d, s[8:11], s29 offen offset:%d sc1" % (v0, v0 + 3, v0 + 4, 1024 * par))
def st2_poison():
    i("s_mov_b64 s[68:69], exec")
    i("s_mov_b64 exec, 0xf")
    for r in range(4): i("v_mov_b32 v%d, -1" % (4 + r))
    i("v_lshlrev_b32 v8, 4, v1")
    i("s_lshl_b32 s13, s66, 10")
    i("s_lshl_b32 s46, s67, 6")
    i("s_add_u32 s13, s13, s46")
    i("s_add_u32 s13, s13, 0x%x" % WS_ST2)
    i("buffer_store_dwordx4 v[4:7], v8, s[8:11], s13 offen sc1")
    i("s_mov_b64 exec, s[68:69]")

def lds_wait(off, target, vt=4, sleep=1):
    top, d = uid("LW"), uid("LWD")
    i("v_mov_b32 v%d, %d" % (vt, MISC + off))
    lab(top)
    i("ds_read_b32 v%d, v%d" % (vt + 1, vt))
    i("s_waitcnt lgkmcnt(0)")
    i("v_readfirstlane_b32 s13, v%d" % (vt + 1))
    i("s_cmp_ge_u32 s13, %d" % target)
    i("s_cbranch_scc1 %s" % d)
    i("s_sleep %d" % sleep)
    i("s_branch %s" % top)
    lab(d)

def lds_add(off, va=4, rtn=False):
    i("s_mov_b64 exec, 1")
    i("v_mov_b32 v%d, %d" % (va, MISC + off))
    i("v_mov_b32 v%d, 1" % (va + 1))
    if rtn:
        i("ds_add_rtn_u32 v%d, v%d, v%d" % (va + 1, va, va + 1))
        i("s_waitcnt lgkmcnt(0)")
        i("v_readfirstlane_b32 s13, v%d" % (va + 1))
    else:
        i("ds_add_u32 v%d, v%d" % (va, va + 1))
    i("s_mov_b64 exec, -1")

def ln_finish(m, v, mr):
    i("v_mul_f32 v%d, 0x%x, v%d" % (m, INV640, m))
    i("v_mul_f32 v%d, 0x%x, v%d" % (v, INV640, v))
    i("v_fma_f32 v%d, -v%d, v%d, v%d" % (v, m, m, v))
    i("v_max_f32 v%d, 0, v%d" % (v, v))
    round_bf16(m, m)
    round_bf16(v, v)
    i("v_add_f32 v%d, 0x%x, v%d" % (v, EPS, v))
    round_bf16(v, v)
    i("v_sqrt_f32 v%d, v%d" % (v, v))
    nop(1)
    round_bf16(v, v)
    i("v_rcp_f32 v%d, v%d" % (v, v))
    nop(1)
    if mr: i("v_mul_f32 v%d, v%d, v%d" % (m, m, v))

W1S, W2R = 8, 120
W1V = 240
def w1_prep():
    i("s_mul_i32 s46, s67, 224")
    i("s_mov_b32 s47, %d" % ((1 << 20) // 14 + 1))
    for k in range(7):
        i("v_add_u32 v4, %d, v1" % (64 * k))
        i("v_mul_lo_u32 v5, v4, s47")
        i("v_lshrrev_b32 v5, 20, v5")
        i("v_mul_u32_u24 v6, 14, v5")
        i("v_sub_u32 v6, v4, v6")
        i("v_mul_u32_u24 v5, 3456, v5")
        i("v_lshl_add_u32 v5, v6, 4, v5")
        i("v_add_u32 v%d, s46, v5" % (W1V + k))
def w1_load(cr):
    for (c, rb_) in cr:
        i("s_and_b32 s46, s3, 3")
        i("s_add_u32 s46, s46, %d" % (4 * c))
        i("s_mul_i32 s46, s46, %d" % (32 * 3456))
        for t in range(7):
            r = rb_ + 4 * t
            i("buffer_load_dwordx4 v[%d:%d], v%d, s[48:51], s46 offen" % (r, r + 3, W1V + t))
W1MAP = [(0, 24), (1, 52), (2, 80), (3, 108), (4, 200)]
def w1_dma(chunks):
    for c in chunks:
        i("s_and_b32 s46, s3, 3")
        i("s_add_u32 s46, s46, %d" % (4 * c))
        i("s_mul_i32 s47, s46, %d" % (32 * 3456))
        i("s_mul_i32 s46, s46, 7168")
        for t in range(7):
            i("s_add_u32 m0, s46, %d" % (1024 * t))
            i("s_nop 0")
            i("buffer_load_dwordx4 v%d, s[48:51], s47 offen lds" % (W1V + t))
def w1_write(cr):
    i("v_lshlrev_b32 v4, 4, v1")
    for (c, rb_) in cr:
        i("s_and_b32 s46, s3, 3")
        i("s_add_u32 s46, s46, %d" % (4 * c))
        i("s_mul_i32 s46, s46, 7168")
        i("v_add_u32 v5, s46, v4")
        for t in range(7):
            r = rb_ + 4 * t
            i("ds_write_b128 v5, v[%d:%d] offset:%d" % (r, r + 3, 1024 * t))
def w2_load(steps, slots):
    for st, sl in zip(steps, slots):
        i("s_add_u32 s46, s61, %d" % (st * 5120))
        for dl in range(5):
            r = W2R + 20 * sl + 4 * dl
            if dl < 4:
                i("buffer_load_dwordx4 v[%d:%d], v4, s[8:11], s46 offen offset:%d sc1" % (r, r + 3, 1024 * dl))
            else:
                i("s_add_u32 s46, s46, 4096")
                i("buffer_load_dwordx4 v[%d:%d], v4, s[8:11], s46 offen sc1" % (r, r + 3))

def main():
    ref = open("cdna_kernels/%s.s.ref" % NAME).read().splitlines()
    for ln in ref:
        if ln.startswith("; Override"): break
        e(ln)
    e("; @launch grid=(256,1,1) block=(512,1,1) lds=%d" % LDS_TOTAL)
    e('.amdgcn_target "amdgcn-amd-amdhsa--gfx950"')
    e(".text")
    e(".globl %s" % KNAME)
    e(".p2align 8")
    e(".type %s,@function" % KNAME)
    lab(KNAME)
    i("s_cmp_ge_u32 s2, 256")
    i("s_cbranch_scc1 L_END")
    stamp(0)
    i("s_load_dwordx16 s[16:31], s[0:1], 0")
    i("s_load_dwordx8 s[36:43], s[0:1], 64")
    i("s_load_dwordx2 s[44:45], s[0:1], 96")
    i("s_load_dwordx4 s[32:35], s[0:1], 104")
    PFS = os.environ.get("PFS", "8")
    i("s_lshr_b32 s65, s2, 3")
    i("s_sub_u32 s46, s65, %s" % PFS)
    i("s_cmp_ge_u32 s46, 2")
    i("s_cbranch_scc1 L_NOPF")
    i("s_getpc_b64 s[46:47]")
    lab("L_PC")
    i("s_sub_u32 s46, s46, L_PC-%s" % KNAME)
    i("s_subb_u32 s47, s47, 0")
    i("v_lshlrev_b32 v4, 7, v0")
    i("v_cmp_gt_u32 vcc, L_CODE_END-%s, v4" % KNAME)
    i("s_and_saveexec_b64 s[68:69], vcc")
    i("s_cbranch_execz L_NOPF2")
    i("global_load_dword v253, v4, s[46:47]")
    lab("L_NOPF2")
    i("s_mov_b64 exec, s[68:69]")
    lab("L_NOPF")
    i("v_lshrrev_b32 v4, 6, v0")
    i("v_and_b32 v1, 63, v0")
    i("v_and_b32 v2, 15, v1")
    i("v_readfirstlane_b32 s3, v4")
    i("v_lshrrev_b32 v3, 4, v1")
    for r in (5, 6, 7) + tuple(range(240, 247)): i("v_mov_b32 v%d, 0" % r)
    i("s_and_b32 s64, s2, 7")
    i("s_lshr_b32 s65, s2, 3")
    i("s_lshr_b32 s66, s64, 1")
    i("s_lshl_b32 s66, s66, 2")
    i("s_lshr_b32 s46, s65, 3")
    i("s_add_u32 s66, s66, s46")
    i("s_and_b32 s67, s64, 1")
    i("s_lshl_b32 s67, s67, 3")
    i("s_and_b32 s46, s65, 7")
    i("s_add_u32 s67, s67, s46")
    i("s_and_b32 s46, s64, 1")
    i("s_lshl_b32 s46, s46, 2")
    i("s_and_b32 s47, s65, 3")
    i("s_add_u32 s60, s46, s47")
    i("s_mul_i32 s61, s60, 54")
    i("s_and_b32 s46, s3, 3")
    i("s_mul_i32 s46, s46, 7")
    i("s_add_u32 s61, s61, s46")
    i("s_lshr_b32 s46, s3, 2")
    i("s_mul_i32 s46, s46, 27")
    i("s_add_u32 s61, s61, s46")
    i("s_mul_i32 s61, s61, 5120")
    i("s_add_u32 s61, s61, 0x%x" % WS_W2P)
    def setup():
        srd(8, 34, WS_SIZE)
        srd(48, 36, D * F * 2)
        srd(52, 40, F * D * 2)
        srd(56, 32, 256)
        lb = uid("NOST2")
        i("s_cmp_lg_u32 s3, 7")
        i("s_cbranch_scc1 %s" % lb)
        st2_poison()
        lab(lb)
    i("s_cmp_lt_u32 s65, 8")
    i("s_cbranch_scc1 L_STATS")
    i("s_cmp_lt_u32 s65, 28")
    i("s_cbranch_scc1 L_CONV")
    i("s_branch L_COLSUM")
    def rp_ids():
        i("s_sub_u32 s46, s65, 20")
        i("s_cmp_lt_u32 s65, 8")
        i("s_cselect_b32 s46, s65, s46")
        i("s_lshl_b32 s46, s46, 3")
        i("s_add_u32 s59x, s46, s64".replace("s59x", "s46"))
        i("s_mov_b32 s62, s46")
        i("s_mul_i32 s63, s3, 96")
        i("s_add_u32 s63, s63, s46")
    def rp_block():
        done = uid("RPD")
        i("s_cmp_ge_u32 s63, 432")
        i("s_cbranch_scc1 %s" % done)
        i("s_mul_i32 s14, s3, 5120")
        i("s_add_u32 s14, s14, 114688")
        i("s_mul_i32 s13, s63, 19419")
        i("s_lshr_b32 s13, s13, 20")
        i("s_mul_i32 s15, s13, 54")
        i("s_sub_u32 s15, s63, s15")
        i("s_mul_i32 s4, s15, %d" % (32 * 1280))
        i("s_mul_i32 s5, s13, 160")
        i("s_add_u32 s4, s4, s5")
        i("s_mov_b32 s47, %d" % ((1 << 20) // 10 + 1))
        for k in range(5):
            i("v_add_u32 v8, %d, v1" % (64 * k))
            i("v_mul_lo_u32 v9, v8, s47")
            i("v_lshrrev_b32 v9, 20, v9")
            i("v_mul_u32_u24 v10, 10, v9")
            i("v_sub_u32 v10, v8, v10")
            i("v_mul_u32_u24 v9, 1280, v9")
            i("v_lshl_add_u32 v9, v10, 4, v9")
            i("s_add_u32 m0, s14, %d" % (1024 * k))
            i("s_nop 0")
            i("buffer_load_dwordx4 v9, s[52:55], s4 offen lds")
        i("v_lshrrev_b32 v5, 2, v2")
        i("v_lshl_add_u32 v5, v3, 2, v5")
        i("v_and_b32 v6, 3, v2")
        i("v_lshlrev_b32 v6, 3, v6")
        i("v_mul_u32_u24 v5, 160, v5")
        i("v_add3_u32 v5, v5, v6, s14")
        i("v_lshlrev_b32 v7, 4, v1")
        i("s_mul_i32 s4, s63, 5120")
        i("s_add_u32 s4, s4, 0x%x" % WS_W2P)
        i("s_waitcnt vmcnt(0)")
        for t in range(5):
            i("ds_read_b64_tr_b16 v[%d:%d], v5 offset:%d" % (64 + 4 * t, 65 + 4 * t, 32 * t))
            i("ds_read_b64_tr_b16 v[%d:%d], v5 offset:%d" % (66 + 4 * t, 67 + 4 * t, 32 * t + 2560))
        for t in range(5):
            i("s_waitcnt lgkmcnt(%d)" % (8 - 2 * t))
            if t == 4: i("s_add_u32 s4, s4, 4096")
            i("buffer_store_dwordx4 v[%d:%d], v7, s[8:11], s4 offen offset:%d sc1" % (64 + 4 * t, 67 + 4 * t, 1024 * (t % 4)))
        lab(done)

    lab("L_STATS")
    i("s_lshl_b32 s46, s65, 3")
    i("s_add_u32 s12, s46, s64")
    i("s_lshl_b32 s13, s12, 5")
    i("s_lshl_b32 s14, s3, 2")
    i("s_add_u32 s13, s13, s14")
    i("v_add_u32 v4, s13, v3")
    i("v_mul_u32_u24 v5, 1280, v4")
    i("v_lshl_add_u32 v5, v2, 4, v5")
    i("s_waitcnt lgkmcnt(0)")
    for k in range(5):
        i("global_load_dwordx4 v[%d:%d], v5, s[16:17] offset:%d" % (32 + 4 * k, 35 + 4 * k, 256 * k))
    i("v_mov_b32 v250, v4")
    setup()
    i("v_mov_b32 v4, v250")
    i("s_cmp_lg_u32 s12, 0")
    i("s_cbranch_scc1 L_NOZ")
    i("s_cmp_lg_u32 s3, 7")
    i("s_cbranch_scc1 L_NOZ")
    for r in range(4): i("v_mov_b32 v%d, 0" % (60 + r))
    i("v_lshlrev_b32 v6, 4, v1")
    i("s_mov_b32 s14, 0x%x" % WS_FL)
    for k in range(FL_SIZE // 1024):
        i("buffer_store_dwordx4 v[60:63], v6, s[8:11], s14 offen offset:%d sc1" % (1024 * k))
    lab("L_NOZ")
    i("v_mov_b32 v7, 0x3f803f80")
    for r in range(8, 16): i("v_mov_b32 v%d, 0" % r)
    i("s_waitcnt vmcnt(0)")
    for k in range(20):
        i("v_dot2_f32_bf16 v%d, v%d, v7, v%d" % (8 + (k & 3), 32 + k, 8 + (k & 3)))
        i("v_dot2_f32_bf16 v%d, v%d, v%d, v%d" % (12 + (k & 3), 32 + k, 32 + k, 12 + (k & 3)))
    nop(3)
    i("v_add_f32 v8, v8, v9")
    i("v_add_f32 v10, v10, v11")
    i("v_add_f32 v12, v12, v13")
    i("v_add_f32 v14, v14, v15")
    i("v_add_f32 v8, v8, v10")
    i("v_add_f32 v9, v12, v14")
    for r in (8, 4, 2, 1):
        nop(2)
        i("v_add_f32_dpp v8, v8, v8 row_ror:%d row_mask:0xf bank_mask:0xf" % r)
        i("v_add_f32_dpp v9, v9, v9 row_ror:%d row_mask:0xf bank_mask:0xf" % r)
    ln_finish(8, 9, False)
    i("v_lshlrev_b32 v4, 3, v4")
    i("v_cmp_eq_u32 vcc, 0, v2")
    i("s_and_saveexec_b64 s[68:69], vcc")
    i("s_mov_b32 s14, 0x%x" % WS_ST1)
    i("buffer_store_dwordx2 v[8:9], v4, s[8:11], s14 offen sc1")
    i("s_mov_b64 exec, s[68:69]")
    i("s_waitcnt vmcnt(0)")
    i("s_barrier")
    stamp(1)
    i("s_cmp_lg_u32 s3, 0")
    i("s_cbranch_scc1 L_NC1")
    arrive_last(DBG_C1, 64, DBG_GO1)
    i("s_branch L_NC1")
    lab("L_COLSUM")
    i("s_waitcnt lgkmcnt(0)")
    setup()
    stamp(1)
    lab("L_NC1")
    rp_ids()
    i("s_cmp_lg_u32 s3, 7")
    i("s_cbranch_scc1 L_NC1A")
    i("v_lshlrev_b32 v8, 2, v1")
    i("v_add_u32 v8, %d, v8" % MISC)
    i("v_mov_b32 v9, 0")
    i("ds_write_b32 v8, v9")
    i("s_waitcnt lgkmcnt(0)")
    lab("L_NC1A")
    i("s_barrier")
    i("s_cmp_ge_u32 s3, 4")
    i("s_cbranch_scc1 L_NC_LD")
    rp_block()
    i("s_cmp_ge_u32 s62, 12")
    i("s_cbranch_scc1 L_NC2")
    i("s_lshl_b32 s63, s62, 2")
    i("s_add_u32 s63, s63, s3")
    i("s_add_u32 s63, s63, 384")
    i("s_waitcnt lgkmcnt(0)")
    rp_block()
    lab("L_NC2")
    i("s_waitcnt vmcnt(0)")
    stamp(4)
    lds_add(M_CH + 8, 4, rtn=True)
    i("s_cmp_lg_u32 s13, 3")
    i("s_cbranch_scc1 L_NC3")
    arrive_last(DBG_CW, 96, DBG_GOW)
    lab("L_NC3")
    i("s_cmp_lt_u32 s65, 28")
    i("s_cbranch_scc1 L_NC5")
    i("s_sub_u32 s46, s65, 28")
    i("s_lshl_b32 s46, s46, 3")
    i("s_add_u32 s12, s46, s64")
    i("s_cmp_ge_u32 s12, 27")
    i("s_cbranch_scc1 L_NC5")
    i("v_lshrrev_b32 v4, 3, v1")
    i("s_lshl_b32 s13, s3, 3")
    i("v_add_u32 v4, s13, v4")
    i("v_mul_u32_u24 v4, 3456, v4")
    i("v_and_b32 v5, 7, v1")
    i("v_lshl_add_u32 v4, v5, 4, v4")
    i("s_lshl_b32 s13, s12, 7")
    for it in range(20):
        i("buffer_load_dwordx4 v[%d:%d], v4, s[48:51], s13 offen" % (64 + 4 * it, 67 + 4 * it))
        i("s_add_u32 s13, s13, %d" % (32 * 3456))
    for r in range(8): i("v_mov_b32 v%d, 0" % (8 + r))
    for it in range(20):
        i("s_waitcnt vmcnt(%d)" % (19 - it))
        for dw in range(4):
            x = 64 + 4 * it + dw
            i("v_lshlrev_b32 v16, 16, v%d" % x)
            i("v_and_b32 v17, 0xffff0000, v%d" % x)
            i("v_pk_add_f32 v[%d:%d], v[%d:%d], v[16:17]" % (8 + 2 * dw, 9 + 2 * dw, 8 + 2 * dw, 9 + 2 * dw))
    nop(1)
    for r in range(8):
        i("v_add_f32_dpp v%d, v%d, v%d row_ror:8 row_mask:0xf bank_mask:0xf" % (8 + r, 8 + r, 8 + r))
    for op in ("v_permlane16_swap_b32", "v_permlane32_swap_b32"):
        for r in range(8): i("v_mov_b32 v%d, v%d" % (16 + r, 8 + r))
        nop(1)
        for r in range(8): i("%s v%d, v%d" % (op, 16 + r, 8 + r))
        nop(1)
        for r in range(8): i("v_add_f32 v%d, v%d, v%d" % (8 + r, 8 + r, 16 + r))
    i("v_lshlrev_b32 v4, 5, v1")
    i("s_lshl_b32 s13, s3, 8")
    i("s_add_u32 s13, s13, %d" % (MISC + 3072))
    i("v_add_u32 v4, s13, v4")
    i("s_mov_b64 exec, 0xff")
    i("ds_write_b128 v4, v[8:11]")
    i("ds_write_b128 v4, v[12:15] offset:16")
    i("s_mov_b64 exec, -1")
    i("s_waitcnt lgkmcnt(0)")
    lds_add(M_CH + 20, 4, rtn=True)
    i("s_cmp_lg_u32 s13, 3")
    i("s_cbranch_scc1 L_NC5")
    i("v_lshlrev_b32 v4, 2, v1")
    i("v_add_u32 v5, %d, v4" % (MISC + 3072))
    for w in range(4):
        i("ds_read_b32 v%d, v5 offset:%d" % (8 + w, 256 * w))
    i("s_waitcnt lgkmcnt(0)")
    for w in range(1, 4): i("v_add_f32 v8, v8, v%d" % (8 + w))
    i("s_lshl_b32 s13, s12, 8")
    i("s_add_u32 s13, s13, 0x%x" % WS_CS)
    i("buffer_store_dword v8, v4, s[8:11], s13 offen sc1")
    i("s_waitcnt vmcnt(0)")
    lds_add(M_CH + 24, 4)
    lab("L_NC5")
    stamp(3)
    i("s_branch L_PHASE_B")
    lab("L_NC_LD")
    i("s_cmp_lg_u32 s3, 7")
    i("s_cbranch_scc1 L_NC_L3")
    i("s_mov_b32 s46, %d" % DBG_GO1)
    poll(56, "s46", 1, 1, 8, sleep=2)
    lds_add(M_S1, 8)
    arrive_shard(FL_CP)
    lab("L_NC_L3")
    w1_prep()
    if os.environ.get("XLATE"):
        lds_wait(M_S1, 1, 4, sleep=4)
        i("s_cmp_lg_u32 s3, 7")
        lq = uid("XL")
        i("s_cbranch_scc1 %s" % lq)
        i("s_lshl_b32 s46, s64, 7")
        i("s_add_u32 s46, s46, 0x%x" % (WS_FL + FL_HINT))
        poll(8, "s46", 1, 1, 8, sleep=8)
        lds_add(M_CH + 28, 8)
        lab(lq)
        lds_wait(M_CH + 28, 1, 4, sleep=8)
    w1_dma([0, 1, 2, 3])
    lds_wait(M_CH + 8, 4, 4, sleep=4)
    w1_dma([4])
    h1_poison(248)
    i("s_waitcnt vmcnt(0)")
    lds_wait(M_S1, 1, 4, sleep=4)
    i("s_cmp_lt_u32 s65, 28")
    i("s_cbranch_scc1 L_NC_L4")
    i("s_sub_u32 s46, s65, 28")
    i("s_lshl_b32 s46, s46, 3")
    i("s_add_u32 s46, s46, s64")
    i("s_cmp_ge_u32 s46, 27")
    i("s_cbranch_scc1 L_NC_L4")
    lds_wait(M_CH + 24, 1, 4, sleep=4)
    lab("L_NC_L4")
    lds_add(M_CH + 12, 248, rtn=True)
    i("s_cmp_lg_u32 s13, 3")
    i("s_cbranch_scc1 L_PHASE_B")
    arrive_shard(FL_CP2, 248)
    i("s_branch L_PHASE_B")

    lab("L_CONV")
    i("s_mul_i32 s12, s64, 20")
    i("s_add_u32 s12, s12, s65")
    i("s_sub_u32 s12, s12, 8")
    i("s_lshl_b32 s13, s12, 2")
    i("s_and_b32 s14, s3, 3")
    i("s_add_u32 s15, s13, s14")
    i("s_lshr_b32 s6, s3, 2")
    i("s_lshl_b32 s46, s6, 6")
    i("v_add_u32 v4, s46, v1")
    i("s_lshl_b32 s47, s15, 8")
    i("v_lshl_add_u32 v5, v4, 1, s47")
    i("s_lshr_b32 s46, s15, 1")
    i("s_lshl_b32 s46, s46, 2")
    i("s_waitcnt lgkmcnt(0)")
    i("global_load_ushort v10, v5, s[18:19]")
    i("global_load_ushort v11, v5, s[20:21]")
    i("global_load_ushort v12, v5, s[22:23]")
    i("global_load_ushort v13, v5, s[24:25]")
    i("s_load_dword s4, s[26:27], s46")
    i("s_load_dword s5, s[28:29], s46")
    i("v_mov_b32 v250, v4")
    setup()
    i("v_mov_b32 v4, v250")
    i("s_lshl_b32 s13, s12, 2")
    i("s_cmp_lt_u32 s3, 4")
    i("s_cbranch_scc1 L_CV_PH")
    i("v_subrev_u32 v6, 256, v0")
    i("v_mul_u32_u24 v6, %d, v6" % (8 * 1280))
    i("s_lshl_b32 s46, s13, 1")
    i("v_add_u32 v6, s46, v6")
    i("v_add_u32 v7, 5120, v6")
    for k in range(4):
        i("global_load_dwordx2 v[%d:%d], v6, s[16:17] offset:%d" % (100 + 2 * k, 101 + 2 * k, 1280 * k))
    i("s_branch L_CV_NOX")
    lab("L_CV_PH")
    for r in range(4): i("v_mov_b32 v%d, -1" % (60 + r))
    i("v_lshlrev_b32 v6, 4, v0")
    i("s_lshl_b32 s46, s12, 14")
    i("s_add_u32 s46, s46, 0x%x" % WS_H)
    for it in range(4):
        i("buffer_store_dwordx4 v[60:63], v6, s[8:11], s46 offen sc1")
        if it < 3: i("s_add_u32 s46, s46, 4096")
    lab("L_CV_NOX")
    i("s_mul_i32 s46, s14, %d" % FAC_CH)
    i("v_lshl_add_u32 v5, v4, 2, s46")
    i("s_waitcnt lgkmcnt(0)")
    i("s_and_b32 s46, s15, 1")
    i("s_lshl_b32 s46, s46, 4")
    i("s_lshr_b32 s4, s4, s46")
    i("s_lshl_b32 s4, s4, 16")
    i("s_lshr_b32 s5, s5, s46")
    i("s_lshl_b32 s5, s5, 16")
    i("v_mov_b32 v14, s4")
    i("v_mul_f32 v14, 0x%x, v14" % LOG2E)
    i("v_exp_f32 v14, v14")
    nop(1)
    round_bf16(14, 14)
    i("s_cmp_lt_u32 s3, 4")
    i("s_cbranch_scc1 L_CV_W0")
    i("s_waitcnt vmcnt(4)")
    i("s_branch L_CV_W1")
    lab("L_CV_W0")
    i("s_waitcnt vmcnt(4)")
    lab("L_CV_W1")
    stamp(1)
    if os.environ.get("TOUCH"):
        i("s_cmp_ge_u32 s3, 4")
        i("s_cbranch_scc1 L_CV_NT")
        i("s_lshl_b32 s46, s12, 2")
        i("s_add_u32 s46, s46, s3")
        i("s_cmp_lt_u32 s46, 320")
        i("s_cselect_b32 s4, s36, s40")
        i("s_cselect_b32 s6x, s37, s41".replace("s6x", "s7"))
        i("s_sub_u32 s47, s46, 320")
        i("s_cselect_b32 s46, s46, s47") if False else None
        i("s_cmp_lt_u32 s46, 320")
        i("s_cselect_b32 s46, s46, s47")
        i("s_mul_i32 s46, s46, %d" % (54 * 128))
        i("s_add_u32 s30, s4, s46")
        i("s_addc_u32 s31, s7, 0")
        i("v_lshlrev_b32 v200, 7, v1")
        i("s_mov_b32 exec_lo, -1")
        i("s_mov_b32 exec_hi, 0x3fffff")
        i("global_load_dword v201, v200, s[30:31]")
        i("s_mov_b64 exec, -1")
        lab("L_CV_NT")
    for r in (10, 11, 12, 13): i("v_lshlrev_b32 v%d, 16, v%d" % (r, r))
    i("v_mul_f32 v10, 0x%x, v10" % LOG2E)
    i("v_exp_f32 v10, v10")
    nop(1)
    round_bf16(10, 10)
    i("v_mul_f32 v10, v10, v14")
    i("v_mul_f32 v10, 0x%x, v10" % NLOG2E)
    i("v_mul_f32 v11, v11, v14")
    i("v_mul_f32 v11, %s, v11" % INV2PI)
    i("v_mul_f32 v12, v12, v14")
    i("v_mul_f32 v13, v13, v14")
    i("v_add_f32 v32, v12, v12")
    i("v_add_f32 v33, v13, v13")
    bases = [(20, 1), (22, 16), (24, 256), (26, 2), (28, 4), (30, 8)]
    for (dst, p) in bases:
        i("v_mul_f32 v%d, 0x%x, v10" % (dst, f2u(float(p))))
        i("v_mul_f32 v%d, 0x%x, v11" % (dst + 1, f2u(float(p))))
    for (dst, p) in bases:
        i("v_exp_f32 v%d, v%d" % (dst, dst))
        i("v_fract_f32 v%d, v%d" % (dst + 1, dst + 1))
    for n, (dst, p) in enumerate(bases):
        i("v_cos_f32 v%d, v%d" % (52 + n, dst + 1))
        i("v_sin_f32 v%d, v%d" % (dst + 1, dst + 1))
    nop(1)
    for n, (dst, p) in enumerate(bases):
        i("v_mul_f32 v%d, v%d, v%d" % (dst + 1, dst, dst + 1))
        i("v_mul_f32 v%d, v%d, v%d" % (dst, dst, 52 + n))
    i("v_mov_b32 v34, 1.0")
    i("v_mov_b32 v35, 0")
    i("v_mov_b32 v36, v32")
    i("v_mov_b32 v37, v33")
    chains = [dict(x=32, s=20, row=0, n=16, y=False, start=0), dict(x=34, s=22, row=47, n=16, y=True, start=0)]
    for (tau, s, row, n) in [(1, 26, 16, 9), (2, 28, 25, 5), (3, 28, 30, 5), (4, 30, 35, 3), (5, 30, 38, 3), (6, 30, 41, 3), (7, 30, 44, 3)]:
        chains.append(dict(x=36 + 2 * tau, s=s, row=row, n=n, y=False, start=tau))
    rnd = 0; pos = [0] * len(chains); tmpc = 0
    while any(pos[k] < c["n"] for k, c in enumerate(chains)):
        muls, fmas, cv, wr = [], [], [], []
        ti = 0
        if rnd < 7:
            t = 52 + 2 * ti; ti += 1
            x, d = 36 + 2 * rnd, 36 + 2 * (rnd + 1)
            muls.append("v_pk_mul_f32 v[%d:%d], v[%d:%d], v[24:25] op_sel:[0,0] op_sel_hi:[1,0]" % (t, t + 1, x, x + 1))
            fmas.append("v_pk_fma_f32 v[%d:%d], v[%d:%d], v[24:25], v[%d:%d] op_sel:[1,1,0] op_sel_hi:[0,1,1] neg_lo:[0,1,0]" % (d, d + 1, x, x + 1, t, t + 1))
        for k, c in enumerate(chains):
            if rnd >= c["start"] and pos[k] < c["n"]:
                x = c["x"]; p = 72 + (tmpc % 16); tmpc += 1
                cv.append("v_cvt_pk_bf16_f32 v%d, v%d, %sv%d" % (p, x, "" if c["y"] else "-", x + 1))
                wr.append("ds_write_b32 v5, v%d offset:%d" % (p, (c["row"] + pos[k]) * XROW))
                if pos[k] < c["n"] - 1:
                    t = 52 + 2 * ti; ti += 1
                    assert t + 1 < 72
                    muls.append("v_pk_mul_f32 v[%d:%d], v[%d:%d], v[%d:%d] op_sel:[0,0] op_sel_hi:[1,0]" % (t, t + 1, x, x + 1, c["s"], c["s"] + 1))
                    fmas.append("v_pk_fma_f32 v[%d:%d], v[%d:%d], v[%d:%d], v[%d:%d] op_sel:[1,1,0] op_sel_hi:[0,1,1] neg_lo:[0,1,0]" % (x, x + 1, x, x + 1, c["s"], c["s"] + 1, t, t + 1))
                pos[k] += 1
        if rnd in (1, 4, 7, 10):
            k = 4 + (rnd - 1) // 3
            lb = uid("XG")
            i("s_cmp_lt_u32 s3, 4")
            i("s_cbranch_scc1 %s" % lb)
            i("global_load_dwordx2 v[%d:%d], v7, s[16:17] offset:%d" % (100 + 2 * k, 101 + 2 * k, 1280 * (k & 3)))
            lab(lb)
        for s_ in cv + muls + wr + fmas: i(s_)
        rnd += 1
    stamp(2)
    i("s_cmp_lg_u32 s3, 4")
    i("s_cbranch_scc1 L_CV_B1")
    i("v_lshlrev_b32 v8, 2, v1")
    i("v_add_u32 v8, %d, v8" % MISC)
    i("v_mov_b32 v9, 0")
    i("ds_write_b32 v8, v9")
    lab("L_CV_B1")
    i("s_waitcnt lgkmcnt(0)")
    i("s_barrier")
    stamp(3)
    i("s_cmp_ge_u32 s3, 4")
    i("s_cbranch_scc1 L_CV_NORM")
    segp = {0: (0, 8, 4), 1: (16, 4, 2), 2: (25, 5, 2), 3: (35, 6, 3)}
    i("s_mul_i32 s46, s3, %d" % FAC_CH)
    i("v_lshrrev_b32 v8, 3, v2")
    i("v_bfe_u32 v9, v2, 2, 1")
    i("v_and_b32 v10, 3, v2")
    for t in range(4):
        b0, a0, c0 = segp[t]
        i("v_mul_u32_u24 v11, %d, v8" % a0)
        i("v_mul_u32_u24 v12, %d, v9" % c0)
        i("v_add3_u32 v11, v11, v12, v10")
        i("v_add_u32 v11, %d, v11" % b0)
        i("v_mul_u32_u24 v11, %d, v11" % XROW)
        i("v_lshl_add_u32 v11, v3, 4, v11")
        i("v_add_u32 v%d, s46, v11" % (16 + t))
    i("v_add_u32 v11, 47, v2")
    i("v_mul_u32_u24 v11, %d, v11" % XROW)
    i("v_lshl_add_u32 v11, v3, 4, v11")
    i("v_add_u32 v15, s46, v11")
    for mu in range(8):
        i("ds_read_b128 v[%d:%d], v15 offset:%d" % (32 + 4 * mu, 35 + 4 * mu, 64 * mu))
        i("ds_read_b128 v[%d:%d], v16 offset:%d" % (64 + 4 * mu, 67 + 4 * mu, 64 * mu))
    accs = [20, 24, 28, 192]
    for t in range(4):
        nxt = ["ds_read_b128 v[%d:%d], v%d offset:%d" % (64 + 32 * (t + 1) + 4 * mu, 67 + 32 * (t + 1) + 4 * mu, 17 + t, 64 * mu) for mu in range(8)] if t < 3 else []
        for s_ in nxt: i(s_)
        a0 = accs[t]
        for mu in range(8):
            if t == 0: i("s_waitcnt lgkmcnt(%d)" % min(15, 8 + 14 - 2 * mu))
            else: i("s_waitcnt lgkmcnt(%d)" % ((8 if nxt else 0) + 7 - mu))
            i("v_mfma_f32_16x16x32_bf16 v[%d:%d], v[%d:%d], v[%d:%d], %s" % (a0, a0 + 3, 64 + 32 * t + 4 * mu, 67 + 32 * t + 4 * mu, 32 + 4 * mu, 35 + 4 * mu, "0" if mu == 0 else "v[%d:%d]" % (a0, a0 + 3)))
    i("s_mul_i32 s46, s3, %d" % KCH)
    i("v_lshlrev_b32 v10, 5, v2")
    i("v_cmp_eq_u32 vcc, 0, v1")
    i("v_mov_b32 v11, s5")
    i("v_lshl_add_u32 v12, v3, 3, v10")
    i("v_cndmask_b32 v11, 0, v11, vcc")
    nop(4)
    i("v_add_f32 v20, v20, v11")
    i("v_cvt_pk_bf16_f32 v64, v23, v22")
    i("v_cvt_pk_bf16_f32 v65, v21, v20")
    i("v_sub_u32 v13, 4088, v12")
    i("v_add_u32 v13, s46, v13")
    i("ds_write_b64 v13, v[64:65]")
    i("v_cvt_pk_bf16_f32 v66, v26, v25")
    i("v_cvt_pk_bf16_f32 v67, v24, v24")
    i("v_sub_u32 v13, 3576, v12")
    i("v_add_u32 v13, s46, v13")
    i("ds_write_b64 v13, v[66:67]")
    i("v_cvt_pk_bf16_f32 v68, v30, v30")
    i("v_cvt_pk_bf16_f32 v69, v29, v29")
    i("v_cvt_pk_bf16_f32 v70, v29, v28")
    i("v_cvt_pk_bf16_f32 v71, v28, v28")
    i("v_lshrrev_b32 v11, 1, v3")
    i("v_lshl_add_u32 v12, v11, 9, v10")
    i("v_and_b32 v11, 1, v3")
    i("v_lshl_add_u32 v12, v11, 4, v12")
    i("v_sub_u32 v13, 3056, v12")
    i("v_add_u32 v13, s46, v13")
    i("ds_write_b128 v13, v[68:71]")
    i("v_cvt_pk_bf16_f32 v72, v194, v194")
    i("v_mov_b32 v73, v72")
    i("v_cvt_pk_bf16_f32 v74, v193, v193")
    i("v_mov_b32 v75, v74")
    i("v_mov_b32 v76, v74")
    i("v_cvt_pk_bf16_f32 v77, v193, v192")
    i("v_cvt_pk_bf16_f32 v78, v192, v192")
    i("v_mov_b32 v79, v78")
    i("v_lshl_add_u32 v12, v3, 9, v10")
    i("v_sub_u32 v13, 2016, v12")
    i("v_add_u32 v13, s46, v13")
    i("ds_write_b128 v13, v[72:75]")
    i("ds_write_b128 v13, v[76:79] offset:16")
    for r in range(4): i("v_mov_b32 v%d, 0" % (32 + r))
    i("v_bfe_u32 v8, v1, 2, 2")
    i("v_mul_u32_u24 v8, %d, v8" % KCP)
    i("v_and_b32 v9, 3, v1")
    i("v_lshl_add_u32 v8, v9, 4, v8")
    i("v_add_u32 v8, s46, v8")
    i("ds_write_b128 v8, v[32:35] offset:4096")
    i("v_lshl_add_u32 v8, v1, 3, s46")
    i("v_add_u32 v9, %d, v8" % KCP)
    i("v_add_u32 v10, %d, v8" % (2 * KCP))
    i("v_add_u32 v11, %d, v8" % (3 * KCP))
    i("s_waitcnt lgkmcnt(0)")
    for it in range(8):
        i("ds_read_b64 v[%d:%d], v8 offset:%d" % (32 + 4 * it, 33 + 4 * it, 512 * it))
        i("ds_read_b64 v[%d:%d], v8 offset:%d" % (34 + 4 * it, 35 + 4 * it, 512 * it + 8))
    for it in range(8):
        i("s_waitcnt lgkmcnt(%d)" % min(15, 14 - 2 * it + 3 * it))
        d = 32 + 4 * it; a = 64 + 4 * it
        i("v_alignbit_b32 v%d, v%d, v%d, 16" % (a, d + 1, d))
        i("v_alignbit_b32 v%d, v%d, v%d, 16" % (a + 1, d + 2, d + 1))
        i("v_alignbit_b32 v%d, v%d, v%d, 16" % (a + 2, d + 3, d + 2))
        o = 128 * it
        i("ds_write2_b32 v9, v%d, v%d offset0:%d offset1:%d" % (a, a + 1, o % 256, o % 256 + 1) if it < 2 else "ds_write2st64_b32 v9, v9, v9" ) if False else None
        if it and it % 1 == 0:
            i("v_add_u32 v9, 512, v9"); i("v_add_u32 v10, 512, v10"); i("v_add_u32 v11, 512, v11")
        i("ds_write2_b32 v9, v%d, v%d offset0:0 offset1:1" % (a, a + 1))
        i("ds_write2_b32 v10, v%d, v%d offset0:0 offset1:1" % (d + 1, d + 2))
        i("ds_write2_b32 v11, v%d, v%d offset0:0 offset1:1" % (a + 1, a + 2))
    i("s_waitcnt vmcnt(0)")
    i("s_branch L_CV_B2")
    lab("L_CV_NORM")
    w1_prep()
    i("s_cmp_lg_u32 s3, 4")
    i("s_cbranch_scc1 L_CV_NW")
    i("s_mov_b32 s46, %d" % DBG_GO1)
    poll(56, "s46", 1, 1, 8, sleep=1)
    lds_add(M_S1, 8)
    i("s_branch L_CV_NG")
    lab("L_CV_NW")
    lds_wait(M_S1, 1)
    lab("L_CV_NG")
    stamp(5)
    i("v_subrev_u32 v6, 256, v0")
    i("v_lshlrev_b32 v6, 6, v6")
    i("s_mov_b32 s46, 0x%x" % WS_ST1)
    for k in range(4):
        i("buffer_load_dwordx4 v[%d:%d], v6, s[8:11], s46 offen offset:%d sc1" % (120 + 4 * k, 123 + 4 * k, 16 * k))
    i("s_mov_b32 s46, 0x%x" % SEL_LO)
    i("s_mov_b32 s47, 0x%x" % SEL_HI)
    i("s_waitcnt vmcnt(4)")
    for ch in range(4):
        for ii in range(4):
            lo = 100 + 2 * (2 * ii) + (ch >> 1); hi = 100 + 2 * (2 * ii + 1) + (ch >> 1)
            i("v_perm_b32 v%d, v%d, v%d, s%d" % (136 + 4 * ch + ii, hi, lo, 46 + (ch & 1)))
    for k in range(8):
        for jj in range(2):
            x = 100 + 2 * k + jj
            i("v_lshlrev_b32 v%d, 16, v%d" % (168 + 4 * k + 2 * jj, x))
            i("v_and_b32 v%d, 0xffff0000, v%d" % (168 + 4 * k + 2 * jj + 1, x))
    i("s_waitcnt vmcnt(0)")
    stamp(8)
    for k in range(8):
        m = 120 + 2 * k; r = m + 1
        for jj in range(2):
            a = 168 + 4 * k + 2 * jj; b = a + 1
            i("v_sub_f32 v%d, v%d, v%d" % (a, a, m))
            i("v_sub_f32 v%d, v%d, v%d" % (b, b, m))
            i("v_cvt_pk_bf16_f32 v%d, v%d, v%d" % (8 + jj, a, b))
        for jj in range(2):
            a = 168 + 4 * k + 2 * jj; b = a + 1
            i("v_lshlrev_b32 v%d, 16, v%d" % (a, 8 + jj))
            i("v_and_b32 v%d, 0xffff0000, v%d" % (b, 8 + jj))
            i("v_mul_f32 v%d, v%d, v%d" % (a, a, r))
            i("v_mul_f32 v%d, v%d, v%d" % (b, b, r))
    for ch in range(4):
        for ii in range(4):
            i("v_cvt_pk_bf16_f32 v%d, v%d, v%d" % (152 + 4 * ch + ii, 168 + 4 * (2 * ii) + ch, 168 + 4 * (2 * ii + 1) + ch))
    i("v_subrev_u32 v6, 256, v0")
    i("v_bfe_u32 v7, v6, 2, 2")
    i("v_lshlrev_b32 v6, 6, v6")
    for ch in range(4):
        i("v_xor_b32 v8, %d, v7" % ch)
        i("v_lshl_add_u32 v%d, v8, 4, v6" % (20 + ch))
        i("v_add_u32 v9, %d, v%d" % (UL + 2048, 20 + ch))
        i("ds_write_b128 v9, v[%d:%d]" % (152 + 4 * ch, 155 + 4 * ch))
    i("v_mov_b32 v8, 0")
    i("v_mov_b32 v9, 0")
    i("v_subrev_u32 v6, 256, v0")
    i("v_lshlrev_b32 v6, 3, v6")
    i("v_add_u32 v6, %d, v6" % UL)
    i("ds_write_b64 v6, v[8:9]")
    lab("L_CV_B2")
    i("s_waitcnt lgkmcnt(0)")
    i("s_barrier")
    stamp(4)
    i("s_cmp_ge_u32 s3, 4")
    i("s_cbranch_scc1 L_CV_HELP")
    i("s_mul_i32 s15, s3, %d" % KCH)
    i("v_and_b32 v8, 3, v2")
    i("v_sub_u32 v8, 3, v8")
    i("v_mul_u32_u24 v8, %d, v8" % KCP)
    i("v_lshrrev_b32 v9, 2, v2")
    i("v_lshlrev_b32 v9, 3, v9")
    i("v_lshl_add_u32 v9, v3, 4, v9")
    i("v_sub_u32 v9, %d, v9" % (4104 - 4032))
    i("v_add3_u32 v10, v8, v9, s15")
    i("v_lshlrev_b32 v8, 1, v2")
    i("v_add_u32 v8, 1, v8")
    i("v_sub_u32 v8, v8, v3")
    i("v_ashrrev_i32 v9, 2, v8")
    i("v_lshlrev_b32 v8, 6, v8")
    i("v_add_u32 v8, %d, v8" % (UL + 256))
    for r in range(4):
        i("v_subrev_u32 v11, %d, v9" % r)
        i("v_and_b32 v11, 3, v11")
        i("v_xor_b32 v11, s3, v11")
        i("v_lshl_add_u32 v%d, v11, 4, v8" % (12 + r))
    def FR(s, ii): return 24 + 64 * s + 4 * ii
    def GR(s, jj): return 24 + 64 * s + 32 + 4 * jj
    ACC = 160
    def reads(rho):
        s = rho & 1; lst = []
        for ii in range(8):
            sig = rho + 8 * ii; off = 64 * (63 - sig)
            lst.append("ds_read_b64 v[%d:%d], v10 offset:%d" % (FR(s, ii), FR(s, ii) + 1, off))
            lst.append("ds_read_b64 v[%d:%d], v10 offset:%d" % (FR(s, ii) + 2, FR(s, ii) + 3, off + 8))
            lst.append("ds_read_b128 v[%d:%d], v%d offset:%d" % (GR(s, ii), GR(s, ii) + 3, 12 + (rho & 3), 2048 * ii + 256 * (7 - rho)))
        return lst
    for r in reads(0): i(r)
    i("v_lshrrev_b32 v16, 1, v3")
    i("v_lshl_add_u32 v16, v2, 1, v16")
    i("v_bfe_u32 v17, v16, 2, 2")
    i("v_xor_b32 v17, s3, v17")
    i("v_lshlrev_b32 v16, 6, v16")
    i("v_lshl_add_u32 v16, v17, 4, v16")
    i("v_and_b32 v17, 1, v3")
    i("v_lshl_add_u32 v16, v17, 3, v16")
    i("v_add_u32 v16, %d, v16" % XL)
    for rho in range(8):
        s = rho & 1
        nxt = reads(rho + 1) if rho < 7 else ["ds_read_b64 v[%d:%d], v16 offset:%d" % (200 + 2 * al, 201 + 2 * al, 2048 * al) for al in range(8)]
        if rho == 7: lds_wait(M_XT, 4, 18)
        i("s_waitcnt lgkmcnt(0)")
        mf = []
        for al in range(8):
            for ii in range(al + 1):
                jj = al - ii
                first = (rho == 0 and ii == 0)
                mf.append("v_mfma_f32_16x16x32_bf16 v[%d:%d], v[%d:%d], v[%d:%d], %s" % (
                    ACC + 4 * al, ACC + 4 * al + 3, FR(s, ii), FR(s, ii) + 3, GR(s, jj), GR(s, jj) + 3,
                    "0" if first else "v[%d:%d]" % (ACC + 4 * al, ACC + 4 * al + 3)))
        k = 0
        for n, m in enumerate(mf):
            i(m)
            if k < len(nxt) and n < 30:
                i(nxt[k]); k += 1
        while k < len(nxt):
            i(nxt[k]); k += 1
    stamp(5)
    i("s_waitcnt lgkmcnt(0)")
    lds_add(M_MD, 4)
    nop(2)
    for al in range(8):
        x0, x1 = 200 + 2 * al, 201 + 2 * al
        a = ACC + 4 * al
        i("v_lshlrev_b32 v20, 16, v%d" % x0)
        i("v_and_b32 v21, 0xffff0000, v%d" % x0)
        i("v_lshlrev_b32 v22, 16, v%d" % x1)
        i("v_and_b32 v23, 0xffff0000, v%d" % x1)
        i("v_pk_add_f32 v[20:21], v[20:21], v[%d:%d]" % (a, a + 1))
        i("v_pk_add_f32 v[22:23], v[22:23], v[%d:%d]" % (a + 2, a + 3))
        i("v_cvt_pk_bf16_f32 v%d, v20, v21" % (24 + 2 * al))
        i("v_cvt_pk_bf16_f32 v%d, v22, v23" % (25 + 2 * al))
    i("v_lshlrev_b32 v8, 5, v2")
    i("v_lshl_add_u32 v8, v3, 3, v8")
    i("s_lshl_b32 s46, s3, 12")
    i("s_add_u32 s46, s46, %d" % TL)
    i("v_add_u32 v8, s46, v8")
    lds_wait(M_MD, 4, 4)
    for al in range(8):
        i("ds_write_b64 v8, v[%d:%d] offset:%d" % (24 + 2 * al, 25 + 2 * al, 512 * al))
    i("s_waitcnt lgkmcnt(0)")
    lds_add(M_TR + 16, 4)
    lds_wait(M_TR + 16, 4)
    i("v_lshlrev_b32 v252, 2, v0")
    i("v_add_u32 v252, %d, v252" % TL)
    i("v_lshlrev_b32 v253, 4, v0")
    i("s_lshl_b32 s14, s12, 14")
    i("s_add_u32 s14, s14, 0x%x" % WS_H)
    i("s_mov_b32 s46, 0x%x" % SEL_LO)
    i("s_mov_b32 s47, 0x%x" % SEL_HI)
    for it in range(4):
        for ch in range(4):
            i("ds_read_b32 v%d, v252 offset:%d" % (8 + 4 * it + ch, ch * 4096 + it * 1024))
    for it in range(4):
        i("s_waitcnt lgkmcnt(%d)" % (12 - 4 * it))
        b = 8 + 4 * it; o = 32 + 4 * it
        i("v_perm_b32 v%d, v%d, v%d, s46" % (o, b + 1, b))
        i("v_perm_b32 v%d, v%d, v%d, s46" % (o + 1, b + 3, b + 2))
        i("v_perm_b32 v%d, v%d, v%d, s47" % (o + 2, b + 1, b))
        i("v_perm_b32 v%d, v%d, v%d, s47" % (o + 3, b + 3, b + 2))
        i("buffer_store_dwordx4 v[%d:%d], v253, s[8:11], s14 offen sc1" % (o, o + 3))
        if it < 3: i("s_add_u32 s14, s14, 4096")
    lds_add(M_TR, 4)
    i("s_cmp_lg_u32 s65, 8")
    i("s_cbranch_scc1 L_CV_NH")
    i("s_cmp_lg_u32 s3, 0")
    i("s_cbranch_scc1 L_CV_NH")
    i("s_lshl_b32 s13, s64, 7")
    i("s_add_u32 s13, s13, 0x%x" % (WS_FL + FL_HINT))
    set_flag(8, "s13", 4)
    lab("L_CV_NH")
    stamp(6)
    i("s_branch L_PHASE_B")
    lab("L_CV_HELP")
    for ch in range(4):
        i("v_add_u32 v9, %d, v%d" % (XL, 20 + ch))
        i("ds_write_b128 v9, v[%d:%d]" % (136 + 4 * ch, 139 + 4 * ch))
    i("s_waitcnt lgkmcnt(0)")
    lds_add(M_XT, 8)
    i("s_cmp_lg_u32 s3, 4")
    i("s_cbranch_scc1 L_CV_NCP")
    arrive_shard(FL_CP, 248)
    lab("L_CV_NCP")
    w1_load(W1MAP)
    stamp(12)
    h1_poison(248)
    stamp(9)
    lds_wait(M_MD, 4, 4, sleep=1)
    stamp(13)
    i("s_bitcmp1_b32 s67, 0")
    i("s_cbranch_scc1 L_CV_V6")
    i("s_waitcnt vmcnt(8)")
    i("s_branch L_CV_V8")
    lab("L_CV_V6")
    i("s_waitcnt vmcnt(6)")
    lab("L_CV_V8")
    stamp(14)
    w1_write(W1MAP[0:4])
    i("s_cmp_lg_u32 s3, 7")
    i("s_cbranch_scc1 L_CV_W4")
    lds_wait(M_TR, 4, 6, sleep=1)
    lab("L_CV_W4")
    w1_write(W1MAP[4:5])
    i("s_waitcnt vmcnt(0)")
    lds_add(M_GP, 248, rtn=True)
    i("s_cmp_lg_u32 s13, 3")
    i("s_cbranch_scc1 L_CV_NGP")
    arrive_shard(FL_CP2, 248)
    lab("L_CV_NGP")
    stamp(6)

    lab("L_PHASE_B")
    if STOP == "A": i("s_branch L_FIN")
    i("s_cmp_lg_u32 s3, 0")
    i("s_cbranch_scc1 L_B_W")
    lds_wait(M_S1, 1, 8)
    i("s_lshl_b32 s46, s64, 7")
    i("s_add_u32 s46, s46, 0x%x" % (WS_FL + FL_HINT))
    poll(8, "s46", 1, 1, 8, sleep=8)
    poll_shards(FL_CP, 8, sleep=16)
    lab("L_B_W")
    i("s_waitcnt lgkmcnt(0)")
    i("s_barrier")
    stamp(7)
    i("s_cmp_ge_u32 s3, 4")
    i("s_cbranch_scc1 L_B_LOAD")
    HB, RING, ACC, WF = 16, 13, 64, 120
    def HS(kap):
        j = kap % RING
        return 16 + 8 * j if j < 6 else 176 + 8 * (j - 6)
    i("s_lshl_b32 s12, s66, 7")
    i("s_lshl_b32 s13, s3, 5")
    i("s_add_u32 s12, s12, s13")
    i("v_lshlrev_b32 v5, 14, v3")
    i("v_lshl_add_u32 v5, v2, 4, v5")
    i("s_lshl_b32 s13, s12, 3")
    i("v_add_u32 v5, s13, v5")
    i("v_lshlrev_b32 v4, 4, v1")
    vq = []
    def hl(kap, half):
        r = HS(kap) + 4 * half
        i("s_mov_b32 s13, 0x%x" % (WS_H + kap * 8 * 16384 + half * 4 * 16384))
        i("buffer_load_dwordx4 v[%d:%d], v5, s[8:11], s13 offen sc1" % (r, r + 3))
        vq.append(("h", kap, half))
    INIT = int(os.environ.get("INIT", "4"))
    pend = [(k_, h_) for k_ in range(20) for h_ in range(2)]
    for _ in range(2 * INIT):
        hl(*pend.pop(0))
    i("v_lshrrev_b32 v6, 2, v2")
    i("v_lshl_add_u32 v6, v3, 2, v6")
    i("v_mul_u32_u24 v6, 224, v6")
    i("v_and_b32 v7, 3, v2")
    i("v_lshl_add_u32 v8, v7, 3, v6")
    i("v_add_u32 v9, %d, v8" % (8 * 7168))
    i("v_add_u32 v10, %d, v8" % (16 * 7168))
    def wreads(kap):
        s = kap & 1; base = 8 + kap // 8; o = (kap % 8) * 7168; lst = []
        for t in range(7):
            r = WF + 28 * s + 4 * t
            lst.append("ds_read_b64_tr_b16 v[%d:%d], v%d offset:%d" % (r, r + 1, base, o + 32 * t))
            lst.append("ds_read_b64_tr_b16 v[%d:%d], v%d offset:%d" % (r + 2, r + 3, base, o + 32 * t + 3584))
        return lst
    i("v_mov_b32 v11, %d" % (MISC + M_CH + 16))
    i("v_mov_b32 v12, 1")
    for r in wreads(0): i(r)
    def swaps(kap):
        r = HS(kap)
        return ["v_swap_b32 v%d, v%d" % (r + 2, r + 4), "v_swap_b32 v%d, v%d" % (r + 3, r + 5)]
    def wait_h(kap):
        idx = max(n for n, x in enumerate(vq) if x[0] == "h" and x[1] == kap)
        return "s_waitcnt vmcnt(%d)" % min(63, len(vq) - 1 - idx)
    slow = []
    EARLYCHK = os.environ.get("EARLYCHK", "1") == "1"
    def check_h(kap, part=0):
        r = HS(kap)
        if part in (0, 1):
            i("v_max3_u32 v6, v%d, v%d, v%d" % (r, r + 2, r + 4))
            i("v_max_u32 v6, v6, v%d" % (r + 6))
            i("v_cmp_eq_u32 vcc, -1, v6")
            if part == 1: return
        bad, back = uid("HBAD"), uid("HOK")
        i("s_cbranch_vccnz %s" % bad)
        lab(back)
        later = sorted(set(x[1] for x in vq if x[0] == "h" and x[1] > kap))
        slow.append((bad, back, kap, later))
    if os.environ.get("XMID"):
        i("s_mov_b32 s96, 0")
        i("s_mov_b32 s97, 0")
    i(wait_h(0))
    check_h(0)
    lds_add(M_CH + 28, 6)
    stamp(12)
    for s_ in swaps(0): i(s_)
    w2pf = [(3, 0), (3, 1), (3, 2), (3, 3), (3, 4), (4, 0), (4, 1), (4, 2), (4, 3), (4, 4), (5, 0), (5, 1), (5, 2), (5, 3), (5, 4)]
    for kap in range(20):
        s = kap & 1
        nxt = wreads(kap + 1) if kap < 19 else []
        if os.environ.get("XMID") and kap in (4, 8, 12, 16): stamp({4: 3, 8: 4, 12: 5, 16: 6}[kap])
        if os.environ.get("XCYC") and kap == 12: i("s_memtime s[90:91]")
        if os.environ.get("XCYC") and kap == 16: i("s_memtime s[92:93]")
        i("s_waitcnt lgkmcnt(0)")
        k = 0; n = 0
        for t in range(7):
            for par in range(2):
                a = ACC + 8 * t + 4 * par
                h = HS(kap) + 4 * par
                w = WF + 28 * s + 4 * t
                i("v_mfma_f32_16x16x32_bf16 v[%d:%d], v[%d:%d], v[%d:%d], %s" % (a, a + 3, w, w + 3, h, h + 3, "0" if kap == 0 else "v[%d:%d]" % (a, a + 3)))
                if k < len(nxt):
                    i(nxt[k]); k += 1
                if n in (1, 5, 8, 12) and pend and pend[0][0] <= kap - 1 + RING:
                    hl(*pend.pop(0))
                    if not pend:
                        i("s_mov_b64 exec, 1")
                        i("ds_add_u32 v11, v12")
                        i("s_mov_b64 exec, -1")
                if EARLYCHK:
                    if n == 3 and kap < 19:
                        i(wait_h(kap + 1))
                        check_h(kap + 1, part=1)
                    if n == 9 and kap < 19:
                        check_h(kap + 1, part=2)
                    if n == 11 and kap < 19:
                        for s_ in swaps(kap + 1): i(s_)
                elif n == 11 and kap < 19:
                    i(wait_h(kap + 1))
                    check_h(kap + 1)
                    for s_ in swaps(kap + 1): i(s_)
                n += 1
    stamp(8)
    lds_wait(M_EP + 4, 2, 6)
    stamp(14)
    i("v_lshlrev_b32 v6, 4, v2")
    i("s_lshl_b32 s13, s3, 8")
    i("s_add_u32 s13, s13, %d" % (MISC + M_STAT))
    i("v_add_u32 v6, s13, v6")
    i("ds_read_b128 v[12:15], v6")
    i("v_lshlrev_b32 v7, 4, v3")
    i("v_add_u32 v7, %d, v7" % MISC)
    for t in range(7):
        i("ds_read_b128 v[%d:%d], v7 offset:%d" % (120 + 4 * t, 123 + 4 * t, M_CS + 64 * t))
        i("ds_read_b128 v[%d:%d], v7 offset:%d" % (148 + 4 * t, 151 + 4 * t, M_B1 + 64 * t))
    i("s_lshl_b32 s27, s66, 3")
    i("s_lshl_b32 s28, s3, 1")
    i("s_add_u32 s27, s27, s28")
    i("s_lshl_b32 s27, s27, 10")
    i("s_add_u32 s27, s27, 0x%x" % WS_H1)
    i("s_mul_i32 s28, s67, 7")
    i("s_waitcnt lgkmcnt(0)")
    def tile(t, par, o):
        a = ACC + 8 * t + 4 * par
        st = 12 + 2 * par
        cs = 120 + 4 * t; b1 = 148 + 4 * t
        tmp = 232 + 4 * ((t + par) & 1) + 8 * par
        for hh in range(2):
            i("v_pk_fma_f32 v[%d:%d], v[%d:%d], v[%d:%d], v[%d:%d] op_sel:[0,0,0] op_sel_hi:[1,0,1] neg_lo:[0,1,0] neg_hi:[0,1,0]" % (tmp + 2 * hh, tmp + 2 * hh + 1, cs + 2 * hh, cs + 2 * hh + 1, st, st + 1, b1 + 2 * hh, b1 + 2 * hh + 1))
        for hh in range(2):
            i("v_pk_fma_f32 v[%d:%d], v[%d:%d], v[%d:%d], v[%d:%d] op_sel:[0,1,0] op_sel_hi:[1,1,1]" % (tmp + 2 * hh, tmp + 2 * hh + 1, a + 2 * hh, a + 2 * hh + 1, st, st + 1, tmp + 2 * hh, tmp + 2 * hh + 1))
        for r in range(4): i("v_max_f32 v%d, 0, v%d" % (tmp + r, tmp + r))
        for hh in range(2):
            i("v_pk_mul_f32 v[%d:%d], v[%d:%d], v[%d:%d]" % (tmp + 2 * hh, tmp + 2 * hh + 1, tmp + 2 * hh, tmp + 2 * hh + 1, tmp + 2 * hh, tmp + 2 * hh + 1))
        i("v_cvt_pk_bf16_f32 v%d, v%d, v%d" % (o, tmp, tmp + 1))
        i("v_cvt_pk_bf16_f32 v%d, v%d, v%d" % (o + 1, tmp + 2, tmp + 3))
    def beta_off(t):
        i("s_add_u32 s29, s28, %d" % t)
        i("s_lshr_b32 s29, s29, 1")
        i("s_lshl_b32 s29, s29, 17")
        i("s_add_u32 s29, s29, s27")
    def epi(pairs, single, half):
        o = 16
        def do_single():
            nonlocal o
            beta_off(single)
            for par in range(2):
                tile(single, par, o)
                i("buffer_store_dwordx2 v[%d:%d], v4, s[8:11], s29 offen offset:%d sc1" % (o, o + 1, 1024 * par + 8 * half))
                o += 4
        if half == 1: do_single()
        for t in pairs:
            beta_off(t)
            for par in range(2):
                tile(t, par, o)
                tile(t + 1, par, o + 2)
                i("buffer_store_dwordx4 v[%d:%d], v4, s[8:11], s29 offen offset:%d sc1" % (o, o + 3, 1024 * par))
                o += 4
        if half == 0: do_single()
    stamp(1)
    i("s_bitcmp1_b32 s67, 0")
    i("s_cbranch_scc1 L_B_ODD")
    epi((0, 2, 4), 6, 0)
    i("s_branch L_B_STD")
    lab("L_B_ODD")
    epi((1, 3, 5), 0, 1)
    lab("L_B_STD")
    stamp(9)
    lds_add(M_CH + 40, 6)
    lds_wait(M_EP, 1, 6)
    i("s_branch L_PHASE_C")
    for (bad, back, kap, later) in slow:
        r = HS(kap)
        lab(bad)
        i("s_mov_b32 s47, 0")
        top = uid("HT")
        lab(top)
        i("s_sleep 2")
        i("s_mov_b32 s13, 0x%x" % (WS_H + kap * 8 * 16384))
        i("buffer_load_dwordx4 v[%d:%d], v5, s[8:11], s13 offen sc1" % (r, r + 3))
        i("s_mov_b32 s13, 0x%x" % (WS_H + kap * 8 * 16384 + 4 * 16384))
        i("buffer_load_dwordx4 v[%d:%d], v5, s[8:11], s13 offen sc1" % (r + 4, r + 7))
        i("s_waitcnt vmcnt(0)")
        i("v_max3_u32 v6, v%d, v%d, v%d" % (r, r + 2, r + 4))
        i("v_max_u32 v6, v6, v%d" % (r + 6))
        i("v_cmp_eq_u32 vcc, -1, v6")
        okl = uid("HR")
        i("s_cbranch_vccz %s" % okl)
        i("s_add_u32 s47, s47, 1")
        i("s_cmp_lt_u32 s47, %d" % SPIN_LIMIT)
        i("s_cbranch_scc1 %s" % top)
        lab(okl)
        for k2 in later:
            r2 = HS(k2)
            i("s_mov_b32 s13, 0x%x" % (WS_H + k2 * 8 * 16384))
            i("buffer_load_dwordx4 v[%d:%d], v5, s[8:11], s13 offen sc1" % (r2, r2 + 3))
            i("s_mov_b32 s13, 0x%x" % (WS_H + k2 * 8 * 16384 + 4 * 16384))
            i("buffer_load_dwordx4 v[%d:%d], v5, s[8:11], s13 offen sc1" % (r2 + 4, r2 + 7))
        i("s_waitcnt vmcnt(0)")
        i("s_branch %s" % back)

    lab("L_B_LOAD")
    lds_wait(M_CH + 28, 1, 4, sleep=4)
    i("s_lshl_b32 s12, s66, 7")
    i("s_lshl_b32 s13, s67, 3")
    i("s_add_u32 s12, s12, s13")
    i("s_sub_u32 s14, s3, 4")
    i("s_mul_i32 s14, s14, 40")
    i("v_lshrrev_b32 v5, 2, v1")
    i("v_add_u32 v5, s14, v5")
    i("v_and_b32 v6, 3, v1")
    i("v_lshlrev_b32 v7, 14, v5")
    i("v_lshl_add_u32 v7, v6, 4, v7")
    i("s_lshl_b32 s13, s12, 3")
    i("s_add_u32 s13, s13, 0x%x" % WS_H)
    i("s_mov_b32 s15, s13")
    i("s_mov_b32 s47, 0")
    for r in range(4): i("v_mov_b32 v%d, 0" % (24 + r))
    lab("L_LS_TOP")
    i("s_mov_b32 s13, s15")
    for k in range(3):
        if k == 2: i("s_mov_b64 exec, 0xffffffff")
        i("buffer_load_dwordx4 v[%d:%d], v7, s[8:11], s13 offen sc1" % (16 + 4 * k, 19 + 4 * k))
        i("s_add_u32 s13, s13, %d" % (16 * 16384))
    i("s_mov_b64 exec, -1")
    i("s_waitcnt vmcnt(0)")
    i("v_max3_u32 v8, v16, v18, v20")
    i("v_max3_u32 v9, v22, v24, v26")
    i("v_max_u32 v8, v8, v9")
    i("v_cmp_eq_u32 vcc, -1, v8")
    i("s_cbranch_vccz L_LS_OK")
    i("s_sleep 8")
    i("s_add_u32 s47, s47, 1")
    i("s_cmp_lt_u32 s47, %d" % SPIN_LIMIT)
    i("s_cbranch_scc1 L_LS_TOP")
    lab("L_LS_OK")
    i("v_mov_b32 v7, 0x3f803f80")
    for r in range(8, 16): i("v_mov_b32 v%d, 0" % r)
    for k in range(3):
        for hf in range(2):
            for dw in range(2):
                x = 16 + 4 * k + 2 * hf + dw
                i("v_dot2_f32_bf16 v%d, v%d, v7, v%d" % (8 + 4 * dw + 2 * hf, x, 8 + 4 * dw + 2 * hf))
                i("v_dot2_f32_bf16 v%d, v%d, v%d, v%d" % (9 + 4 * dw + 2 * hf, x, x, 9 + 4 * dw + 2 * hf))
    nop(3)
    for r in range(4): i("v_add_f32 v%d, v%d, v%d" % (8 + r, 8 + r, 12 + r))
    for rr in (8, 4):
        nop(2)
        for r in range(4):
            i("v_add_f32_dpp v%d, v%d, v%d row_ror:%d row_mask:0xf bank_mask:0xf" % (8 + r, 8 + r, 8 + r, rr))
    for op in ("v_permlane16_swap_b32", "v_permlane32_swap_b32"):
        for r in range(4): i("v_mov_b32 v%d, v%d" % (12 + r, 8 + r))
        nop(1)
        for r in range(4): i("%s v%d, v%d" % (op, 12 + r, 8 + r))
        nop(1)
        for r in range(4): i("v_add_f32 v%d, v%d, v%d" % (8 + r, 8 + r, 12 + r))
    i("s_sub_u32 s13, s3, 4")
    i("s_lshl_b32 s13, s13, 6")
    i("s_add_u32 s13, s13, %d" % (MISC + 2304))
    i("v_lshlrev_b32 v5, 4, v1")
    i("v_add_u32 v5, s13, v5")
    i("s_mov_b64 exec, 0xf")
    i("ds_write_b128 v5, v[8:11]")
    i("s_mov_b64 exec, -1")
    i("s_waitcnt lgkmcnt(0)")
    lds_add(M_ST, 4, rtn=True)
    i("s_cmp_eq_u32 s13, 0")
    i("s_cbranch_scc1 L_B_CSP")
    i("s_cmp_lg_u32 s13, 3")
    i("s_cbranch_scc1 L_B_LD1")
    i("s_mov_b64 exec, 0xf")
    i("v_lshlrev_b32 v5, 4, v1")
    i("v_add_u32 v5, %d, v5" % (MISC + 2304))
    for w in range(4):
        i("ds_read_b128 v[%d:%d], v5 offset:%d" % (16 + 4 * w, 19 + 4 * w, 64 * w))
    i("s_waitcnt lgkmcnt(0)")
    for w in range(1, 4):
        i("v_pk_add_f32 v[16:17], v[16:17], v[%d:%d]" % (16 + 4 * w, 17 + 4 * w))
        i("v_pk_add_f32 v[18:19], v[18:19], v[%d:%d]" % (18 + 4 * w, 19 + 4 * w))
    ln_finish(16, 17, True)
    ln_finish(18, 19, True)
    i("v_lshlrev_b32 v5, 4, v1")
    i("s_lshl_b32 s13, s12, 3")
    i("s_add_u32 s13, s13, 0x%x" % WS_ST2)
    i("buffer_store_dwordx4 v[16:19], v5, s[8:11], s13 offen sc1")
    i("s_mov_b64 exec, -1")
    i("v_lshlrev_b32 v5, 4, v1")
    i("s_lshl_b32 s13, s66, 10")
    i("s_add_u32 s13, s13, 0x%x" % WS_ST2)
    i("s_mov_b32 s47, 0")
    lab("L_ST2_TOP")
    i("buffer_load_dwordx4 v[16:19], v5, s[8:11], s13 offen sc1")
    i("s_waitcnt vmcnt(0)")
    i("v_max_u32 v8, v17, v19")
    i("v_cmp_eq_u32 vcc, -1, v8")
    i("s_cbranch_vccz L_ST2_OK")
    i("s_sleep 1")
    i("s_add_u32 s47, s47, 1")
    i("s_cmp_lt_u32 s47, %d" % SPIN_LIMIT)
    i("s_cbranch_scc1 L_ST2_TOP")
    lab("L_ST2_OK")
    i("v_add_u32 v6, %d, v5" % (MISC + M_STAT))
    i("ds_write_b128 v6, v[16:19]")
    i("s_waitcnt lgkmcnt(0)")
    lds_add(M_EP + 4, 6)
    i("s_branch L_B_LD1")
    lab("L_B_CSP")
    poll_shards(FL_CP2, 24, sleep=16)
    i("s_mul_i32 s14, s67, 112")
    i("v_lshlrev_b32 v5, 2, v1")
    i("s_lshl_b32 s13, s14, 2")
    i("s_add_u32 s13, s13, 0x%x" % WS_CS)
    i("buffer_load_dword v20, v5, s[8:11], s13 offen sc1")
    i("buffer_load_dword v21, v5, s[8:11], s13 offen offset:256 sc1")
    srd(4, 38, F * 2)
    i("v_lshlrev_b32 v6, 1, v1")
    i("s_lshl_b32 s13, s14, 1")
    i("buffer_load_ushort v22, v6, s[4:7], s13 offen")
    i("buffer_load_ushort v23, v6, s[4:7], s13 offen offset:128")
    i("s_waitcnt vmcnt(0)")
    i("v_lshlrev_b32 v22, 16, v22")
    i("v_lshlrev_b32 v23, 16, v23")
    i("v_add_u32 v6, %d, v5" % MISC)
    i("ds_write_b32 v6, v20 offset:%d" % M_CS)
    i("ds_write_b32 v6, v21 offset:%d" % (M_CS + 256))
    i("ds_write_b32 v6, v22 offset:%d" % M_B1)
    i("ds_write_b32 v6, v23 offset:%d" % (M_B1 + 256))
    i("s_waitcnt lgkmcnt(0)")
    lds_add(M_EP + 4, 6)
    lab("L_B_LD1")
    i("s_mov_b32 s46, %d" % DBG_GOW)
    poll(56, "s46", 1, 1, 8, sleep=2)
    lds_add(M_EP, 8)
    lds_wait(M_CH + 16, 4, 6, sleep=2)
    if os.environ.get("W2GATE", "0") == "1": lds_wait(M_EP + 4, 2, 6, sleep=2)
    i("v_lshlrev_b32 v4, 4, v1")
    if not os.environ.get("XNOW2"): w2_load(range(6), range(6))
    lds_wait(M_EP + 4, 2, 6, sleep=4)
    if os.environ.get("GATEC", "1") == "1": lds_wait(M_CH + 40, 4, 6, sleep=4)

    lab("L_PHASE_C")
    if STOP == "B": i("s_branch L_FIN")
    i("s_lshr_b32 s12, s64, 1")
    i("s_lshl_b32 s12, s12, 3")
    i("s_lshr_b32 s13, s65, 2")
    i("s_add_u32 s12, s12, s13")
    stamp(10)
    i("s_and_b32 s4, s3, 3")
    i("s_mul_i32 s5, s4, 7")
    i("s_lshr_b32 s6, s3, 2")
    i("s_mul_i32 s7, s6, 27")
    i("s_add_u32 s5, s5, s7")
    i("s_lshl_b32 s5, s5, 7")
    i("s_lshl_b32 s7, s12, 2")
    i("s_add_u32 s5, s5, s7")
    i("s_lshl_b32 s5, s5, 10")
    i("s_add_u32 s5, s5, 0x%x" % WS_H1)
    R2, ACC2 = 8, 40
    vqa, vqb = [], []
    def h1l(st, lt):
        r = R2 + 16 * (st & 1) + 4 * lt
        i("s_add_u32 s13, s5, %d" % (st * 131072))
        i("buffer_load_dwordx4 v[%d:%d], v4, s[8:11], s13 offen offset:%d sc1" % (r, r + 3, 1024 * lt))
        vqa.append(("h", st, lt)); vqb.append(("h", st, lt))
    def w2l(st, sl, both=False):
        lb = uid("W2S")
        if not both:
            i("s_cmp_ge_u32 s3, 4")
            i("s_cbranch_scc1 %s" % lb)
        w2_load([st], [sl])
        lab(lb)
        for dl in range(5):
            vqa.append(("w", st, dl))
            if both: vqb.append(("w", st, dl))
    W2PRE = int(os.environ.get("W2PRE", "6"))
    for st_ in range(max(1, W2PRE)): w2l(st_, st_)
    for lt in range(4): h1l(0, lt)
    if W2PRE < 2: w2l(1, 1)
    for lt in range(4): h1l(1, lt)
    for r in range(80): i("v_mov_b32 v%d, 0" % (ACC2 + r))
    srd(56, 42, D * 2)
    srd(48, 44, L * D * 2)
    i("s_mul_i32 s7, s60, 5")
    i("s_lshl_b32 s15, s12, 6")
    i("s_and_b32 s14, s3, 3")
    i("s_lshr_b32 s13, s14, 1")
    i("s_lshl_b32 s13, s13, 5")
    i("s_add_u32 s15, s15, s13")
    i("s_and_b32 s13, s14, 1")
    i("s_add_u32 s15, s15, s13")
    i("v_lshlrev_b32 v6, 1, v2")
    i("v_add_u32 v6, s15, v6")
    slow2 = []
    def wait_for(tag):
        ns = []
        for q in (vqa, vqb):
            idxs = [n for n, x in enumerate(q) if x == tag]
            if idxs: ns.append(len(q) - 1 - max(idxs))
        i("s_waitcnt vmcnt(%d)" % min(63, min(ns)))
    for st in range(7):
        if st == 6:
            i("s_cmp_eq_u32 s4, 3")
            i("s_cbranch_scc1 L_C_RED")
            wait_for(("w", 6, 4))
        if st + 2 <= 5 and st + 2 >= max(2, W2PRE): w2l(st + 2, st + 2)
        sl = st if st < 6 else 0
        for lt in range(4):
            hr = R2 + 16 * (st & 1) + 4 * lt
            if (st, lt) == (0, 0):
                wait_for(("h", st, lt))
                i("v_max_u32 v5, v%d, v%d" % (hr, hr + 2))
                i("v_cmp_eq_u32 vcc, -1, v5")
            bad, back = uid("GBAD"), uid("GOK")
            i("s_cbranch_vccnz %s" % bad)
            lab(back)
            later = [(x[1], x[2]) for x in vqb if x[0] == "h" and (x[1], x[2]) > (st, lt)]
            slow2.append((bad, back, st, lt, later))
            if st == 0 and lt == 0: stamp(2)
            nx = (st, lt + 1) if lt < 3 else (st + 1, 0)
            for dl in range(5):
                a = ACC2 + 16 * dl + 4 * lt
                w = W2R + 20 * sl + 4 * dl
                h = R2 + 16 * (st & 1) + 4 * lt
                i("v_mfma_f32_16x16x32_bf16 v[%d:%d], v[%d:%d], v[%d:%d], v[%d:%d]" % (a, a + 3, w, w + 3, h, h + 3, a, a + 3))
                if dl == 1 and nx[0] < 7:
                    nr = R2 + 16 * (nx[0] & 1) + 4 * nx[1]
                    wait_for(("h",) + nx)
                    i("v_max_u32 v5, v%d, v%d" % (nr, nr + 2))
                    i("v_cmp_eq_u32 vcc, -1, v5")
            if st + 2 < 7: h1l(st + 2, lt)
        if st == 0:
            w2l(6, 0, both=True)
        if st == 1:
            for j in range(3):
                i("s_lshr_b32 s46, s3, 2")
                i("s_add_u32 s46, s46, %d" % (2 * j))
                i("s_min_u32 s46, s46, 4")
                i("s_add_u32 s46, s46, s7")
                i("s_lshl_b32 s13, s46, 16")
                i("s_add_u32 s13, s13, 0x%x" % WS_H)
                i("v_lshlrev_b32 v7, 14, v3")
                i("v_lshl_add_u32 v7, v6, 3, v7")
                i("buffer_load_dwordx2 v[%d:%d], v7, s[8:11], s13 offen sc1" % (240 + 2 * j, 241 + 2 * j))
                i("s_lshl_b32 s13, s46, 5")
                i("v_lshlrev_b32 v7, 3, v3")
                i("buffer_load_dwordx2 v[%d:%d], v7, s[56:59], s13 offen" % (246 + 2 * j, 247 + 2 * j))
                for q in (vqa, vqb): q.append(("e", j, 0)); q.append(("e", j, 1))
    lab("L_C_RED")
    stamp(11)
    i("s_waitcnt vmcnt(0)")
    i("s_barrier")
    i("s_lshl_b32 s13, s3, 10")
    i("v_add_u32 v5, s13, v4")
    i("v_add_u32 v7, 65536, v5")
    i("v_add_u32 v8, 131072, v5")
    nop(4)
    for T in range(20):
        a = ACC2 + 4 * T
        base = (5, 7, 8)[T // 8]
        i("ds_write_b128 v%d, v[%d:%d] offset:%d" % (base, a, a + 3, (T % 8) * 8192))
    i("s_lshl_b32 s13, s3, 13")
    i("v_add_u32 v5, s13, v4")
    i("v_add_u32 v7, 65536, v5")
    i("v_add_u32 v8, 131072, v5")
    i("s_waitcnt lgkmcnt(0)")
    i("s_barrier")
    for j in range(3):
        if j == 2:
            i("s_cmp_ge_u32 s3, 4")
            i("s_cbranch_scc1 L_C_RD")
        for src in range(8):
            r = 120 + 32 * j + 4 * src
            i("ds_read_b128 v[%d:%d], v%d offset:%d" % (r, r + 3, (5, 7, 8)[j], src * 1024))
    lab("L_C_RD")
    i("s_waitcnt vmcnt(0)")
    for j in range(3):
        if j == 2:
            i("s_cmp_ge_u32 s3, 4")
            i("s_cbranch_scc1 L_FIN")
        i("s_waitcnt lgkmcnt(%d)" % (8 if j == 0 else 0))
        r = 120 + 32 * j
        for (x_, y_) in ((0, 4), (8, 12), (16, 20), (24, 28), (0, 8), (16, 24), (0, 16)):
            i("v_pk_add_f32 v[%d:%d], v[%d:%d], v[%d:%d]" % (r + x_, r + x_ + 1, r + x_, r + x_ + 1, r + y_, r + y_ + 1))
            i("v_pk_add_f32 v[%d:%d], v[%d:%d], v[%d:%d]" % (r + x_ + 2, r + x_ + 3, r + x_ + 2, r + x_ + 3, r + y_ + 2, r + y_ + 3))
        i("v_cvt_pk_bf16_f32 v30, v%d, v%d" % (r, r + 1))
        i("v_cvt_pk_bf16_f32 v31, v%d, v%d" % (r + 2, r + 3))
        for (src, dst) in ((30, 32), (31, 34), (246 + 2 * j, 36), (247 + 2 * j, 38)):
            i("v_lshlrev_b32 v%d, 16, v%d" % (dst, src))
            i("v_and_b32 v%d, 0xffff0000, v%d" % (dst + 1, src))
        i("v_pk_add_f32 v[32:33], v[32:33], v[36:37]")
        i("v_pk_add_f32 v[34:35], v[34:35], v[38:39]")
        i("v_cvt_pk_bf16_f32 v30, v32, v33")
        i("v_cvt_pk_bf16_f32 v31, v34, v35")
        for (src, dst) in ((30, 32), (31, 34), (240 + 2 * j, 36), (241 + 2 * j, 38)):
            i("v_lshlrev_b32 v%d, 16, v%d" % (dst, src))
            i("v_and_b32 v%d, 0xffff0000, v%d" % (dst + 1, src))
        i("v_pk_add_f32 v[32:33], v[32:33], v[36:37]")
        i("v_pk_add_f32 v[34:35], v[34:35], v[38:39]")
        i("v_cvt_pk_bf16_f32 v%d, v32, v33" % (24 + 2 * j))
        i("v_cvt_pk_bf16_f32 v%d, v34, v35" % (25 + 2 * j))
        i("s_lshr_b32 s46, s3, 2")
        i("s_add_u32 s46, s46, %d" % (2 * j))
        i("s_add_u32 s46, s46, s7")
        i("s_lshl_b32 s46, s46, 5")
        i("v_mul_u32_u24 v9, 1280, v6")
        i("v_lshl_add_u32 v9, v3, 3, v9")
        i("buffer_store_dwordx2 v[%d:%d], v9, s[48:51], s46 offen%s" % (24 + 2 * j, 25 + 2 * j, os.environ.get("OUTF", "")))
    lab("L_FIN")
    stamp_flush()
    lab("L_END")
    i("s_endpgm")
    for (bad, back, st, lt, later) in slow2:
        r = R2 + 16 * (st & 1) + 4 * lt
        lab(bad)
        i("s_mov_b32 s47, 0")
        top = uid("GT")
        lab(top)
        i("s_sleep 1")
        i("s_add_u32 s13, s5, %d" % (st * 131072))
        i("buffer_load_dwordx4 v[%d:%d], v4, s[8:11], s13 offen offset:%d sc1" % (r, r + 3, 1024 * lt))
        i("s_waitcnt vmcnt(0)")
        i("v_max_u32 v5, v%d, v%d" % (r, r + 2))
        i("v_cmp_eq_u32 vcc, -1, v5")
        okl = uid("GR")
        i("s_cbranch_vccz %s" % okl)
        i("s_add_u32 s47, s47, 1")
        i("s_cmp_lt_u32 s47, %d" % SPIN_LIMIT)
        i("s_cbranch_scc1 %s" % top)
        lab(okl)
        for (s2_, l2_) in later:
            r2 = R2 + 16 * (s2_ & 1) + 4 * l2_
            i("s_add_u32 s13, s5, %d" % (s2_ * 131072))
            i("buffer_load_dwordx4 v[%d:%d], v4, s[8:11], s13 offen offset:%d sc1" % (r2, r2 + 3, 1024 * l2_))
        i("s_waitcnt vmcnt(0)")
        i("s_branch %s" % back)
    lab("L_CODE_END")
    e('.section .rodata,"a"')
    e(".p2align 6")
    e(".amdhsa_kernel %s" % KNAME)
    e("  .amdhsa_next_free_vgpr 256")
    e("  .amdhsa_next_free_sgpr 102")
    e("  .amdhsa_accum_offset 256")
    e("  .amdhsa_group_segment_fixed_size 0")
    e("  .amdhsa_kernarg_size 120")
    e("  .amdhsa_user_sgpr_count 2")
    e("  .amdhsa_user_sgpr_kernarg_segment_ptr 1")
    e("  .amdhsa_system_sgpr_workgroup_id_x 1")
    e(".end_amdhsa_kernel")

if __name__ == "__main__":
    main()
    path = sys.argv[1] if len(sys.argv) > 1 else "cdna_kernels/%s.s" % NAME
    open(path, "w").write("\n".join(x for x in out if x is not None) + "\n")
    print("wrote", path, len(out), "lines")
```

```python
import sys, os, struct
NAME = "sequential_preLN__ssm_conv_s4d__dense_activation_squared_relu__prompt"
KNAME = NAME + "_kernel"
L, D, NS, F = 2048, 640, 128, 1728
STAMPS = os.environ.get("STAMPS", "0") == "1"
STOP = os.environ.get("STOP", "")

WS_ST1 = 0x000000
WS_CS  = 0x008000
WS_ST2 = 0x010000
WS_FL  = 0x020000
WS_H   = 0x100000
WS_H1  = 0x400000
WS_W1P = 0xC00000
WS_W2P = 0x1000000
WS_STAMP = 0x8000000
WS_SIZE = 0x10000000
FL_CP, FL_CP2, FL_HINT, FL_SIZE = 0, 1024, 2048, 3072
DBG_C1, DBG_CW, DBG_CP, DBG_CP2, DBG_GO1, DBG_GOW, DBG_GOP, DBG_GOP2 = 0, 4, 8, 12, 128, 132, 136, 140
XROW = 544
FAC_CH = 63 * XROW
KCH, KCP = FAC_CH, 4160
UL = 137216
XL = 50944
TL = 142336
MISC = 158720
M_CH, M_ST, M_S1, M_XT, M_TR, M_HS, M_EP, M_GP, M_MD = 0, 32, 64, 68, 72, 76, 80, 92, 96
M_STAT, M_CS, M_B1 = 256, 1280, 1792
LDS_TOTAL = 163840

out = []
def e(s=""): out.append(s)
def lab(s): out.append(s + ":")
def i(s): out.append("    " + s)
def f2u(f): return struct.unpack("<I", struct.pack("<f", f))[0]
def nop(n):
    while n > 0:
        k = min(n, 16); i("s_nop %d" % (k - 1)); n -= k
def srd(dst, ptr_lo, nbytes):
    i("s_mov_b32 s%d, s%d" % (dst, ptr_lo))
    i("s_mov_b32 s%d, s%d" % (dst + 1, ptr_lo + 1))
    i("s_mov_b32 s%d, 0x%x" % (dst + 2, nbytes))
    i("s_mov_b32 s%d, 0x00020000" % (dst + 3))
def round_bf16(dst, src):
    i("v_cvt_pk_bf16_f32 v%d, v%d, v%d" % (dst, src, src))
    i("v_lshlrev_b32 v%d, 16, v%d" % (dst, dst))
_uid = [0]
def uid(p):
    _uid[0] += 1
    return "%s_%d" % (p, _uid[0])
def stamp(k):
    if STAMPS:
        assert k < 15
        i("s_memrealtime s[%d:%d]" % (70 + 2 * k, 71 + 2 * k))
def stamp_flush():
    if not STAMPS: return
    i("s_memrealtime s[100:101]")
    i("s_waitcnt lgkmcnt(0)")
    i("s_mov_b64 exec, 1")
    i("s_lshl_b32 s46, s2, 3")
    i("s_add_u32 s46, s46, s3")
    i("s_lshl_b32 s46, s46, 7")
    i("s_add_u32 s46, s46, 0x%x" % WS_STAMP)
    i("v_mov_b32 v0, 0")
    for k in range(16):
        i("v_mov_b32 v2, s%d" % (70 + 2 * k))
        i("v_mov_b32 v3, s%d" % (71 + 2 * k))
        i("buffer_store_dwordx2 v[2:3], v0, s[8:11], s46 offen offset:%d" % (8 * k))
        i("s_nop 1")

LOG2E, NLOG2E, INV2PI = 0x3fb8aa3b, 0xbfb8aa3b, "0.15915494"
SEL_LO, SEL_HI = 0x05040100, 0x07060302
INV640, EPS = 0x3acccccd, 0x3727c5ac
SPIN_LIMIT = 1 << 18

def poll(srd_reg, soff, nlanes, ndw, vt, spread=False, sleep=2):
    top, done = uid("POLL"), uid("POLLD")
    i("s_mov_b64 s[68:69], exec")
    m = (1 << nlanes) - 1
    i("s_mov_b32 exec_lo, 0x%x" % (m & 0xffffffff))
    i("s_mov_b32 exec_hi, 0x%x" % (m >> 32))
    if spread:
        i("v_lshrrev_b32 v%d, 1, v1" % (vt + 4))
        i("v_lshlrev_b32 v%d, 7, v%d" % (vt + 4, vt + 4))
        i("v_and_b32 v%d, 1, v1" % (vt + 5))
        i("v_lshl_add_u32 v%d, v%d, 4, v%d" % (vt + 4, vt + 5, vt + 4))
    else:
        i("v_lshlrev_b32 v%d, %d, v1" % (vt + 4, {1: 2, 4: 4}[ndw]))
    i("s_mov_b32 s47, 0")
    lab(top)
    if ndw == 1:
        i("buffer_load_dword v%d, v%d, s[%d:%d], %s offen sc1" % (vt, vt + 4, srd_reg, srd_reg + 3, soff))
        i("s_waitcnt vmcnt(0)")
    else:
        i("buffer_load_dwordx4 v[%d:%d], v%d, s[%d:%d], %s offen sc1" % (vt, vt + 3, vt + 4, srd_reg, srd_reg + 3, soff))
        i("s_waitcnt vmcnt(0)")
        i("v_min_u32 v%d, v%d, v%d" % (vt, vt, vt + 1))
        i("v_min_u32 v%d, v%d, v%d" % (vt + 2, vt + 2, vt + 3))
        i("v_min_u32 v%d, v%d, v%d" % (vt, vt, vt + 2))
    i("v_cmp_ne_u32 vcc, 0, v%d" % vt)
    i("s_cmp_eq_u64 vcc, exec")
    i("s_cbranch_scc1 %s" % done)
    i("s_sleep %d" % sleep)
    i("s_add_u32 s47, s47, 1")
    i("s_cmp_lt_u32 s47, %d" % SPIN_LIMIT)
    i("s_cbranch_scc1 %s" % top)
    lab(done)
    i("s_mov_b64 exec, s[68:69]")

def set_flag(srd_reg, soff, va=4):
    i("s_mov_b64 s[68:69], exec")
    i("s_mov_b64 exec, 1")
    i("v_mov_b32 v%d, 0" % va)
    i("v_mov_b32 v%d, 1" % (va + 1))
    i("buffer_store_dword v%d, v%d, s[%d:%d], %s offen sc1" % (va + 1, va, srd_reg, srd_reg + 3, soff))
    i("s_mov_b64 exec, s[68:69]")

def arrive_last(cnt_off, total, go_off):
    lbl = uid("ARR")
    i("s_mov_b64 s[68:69], exec")
    i("s_mov_b64 exec, 1")
    i("v_mov_b32 v4, %d" % cnt_off)
    i("v_mov_b32 v5, 1")
    i("buffer_atomic_add v5, v4, s[56:59], 0 offen sc0 sc1")
    i("s_waitcnt vmcnt(0)")
    i("v_readfirstlane_b32 s13, v5")
    i("s_mov_b64 exec, s[68:69]")
    i("s_cmp_lg_u32 s13, %d" % (total - 1))
    i("s_cbranch_scc1 %s" % lbl)
    i("s_mov_b32 s13, %d" % go_off)
    set_flag(56, "s13")
    lab(lbl)

def arrive_shard(floff, va=4):
    i("s_mov_b64 s[68:69], exec")
    i("s_mov_b64 exec, 1")
    i("s_lshl_b32 s13, s64, 7")
    i("s_add_u32 s13, s13, 0x%x" % (WS_FL + floff))
    i("v_mov_b32 v%d, 0" % va)
    i("v_mov_b32 v%d, 1" % (va + 1))
    i("buffer_atomic_add v%d, v%d, s[8:11], s13 offen sc1" % (va + 1, va))
    i("s_mov_b64 exec, s[68:69]")
def poll_shards(floff, vt, sleep=4):
    top, done = uid("PS"), uid("PSD")
    i("s_mov_b64 s[68:69], exec")
    i("s_mov_b64 exec, 0xff")
    i("v_lshlrev_b32 v%d, 7, v1" % (vt + 1))
    i("s_mov_b32 s46, 0x%x" % (WS_FL + floff))
    i("s_mov_b32 s47, 0")
    lab(top)
    i("buffer_load_dword v%d, v%d, s[8:11], s46 offen sc1" % (vt, vt + 1))
    i("s_waitcnt vmcnt(0)")
    i("v_cmp_le_u32 vcc, 32, v%d" % vt)
    i("s_cmp_eq_u64 vcc, exec")
    i("s_cbranch_scc1 %s" % done)
    i("s_sleep %d" % sleep)
    i("s_add_u32 s47, s47, 1")
    i("s_cmp_lt_u32 s47, %d" % SPIN_LIMIT)
    i("s_cbranch_scc1 %s" % top)
    lab(done)
    i("s_mov_b64 exec, s[68:69]")
def h1_poison(v0=4):
    skip = uid("HPS")
    i("v_lshlrev_b32 v%d, 4, v1" % (v0 + 4))
    for r in range(4): i("v_mov_b32 v%d, -1" % (v0 + r))
    i("s_lshl_b32 s27, s66, 3")
    i("s_and_b32 s28, s3, 3")
    i("s_lshl_b32 s28, s28, 1")
    i("s_add_u32 s27, s27, s28")
    i("s_lshl_b32 s27, s27, 10")
    i("s_add_u32 s27, s27, 0x%x" % WS_H1)
    i("s_mul_i32 s28, s67, 7")
    i("s_lshr_b32 s28, s28, 1")
    i("s_lshl_b32 s28, s28, 17")
    i("s_add_u32 s29, s27, s28")
    i("s_bitcmp1_b32 s67, 0")
    i("s_cbranch_scc1 %s" % skip)
    for par in range(2): i("buffer_store_dwordx4 v[%d:%d], v%d, s[8:11], s29 offen offset:%d sc1" % (v0, v0 + 3, v0 + 4, 1024 * par))
    lab(skip)
    for b_ in range(1, 4):
        i("s_add_u32 s29, s29, 131072")
        for par in range(2): i("buffer_store_dwordx4 v[%d:%d], v%d, s[8:11], s29 offen offset:%d sc1" % (v0, v0 + 3, v0 + 4, 1024 * par))
def st2_poison():
    i("s_mov_b64 s[68:69], exec")
    i("s_mov_b64 exec, 0xf")
    for r in range(4): i("v_mov_b32 v%d, -1" % (4 + r))
    i("v_lshlrev_b32 v8, 4, v1")
    i("s_lshl_b32 s13, s66, 10")
    i("s_lshl_b32 s46, s67, 6")
    i("s_add_u32 s13, s13, s46")
    i("s_add_u32 s13, s13, 0x%x" % WS_ST2)
    i("buffer_store_dwordx4 v[4:7], v8, s[8:11], s13 offen sc1")
    i("s_mov_b64 exec, s[68:69]")
    i("s_nop 1")

def lds_wait(off, target, vt=4, sleep=1):
    top, d = uid("LW"), uid("LWD")
    i("v_mov_b32 v%d, %d" % (vt, MISC + off))
    lab(top)
    i("ds_read_b32 v%d, v%d" % (vt + 1, vt))
    i("s_waitcnt lgkmcnt(0)")
    i("v_readfirstlane_b32 s13, v%d" % (vt + 1))
    i("s_cmp_ge_u32 s13, %d" % target)
    i("s_cbranch_scc1 %s" % d)
    i("s_sleep %d" % sleep)
    i("s_branch %s" % top)
    lab(d)

def lds_add(off, va=4, rtn=False):
    i("s_mov_b64 exec, 1")
    i("v_mov_b32 v%d, %d" % (va, MISC + off))
    i("v_mov_b32 v%d, 1" % (va + 1))
    if rtn:
        i("ds_add_rtn_u32 v%d, v%d, v%d" % (va + 1, va, va + 1))
        i("s_waitcnt lgkmcnt(0)")
        i("v_readfirstlane_b32 s13, v%d" % (va + 1))
    else:
        i("ds_add_u32 v%d, v%d" % (va, va + 1))
    i("s_mov_b64 exec, -1")

def ln_finish(m, v, mr):
    i("v_mul_f32 v%d, 0x%x, v%d" % (m, INV640, m))
    i("v_mul_f32 v%d, 0x%x, v%d" % (v, INV640, v))
    i("v_fma_f32 v%d, -v%d, v%d, v%d" % (v, m, m, v))
    i("v_max_f32 v%d, 0, v%d" % (v, v))
    round_bf16(m, m)
    round_bf16(v, v)
    i("v_add_f32 v%d, 0x%x, v%d" % (v, EPS, v))
    round_bf16(v, v)
    i("v_sqrt_f32 v%d, v%d" % (v, v))
    nop(1)
    round_bf16(v, v)
    i("v_rcp_f32 v%d, v%d" % (v, v))
    nop(1)
    if mr: i("v_mul_f32 v%d, v%d, v%d" % (m, m, v))

W1S, W2R = 8, 120
W1V = 240
def w1_prep():
    i("s_mul_i32 s46, s67, 224")
    i("s_mov_b32 s47, %d" % ((1 << 20) // 14 + 1))
    for k in range(7):
        i("v_add_u32 v4, %d, v1" % (64 * k))
        i("v_mul_lo_u32 v5, v4, s47")
        i("v_lshrrev_b32 v5, 20, v5")
        i("v_mul_u32_u24 v6, 14, v5")
        i("v_sub_u32 v6, v4, v6")
        i("v_mul_u32_u24 v5, 3456, v5")
        i("v_lshl_add_u32 v5, v6, 4, v5")
        i("v_add_u32 v%d, s46, v5" % (W1V + k))
def w1_load(cr):
    for (c, rb_) in cr:
        i("s_and_b32 s46, s3, 3")
        i("s_add_u32 s46, s46, %d" % (4 * c))
        i("s_mul_i32 s46, s46, %d" % (32 * 3456))
        for t in range(7):
            r = rb_ + 4 * t
            i("buffer_load_dwordx4 v[%d:%d], v%d, s[48:51], s46 offen" % (r, r + 3, W1V + t))
W1MAP = [(0, 24), (1, 52), (2, 80), (3, 108), (4, 200)]
def w1_dma(chunks):
    for c in chunks:
        i("s_and_b32 s46, s3, 3")
        i("s_add_u32 s46, s46, %d" % (4 * c))
        i("s_mul_i32 s47, s46, %d" % (32 * 3456))
        i("s_mul_i32 s46, s46, 7168")
        for t in range(7):
            i("s_add_u32 m0, s46, %d" % (1024 * t))
            i("s_nop 0")
            i("buffer_load_dwordx4 v%d, s[48:51], s47 offen lds" % (W1V + t))
def w1_write(cr):
    i("v_lshlrev_b32 v4, 4, v1")
    for (c, rb_) in cr:
        i("s_and_b32 s46, s3, 3")
        i("s_add_u32 s46, s46, %d" % (4 * c))
        i("s_mul_i32 s46, s46, 7168")
        i("v_add_u32 v5, s46, v4")
        for t in range(7):
            r = rb_ + 4 * t
            i("ds_write_b128 v5, v[%d:%d] offset:%d" % (r, r + 3, 1024 * t))
def w2_load(steps, slots):
    for st, sl in zip(steps, slots):
        i("s_add_u32 s46, s61, %d" % (st * 5120))
        for dl in range(5):
            r = W2R + 20 * sl + 4 * dl
            if dl < 4:
                i("buffer_load_dwordx4 v[%d:%d], v4, s[8:11], s46 offen offset:%d sc1" % (r, r + 3, 1024 * dl))
            else:
                i("s_add_u32 s46, s46, 4096")
                i("buffer_load_dwordx4 v[%d:%d], v4, s[8:11], s46 offen sc1" % (r, r + 3))

def main():
    ref = open("cdna_kernels/%s.s.ref" % NAME).read().splitlines()
    for ln in ref:
        if ln.startswith("; Override"): break
        e(ln)
    e("; @launch grid=(256,1,1) block=(512,1,1) lds=%d" % LDS_TOTAL)
    e('.amdgcn_target "amdgcn-amd-amdhsa--gfx950"')
    e(".text")
    e(".globl %s" % KNAME)
    e(".p2align 8")
    e(".type %s,@function" % KNAME)
    lab(KNAME)
    i("s_cmp_ge_u32 s2, 256")
    i("s_cbranch_scc1 L_END")
    stamp(0)
    i("s_load_dwordx16 s[16:31], s[0:1], 0")
    i("s_load_dwordx8 s[36:43], s[0:1], 64")
    i("s_load_dwordx2 s[44:45], s[0:1], 96")
    i("s_load_dwordx4 s[32:35], s[0:1], 104")
    PFS = os.environ.get("PFS", "8")
    i("s_lshr_b32 s65, s2, 3")
    i("s_sub_u32 s46, s65, %s" % PFS)
    i("s_cmp_ge_u32 s46, 2")
    i("s_cbranch_scc1 L_NOPF")
    i("s_getpc_b64 s[46:47]")
    lab("L_PC")
    i("s_sub_u32 s46, s46, L_PC-%s" % KNAME)
    i("s_subb_u32 s47, s47, 0")
    i("v_lshlrev_b32 v4, 7, v0")
    i("v_cmp_gt_u32 vcc, L_CODE_END-%s, v4" % KNAME)
    i("s_and_saveexec_b64 s[68:69], vcc")
    i("s_cbranch_execz L_NOPF2")
    i("global_load_dword v253, v4, s[46:47]")
    lab("L_NOPF2")
    i("s_mov_b64 exec, s[68:69]")
    lab("L_NOPF")
    i("v_lshrrev_b32 v4, 6, v0")
    i("v_and_b32 v1, 63, v0")
    i("v_and_b32 v2, 15, v1")
    i("v_readfirstlane_b32 s3, v4")
    i("v_lshrrev_b32 v3, 4, v1")
    for r in (5, 6, 7) + tuple(range(240, 247)): i("v_mov_b32 v%d, 0" % r)
    i("s_and_b32 s64, s2, 7")
    i("s_lshr_b32 s65, s2, 3")
    i("s_lshr_b32 s66, s64, 1")
    i("s_lshl_b32 s66, s66, 2")
    i("s_lshr_b32 s46, s65, 3")
    i("s_add_u32 s66, s66, s46")
    i("s_and_b32 s67, s64, 1")
    i("s_lshl_b32 s67, s67, 3")
    i("s_and_b32 s46, s65, 7")
    i("s_add_u32 s67, s67, s46")
    i("s_and_b32 s46, s64, 1")
    i("s_lshl_b32 s46, s46, 2")
    i("s_and_b32 s47, s65, 3")
    i("s_add_u32 s60, s46, s47")
    i("s_mul_i32 s61, s60, 54")
    i("s_and_b32 s46, s3, 3")
    i("s_mul_i32 s46, s46, 7")
    i("s_add_u32 s61, s61, s46")
    i("s_lshr_b32 s46, s3, 2")
    i("s_mul_i32 s46, s46, 27")
    i("s_add_u32 s61, s61, s46")
    i("s_mul_i32 s61, s61, 5120")
    i("s_add_u32 s61, s61, 0x%x" % WS_W2P)
    def setup():
        srd(8, 34, WS_SIZE)
        srd(48, 36, D * F * 2)
        srd(52, 40, F * D * 2)
        srd(56, 32, 256)
        lb = uid("NOST2")
        i("s_cmp_lg_u32 s3, 7")
        i("s_cbranch_scc1 %s" % lb)
        st2_poison()
        lab(lb)
    i("s_cmp_lt_u32 s65, 8")
    i("s_cbranch_scc1 L_STATS")
    i("s_cmp_lt_u32 s65, 28")
    i("s_cbranch_scc1 L_CONV")
    i("s_branch L_COLSUM")
    def rp_ids():
        i("s_sub_u32 s46, s65, 20")
        i("s_cmp_lt_u32 s65, 8")
        i("s_cselect_b32 s46, s65, s46")
        i("s_lshl_b32 s46, s46, 3")
        i("s_add_u32 s59x, s46, s64".replace("s59x", "s46"))
        i("s_mov_b32 s62, s46")
        i("s_mul_i32 s63, s3, 96")
        i("s_add_u32 s63, s63, s46")
    def rp_block():
        done = uid("RPD")
        i("s_cmp_ge_u32 s63, 432")
        i("s_cbranch_scc1 %s" % done)
        i("s_mul_i32 s14, s3, 5120")
        i("s_add_u32 s14, s14, 114688")
        i("s_mul_i32 s13, s63, 19419")
        i("s_lshr_b32 s13, s13, 20")
        i("s_mul_i32 s15, s13, 54")
        i("s_sub_u32 s15, s63, s15")
        i("s_mul_i32 s4, s15, %d" % (32 * 1280))
        i("s_mul_i32 s5, s13, 160")
        i("s_add_u32 s4, s4, s5")
        i("s_mov_b32 s47, %d" % ((1 << 20) // 10 + 1))
        for k in range(5):
            i("v_add_u32 v8, %d, v1" % (64 * k))
            i("v_mul_lo_u32 v9, v8, s47")
            i("v_lshrrev_b32 v9, 20, v9")
            i("v_mul_u32_u24 v10, 10, v9")
            i("v_sub_u32 v10, v8, v10")
            i("v_mul_u32_u24 v9, 1280, v9")
            i("v_lshl_add_u32 v9, v10, 4, v9")
            i("s_add_u32 m0, s14, %d" % (1024 * k))
            i("s_nop 0")
            i("buffer_load_dwordx4 v9, s[52:55], s4 offen lds")
        i("v_lshrrev_b32 v5, 2, v2")
        i("v_lshl_add_u32 v5, v3, 2, v5")
        i("v_and_b32 v6, 3, v2")
        i("v_lshlrev_b32 v6, 3, v6")
        i("v_mul_u32_u24 v5, 160, v5")
        i("v_add3_u32 v5, v5, v6, s14")
        i("v_lshlrev_b32 v7, 4, v1")
        i("s_mul_i32 s4, s63, 5120")
        i("s_add_u32 s4, s4, 0x%x" % WS_W2P)
        i("s_waitcnt vmcnt(0)")
        for t in range(5):
            i("ds_read_b64_tr_b16 v[%d:%d], v5 offset:%d" % (64 + 4 * t, 65 + 4 * t, 32 * t))
            i("ds_read_b64_tr_b16 v[%d:%d], v5 offset:%d" % (66 + 4 * t, 67 + 4 * t, 32 * t + 2560))
        for t in range(5):
            i("s_waitcnt lgkmcnt(%d)" % (8 - 2 * t))
            if t == 4: i("s_add_u32 s4, s4, 4096")
            i("buffer_store_dwordx4 v[%d:%d], v7, s[8:11], s4 offen offset:%d sc1" % (64 + 4 * t, 67 + 4 * t, 1024 * (t % 4)))
        lab(done)

    lab("L_STATS")
    i("s_lshl_b32 s46, s65, 3")
    i("s_add_u32 s12, s46, s64")
    i("s_lshl_b32 s13, s12, 5")
    i("s_lshl_b32 s14, s3, 2")
    i("s_add_u32 s13, s13, s14")
    i("v_add_u32 v4, s13, v3")
    i("v_mul_u32_u24 v5, 1280, v4")
    i("v_lshl_add_u32 v5, v2, 4, v5")
    i("s_waitcnt lgkmcnt(0)")
    for k in range(5):
        i("global_load_dwordx4 v[%d:%d], v5, s[16:17] offset:%d" % (32 + 4 * k, 35 + 4 * k, 256 * k))
    i("v_mov_b32 v250, v4")
    setup()
    i("v_mov_b32 v4, v250")
    i("s_cmp_lg_u32 s12, 0")
    i("s_cbranch_scc1 L_NOZ")
    i("s_cmp_lg_u32 s3, 7")
    i("s_cbranch_scc1 L_NOZ")
    for r in range(4): i("v_mov_b32 v%d, 0" % (60 + r))
    i("v_lshlrev_b32 v6, 4, v1")
    i("s_mov_b32 s14, 0x%x" % WS_FL)
    for k in range(FL_SIZE // 1024):
        i("buffer_store_dwordx4 v[60:63], v6, s[8:11], s14 offen offset:%d sc1" % (1024 * k))
    lab("L_NOZ")
    i("v_mov_b32 v7, 0x3f803f80")
    for r in range(8, 16): i("v_mov_b32 v%d, 0" % r)
    i("s_waitcnt vmcnt(0)")
    for k in range(20):
        i("v_dot2_f32_bf16 v%d, v%d, v7, v%d" % (8 + (k & 3), 32 + k, 8 + (k & 3)))
        i("v_dot2_f32_bf16 v%d, v%d, v%d, v%d" % (12 + (k & 3), 32 + k, 32 + k, 12 + (k & 3)))
    nop(3)
    i("v_add_f32 v8, v8, v9")
    i("v_add_f32 v10, v10, v11")
    i("v_add_f32 v12, v12, v13")
    i("v_add_f32 v14, v14, v15")
    i("v_add_f32 v8, v8, v10")
    i("v_add_f32 v9, v12, v14")
    for r in (8, 4, 2, 1):
        nop(2)
        i("v_add_f32_dpp v8, v8, v8 row_ror:%d row_mask:0xf bank_mask:0xf" % r)
        i("v_add_f32_dpp v9, v9, v9 row_ror:%d row_mask:0xf bank_mask:0xf" % r)
    ln_finish(8, 9, False)
    i("v_lshlrev_b32 v4, 3, v4")
    i("v_cmp_eq_u32 vcc, 0, v2")
    i("s_and_saveexec_b64 s[68:69], vcc")
    i("s_mov_b32 s14, 0x%x" % WS_ST1)
    i("buffer_store_dwordx2 v[8:9], v4, s[8:11], s14 offen sc1")
    i("s_mov_b64 exec, s[68:69]")
    i("s_waitcnt vmcnt(0)")
    i("s_barrier")
    stamp(1)
    i("s_cmp_lg_u32 s3, 0")
    i("s_cbranch_scc1 L_NC1")
    arrive_last(DBG_C1, 64, DBG_GO1)
    i("s_branch L_NC1")
    lab("L_COLSUM")
    i("s_waitcnt lgkmcnt(0)")
    setup()
    stamp(1)
    lab("L_NC1")
    rp_ids()
    i("s_cmp_lg_u32 s3, 7")
    i("s_cbranch_scc1 L_NC1A")
    i("v_lshlrev_b32 v8, 2, v1")
    i("v_add_u32 v8, %d, v8" % MISC)
    i("v_mov_b32 v9, 0")
    i("ds_write_b32 v8, v9")
    i("s_waitcnt lgkmcnt(0)")
    lab("L_NC1A")
    i("s_barrier")
    i("s_cmp_ge_u32 s3, 4")
    i("s_cbranch_scc1 L_NC_LD")
    rp_block()
    i("s_cmp_ge_u32 s62, 12")
    i("s_cbranch_scc1 L_NC2")
    i("s_lshl_b32 s63, s62, 2")
    i("s_add_u32 s63, s63, s3")
    i("s_add_u32 s63, s63, 384")
    i("s_waitcnt lgkmcnt(0)")
    rp_block()
    lab("L_NC2")
    i("s_waitcnt vmcnt(0)")
    stamp(4)
    lds_add(M_CH + 8, 4, rtn=True)
    i("s_cmp_lg_u32 s13, 3")
    i("s_cbranch_scc1 L_NC3")
    arrive_last(DBG_CW, 96, DBG_GOW)
    lab("L_NC3")
    i("s_cmp_lt_u32 s65, 28")
    i("s_cbranch_scc1 L_NC5")
    i("s_sub_u32 s46, s65, 28")
    i("s_lshl_b32 s46, s46, 3")
    i("s_add_u32 s12, s46, s64")
    i("s_cmp_ge_u32 s12, 27")
    i("s_cbranch_scc1 L_NC5")
    i("v_lshrrev_b32 v4, 3, v1")
    i("s_lshl_b32 s13, s3, 3")
    i("v_add_u32 v4, s13, v4")
    i("v_mul_u32_u24 v4, 3456, v4")
    i("v_and_b32 v5, 7, v1")
    i("v_lshl_add_u32 v4, v5, 4, v4")
    i("s_lshl_b32 s13, s12, 7")
    for it in range(20):
        i("buffer_load_dwordx4 v[%d:%d], v4, s[48:51], s13 offen" % (64 + 4 * it, 67 + 4 * it))
        i("s_add_u32 s13, s13, %d" % (32 * 3456))
    for r in range(8): i("v_mov_b32 v%d, 0" % (8 + r))
    for it in range(20):
        i("s_waitcnt vmcnt(%d)" % (19 - it))
        for dw in range(4):
            x = 64 + 4 * it + dw
            i("v_lshlrev_b32 v16, 16, v%d" % x)
            i("v_and_b32 v17, 0xffff0000, v%d" % x)
            i("v_pk_add_f32 v[%d:%d], v[%d:%d], v[16:17]" % (8 + 2 * dw, 9 + 2 * dw, 8 + 2 * dw, 9 + 2 * dw))
    nop(1)
    for r in range(8):
        i("v_add_f32_dpp v%d, v%d, v%d row_ror:8 row_mask:0xf bank_mask:0xf" % (8 + r, 8 + r, 8 + r))
    for op in ("v_permlane16_swap_b32", "v_permlane32_swap_b32"):
        for r in range(8): i("v_mov_b32 v%d, v%d" % (16 + r, 8 + r))
        nop(1)
        for r in range(8): i("%s v%d, v%d" % (op, 16 + r, 8 + r))
        nop(1)
        for r in range(8): i("v_add_f32 v%d, v%d, v%d" % (8 + r, 8 + r, 16 + r))
    i("v_lshlrev_b32 v4, 5, v1")
    i("s_lshl_b32 s13, s3, 8")
    i("s_add_u32 s13, s13, %d" % (MISC + 3072))
    i("v_add_u32 v4, s13, v4")
    i("s_mov_b64 exec, 0xff")
    i("ds_write_b128 v4, v[8:11]")
    i("ds_write_b128 v4, v[12:15] offset:16")
    i("s_mov_b64 exec, -1")
    i("s_waitcnt lgkmcnt(0)")
    lds_add(M_CH + 20, 4, rtn=True)
    i("s_cmp_lg_u32 s13, 3")
    i("s_cbranch_scc1 L_NC5")
    i("v_lshlrev_b32 v4, 2, v1")
    i("v_add_u32 v5, %d, v4" % (MISC + 3072))
    for w in range(4):
        i("ds_read_b32 v%d, v5 offset:%d" % (8 + w, 256 * w))
    i("s_waitcnt lgkmcnt(0)")
    for w in range(1, 4): i("v_add_f32 v8, v8, v%d" % (8 + w))
    i("s_lshl_b32 s13, s12, 8")
    i("s_add_u32 s13, s13, 0x%x" % WS_CS)
    i("buffer_store_dword v8, v4, s[8:11], s13 offen sc1")
    i("s_waitcnt vmcnt(0)")
    lds_add(M_CH + 24, 4)
    lab("L_NC5")
    stamp(3)
    i("s_branch L_PHASE_B")
    lab("L_NC_LD")
    i("s_cmp_lg_u32 s3, 7")
    i("s_cbranch_scc1 L_NC_L3")
    i("s_mov_b32 s46, %d" % DBG_GO1)
    poll(56, "s46", 1, 1, 8, sleep=2)
    lds_add(M_S1, 8)
    arrive_shard(FL_CP)
    lab("L_NC_L3")
    w1_prep()
    if os.environ.get("XLATE"):
        lds_wait(M_S1, 1, 4, sleep=4)
        i("s_cmp_lg_u32 s3, 7")
        lq = uid("XL")
        i("s_cbranch_scc1 %s" % lq)
        i("s_lshl_b32 s46, s64, 7")
        i("s_add_u32 s46, s46, 0x%x" % (WS_FL + FL_HINT))
        poll(8, "s46", 1, 1, 8, sleep=8)
        lds_add(M_CH + 28, 8)
        lab(lq)
        lds_wait(M_CH + 28, 1, 4, sleep=8)
    w1_dma([0, 1, 2, 3])
    lds_wait(M_CH + 8, 4, 4, sleep=4)
    w1_dma([4])
    h1_poison(248)
    i("s_waitcnt vmcnt(0)")
    lds_wait(M_S1, 1, 4, sleep=4)
    i("s_cmp_lt_u32 s65, 28")
    i("s_cbranch_scc1 L_NC_L4")
    i("s_sub_u32 s46, s65, 28")
    i("s_lshl_b32 s46, s46, 3")
    i("s_add_u32 s46, s46, s64")
    i("s_cmp_ge_u32 s46, 27")
    i("s_cbranch_scc1 L_NC_L4")
    lds_wait(M_CH + 24, 1, 4, sleep=4)
    lab("L_NC_L4")
    lds_add(M_CH + 12, 248, rtn=True)
    i("s_cmp_lg_u32 s13, 3")
    i("s_cbranch_scc1 L_PHASE_B")
    arrive_shard(FL_CP2, 248)
    i("s_branch L_PHASE_B")

    lab("L_CONV")
    i("s_mul_i32 s12, s64, 20")
    i("s_add_u32 s12, s12, s65")
    i("s_sub_u32 s12, s12, 8")
    i("s_lshl_b32 s13, s12, 2")
    i("s_and_b32 s14, s3, 3")
    i("s_add_u32 s15, s13, s14")
    i("s_lshr_b32 s6, s3, 2")
    i("s_lshl_b32 s46, s6, 6")
    i("v_add_u32 v4, s46, v1")
    i("s_lshl_b32 s47, s15, 8")
    i("v_lshl_add_u32 v5, v4, 1, s47")
    i("s_lshr_b32 s46, s15, 1")
    i("s_lshl_b32 s46, s46, 2")
    i("s_waitcnt lgkmcnt(0)")
    i("global_load_ushort v10, v5, s[18:19]")
    i("global_load_ushort v11, v5, s[20:21]")
    i("global_load_ushort v12, v5, s[22:23]")
    i("global_load_ushort v13, v5, s[24:25]")
    i("s_load_dword s4, s[26:27], s46")
    i("s_load_dword s5, s[28:29], s46")
    i("v_mov_b32 v250, v4")
    setup()
    i("v_mov_b32 v4, v250")
    i("s_lshl_b32 s13, s12, 2")
    i("s_cmp_lt_u32 s3, 4")
    i("s_cbranch_scc1 L_CV_PH")
    i("v_subrev_u32 v6, 256, v0")
    i("v_mul_u32_u24 v6, %d, v6" % (8 * 1280))
    i("s_lshl_b32 s46, s13, 1")
    i("v_add_u32 v6, s46, v6")
    i("v_add_u32 v7, 5120, v6")
    for k in range(4):
        i("global_load_dwordx2 v[%d:%d], v6, s[16:17] offset:%d" % (100 + 2 * k, 101 + 2 * k, 1280 * k))
    i("s_branch L_CV_NOX")
    lab("L_CV_PH")
    for r in range(4): i("v_mov_b32 v%d, -1" % (60 + r))
    i("v_lshlrev_b32 v6, 4, v0")
    i("s_lshl_b32 s46, s12, 14")
    i("s_add_u32 s46, s46, 0x%x" % WS_H)
    for it in range(4):
        i("buffer_store_dwordx4 v[60:63], v6, s[8:11], s46 offen sc1")
        if it < 3: i("s_add_u32 s46, s46, 4096")
    lab("L_CV_NOX")
    i("s_mul_i32 s46, s14, %d" % FAC_CH)
    i("v_lshl_add_u32 v5, v4, 2, s46")
    i("s_waitcnt lgkmcnt(0)")
    i("s_and_b32 s46, s15, 1")
    i("s_lshl_b32 s46, s46, 4")
    i("s_lshr_b32 s4, s4, s46")
    i("s_lshl_b32 s4, s4, 16")
    i("s_lshr_b32 s5, s5, s46")
    i("s_lshl_b32 s5, s5, 16")
    i("v_mov_b32 v14, s4")
    i("v_mul_f32 v14, 0x%x, v14" % LOG2E)
    i("v_exp_f32 v14, v14")
    nop(1)
    round_bf16(14, 14)
    i("s_cmp_lt_u32 s3, 4")
    i("s_cbranch_scc1 L_CV_W0")
    i("s_waitcnt vmcnt(4)")
    i("s_branch L_CV_W1")
    lab("L_CV_W0")
    i("s_waitcnt vmcnt(4)")
    lab("L_CV_W1")
    stamp(1)
    if os.environ.get("TOUCH"):
        i("s_cmp_ge_u32 s3, 4")
        i("s_cbranch_scc1 L_CV_NT")
        i("s_lshl_b32 s46, s12, 2")
        i("s_add_u32 s46, s46, s3")
        i("s_cmp_lt_u32 s46, 320")
        i("s_cselect_b32 s4, s36, s40")
        i("s_cselect_b32 s6x, s37, s41".replace("s6x", "s7"))
        i("s_sub_u32 s47, s46, 320")
        i("s_cselect_b32 s46, s46, s47") if False else None
        i("s_cmp_lt_u32 s46, 320")
        i("s_cselect_b32 s46, s46, s47")
        i("s_mul_i32 s46, s46, %d" % (54 * 128))
        i("s_add_u32 s30, s4, s46")
        i("s_addc_u32 s31, s7, 0")
        i("v_lshlrev_b32 v200, 7, v1")
        i("s_mov_b32 exec_lo, -1")
        i("s_mov_b32 exec_hi, 0x3fffff")
        i("global_load_dword v201, v200, s[30:31]")
        i("s_mov_b64 exec, -1")
        lab("L_CV_NT")
    for r in (10, 11, 12, 13): i("v_lshlrev_b32 v%d, 16, v%d" % (r, r))
    i("v_mul_f32 v10, 0x%x, v10" % LOG2E)
    i("v_exp_f32 v10, v10")
    nop(1)
    round_bf16(10, 10)
    i("v_mul_f32 v10, v10, v14")
    i("v_mul_f32 v10, 0x%x, v10" % NLOG2E)
    i("v_mul_f32 v11, v11, v14")
    i("v_mul_f32 v11, %s, v11" % INV2PI)
    i("v_mul_f32 v12, v12, v14")
    i("v_mul_f32 v13, v13, v14")
    i("v_add_f32 v32, v12, v12")
    i("v_add_f32 v33, v13, v13")
    bases = [(20, 1), (22, 16), (24, 256), (26, 2), (28, 4), (30, 8)]
    for (dst, p) in bases:
        i("v_mul_f32 v%d, 0x%x, v10" % (dst, f2u(float(p))))
        i("v_mul_f32 v%d, 0x%x, v11" % (dst + 1, f2u(float(p))))
    for (dst, p) in bases:
        i("v_exp_f32 v%d, v%d" % (dst, dst))
        i("v_fract_f32 v%d, v%d" % (dst + 1, dst + 1))
    for n, (dst, p) in enumerate(bases):
        i("v_cos_f32 v%d, v%d" % (52 + n, dst + 1))
        i("v_sin_f32 v%d, v%d" % (dst + 1, dst + 1))
    nop(1)
    for n, (dst, p) in enumerate(bases):
        i("v_mul_f32 v%d, v%d, v%d" % (dst + 1, dst, dst + 1))
        i("v_mul_f32 v%d, v%d, v%d" % (dst, dst, 52 + n))
    i("v_mov_b32 v34, 1.0")
    i("v_mov_b32 v35, 0")
    i("v_mov_b32 v36, v32")
    i("v_mov_b32 v37, v33")
    chains = [dict(x=32, s=20, row=0, n=16, y=False, start=0), dict(x=34, s=22, row=47, n=16, y=True, start=0)]
    for (tau, s, row, n) in [(1, 26, 16, 9), (2, 28, 25, 5), (3, 28, 30, 5), (4, 30, 35, 3), (5, 30, 38, 3), (6, 30, 41, 3), (7, 30, 44, 3)]:
        chains.append(dict(x=36 + 2 * tau, s=s, row=row, n=n, y=False, start=tau))
    rnd = 0; pos = [0] * len(chains); tmpc = 0
    while any(pos[k] < c["n"] for k, c in enumerate(chains)):
        muls, fmas, cv, wr = [], [], [], []
        ti = 0
        if rnd < 7:
            t = 52 + 2 * ti; ti += 1
            x, d = 36 + 2 * rnd, 36 + 2 * (rnd + 1)
            muls.append("v_pk_mul_f32 v[%d:%d], v[%d:%d], v[24:25] op_sel:[0,0] op_sel_hi:[1,0]" % (t, t + 1, x, x + 1))
            fmas.append("v_pk_fma_f32 v[%d:%d], v[%d:%d], v[24:25], v[%d:%d] op_sel:[1,1,0] op_sel_hi:[0,1,1] neg_lo:[0,1,0]" % (d, d + 1, x, x + 1, t, t + 1))
        for k, c in enumerate(chains):
            if rnd >= c["start"] and pos[k] < c["n"]:
                x = c["x"]; p = 72 + (tmpc % 16); tmpc += 1
                cv.append("v_cvt_pk_bf16_f32 v%d, v%d, %sv%d" % (p, x, "" if c["y"] else "-", x + 1))
                wr.append("ds_write_b32 v5, v%d offset:%d" % (p, (c["row"] + pos[k]) * XROW))
                if pos[k] < c["n"] - 1:
                    t = 52 + 2 * ti; ti += 1
                    assert t + 1 < 72
                    muls.append("v_pk_mul_f32 v[%d:%d], v[%d:%d], v[%d:%d] op_sel:[0,0] op_sel_hi:[1,0]" % (t, t + 1, x, x + 1, c["s"], c["s"] + 1))
                    fmas.append("v_pk_fma_f32 v[%d:%d], v[%d:%d], v[%d:%d], v[%d:%d] op_sel:[1,1,0] op_sel_hi:[0,1,1] neg_lo:[0,1,0]" % (x, x + 1, x, x + 1, c["s"], c["s"] + 1, t, t + 1))
                pos[k] += 1
        if rnd in (1, 4, 7, 10):
            k = 4 + (rnd - 1) // 3
            lb = uid("XG")
            i("s_cmp_lt_u32 s3, 4")
            i("s_cbranch_scc1 %s" % lb)
            i("global_load_dwordx2 v[%d:%d], v7, s[16:17] offset:%d" % (100 + 2 * k, 101 + 2 * k, 1280 * (k & 3)))
            lab(lb)
        for s_ in cv + muls + wr + fmas: i(s_)
        rnd += 1
    stamp(2)
    i("s_cmp_lg_u32 s3, 4")
    i("s_cbranch_scc1 L_CV_B1")
    i("v_lshlrev_b32 v8, 2, v1")
    i("v_add_u32 v8, %d, v8" % MISC)
    i("v_mov_b32 v9, 0")
    i("ds_write_b32 v8, v9")
    lab("L_CV_B1")
    i("s_waitcnt lgkmcnt(0)")
    i("s_barrier")
    stamp(3)
    i("s_cmp_ge_u32 s3, 4")
    i("s_cbranch_scc1 L_CV_NORM")
    segp = {0: (0, 8, 4), 1: (16, 4, 2), 2: (25, 5, 2), 3: (35, 6, 3)}
    i("s_mul_i32 s46, s3, %d" % FAC_CH)
    i("v_lshrrev_b32 v8, 3, v2")
    i("v_bfe_u32 v9, v2, 2, 1")
    i("v_and_b32 v10, 3, v2")
    for t in range(4):
        b0, a0, c0 = segp[t]
        i("v_mul_u32_u24 v11, %d, v8" % a0)
        i("v_mul_u32_u24 v12, %d, v9" % c0)
        i("v_add3_u32 v11, v11, v12, v10")
        i("v_add_u32 v11, %d, v11" % b0)
        i("v_mul_u32_u24 v11, %d, v11" % XROW)
        i("v_lshl_add_u32 v11, v3, 4, v11")
        i("v_add_u32 v%d, s46, v11" % (16 + t))
    i("v_add_u32 v11, 47, v2")
    i("v_mul_u32_u24 v11, %d, v11" % XROW)
    i("v_lshl_add_u32 v11, v3, 4, v11")
    i("v_add_u32 v15, s46, v11")
    for mu in range(8):
        i("ds_read_b128 v[%d:%d], v15 offset:%d" % (32 + 4 * mu, 35 + 4 * mu, 64 * mu))
        i("ds_read_b128 v[%d:%d], v16 offset:%d" % (64 + 4 * mu, 67 + 4 * mu, 64 * mu))
    accs = [20, 24, 28, 192]
    for t in range(4):
        nxt = ["ds_read_b128 v[%d:%d], v%d offset:%d" % (64 + 32 * (t + 1) + 4 * mu, 67 + 32 * (t + 1) + 4 * mu, 17 + t, 64 * mu) for mu in range(8)] if t < 3 else []
        for s_ in nxt: i(s_)
        a0 = accs[t]
        for mu in range(8):
            if t == 0: i("s_waitcnt lgkmcnt(%d)" % min(15, 8 + 14 - 2 * mu))
            else: i("s_waitcnt lgkmcnt(%d)" % ((8 if nxt else 0) + 7 - mu))
            i("v_mfma_f32_16x16x32_bf16 v[%d:%d], v[%d:%d], v[%d:%d], %s" % (a0, a0 + 3, 64 + 32 * t + 4 * mu, 67 + 32 * t + 4 * mu, 32 + 4 * mu, 35 + 4 * mu, "0" if mu == 0 else "v[%d:%d]" % (a0, a0 + 3)))
    i("s_mul_i32 s46, s3, %d" % KCH)
    i("v_lshlrev_b32 v10, 5, v2")
    i("v_cmp_eq_u32 vcc, 0, v1")
    i("v_mov_b32 v11, s5")
    i("v_lshl_add_u32 v12, v3, 3, v10")
    i("v_cndmask_b32 v11, 0, v11, vcc")
    nop(4)
    i("v_add_f32 v20, v20, v11")
    i("v_cvt_pk_bf16_f32 v64, v23, v22")
    i("v_cvt_pk_bf16_f32 v65, v21, v20")
    i("v_sub_u32 v13, 4088, v12")
    i("v_add_u32 v13, s46, v13")
    i("ds_write_b64 v13, v[64:65]")
    i("v_cvt_pk_bf16_f32 v66, v26, v25")
    i("v_cvt_pk_bf16_f32 v67, v24, v24")
    i("v_sub_u32 v13, 3576, v12")
    i("v_add_u32 v13, s46, v13")
    i("ds_write_b64 v13, v[66:67]")
    i("v_cvt_pk_bf16_f32 v68, v30, v30")
    i("v_cvt_pk_bf16_f32 v69, v29, v29")
    i("v_cvt_pk_bf16_f32 v70, v29, v28")
    i("v_cvt_pk_bf16_f32 v71, v28, v28")
    i("v_lshrrev_b32 v11, 1, v3")
    i("v_lshl_add_u32 v12, v11, 9, v10")
    i("v_and_b32 v11, 1, v3")
    i("v_lshl_add_u32 v12, v11, 4, v12")
    i("v_sub_u32 v13, 3056, v12")
    i("v_add_u32 v13, s46, v13")
    i("ds_write_b128 v13, v[68:71]")
    i("v_cvt_pk_bf16_f32 v72, v194, v194")
    i("v_mov_b32 v73, v72")
    i("v_cvt_pk_bf16_f32 v74, v193, v193")
    i("v_mov_b32 v75, v74")
    i("v_mov_b32 v76, v74")
    i("v_cvt_pk_bf16_f32 v77, v193, v192")
    i("v_cvt_pk_bf16_f32 v78, v192, v192")
    i("v_mov_b32 v79, v78")
    i("v_lshl_add_u32 v12, v3, 9, v10")
    i("v_sub_u32 v13, 2016, v12")
    i("v_add_u32 v13, s46, v13")
    i("ds_write_b128 v13, v[72:75]")
    i("ds_write_b128 v13, v[76:79] offset:16")
    for r in range(4): i("v_mov_b32 v%d, 0" % (32 + r))
    i("v_bfe_u32 v8, v1, 2, 2")
    i("v_mul_u32_u24 v8, %d, v8" % KCP)
    i("v_and_b32 v9, 3, v1")
    i("v_lshl_add_u32 v8, v9, 4, v8")
    i("v_add_u32 v8, s46, v8")
    i("ds_write_b128 v8, v[32:35] offset:4096")
    i("v_lshl_add_u32 v8, v1, 3, s46")
    i("v_add_u32 v9, %d, v8" % KCP)
    i("v_add_u32 v10, %d, v8" % (2 * KCP))
    i("v_add_u32 v11, %d, v8" % (3 * KCP))
    i("s_waitcnt lgkmcnt(0)")
    for it in range(8):
        i("ds_read_b64 v[%d:%d], v8 offset:%d" % (32 + 4 * it, 33 + 4 * it, 512 * it))
        i("ds_read_b64 v[%d:%d], v8 offset:%d" % (34 + 4 * it, 35 + 4 * it, 512 * it + 8))
    for it in range(8):
        i("s_waitcnt lgkmcnt(%d)" % min(15, 14 - 2 * it + 3 * it))
        d = 32 + 4 * it; a = 64 + 4 * it
        i("v_alignbit_b32 v%d, v%d, v%d, 16" % (a, d + 1, d))
        i("v_alignbit_b32 v%d, v%d, v%d, 16" % (a + 1, d + 2, d + 1))
        i("v_alignbit_b32 v%d, v%d, v%d, 16" % (a + 2, d + 3, d + 2))
        o = 128 * it
        i("ds_write2_b32 v9, v%d, v%d offset0:%d offset1:%d" % (a, a + 1, o % 256, o % 256 + 1) if it < 2 else "ds_write2st64_b32 v9, v9, v9" ) if False else None
        if it and it % 1 == 0:
            i("v_add_u32 v9, 512, v9"); i("v_add_u32 v10, 512, v10"); i("v_add_u32 v11, 512, v11")
        i("ds_write2_b32 v9, v%d, v%d offset0:0 offset1:1" % (a, a + 1))
        i("ds_write2_b32 v10, v%d, v%d offset0:0 offset1:1" % (d + 1, d + 2))
        i("ds_write2_b32 v11, v%d, v%d offset0:0 offset1:1" % (a + 1, a + 2))
    i("s_waitcnt vmcnt(0)")
    i("s_branch L_CV_B2")
    lab("L_CV_NORM")
    w1_prep()
    i("s_cmp_lg_u32 s3, 4")
    i("s_cbranch_scc1 L_CV_NW")
    i("s_mov_b32 s46, %d" % DBG_GO1)
    poll(56, "s46", 1, 1, 8, sleep=1)
    lds_add(M_S1, 8)
    i("s_branch L_CV_NG")
    lab("L_CV_NW")
    lds_wait(M_S1, 1)
    lab("L_CV_NG")
    stamp(5)
    i("v_subrev_u32 v6, 256, v0")
    i("v_lshlrev_b32 v6, 6, v6")
    i("s_mov_b32 s46, 0x%x" % WS_ST1)
    for k in range(4):
        i("buffer_load_dwordx4 v[%d:%d], v6, s[8:11], s46 offen offset:%d sc1" % (120 + 4 * k, 123 + 4 * k, 16 * k))
    i("s_mov_b32 s46, 0x%x" % SEL_LO)
    i("s_mov_b32 s47, 0x%x" % SEL_HI)
    i("s_waitcnt vmcnt(4)")
    for ch in range(4):
        for ii in range(4):
            lo = 100 + 2 * (2 * ii) + (ch >> 1); hi = 100 + 2 * (2 * ii + 1) + (ch >> 1)
            i("v_perm_b32 v%d, v%d, v%d, s%d" % (136 + 4 * ch + ii, hi, lo, 46 + (ch & 1)))
    for k in range(8):
        for jj in range(2):
            x = 100 + 2 * k + jj
            i("v_lshlrev_b32 v%d, 16, v%d" % (168 + 4 * k + 2 * jj, x))
            i("v_and_b32 v%d, 0xffff0000, v%d" % (168 + 4 * k + 2 * jj + 1, x))
    i("s_waitcnt vmcnt(0)")
    stamp(8)
    for k in range(8):
        m = 120 + 2 * k; r = m + 1
        for jj in range(2):
            a = 168 + 4 * k + 2 * jj; b = a + 1
            i("v_sub_f32 v%d, v%d, v%d" % (a, a, m))
            i("v_sub_f32 v%d, v%d, v%d" % (b, b, m))
            i("v_cvt_pk_bf16_f32 v%d, v%d, v%d" % (8 + jj, a, b))
        for jj in range(2):
            a = 168 + 4 * k + 2 * jj; b = a + 1
            i("v_lshlrev_b32 v%d, 16, v%d" % (a, 8 + jj))
            i("v_and_b32 v%d, 0xffff0000, v%d" % (b, 8 + jj))
            i("v_mul_f32 v%d, v%d, v%d" % (a, a, r))
            i("v_mul_f32 v%d, v%d, v%d" % (b, b, r))
    for ch in range(4):
        for ii in range(4):
            i("v_cvt_pk_bf16_f32 v%d, v%d, v%d" % (152 + 4 * ch + ii, 168 + 4 * (2 * ii) + ch, 168 + 4 * (2 * ii + 1) + ch))
    i("v_subrev_u32 v6, 256, v0")
    i("v_bfe_u32 v7, v6, 2, 2")
    i("v_lshlrev_b32 v6, 6, v6")
    for ch in range(4):
        i("v_xor_b32 v8, %d, v7" % ch)
        i("v_lshl_add_u32 v%d, v8, 4, v6" % (20 + ch))
        i("v_add_u32 v9, %d, v%d" % (UL + 2048, 20 + ch))
        i("ds_write_b128 v9, v[%d:%d]" % (152 + 4 * ch, 155 + 4 * ch))
    i("v_mov_b32 v8, 0")
    i("v_mov_b32 v9, 0")
    i("v_subrev_u32 v6, 256, v0")
    i("v_lshlrev_b32 v6, 3, v6")
    i("v_add_u32 v6, %d, v6" % UL)
    i("ds_write_b64 v6, v[8:9]")
    lab("L_CV_B2")
    i("s_waitcnt lgkmcnt(0)")
    i("s_barrier")
    stamp(4)
    i("s_cmp_ge_u32 s3, 4")
    i("s_cbranch_scc1 L_CV_HELP")
    i("s_mul_i32 s15, s3, %d" % KCH)
    i("v_and_b32 v8, 3, v2")
    i("v_sub_u32 v8, 3, v8")
    i("v_mul_u32_u24 v8, %d, v8" % KCP)
    i("v_lshrrev_b32 v9, 2, v2")
    i("v_lshlrev_b32 v9, 3, v9")
    i("v_lshl_add_u32 v9, v3, 4, v9")
    i("v_sub_u32 v9, %d, v9" % (4104 - 4032))
    i("v_add3_u32 v10, v8, v9, s15")
    i("v_lshlrev_b32 v8, 1, v2")
    i("v_add_u32 v8, 1, v8")
    i("v_sub_u32 v8, v8, v3")
    i("v_ashrrev_i32 v9, 2, v8")
    i("v_lshlrev_b32 v8, 6, v8")
    i("v_add_u32 v8, %d, v8" % (UL + 256))
    for r in range(4):
        i("v_subrev_u32 v11, %d, v9" % r)
        i("v_and_b32 v11, 3, v11")
        i("v_xor_b32 v11, s3, v11")
        i("v_lshl_add_u32 v%d, v11, 4, v8" % (12 + r))
    def FR(s, ii): return 24 + 64 * s + 4 * ii
    def GR(s, jj): return 24 + 64 * s + 32 + 4 * jj
    ACC = 160
    def reads(rho):
        s = rho & 1; lst = []
        for ii in range(8):
            sig = rho + 8 * ii; off = 64 * (63 - sig)
            lst.append("ds_read_b64 v[%d:%d], v10 offset:%d" % (FR(s, ii), FR(s, ii) + 1, off))
            lst.append("ds_read_b64 v[%d:%d], v10 offset:%d" % (FR(s, ii) + 2, FR(s, ii) + 3, off + 8))
            lst.append("ds_read_b128 v[%d:%d], v%d offset:%d" % (GR(s, ii), GR(s, ii) + 3, 12 + (rho & 3), 2048 * ii + 256 * (7 - rho)))
        return lst
    for r in reads(0): i(r)
    i("v_lshrrev_b32 v16, 1, v3")
    i("v_lshl_add_u32 v16, v2, 1, v16")
    i("v_bfe_u32 v17, v16, 2, 2")
    i("v_xor_b32 v17, s3, v17")
    i("v_lshlrev_b32 v16, 6, v16")
    i("v_lshl_add_u32 v16, v17, 4, v16")
    i("v_and_b32 v17, 1, v3")
    i("v_lshl_add_u32 v16, v17, 3, v16")
    i("v_add_u32 v16, %d, v16" % XL)
    for rho in range(8):
        s = rho & 1
        nxt = reads(rho + 1) if rho < 7 else ["ds_read_b64 v[%d:%d], v16 offset:%d" % (200 + 2 * al, 201 + 2 * al, 2048 * al) for al in range(8)]
        if rho == 7: lds_wait(M_XT, 4, 18)
        i("s_waitcnt lgkmcnt(0)")
        mf = []
        for al in range(8):
            for ii in range(al + 1):
                jj = al - ii
                first = (rho == 0 and ii == 0)
                mf.append("v_mfma_f32_16x16x32_bf16 v[%d:%d], v[%d:%d], v[%d:%d], %s" % (
                    ACC + 4 * al, ACC + 4 * al + 3, FR(s, ii), FR(s, ii) + 3, GR(s, jj), GR(s, jj) + 3,
                    "0" if first else "v[%d:%d]" % (ACC + 4 * al, ACC + 4 * al + 3)))
        k = 0
        for n, m in enumerate(mf):
            i(m)
            if k < len(nxt) and n < 30:
                i(nxt[k]); k += 1
        while k < len(nxt):
            i(nxt[k]); k += 1
    stamp(5)
    i("s_waitcnt lgkmcnt(0)")
    lds_add(M_MD, 4)
    nop(2)
    for al in range(8):
        x0, x1 = 200 + 2 * al, 201 + 2 * al
        a = ACC + 4 * al
        i("v_lshlrev_b32 v20, 16, v%d" % x0)
        i("v_and_b32 v21, 0xffff0000, v%d" % x0)
        i("v_lshlrev_b32 v22, 16, v%d" % x1)
        i("v_and_b32 v23, 0xffff0000, v%d" % x1)
        i("v_pk_add_f32 v[20:21], v[20:21], v[%d:%d]" % (a, a + 1))
        i("v_pk_add_f32 v[22:23], v[22:23], v[%d:%d]" % (a + 2, a + 3))
        i("v_cvt_pk_bf16_f32 v%d, v20, v21" % (24 + 2 * al))
        i("v_cvt_pk_bf16_f32 v%d, v22, v23" % (25 + 2 * al))
    i("v_lshlrev_b32 v8, 5, v2")
    i("v_lshl_add_u32 v8, v3, 3, v8")
    i("s_lshl_b32 s46, s3, 12")
    i("s_add_u32 s46, s46, %d" % TL)
    i("v_add_u32 v8, s46, v8")
    lds_wait(M_MD, 4, 4)
    for al in range(8):
        i("ds_write_b64 v8, v[%d:%d] offset:%d" % (24 + 2 * al, 25 + 2 * al, 512 * al))
    i("s_waitcnt lgkmcnt(0)")
    lds_add(M_TR + 16, 4)
    lds_wait(M_TR + 16, 4)
    i("v_lshlrev_b32 v252, 2, v0")
    i("v_add_u32 v252, %d, v252" % TL)
    i("v_lshlrev_b32 v253, 4, v0")
    i("s_lshl_b32 s14, s12, 14")
    i("s_add_u32 s14, s14, 0x%x" % WS_H)
    i("s_mov_b32 s46, 0x%x" % SEL_LO)
    i("s_mov_b32 s47, 0x%x" % SEL_HI)
    for it in range(4):
        for ch in range(4):
            i("ds_read_b32 v%d, v252 offset:%d" % (8 + 4 * it + ch, ch * 4096 + it * 1024))
    for it in range(4):
        i("s_waitcnt lgkmcnt(%d)" % (12 - 4 * it))
        b = 8 + 4 * it; o = 32 + 4 * it
        i("v_perm_b32 v%d, v%d, v%d, s46" % (o, b + 1, b))
        i("v_perm_b32 v%d, v%d, v%d, s46" % (o + 1, b + 3, b + 2))
        i("v_perm_b32 v%d, v%d, v%d, s47" % (o + 2, b + 1, b))
        i("v_perm_b32 v%d, v%d, v%d, s47" % (o + 3, b + 3, b + 2))
        i("buffer_store_dwordx4 v[%d:%d], v253, s[8:11], s14 offen sc1" % (o, o + 3))
        if it < 3: i("s_add_u32 s14, s14, 4096")
    lds_add(M_TR, 4)
    i("s_cmp_lg_u32 s65, 8")
    i("s_cbranch_scc1 L_CV_NH")
    i("s_cmp_lg_u32 s3, 0")
    i("s_cbranch_scc1 L_CV_NH")
    i("s_lshl_b32 s13, s64, 7")
    i("s_add_u32 s13, s13, 0x%x" % (WS_FL + FL_HINT))
    set_flag(8, "s13", 4)
    lab("L_CV_NH")
    stamp(6)
    i("s_branch L_PHASE_B")
    lab("L_CV_HELP")
    for ch in range(4):
        i("v_add_u32 v9, %d, v%d" % (XL, 20 + ch))
        i("ds_write_b128 v9, v[%d:%d]" % (136 + 4 * ch, 139 + 4 * ch))
    i("s_waitcnt lgkmcnt(0)")
    lds_add(M_XT, 8)
    i("s_cmp_lg_u32 s3, 4")
    i("s_cbranch_scc1 L_CV_NCP")
    arrive_shard(FL_CP, 248)
    lab("L_CV_NCP")
    w1_load(W1MAP)
    stamp(12)
    h1_poison(248)
    stamp(9)
    lds_wait(M_MD, 4, 4, sleep=1)
    stamp(13)
    i("s_bitcmp1_b32 s67, 0")
    i("s_cbranch_scc1 L_CV_V6")
    i("s_waitcnt vmcnt(8)")
    i("s_branch L_CV_V8")
    lab("L_CV_V6")
    i("s_waitcnt vmcnt(6)")
    lab("L_CV_V8")
    stamp(14)
    w1_write(W1MAP[0:4])
    i("s_cmp_lg_u32 s3, 7")
    i("s_cbranch_scc1 L_CV_W4")
    lds_wait(M_TR, 4, 6, sleep=1)
    lab("L_CV_W4")
    w1_write(W1MAP[4:5])
    i("s_waitcnt vmcnt(0)")
    lds_add(M_GP, 248, rtn=True)
    i("s_cmp_lg_u32 s13, 3")
    i("s_cbranch_scc1 L_CV_NGP")
    arrive_shard(FL_CP2, 248)
    lab("L_CV_NGP")
    stamp(6)

    lab("L_PHASE_B")
    if STOP == "A": i("s_branch L_FIN")
    i("s_cmp_lg_u32 s3, 0")
    i("s_cbranch_scc1 L_B_W")
    lds_wait(M_S1, 1, 8)
    i("s_lshl_b32 s46, s64, 7")
    i("s_add_u32 s46, s46, 0x%x" % (WS_FL + FL_HINT))
    poll(8, "s46", 1, 1, 8, sleep=8)
    poll_shards(FL_CP, 8, sleep=16)
    lab("L_B_W")
    i("s_waitcnt lgkmcnt(0)")
    i("s_barrier")
    stamp(7)
    i("s_cmp_ge_u32 s3, 4")
    i("s_cbranch_scc1 L_B_LOAD")
    HB, RING, ACC, WF = 16, 13, 64, 120
    def HS(kap):
        j = kap % RING
        return 16 + 8 * j if j < 6 else 176 + 8 * (j - 6)
    i("s_lshl_b32 s12, s66, 7")
    i("s_lshl_b32 s13, s3, 5")
    i("s_add_u32 s12, s12, s13")
    i("v_lshlrev_b32 v5, 14, v3")
    i("v_lshl_add_u32 v5, v2, 4, v5")
    i("s_lshl_b32 s13, s12, 3")
    i("v_add_u32 v5, s13, v5")
    i("v_lshlrev_b32 v4, 4, v1")
    vq = []
    def hl(kap, half):
        r = HS(kap) + 4 * half
        i("s_mov_b32 s13, 0x%x" % (WS_H + kap * 8 * 16384 + half * 4 * 16384))
        i("buffer_load_dwordx4 v[%d:%d], v5, s[8:11], s13 offen sc1" % (r, r + 3))
        vq.append(("h", kap, half))
    INIT = int(os.environ.get("INIT", "4"))
    pend = [(k_, h_) for k_ in range(20) for h_ in range(2)]
    for _ in range(2 * INIT):
        hl(*pend.pop(0))
    i("v_lshrrev_b32 v6, 2, v2")
    i("v_lshl_add_u32 v6, v3, 2, v6")
    i("v_mul_u32_u24 v6, 224, v6")
    i("v_and_b32 v7, 3, v2")
    i("v_lshl_add_u32 v8, v7, 3, v6")
    i("v_add_u32 v9, %d, v8" % (8 * 7168))
    i("v_add_u32 v10, %d, v8" % (16 * 7168))
    def wreads(kap):
        s = kap & 1; base = 8 + kap // 8; o = (kap % 8) * 7168; lst = []
        for t in range(7):
            r = WF + 28 * s + 4 * t
            lst.append("ds_read_b64_tr_b16 v[%d:%d], v%d offset:%d" % (r, r + 1, base, o + 32 * t))
            lst.append("ds_read_b64_tr_b16 v[%d:%d], v%d offset:%d" % (r + 2, r + 3, base, o + 32 * t + 3584))
        return lst
    i("v_mov_b32 v11, %d" % (MISC + M_CH + 16))
    i("v_mov_b32 v12, 1")
    for r in wreads(0): i(r)
    def swaps(kap):
        r = HS(kap)
        return ["v_swap_b32 v%d, v%d" % (r + 2, r + 4), "v_swap_b32 v%d, v%d" % (r + 3, r + 5)]
    def wait_h(kap):
        idx = max(n for n, x in enumerate(vq) if x[0] == "h" and x[1] == kap)
        return "s_waitcnt vmcnt(%d)" % min(63, len(vq) - 1 - idx)
    slow = []
    EARLYCHK = os.environ.get("EARLYCHK", "1") == "1"
    def check_h(kap, part=0):
        r = HS(kap)
        if part in (0, 1):
            i("v_max3_u32 v6, v%d, v%d, v%d" % (r, r + 2, r + 4))
            i("v_max_u32 v6, v6, v%d" % (r + 6))
            i("v_cmp_eq_u32 vcc, -1, v6")
            if part == 1: return
        bad, back = uid("HBAD"), uid("HOK")
        i("s_cbranch_vccnz %s" % bad)
        lab(back)
        later = sorted(set(x[1] for x in vq if x[0] == "h" and x[1] > kap))
        slow.append((bad, back, kap, later))
    if os.environ.get("XMID"):
        i("s_mov_b32 s96, 0")
        i("s_mov_b32 s97, 0")
    i(wait_h(0))
    check_h(0)
    lds_add(M_CH + 28, 6)
    stamp(12)
    for s_ in swaps(0): i(s_)
    i("s_nop 1")
    w2pf = [(3, 0), (3, 1), (3, 2), (3, 3), (3, 4), (4, 0), (4, 1), (4, 2), (4, 3), (4, 4), (5, 0), (5, 1), (5, 2), (5, 3), (5, 4)]
    for kap in range(20):
        s = kap & 1
        nxt = wreads(kap + 1) if kap < 19 else []
        if os.environ.get("XMID") and kap in (4, 8, 12, 16): stamp({4: 3, 8: 4, 12: 5, 16: 6}[kap])
        if os.environ.get("XCYC") and kap == 12: i("s_memtime s[90:91]")
        if os.environ.get("XCYC") and kap == 16: i("s_memtime s[92:93]")
        i("s_waitcnt lgkmcnt(0)")
        k = 0; n = 0
        for t in range(7):
            for par in range(2):
                a = ACC + 8 * t + 4 * par
                h = HS(kap) + 4 * par
                w = WF + 28 * s + 4 * t
                i("v_mfma_f32_16x16x32_bf16 v[%d:%d], v[%d:%d], v[%d:%d], %s" % (a, a + 3, w, w + 3, h, h + 3, "0" if kap == 0 else "v[%d:%d]" % (a, a + 3)))
                if k < len(nxt):
                    i(nxt[k]); k += 1
                if n in (1, 5, 8, 12) and pend and pend[0][0] <= kap - 1 + RING:
                    hl(*pend.pop(0))
                    if not pend:
                        i("s_mov_b64 exec, 1")
                        i("ds_add_u32 v11, v12")
                        i("s_mov_b64 exec, -1")
                if EARLYCHK:
                    if n == 3 and kap < 19:
                        i(wait_h(kap + 1))
                        check_h(kap + 1, part=1)
                    if n == 9 and kap < 19:
                        check_h(kap + 1, part=2)
                    if n == 11 and kap < 19:
                        for s_ in swaps(kap + 1): i(s_)
                elif n == 11 and kap < 19:
                    i(wait_h(kap + 1))
                    check_h(kap + 1)
                    for s_ in swaps(kap + 1): i(s_)
                n += 1
    stamp(8)
    lds_wait(M_EP + 4, 2, 6)
    stamp(14)
    i("v_lshlrev_b32 v6, 4, v2")
    i("s_lshl_b32 s13, s3, 8")
    i("s_add_u32 s13, s13, %d" % (MISC + M_STAT))
    i("v_add_u32 v6, s13, v6")
    i("ds_read_b128 v[12:15], v6")
    i("v_lshlrev_b32 v7, 4, v3")
    i("v_add_u32 v7, %d, v7" % MISC)
    for t in range(7):
        i("ds_read_b128 v[%d:%d], v7 offset:%d" % (120 + 4 * t, 123 + 4 * t, M_CS + 64 * t))
        i("ds_read_b128 v[%d:%d], v7 offset:%d" % (148 + 4 * t, 151 + 4 * t, M_B1 + 64 * t))
    i("s_lshl_b32 s27, s66, 3")
    i("s_lshl_b32 s28, s3, 1")
    i("s_add_u32 s27, s27, s28")
    i("s_lshl_b32 s27, s27, 10")
    i("s_add_u32 s27, s27, 0x%x" % WS_H1)
    i("s_mul_i32 s28, s67, 7")
    i("s_waitcnt lgkmcnt(0)")
    def tile(t, par, o):
        a = ACC + 8 * t + 4 * par
        st = 12 + 2 * par
        cs = 120 + 4 * t; b1 = 148 + 4 * t
        tmp = 232 + 4 * ((t + par) & 1) + 8 * par
        for hh in range(2):
            i("v_pk_fma_f32 v[%d:%d], v[%d:%d], v[%d:%d], v[%d:%d] op_sel:[0,0,0] op_sel_hi:[1,0,1] neg_lo:[0,1,0] neg_hi:[0,1,0]" % (tmp + 2 * hh, tmp + 2 * hh + 1, cs + 2 * hh, cs + 2 * hh + 1, st, st + 1, b1 + 2 * hh, b1 + 2 * hh + 1))
        for hh in range(2):
            i("v_pk_fma_f32 v[%d:%d], v[%d:%d], v[%d:%d], v[%d:%d] op_sel:[0,1,0] op_sel_hi:[1,1,1]" % (tmp + 2 * hh, tmp + 2 * hh + 1, a + 2 * hh, a + 2 * hh + 1, st, st + 1, tmp + 2 * hh, tmp + 2 * hh + 1))
        for r in range(4): i("v_max_f32 v%d, 0, v%d" % (tmp + r, tmp + r))
        for hh in range(2):
            i("v_pk_mul_f32 v[%d:%d], v[%d:%d], v[%d:%d]" % (tmp + 2 * hh, tmp + 2 * hh + 1, tmp + 2 * hh, tmp + 2 * hh + 1, tmp + 2 * hh, tmp + 2 * hh + 1))
        i("v_cvt_pk_bf16_f32 v%d, v%d, v%d" % (o, tmp, tmp + 1))
        i("v_cvt_pk_bf16_f32 v%d, v%d, v%d" % (o + 1, tmp + 2, tmp + 3))
    def beta_off(t):
        i("s_add_u32 s29, s28, %d" % t)
        i("s_lshr_b32 s29, s29, 1")
        i("s_lshl_b32 s29, s29, 17")
        i("s_add_u32 s29, s29, s27")
    def epi(pairs, single, half):
        o = 16
        def do_single():
            nonlocal o
            beta_off(single)
            for par in range(2):
                tile(single, par, o)
                i("buffer_store_dwordx2 v[%d:%d], v4, s[8:11], s29 offen offset:%d sc1" % (o, o + 1, 1024 * par + 8 * half))
                o += 4
        if half == 1: do_single()
        for t in pairs:
            beta_off(t)
            for par in range(2):
                tile(t, par, o)
                tile(t + 1, par, o + 2)
                i("buffer_store_dwordx4 v[%d:%d], v4, s[8:11], s29 offen offset:%d sc1" % (o, o + 3, 1024 * par))
                o += 4
        if half == 0: do_single()
    stamp(1)
    i("s_bitcmp1_b32 s67, 0")
    i("s_cbranch_scc1 L_B_ODD")
    epi((0, 2, 4), 6, 0)
    i("s_branch L_B_STD")
    lab("L_B_ODD")
    epi((1, 3, 5), 0, 1)
    lab("L_B_STD")
    stamp(9)
    lds_add(M_CH + 40, 6)
    lds_wait(M_EP, 1, 6)
    i("s_branch L_PHASE_C")
    for (bad, back, kap, later) in slow:
        r = HS(kap)
        lab(bad)
        i("s_mov_b32 s47, 0")
        top = uid("HT")
        lab(top)
        i("s_sleep 2")
        i("s_mov_b32 s13, 0x%x" % (WS_H + kap * 8 * 16384))
        i("buffer_load_dwordx4 v[%d:%d], v5, s[8:11], s13 offen sc1" % (r, r + 3))
        i("s_mov_b32 s13, 0x%x" % (WS_H + kap * 8 * 16384 + 4 * 16384))
        i("buffer_load_dwordx4 v[%d:%d], v5, s[8:11], s13 offen sc1" % (r + 4, r + 7))
        i("s_waitcnt vmcnt(0)")
        i("v_max3_u32 v6, v%d, v%d, v%d" % (r, r + 2, r + 4))
        i("v_max_u32 v6, v6, v%d" % (r + 6))
        i("v_cmp_eq_u32 vcc, -1, v6")
        okl = uid("HR")
        i("s_cbranch_vccz %s" % okl)
        i("s_add_u32 s47, s47, 1")
        i("s_cmp_lt_u32 s47, %d" % SPIN_LIMIT)
        i("s_cbranch_scc1 %s" % top)
        lab(okl)
        for k2 in later:
            r2 = HS(k2)
            i("s_mov_b32 s13, 0x%x" % (WS_H + k2 * 8 * 16384))
            i("buffer_load_dwordx4 v[%d:%d], v5, s[8:11], s13 offen sc1" % (r2, r2 + 3))
            i("s_mov_b32 s13, 0x%x" % (WS_H + k2 * 8 * 16384 + 4 * 16384))
            i("buffer_load_dwordx4 v[%d:%d], v5, s[8:11], s13 offen sc1" % (r2 + 4, r2 + 7))
        i("s_waitcnt vmcnt(0)")
        i("s_branch %s" % back)

    lab("L_B_LOAD")
    lds_wait(M_CH + 28, 1, 4, sleep=4)
    i("s_lshl_b32 s12, s66, 7")
    i("s_lshl_b32 s13, s67, 3")
    i("s_add_u32 s12, s12, s13")
    i("s_sub_u32 s14, s3, 4")
    i("s_mul_i32 s14, s14, 40")
    i("v_lshrrev_b32 v5, 2, v1")
    i("v_add_u32 v5, s14, v5")
    i("v_and_b32 v6, 3, v1")
    i("v_lshlrev_b32 v7, 14, v5")
    i("v_lshl_add_u32 v7, v6, 4, v7")
    i("s_lshl_b32 s13, s12, 3")
    i("s_add_u32 s13, s13, 0x%x" % WS_H)
    i("s_mov_b32 s15, s13")
    i("s_mov_b32 s47, 0")
    for r in range(4): i("v_mov_b32 v%d, 0" % (24 + r))
    lab("L_LS_TOP")
    i("s_mov_b32 s13, s15")
    for k in range(3):
        if k == 2: i("s_mov_b64 exec, 0xffffffff")
        i("buffer_load_dwordx4 v[%d:%d], v7, s[8:11], s13 offen sc1" % (16 + 4 * k, 19 + 4 * k))
        i("s_add_u32 s13, s13, %d" % (16 * 16384))
    i("s_mov_b64 exec, -1")
    i("s_waitcnt vmcnt(0)")
    i("v_max3_u32 v8, v16, v18, v20")
    i("v_max3_u32 v9, v22, v24, v26")
    i("v_max_u32 v8, v8, v9")
    i("v_cmp_eq_u32 vcc, -1, v8")
    i("s_cbranch_vccz L_LS_OK")
    i("s_sleep 8")
    i("s_add_u32 s47, s47, 1")
    i("s_cmp_lt_u32 s47, %d" % SPIN_LIMIT)
    i("s_cbranch_scc1 L_LS_TOP")
    lab("L_LS_OK")
    i("v_mov_b32 v7, 0x3f803f80")
    for r in range(8, 16): i("v_mov_b32 v%d, 0" % r)
    for k in range(3):
        for hf in range(2):
            for dw in range(2):
                x = 16 + 4 * k + 2 * hf + dw
                i("v_dot2_f32_bf16 v%d, v%d, v7, v%d" % (8 + 4 * dw + 2 * hf, x, 8 + 4 * dw + 2 * hf))
                i("v_dot2_f32_bf16 v%d, v%d, v%d, v%d" % (9 + 4 * dw + 2 * hf, x, x, 9 + 4 * dw + 2 * hf))
    nop(3)
    for r in range(4): i("v_add_f32 v%d, v%d, v%d" % (8 + r, 8 + r, 12 + r))
    for rr in (8, 4):
        nop(2)
        for r in range(4):
            i("v_add_f32_dpp v%d, v%d, v%d row_ror:%d row_mask:0xf bank_mask:0xf" % (8 + r, 8 + r, 8 + r, rr))
    for op in ("v_permlane16_swap_b32", "v_permlane32_swap_b32"):
        for r in range(4): i("v_mov_b32 v%d, v%d" % (12 + r, 8 + r))
        nop(1)
        for r in range(4): i("%s v%d, v%d" % (op, 12 + r, 8 + r))
        nop(1)
        for r in range(4): i("v_add_f32 v%d, v%d, v%d" % (8 + r, 8 + r, 12 + r))
    i("s_sub_u32 s13, s3, 4")
    i("s_lshl_b32 s13, s13, 6")
    i("s_add_u32 s13, s13, %d" % (MISC + 2304))
    i("v_lshlrev_b32 v5, 4, v1")
    i("v_add_u32 v5, s13, v5")
    i("s_mov_b64 exec, 0xf")
    i("ds_write_b128 v5, v[8:11]")
    i("s_mov_b64 exec, -1")
    i("s_waitcnt lgkmcnt(0)")
    lds_add(M_ST, 4, rtn=True)
    i("s_cmp_eq_u32 s13, 0")
    i("s_cbranch_scc1 L_B_CSP")
    i("s_cmp_lg_u32 s13, 3")
    i("s_cbranch_scc1 L_B_LD1")
    i("s_mov_b64 exec, 0xf")
    i("v_lshlrev_b32 v5, 4, v1")
    i("v_add_u32 v5, %d, v5" % (MISC + 2304))
    for w in range(4):
        i("ds_read_b128 v[%d:%d], v5 offset:%d" % (16 + 4 * w, 19 + 4 * w, 64 * w))
    i("s_waitcnt lgkmcnt(0)")
    for w in range(1, 4):
        i("v_pk_add_f32 v[16:17], v[16:17], v[%d:%d]" % (16 + 4 * w, 17 + 4 * w))
        i("v_pk_add_f32 v[18:19], v[18:19], v[%d:%d]" % (18 + 4 * w, 19 + 4 * w))
    ln_finish(16, 17, True)
    ln_finish(18, 19, True)
    i("v_lshlrev_b32 v5, 4, v1")
    i("s_lshl_b32 s13, s12, 3")
    i("s_add_u32 s13, s13, 0x%x" % WS_ST2)
    i("buffer_store_dwordx4 v[16:19], v5, s[8:11], s13 offen sc1")
    i("s_mov_b64 exec, -1")
    i("v_lshlrev_b32 v5, 4, v1")
    i("s_lshl_b32 s13, s66, 10")
    i("s_add_u32 s13, s13, 0x%x" % WS_ST2)
    i("s_mov_b32 s47, 0")
    lab("L_ST2_TOP")
    i("buffer_load_dwordx4 v[16:19], v5, s[8:11], s13 offen sc1")
    i("s_waitcnt vmcnt(0)")
    i("v_max_u32 v8, v17, v19")
    i("v_cmp_eq_u32 vcc, -1, v8")
    i("s_cbranch_vccz L_ST2_OK")
    i("s_sleep 1")
    i("s_add_u32 s47, s47, 1")
    i("s_cmp_lt_u32 s47, %d" % SPIN_LIMIT)
    i("s_cbranch_scc1 L_ST2_TOP")
    lab("L_ST2_OK")
    i("v_add_u32 v6, %d, v5" % (MISC + M_STAT))
    i("ds_write_b128 v6, v[16:19]")
    i("s_waitcnt lgkmcnt(0)")
    lds_add(M_EP + 4, 6)
    i("s_branch L_B_LD1")
    lab("L_B_CSP")
    poll_shards(FL_CP2, 24, sleep=16)
    i("s_mul_i32 s14, s67, 112")
    i("v_lshlrev_b32 v5, 2, v1")
    i("s_lshl_b32 s13, s14, 2")
    i("s_add_u32 s13, s13, 0x%x" % WS_CS)
    i("buffer_load_dword v20, v5, s[8:11], s13 offen sc1")
    i("buffer_load_dword v21, v5, s[8:11], s13 offen offset:256 sc1")
    srd(4, 38, F * 2)
    i("v_lshlrev_b32 v6, 1, v1")
    i("s_lshl_b32 s13, s14, 1")
    i("buffer_load_ushort v22, v6, s[4:7], s13 offen")
    i("buffer_load_ushort v23, v6, s[4:7], s13 offen offset:128")
    i("s_waitcnt vmcnt(0)")
    i("v_lshlrev_b32 v22, 16, v22")
    i("v_lshlrev_b32 v23, 16, v23")
    i("v_add_u32 v6, %d, v5" % MISC)
    i("ds_write_b32 v6, v20 offset:%d" % M_CS)
    i("ds_write_b32 v6, v21 offset:%d" % (M_CS + 256))
    i("ds_write_b32 v6, v22 offset:%d" % M_B1)
    i("ds_write_b32 v6, v23 offset:%d" % (M_B1 + 256))
    i("s_waitcnt lgkmcnt(0)")
    lds_add(M_EP + 4, 6)
    lab("L_B_LD1")
    i("s_mov_b32 s46, %d" % DBG_GOW)
    poll(56, "s46", 1, 1, 8, sleep=2)
    lds_add(M_EP, 8)
    lds_wait(M_CH + 16, 4, 6, sleep=2)
    if os.environ.get("W2GATE", "0") == "1": lds_wait(M_EP + 4, 2, 6, sleep=2)
    i("v_lshlrev_b32 v4, 4, v1")
    if not os.environ.get("XNOW2"): w2_load(range(6), range(6))
    lds_wait(M_EP + 4, 2, 6, sleep=4)
    if os.environ.get("GATEC", "1") == "1": lds_wait(M_CH + 40, 4, 6, sleep=4)

    lab("L_PHASE_C")
    if STOP == "B": i("s_branch L_FIN")
    i("s_lshr_b32 s12, s64, 1")
    i("s_lshl_b32 s12, s12, 3")
    i("s_lshr_b32 s13, s65, 2")
    i("s_add_u32 s12, s12, s13")
    stamp(10)
    i("s_and_b32 s4, s3, 3")
    i("s_mul_i32 s5, s4, 7")
    i("s_lshr_b32 s6, s3, 2")
    i("s_mul_i32 s7, s6, 27")
    i("s_add_u32 s5, s5, s7")
    i("s_lshl_b32 s5, s5, 7")
    i("s_lshl_b32 s7, s12, 2")
    i("s_add_u32 s5, s5, s7")
    i("s_lshl_b32 s5, s5, 10")
    i("s_add_u32 s5, s5, 0x%x" % WS_H1)
    R2, ACC2 = 8, 40
    vqa, vqb = [], []
    def h1l(st, lt):
        r = R2 + 16 * (st & 1) + 4 * lt
        i("s_add_u32 s13, s5, %d" % (st * 131072))
        i("buffer_load_dwordx4 v[%d:%d], v4, s[8:11], s13 offen offset:%d sc1" % (r, r + 3, 1024 * lt))
        vqa.append(("h", st, lt)); vqb.append(("h", st, lt))
    def w2l(st, sl, both=False):
        lb = uid("W2S")
        if not both:
            i("s_cmp_ge_u32 s3, 4")
            i("s_cbranch_scc1 %s" % lb)
        w2_load([st], [sl])
        lab(lb)
        for dl in range(5):
            vqa.append(("w", st, dl))
            if both: vqb.append(("w", st, dl))
    W2PRE = int(os.environ.get("W2PRE", "6"))
    for st_ in range(max(1, W2PRE)): w2l(st_, st_)
    for lt in range(4): h1l(0, lt)
    if W2PRE < 2: w2l(1, 1)
    for lt in range(4): h1l(1, lt)
    for r in range(80): i("v_mov_b32 v%d, 0" % (ACC2 + r))
    srd(56, 42, D * 2)
    srd(48, 44, L * D * 2)
    i("s_mul_i32 s7, s60, 5")
    i("s_lshl_b32 s15, s12, 6")
    i("s_and_b32 s14, s3, 3")
    i("s_lshr_b32 s13, s14, 1")
    i("s_lshl_b32 s13, s13, 5")
    i("s_add_u32 s15, s15, s13")
    i("s_and_b32 s13, s14, 1")
    i("s_add_u32 s15, s15, s13")
    i("v_lshlrev_b32 v6, 1, v2")
    i("v_add_u32 v6, s15, v6")
    slow2 = []
    def wait_for(tag):
        ns = []
        for q in (vqa, vqb):
            idxs = [n for n, x in enumerate(q) if x == tag]
            if idxs: ns.append(len(q) - 1 - max(idxs))
        i("s_waitcnt vmcnt(%d)" % min(63, min(ns)))
    for st in range(7):
        if st == 6:
            i("s_cmp_eq_u32 s4, 3")
            i("s_cbranch_scc1 L_C_RED")
            wait_for(("w", 6, 4))
        if st + 2 <= 5 and st + 2 >= max(2, W2PRE): w2l(st + 2, st + 2)
        sl = st if st < 6 else 0
        for lt in range(4):
            hr = R2 + 16 * (st & 1) + 4 * lt
            if (st, lt) == (0, 0):
                wait_for(("h", st, lt))
                i("v_max_u32 v5, v%d, v%d" % (hr, hr + 2))
                i("v_cmp_eq_u32 vcc, -1, v5")
            bad, back = uid("GBAD"), uid("GOK")
            i("s_cbranch_vccnz %s" % bad)
            lab(back)
            later = [(x[1], x[2]) for x in vqb if x[0] == "h" and (x[1], x[2]) > (st, lt)]
            slow2.append((bad, back, st, lt, later))
            if st == 0 and lt == 0: stamp(2)
            nx = (st, lt + 1) if lt < 3 else (st + 1, 0)
            for dl in range(5):
                a = ACC2 + 16 * dl + 4 * lt
                w = W2R + 20 * sl + 4 * dl
                h = R2 + 16 * (st & 1) + 4 * lt
                i("v_mfma_f32_16x16x32_bf16 v[%d:%d], v[%d:%d], v[%d:%d], v[%d:%d]" % (a, a + 3, w, w + 3, h, h + 3, a, a + 3))
                if dl == 1 and nx[0] < 7:
                    nr = R2 + 16 * (nx[0] & 1) + 4 * nx[1]
                    wait_for(("h",) + nx)
                    i("v_max_u32 v5, v%d, v%d" % (nr, nr + 2))
                    i("v_cmp_eq_u32 vcc, -1, v5")
            if st + 2 < 7: h1l(st + 2, lt)
        if st == 0:
            w2l(6, 0, both=True)
        if st == 1:
            for j in range(3):
                i("s_lshr_b32 s46, s3, 2")
                i("s_add_u32 s46, s46, %d" % (2 * j))
                i("s_min_u32 s46, s46, 4")
                i("s_add_u32 s46, s46, s7")
                i("s_lshl_b32 s13, s46, 16")
                i("s_add_u32 s13, s13, 0x%x" % WS_H)
                i("v_lshlrev_b32 v7, 14, v3")
                i("v_lshl_add_u32 v7, v6, 3, v7")
                i("buffer_load_dwordx2 v[%d:%d], v7, s[8:11], s13 offen sc1" % (240 + 2 * j, 241 + 2 * j))
                i("s_lshl_b32 s13, s46, 5")
                i("v_lshlrev_b32 v7, 3, v3")
                i("buffer_load_dwordx2 v[%d:%d], v7, s[56:59], s13 offen" % (246 + 2 * j, 247 + 2 * j))
                for q in (vqa, vqb): q.append(("e", j, 0)); q.append(("e", j, 1))
    lab("L_C_RED")
    stamp(11)
    i("s_waitcnt vmcnt(0)")
    i("s_barrier")
    i("s_lshl_b32 s13, s3, 10")
    i("v_add_u32 v5, s13, v4")
    i("v_add_u32 v7, 65536, v5")
    i("v_add_u32 v8, 131072, v5")
    nop(4)
    for T in range(20):
        a = ACC2 + 4 * T
        base = (5, 7, 8)[T // 8]
        i("ds_write_b128 v%d, v[%d:%d] offset:%d" % (base, a, a + 3, (T % 8) * 8192))
    i("s_lshl_b32 s13, s3, 13")
    i("v_add_u32 v5, s13, v4")
    i("v_add_u32 v7, 65536, v5")
    i("v_add_u32 v8, 131072, v5")
    i("s_waitcnt lgkmcnt(0)")
    i("s_barrier")
    for j in range(3):
        if j == 2:
            i("s_cmp_ge_u32 s3, 4")
            i("s_cbranch_scc1 L_C_RD")
        for src in range(8):
            r = 120 + 32 * j + 4 * src
            i("ds_read_b128 v[%d:%d], v%d offset:%d" % (r, r + 3, (5, 7, 8)[j], src * 1024))
    lab("L_C_RD")
    i("s_waitcnt vmcnt(0)")
    for j in range(3):
        if j == 2:
            i("s_cmp_ge_u32 s3, 4")
            i("s_cbranch_scc1 L_FIN")
        i("s_waitcnt lgkmcnt(%d)" % (8 if j == 0 else 0))
        r = 120 + 32 * j
        for (x_, y_) in ((0, 4), (8, 12), (16, 20), (24, 28), (0, 8), (16, 24), (0, 16)):
            i("v_pk_add_f32 v[%d:%d], v[%d:%d], v[%d:%d]" % (r + x_, r + x_ + 1, r + x_, r + x_ + 1, r + y_, r + y_ + 1))
            i("v_pk_add_f32 v[%d:%d], v[%d:%d], v[%d:%d]" % (r + x_ + 2, r + x_ + 3, r + x_ + 2, r + x_ + 3, r + y_ + 2, r + y_ + 3))
        i("v_cvt_pk_bf16_f32 v30, v%d, v%d" % (r, r + 1))
        i("v_cvt_pk_bf16_f32 v31, v%d, v%d" % (r + 2, r + 3))
        for (src, dst) in ((30, 32), (31, 34), (246 + 2 * j, 36), (247 + 2 * j, 38)):
            i("v_lshlrev_b32 v%d, 16, v%d" % (dst, src))
            i("v_and_b32 v%d, 0xffff0000, v%d" % (dst + 1, src))
        i("v_pk_add_f32 v[32:33], v[32:33], v[36:37]")
        i("v_pk_add_f32 v[34:35], v[34:35], v[38:39]")
        i("v_cvt_pk_bf16_f32 v30, v32, v33")
        i("v_cvt_pk_bf16_f32 v31, v34, v35")
        for (src, dst) in ((30, 32), (31, 34), (240 + 2 * j, 36), (241 + 2 * j, 38)):
            i("v_lshlrev_b32 v%d, 16, v%d" % (dst, src))
            i("v_and_b32 v%d, 0xffff0000, v%d" % (dst + 1, src))
        i("v_pk_add_f32 v[32:33], v[32:33], v[36:37]")
        i("v_pk_add_f32 v[34:35], v[34:35], v[38:39]")
        i("v_cvt_pk_bf16_f32 v%d, v32, v33" % (24 + 2 * j))
        i("v_cvt_pk_bf16_f32 v%d, v34, v35" % (25 + 2 * j))
        i("s_lshr_b32 s46, s3, 2")
        i("s_add_u32 s46, s46, %d" % (2 * j))
        i("s_add_u32 s46, s46, s7")
        i("s_lshl_b32 s46, s46, 5")
        i("v_mul_u32_u24 v9, 1280, v6")
        i("v_lshl_add_u32 v9, v3, 3, v9")
        i("buffer_store_dwordx2 v[%d:%d], v9, s[48:51], s46 offen%s" % (24 + 2 * j, 25 + 2 * j, os.environ.get("OUTF", "")))
    lab("L_FIN")
    stamp_flush()
    lab("L_END")
    i("s_endpgm")
    for (bad, back, st, lt, later) in slow2:
        r = R2 + 16 * (st & 1) + 4 * lt
        lab(bad)
        i("s_mov_b32 s47, 0")
        top = uid("GT")
        lab(top)
        i("s_sleep 1")
        i("s_add_u32 s13, s5, %d" % (st * 131072))
        i("buffer_load_dwordx4 v[%d:%d], v4, s[8:11], s13 offen offset:%d sc1" % (r, r + 3, 1024 * lt))
        i("s_waitcnt vmcnt(0)")
        i("v_max_u32 v5, v%d, v%d" % (r, r + 2))
        i("v_cmp_eq_u32 vcc, -1, v5")
        okl = uid("GR")
        i("s_cbranch_vccz %s" % okl)
        i("s_add_u32 s47, s47, 1")
        i("s_cmp_lt_u32 s47, %d" % SPIN_LIMIT)
        i("s_cbranch_scc1 %s" % top)
        lab(okl)
        for (s2_, l2_) in later:
            r2 = R2 + 16 * (s2_ & 1) + 4 * l2_
            i("s_add_u32 s13, s5, %d" % (s2_ * 131072))
            i("buffer_load_dwordx4 v[%d:%d], v4, s[8:11], s13 offen offset:%d sc1" % (r2, r2 + 3, 1024 * l2_))
        i("s_waitcnt vmcnt(0)")
        i("s_branch %s" % back)
    lab("L_CODE_END")
    e('.section .rodata,"a"')
    e(".p2align 6")
    e(".amdhsa_kernel %s" % KNAME)
    e("  .amdhsa_next_free_vgpr 256")
    e("  .amdhsa_next_free_sgpr 102")
    e("  .amdhsa_accum_offset 256")
    e("  .amdhsa_group_segment_fixed_size 0")
    e("  .amdhsa_kernarg_size 120")
    e("  .amdhsa_user_sgpr_count 2")
    e("  .amdhsa_user_sgpr_kernarg_segment_ptr 1")
    e("  .amdhsa_system_sgpr_workgroup_id_x 1")
    e(".end_amdhsa_kernel")

if __name__ == "__main__":
    main()
    path = sys.argv[1] if len(sys.argv) > 1 else "cdna_kernels/%s.s" % NAME
    open(path, "w").write("\n".join(x for x in out if x is not None) + "\n")
    print("wrote", path, len(out), "lines")
```

```python
import sys, os, struct
NAME = "sequential_preLN__ssm_conv_s4d__dense_activation_squared_relu__prompt"
KNAME = NAME + "_kernel"
L, D, NS, F = 2048, 640, 128, 1728
STAMPS = os.environ.get("STAMPS", "0") == "1"
STOP = os.environ.get("STOP", "")

WS_ST1 = 0x000000
WS_CS  = 0x008000
WS_ST2 = 0x010000
WS_FL  = 0x020000
WS_H   = 0x100000
WS_H1  = 0x400000
WS_W1P = 0xC00000
WS_W2P = 0x1000000
WS_STAMP = 0x8000000
WS_SIZE = 0x10000000
FL_CP, FL_CP2, FL_HINT, FL_SIZE = 0, 1024, 2048, 3072
DBG_C1, DBG_CW, DBG_CP, DBG_CP2, DBG_GO1, DBG_GOW, DBG_GOP, DBG_GOP2 = 0, 4, 8, 12, 128, 132, 136, 140
XROW = 544
FAC_CH = 63 * XROW
KCH, KCP = FAC_CH, 4160
UL = 137216
XL = 50944
TL = 142336
MISC = 158720
M_CH, M_ST, M_S1, M_XT, M_TR, M_HS, M_EP, M_GP, M_MD = 0, 32, 64, 68, 72, 76, 80, 92, 96
M_STAT, M_CS, M_B1 = 256, 1280, 1792
LDS_TOTAL = 163840

out = []
def e(s=""): out.append(s)
def lab(s): out.append(s + ":")
def i(s): out.append("    " + s)
def f2u(f): return struct.unpack("<I", struct.pack("<f", f))[0]
def nop(n):
    while n > 0:
        k = min(n, 16); i("s_nop %d" % (k - 1)); n -= k
def srd(dst, ptr_lo, nbytes):
    i("s_mov_b32 s%d, s%d" % (dst, ptr_lo))
    i("s_mov_b32 s%d, s%d" % (dst + 1, ptr_lo + 1))
    i("s_mov_b32 s%d, 0x%x" % (dst + 2, nbytes))
    i("s_mov_b32 s%d, 0x00020000" % (dst + 3))
def round_bf16(dst, src):
    i("v_cvt_pk_bf16_f32 v%d, v%d, v%d" % (dst, src, src))
    i("v_lshlrev_b32 v%d, 16, v%d" % (dst, dst))
_uid = [0]
def uid(p):
    _uid[0] += 1
    return "%s_%d" % (p, _uid[0])
def stamp(k):
    if STAMPS:
        assert k < 15
        i("s_memrealtime s[%d:%d]" % (70 + 2 * k, 71 + 2 * k))
def stamp_flush():
    if not STAMPS: return
    i("s_memrealtime s[100:101]")
    i("s_waitcnt lgkmcnt(0)")
    i("s_mov_b64 exec, 1")
    i("s_lshl_b32 s46, s2, 3")
    i("s_add_u32 s46, s46, s3")
    i("s_lshl_b32 s46, s46, 7")
    i("s_add_u32 s46, s46, 0x%x" % WS_STAMP)
    i("v_mov_b32 v0, 0")
    for k in range(16):
        i("v_mov_b32 v2, s%d" % (70 + 2 * k))
        i("v_mov_b32 v3, s%d" % (71 + 2 * k))
        i("buffer_store_dwordx2 v[2:3], v0, s[8:11], s46 offen offset:%d" % (8 * k))
        i("s_nop 1")

LOG2E, NLOG2E, INV2PI = 0x3fb8aa3b, 0xbfb8aa3b, "0.15915494"
SEL_LO, SEL_HI = 0x05040100, 0x07060302
INV640, EPS = 0x3acccccd, 0x3727c5ac
SPIN_LIMIT = 1 << 18

def poll(srd_reg, soff, nlanes, ndw, vt, spread=False, sleep=2):
    top, done = uid("POLL"), uid("POLLD")
    i("s_mov_b64 s[68:69], exec")
    m = (1 << nlanes) - 1
    i("s_mov_b32 exec_lo, 0x%x" % (m & 0xffffffff))
    i("s_mov_b32 exec_hi, 0x%x" % (m >> 32))
    if spread:
        i("v_lshrrev_b32 v%d, 1, v1" % (vt + 4))
        i("v_lshlrev_b32 v%d, 7, v%d" % (vt + 4, vt + 4))
        i("v_and_b32 v%d, 1, v1" % (vt + 5))
        i("v_lshl_add_u32 v%d, v%d, 4, v%d" % (vt + 4, vt + 5, vt + 4))
    else:
        i("v_lshlrev_b32 v%d, %d, v1" % (vt + 4, {1: 2, 4: 4}[ndw]))
    i("s_mov_b32 s47, 0")
    lab(top)
    if ndw == 1:
        i("buffer_load_dword v%d, v%d, s[%d:%d], %s offen sc1" % (vt, vt + 4, srd_reg, srd_reg + 3, soff))
        i("s_waitcnt vmcnt(0)")
    else:
        i("buffer_load_dwordx4 v[%d:%d], v%d, s[%d:%d], %s offen sc1" % (vt, vt + 3, vt + 4, srd_reg, srd_reg + 3, soff))
        i("s_waitcnt vmcnt(0)")
        i("v_min_u32 v%d, v%d, v%d" % (vt, vt, vt + 1))
        i("v_min_u32 v%d, v%d, v%d" % (vt + 2, vt + 2, vt + 3))
        i("v_min_u32 v%d, v%d, v%d" % (vt, vt, vt + 2))
    i("v_cmp_ne_u32 vcc, 0, v%d" % vt)
    i("s_cmp_eq_u64 vcc, exec")
    i("s_cbranch_scc1 %s" % done)
    i("s_sleep %d" % sleep)
    i("s_add_u32 s47, s47, 1")
    i("s_cmp_lt_u32 s47, %d" % SPIN_LIMIT)
    i("s_cbranch_scc1 %s" % top)
    lab(done)
    i("s_mov_b64 exec, s[68:69]")

def set_flag(srd_reg, soff, va=4):
    i("s_mov_b64 s[68:69], exec")
    i("s_mov_b64 exec, 1")
    i("v_mov_b32 v%d, 0" % va)
    i("v_mov_b32 v%d, 1" % (va + 1))
    i("buffer_store_dword v%d, v%d, s[%d:%d], %s offen sc1" % (va + 1, va, srd_reg, srd_reg + 3, soff))
    i("s_mov_b64 exec, s[68:69]")

def arrive_last(cnt_off, total, go_off):
    lbl = uid("ARR")
    i("s_mov_b64 s[68:69], exec")
    i("s_mov_b64 exec, 1")
    i("v_mov_b32 v4, %d" % cnt_off)
    i("v_mov_b32 v5, 1")
    i("buffer_atomic_add v5, v4, s[56:59], 0 offen sc0 sc1")
    i("s_waitcnt vmcnt(0)")
    i("v_readfirstlane_b32 s13, v5")
    i("s_mov_b64 exec, s[68:69]")
    i("s_cmp_lg_u32 s13, %d" % (total - 1))
    i("s_cbranch_scc1 %s" % lbl)
    i("s_mov_b32 s13, %d" % go_off)
    set_flag(56, "s13")
    lab(lbl)

def arrive_shard(floff, va=4):
    i("s_mov_b64 s[68:69], exec")
    i("s_mov_b64 exec, 1")
    i("s_lshl_b32 s13, s64, 7")
    i("s_add_u32 s13, s13, 0x%x" % (WS_FL + floff))
    i("v_mov_b32 v%d, 0" % va)
    i("v_mov_b32 v%d, 1" % (va + 1))
    i("buffer_atomic_add v%d, v%d, s[8:11], s13 offen sc1" % (va + 1, va))
    i("s_mov_b64 exec, s[68:69]")
def poll_shards(floff, vt, sleep=4):
    top, done = uid("PS"), uid("PSD")
    i("s_mov_b64 s[68:69], exec")
    i("s_mov_b64 exec, 0xff")
    i("v_lshlrev_b32 v%d, 7, v1" % (vt + 1))
    i("s_mov_b32 s46, 0x%x" % (WS_FL + floff))
    i("s_mov_b32 s47, 0")
    lab(top)
    i("buffer_load_dword v%d, v%d, s[8:11], s46 offen sc1" % (vt, vt + 1))
    i("s_waitcnt vmcnt(0)")
    i("v_cmp_le_u32 vcc, 32, v%d" % vt)
    i("s_cmp_eq_u64 vcc, exec")
    i("s_cbranch_scc1 %s" % done)
    i("s_sleep %d" % sleep)
    i("s_add_u32 s47, s47, 1")
    i("s_cmp_lt_u32 s47, %d" % SPIN_LIMIT)
    i("s_cbranch_scc1 %s" % top)
    lab(done)
    i("s_mov_b64 exec, s[68:69]")
def h1_poison(v0=4):
    skip = uid("HPS")
    i("v_lshlrev_b32 v%d, 4, v1" % (v0 + 4))
    for r in range(4): i("v_mov_b32 v%d, -1" % (v0 + r))
    i("s_lshl_b32 s27, s66, 3")
    i("s_and_b32 s28, s3, 3")
    i("s_lshl_b32 s28, s28, 1")
    i("s_add_u32 s27, s27, s28")
    i("s_lshl_b32 s27, s27, 10")
    i("s_add_u32 s27, s27, 0x%x" % WS_H1)
    i("s_mul_i32 s28, s67, 7")
    i("s_lshr_b32 s28, s28, 1")
    i("s_lshl_b32 s28, s28, 17")
    i("s_add_u32 s29, s27, s28")
    i("s_bitcmp1_b32 s67, 0")
    i("s_cbranch_scc1 %s" % skip)
    for par in range(2): i("buffer_store_dwordx4 v[%d:%d], v%d, s[8:11], s29 offen offset:%d sc1" % (v0, v0 + 3, v0 + 4, 1024 * par))
    lab(skip)
    for b_ in range(1, 4):
        i("s_add_u32 s29, s29, 131072")
        for par in range(2): i("buffer_store_dwordx4 v[%d:%d], v%d, s[8:11], s29 offen offset:%d sc1" % (v0, v0 + 3, v0 + 4, 1024 * par))
def st2_poison():
    i("s_mov_b64 s[68:69], exec")
    i("s_mov_b64 exec, 0xf")
    for r in range(4): i("v_mov_b32 v%d, -1" % (4 + r))
    i("v_lshlrev_b32 v8, 4, v1")
    i("s_lshl_b32 s13, s66, 10")
    i("s_lshl_b32 s46, s67, 6")
    i("s_add_u32 s13, s13, s46")
    i("s_add_u32 s13, s13, 0x%x" % WS_ST2)
    i("buffer_store_dwordx4 v[4:7], v8, s[8:11], s13 offen sc1")
    i("s_mov_b64 exec, s[68:69]")
    i("s_nop 1")

def lds_wait(off, target, vt=4, sleep=1):
    top, d = uid("LW"), uid("LWD")
    i("v_mov_b32 v%d, %d" % (vt, MISC + off))
    lab(top)
    i("ds_read_b32 v%d, v%d" % (vt + 1, vt))
    i("s_waitcnt lgkmcnt(0)")
    i("v_readfirstlane_b32 s13, v%d" % (vt + 1))
    i("s_cmp_ge_u32 s13, %d" % target)
    i("s_cbranch_scc1 %s" % d)
    i("s_sleep %d" % sleep)
    i("s_branch %s" % top)
    lab(d)

def lds_add(off, va=4, rtn=False):
    i("s_mov_b64 exec, 1")
    i("v_mov_b32 v%d, %d" % (va, MISC + off))
    i("v_mov_b32 v%d, 1" % (va + 1))
    if rtn:
        i("ds_add_rtn_u32 v%d, v%d, v%d" % (va + 1, va, va + 1))
        i("s_waitcnt lgkmcnt(0)")
        i("v_readfirstlane_b32 s13, v%d" % (va + 1))
    else:
        i("ds_add_u32 v%d, v%d" % (va, va + 1))
    i("s_mov_b64 exec, -1")

def ln_finish(m, v, mr):
    i("v_mul_f32 v%d, 0x%x, v%d" % (m, INV640, m))
    i("v_mul_f32 v%d, 0x%x, v%d" % (v, INV640, v))
    i("v_fma_f32 v%d, -v%d, v%d, v%d" % (v, m, m, v))
    i("v_max_f32 v%d, 0, v%d" % (v, v))
    round_bf16(m, m)
    round_bf16(v, v)
    i("v_add_f32 v%d, 0x%x, v%d" % (v, EPS, v))
    round_bf16(v, v)
    i("v_sqrt_f32 v%d, v%d" % (v, v))
    nop(1)
    round_bf16(v, v)
    i("v_rcp_f32 v%d, v%d" % (v, v))
    nop(1)
    if mr: i("v_mul_f32 v%d, v%d, v%d" % (m, m, v))

W1S, W2R = 8, 120
W1V = 240
def w1_prep():
    i("s_mul_i32 s46, s67, 224")
    i("s_mov_b32 s47, %d" % ((1 << 20) // 14 + 1))
    for k in range(7):
        i("v_add_u32 v4, %d, v1" % (64 * k))
        i("v_mul_lo_u32 v5, v4, s47")
        i("v_lshrrev_b32 v5, 20, v5")
        i("v_mul_u32_u24 v6, 14, v5")
        i("v_sub_u32 v6, v4, v6")
        i("v_mul_u32_u24 v5, 3456, v5")
        i("v_lshl_add_u32 v5, v6, 4, v5")
        i("v_add_u32 v%d, s46, v5" % (W1V + k))
def w1_load(cr):
    for (c, rb_) in cr:
        i("s_and_b32 s46, s3, 3")
        i("s_add_u32 s46, s46, %d" % (4 * c))
        i("s_mul_i32 s46, s46, %d" % (32 * 3456))
        for t in range(7):
            r = rb_ + 4 * t
            i("buffer_load_dwordx4 v[%d:%d], v%d, s[48:51], s46 offen" % (r, r + 3, W1V + t))
W1MAP = [(0, 24), (1, 52), (2, 80), (3, 108), (4, 200)]
def w1_dma(chunks):
    for c in chunks:
        i("s_and_b32 s46, s3, 3")
        i("s_add_u32 s46, s46, %d" % (4 * c))
        i("s_mul_i32 s47, s46, %d" % (32 * 3456))
        i("s_mul_i32 s46, s46, 7168")
        for t in range(7):
            i("s_add_u32 m0, s46, %d" % (1024 * t))
            i("s_nop 0")
            i("buffer_load_dwordx4 v%d, s[48:51], s47 offen lds" % (W1V + t))
def w1_write(cr):
    i("v_lshlrev_b32 v4, 4, v1")
    for (c, rb_) in cr:
        i("s_and_b32 s46, s3, 3")
        i("s_add_u32 s46, s46, %d" % (4 * c))
        i("s_mul_i32 s46, s46, 7168")
        i("v_add_u32 v5, s46, v4")
        for t in range(7):
            r = rb_ + 4 * t
            i("ds_write_b128 v5, v[%d:%d] offset:%d" % (r, r + 3, 1024 * t))
def w2_load(steps, slots):
    for st, sl in zip(steps, slots):
        i("s_add_u32 s46, s61, %d" % (st * 5120))
        for dl in range(5):
            r = W2R + 20 * sl + 4 * dl
            if dl < 4:
                i("buffer_load_dwordx4 v[%d:%d], v4, s[8:11], s46 offen offset:%d sc1" % (r, r + 3, 1024 * dl))
            else:
                i("s_add_u32 s46, s46, 4096")
                i("buffer_load_dwordx4 v[%d:%d], v4, s[8:11], s46 offen sc1" % (r, r + 3))

def main():
    ref = open("cdna_kernels/%s.s.ref" % NAME).read().splitlines()
    for ln in ref:
        if ln.startswith("; Override"): break
        e(ln)
    e("; @launch grid=(256,1,1) block=(512,1,1) lds=%d" % LDS_TOTAL)
    e('.amdgcn_target "amdgcn-amd-amdhsa--gfx950"')
    e(".text")
    e(".globl %s" % KNAME)
    e(".p2align 8")
    e(".type %s,@function" % KNAME)
    lab(KNAME)
    i("s_cmp_ge_u32 s2, 256")
    i("s_cbranch_scc1 L_END")
    stamp(0)
    i("s_load_dwordx16 s[16:31], s[0:1], 0")
    i("s_load_dwordx8 s[36:43], s[0:1], 64")
    i("s_load_dwordx2 s[44:45], s[0:1], 96")
    i("s_load_dwordx4 s[32:35], s[0:1], 104")
    PFS = os.environ.get("PFS", "8")
    i("s_lshr_b32 s65, s2, 3")
    i("s_sub_u32 s46, s65, %s" % PFS)
    i("s_cmp_ge_u32 s46, 2")
    i("s_cbranch_scc1 L_NOPF")
    i("s_getpc_b64 s[46:47]")
    lab("L_PC")
    i("s_sub_u32 s46, s46, L_PC-%s" % KNAME)
    i("s_subb_u32 s47, s47, 0")
    i("v_lshlrev_b32 v4, 7, v0")
    i("v_cmp_gt_u32 vcc, L_CODE_END-%s, v4" % KNAME)
    i("s_and_saveexec_b64 s[68:69], vcc")
    i("s_cbranch_execz L_NOPF2")
    i("global_load_dword v253, v4, s[46:47]")
    lab("L_NOPF2")
    i("s_mov_b64 exec, s[68:69]")
    lab("L_NOPF")
    i("v_lshrrev_b32 v4, 6, v0")
    i("v_and_b32 v1, 63, v0")
    i("v_and_b32 v2, 15, v1")
    i("v_readfirstlane_b32 s3, v4")
    i("v_lshrrev_b32 v3, 4, v1")
    for r in (5, 6, 7) + tuple(range(240, 247)): i("v_mov_b32 v%d, 0" % r)
    i("s_and_b32 s64, s2, 7")
    i("s_lshr_b32 s65, s2, 3")
    i("s_lshr_b32 s66, s64, 1")
    i("s_lshl_b32 s66, s66, 2")
    i("s_lshr_b32 s46, s65, 3")
    i("s_add_u32 s66, s66, s46")
    i("s_and_b32 s67, s64, 1")
    i("s_lshl_b32 s67, s67, 3")
    i("s_and_b32 s46, s65, 7")
    i("s_add_u32 s67, s67, s46")
    i("s_and_b32 s46, s64, 1")
    i("s_lshl_b32 s46, s46, 2")
    i("s_and_b32 s47, s65, 3")
    i("s_add_u32 s60, s46, s47")
    i("s_mul_i32 s61, s60, 54")
    i("s_and_b32 s46, s3, 3")
    i("s_mul_i32 s46, s46, 7")
    i("s_add_u32 s61, s61, s46")
    i("s_lshr_b32 s46, s3, 2")
    i("s_mul_i32 s46, s46, 27")
    i("s_add_u32 s61, s61, s46")
    i("s_mul_i32 s61, s61, 5120")
    i("s_add_u32 s61, s61, 0x%x" % WS_W2P)
    def setup():
        srd(8, 34, WS_SIZE)
        srd(48, 36, D * F * 2)
        srd(52, 40, F * D * 2)
        srd(56, 32, 256)
        lb = uid("NOST2")
        i("s_cmp_lg_u32 s3, 7")
        i("s_cbranch_scc1 %s" % lb)
        st2_poison()
        lab(lb)
    i("s_cmp_lt_u32 s65, 8")
    i("s_cbranch_scc1 L_STATS")
    i("s_cmp_lt_u32 s65, 28")
    i("s_cbranch_scc1 L_CONV")
    i("s_branch L_COLSUM")
    def rp_ids():
        i("s_sub_u32 s46, s65, 20")
        i("s_cmp_lt_u32 s65, 8")
        i("s_cselect_b32 s46, s65, s46")
        i("s_lshl_b32 s46, s46, 3")
        i("s_add_u32 s59x, s46, s64".replace("s59x", "s46"))
        i("s_mov_b32 s62, s46")
        i("s_mul_i32 s63, s3, 96")
        i("s_add_u32 s63, s63, s46")
    def rp_block():
        done = uid("RPD")
        i("s_cmp_ge_u32 s63, 432")
        i("s_cbranch_scc1 %s" % done)
        i("s_mul_i32 s14, s3, 5120")
        i("s_add_u32 s14, s14, 114688")
        i("s_mul_i32 s13, s63, 19419")
        i("s_lshr_b32 s13, s13, 20")
        i("s_mul_i32 s15, s13, 54")
        i("s_sub_u32 s15, s63, s15")
        i("s_mul_i32 s4, s15, %d" % (32 * 1280))
        i("s_mul_i32 s5, s13, 160")
        i("s_add_u32 s4, s4, s5")
        i("s_mov_b32 s47, %d" % ((1 << 20) // 10 + 1))
        for k in range(5):
            i("v_add_u32 v8, %d, v1" % (64 * k))
            i("v_mul_lo_u32 v9, v8, s47")
            i("v_lshrrev_b32 v9, 20, v9")
            i("v_mul_u32_u24 v10, 10, v9")
            i("v_sub_u32 v10, v8, v10")
            i("v_mul_u32_u24 v9, 1280, v9")
            i("v_lshl_add_u32 v9, v10, 4, v9")
            i("s_add_u32 m0, s14, %d" % (1024 * k))
            i("s_nop 0")
            i("buffer_load_dwordx4 v9, s[52:55], s4 offen lds")
        i("v_lshrrev_b32 v5, 2, v2")
        i("v_lshl_add_u32 v5, v3, 2, v5")
        i("v_and_b32 v6, 3, v2")
        i("v_lshlrev_b32 v6, 3, v6")
        i("v_mul_u32_u24 v5, 160, v5")
        i("v_add3_u32 v5, v5, v6, s14")
        i("v_lshlrev_b32 v7, 4, v1")
        i("s_mul_i32 s4, s63, 5120")
        i("s_add_u32 s4, s4, 0x%x" % WS_W2P)
        i("s_waitcnt vmcnt(0)")
        for t in range(5):
            i("ds_read_b64_tr_b16 v[%d:%d], v5 offset:%d" % (64 + 4 * t, 65 + 4 * t, 32 * t))
            i("ds_read_b64_tr_b16 v[%d:%d], v5 offset:%d" % (66 + 4 * t, 67 + 4 * t, 32 * t + 2560))
        for t in range(5):
            i("s_waitcnt lgkmcnt(%d)" % (8 - 2 * t))
            if t == 4: i("s_add_u32 s4, s4, 4096")
            i("buffer_store_dwordx4 v[%d:%d], v7, s[8:11], s4 offen offset:%d sc1" % (64 + 4 * t, 67 + 4 * t, 1024 * (t % 4)))
        lab(done)

    lab("L_STATS")
    i("s_lshl_b32 s46, s65, 3")
    i("s_add_u32 s12, s46, s64")
    i("s_lshl_b32 s13, s12, 5")
    i("s_lshl_b32 s14, s3, 2")
    i("s_add_u32 s13, s13, s14")
    i("v_add_u32 v4, s13, v3")
    i("v_mul_u32_u24 v5, 1280, v4")
    i("v_lshl_add_u32 v5, v2, 4, v5")
    i("s_waitcnt lgkmcnt(0)")
    for k in range(5):
        i("global_load_dwordx4 v[%d:%d], v5, s[16:17] offset:%d" % (32 + 4 * k, 35 + 4 * k, 256 * k))
    i("v_mov_b32 v250, v4")
    setup()
    i("v_mov_b32 v4, v250")
    i("s_cmp_lg_u32 s12, 0")
    i("s_cbranch_scc1 L_NOZ")
    i("s_cmp_lg_u32 s3, 7")
    i("s_cbranch_scc1 L_NOZ")
    for r in range(4): i("v_mov_b32 v%d, 0" % (60 + r))
    i("v_lshlrev_b32 v6, 4, v1")
    i("s_mov_b32 s14, 0x%x" % WS_FL)
    for k in range(FL_SIZE // 1024):
        i("buffer_store_dwordx4 v[60:63], v6, s[8:11], s14 offen offset:%d sc1" % (1024 * k))
    lab("L_NOZ")
    i("v_mov_b32 v7, 0x3f803f80")
    for r in range(8, 16): i("v_mov_b32 v%d, 0" % r)
    i("s_waitcnt vmcnt(0)")
    for k in range(20):
        i("v_dot2_f32_bf16 v%d, v%d, v7, v%d" % (8 + (k & 3), 32 + k, 8 + (k & 3)))
        i("v_dot2_f32_bf16 v%d, v%d, v%d, v%d" % (12 + (k & 3), 32 + k, 32 + k, 12 + (k & 3)))
    nop(3)
    i("v_add_f32 v8, v8, v9")
    i("v_add_f32 v10, v10, v11")
    i("v_add_f32 v12, v12, v13")
    i("v_add_f32 v14, v14, v15")
    i("v_add_f32 v8, v8, v10")
    i("v_add_f32 v9, v12, v14")
    for r in (8, 4, 2, 1):
        nop(2)
        i("v_add_f32_dpp v8, v8, v8 row_ror:%d row_mask:0xf bank_mask:0xf" % r)
        i("v_add_f32_dpp v9, v9, v9 row_ror:%d row_mask:0xf bank_mask:0xf" % r)
    ln_finish(8, 9, False)
    i("v_lshlrev_b32 v4, 3, v4")
    i("v_cmp_eq_u32 vcc, 0, v2")
    i("s_and_saveexec_b64 s[68:69], vcc")
    i("s_mov_b32 s14, 0x%x" % WS_ST1)
    i("buffer_store_dwordx2 v[8:9], v4, s[8:11], s14 offen sc1")
    i("s_mov_b64 exec, s[68:69]")
    i("s_waitcnt vmcnt(0)")
    i("s_barrier")
    stamp(1)
    i("s_cmp_lg_u32 s3, 0")
    i("s_cbranch_scc1 L_NC1")
    arrive_last(DBG_C1, 64, DBG_GO1)
    i("s_branch L_NC1")
    lab("L_COLSUM")
    i("s_waitcnt lgkmcnt(0)")
    setup()
    stamp(1)
    lab("L_NC1")
    rp_ids()
    i("s_cmp_lg_u32 s3, 7")
    i("s_cbranch_scc1 L_NC1A")
    i("v_lshlrev_b32 v8, 2, v1")
    i("v_add_u32 v8, %d, v8" % MISC)
    i("v_mov_b32 v9, 0")
    i("ds_write_b32 v8, v9")
    i("s_waitcnt lgkmcnt(0)")
    lab("L_NC1A")
    i("s_barrier")
    i("s_cmp_ge_u32 s3, 4")
    i("s_cbranch_scc1 L_NC_LD")
    rp_block()
    i("s_cmp_ge_u32 s62, 12")
    i("s_cbranch_scc1 L_NC2")
    i("s_lshl_b32 s63, s62, 2")
    i("s_add_u32 s63, s63, s3")
    i("s_add_u32 s63, s63, 384")
    i("s_waitcnt lgkmcnt(0)")
    rp_block()
    lab("L_NC2")
    i("s_waitcnt vmcnt(0)")
    stamp(4)
    lds_add(M_CH + 8, 4, rtn=True)
    i("s_cmp_lg_u32 s13, 3")
    i("s_cbranch_scc1 L_NC3")
    arrive_last(DBG_CW, 96, DBG_GOW)
    lab("L_NC3")
    i("s_cmp_lt_u32 s65, 28")
    i("s_cbranch_scc1 L_NC5")
    i("s_sub_u32 s46, s65, 28")
    i("s_lshl_b32 s46, s46, 3")
    i("s_add_u32 s12, s46, s64")
    i("s_cmp_ge_u32 s12, 27")
    i("s_cbranch_scc1 L_NC5")
    i("v_lshrrev_b32 v4, 3, v1")
    i("s_lshl_b32 s13, s3, 3")
    i("v_add_u32 v4, s13, v4")
    i("v_mul_u32_u24 v4, 3456, v4")
    i("v_and_b32 v5, 7, v1")
    i("v_lshl_add_u32 v4, v5, 4, v4")
    i("s_lshl_b32 s13, s12, 7")
    for it in range(20):
        i("buffer_load_dwordx4 v[%d:%d], v4, s[48:51], s13 offen" % (64 + 4 * it, 67 + 4 * it))
        i("s_add_u32 s13, s13, %d" % (32 * 3456))
    for r in range(8): i("v_mov_b32 v%d, 0" % (8 + r))
    for it in range(20):
        i("s_waitcnt vmcnt(%d)" % (19 - it))
        for dw in range(4):
            x = 64 + 4 * it + dw
            i("v_lshlrev_b32 v16, 16, v%d" % x)
            i("v_and_b32 v17, 0xffff0000, v%d" % x)
            i("v_pk_add_f32 v[%d:%d], v[%d:%d], v[16:17]" % (8 + 2 * dw, 9 + 2 * dw, 8 + 2 * dw, 9 + 2 * dw))
    nop(1)
    for r in range(8):
        i("v_add_f32_dpp v%d, v%d, v%d row_ror:8 row_mask:0xf bank_mask:0xf" % (8 + r, 8 + r, 8 + r))
    for op in ("v_permlane16_swap_b32", "v_permlane32_swap_b32"):
        for r in range(8): i("v_mov_b32 v%d, v%d" % (16 + r, 8 + r))
        nop(1)
        for r in range(8): i("%s v%d, v%d" % (op, 16 + r, 8 + r))
        nop(1)
        for r in range(8): i("v_add_f32 v%d, v%d, v%d" % (8 + r, 8 + r, 16 + r))
    i("v_lshlrev_b32 v4, 5, v1")
    i("s_lshl_b32 s13, s3, 8")
    i("s_add_u32 s13, s13, %d" % (MISC + 3072))
    i("v_add_u32 v4, s13, v4")
    i("s_mov_b64 exec, 0xff")
    i("ds_write_b128 v4, v[8:11]")
    i("ds_write_b128 v4, v[12:15] offset:16")
    i("s_mov_b64 exec, -1")
    i("s_waitcnt lgkmcnt(0)")
    lds_add(M_CH + 20, 4, rtn=True)
    i("s_cmp_lg_u32 s13, 3")
    i("s_cbranch_scc1 L_NC5")
    i("v_lshlrev_b32 v4, 2, v1")
    i("v_add_u32 v5, %d, v4" % (MISC + 3072))
    for w in range(4):
        i("ds_read_b32 v%d, v5 offset:%d" % (8 + w, 256 * w))
    i("s_waitcnt lgkmcnt(0)")
    for w in range(1, 4): i("v_add_f32 v8, v8, v%d" % (8 + w))
    i("s_lshl_b32 s13, s12, 8")
    i("s_add_u32 s13, s13, 0x%x" % WS_CS)
    i("buffer_store_dword v8, v4, s[8:11], s13 offen sc1")
    i("s_waitcnt vmcnt(0)")
    lds_add(M_CH + 24, 4)
    lab("L_NC5")
    stamp(3)
    i("s_branch L_PHASE_B")
    lab("L_NC_LD")
    i("s_cmp_lg_u32 s3, 7")
    i("s_cbranch_scc1 L_NC_L3")
    i("s_mov_b32 s46, %d" % DBG_GO1)
    poll(56, "s46", 1, 1, 8, sleep=2)
    lds_add(M_S1, 8)
    arrive_shard(FL_CP)
    lab("L_NC_L3")
    w1_prep()
    if os.environ.get("XLATE"):
        lds_wait(M_S1, 1, 4, sleep=4)
        i("s_cmp_lg_u32 s3, 7")
        lq = uid("XL")
        i("s_cbranch_scc1 %s" % lq)
        i("s_lshl_b32 s46, s64, 7")
        i("s_add_u32 s46, s46, 0x%x" % (WS_FL + FL_HINT))
        poll(8, "s46", 1, 1, 8, sleep=8)
        lds_add(M_CH + 28, 8)
        lab(lq)
        lds_wait(M_CH + 28, 1, 4, sleep=8)
    w1_dma([0, 1, 2, 3])
    lds_wait(M_CH + 8, 4, 4, sleep=4)
    w1_dma([4])
    h1_poison(248)
    i("s_waitcnt vmcnt(0)")
    lds_wait(M_S1, 1, 4, sleep=4)
    i("s_cmp_lt_u32 s65, 28")
    i("s_cbranch_scc1 L_NC_L4")
    i("s_sub_u32 s46, s65, 28")
    i("s_lshl_b32 s46, s46, 3")
    i("s_add_u32 s46, s46, s64")
    i("s_cmp_ge_u32 s46, 27")
    i("s_cbranch_scc1 L_NC_L4")
    lds_wait(M_CH + 24, 1, 4, sleep=4)
    lab("L_NC_L4")
    lds_add(M_CH + 12, 248, rtn=True)
    i("s_cmp_lg_u32 s13, 3")
    i("s_cbranch_scc1 L_PHASE_B")
    arrive_shard(FL_CP2, 248)
    i("s_branch L_PHASE_B")

    lab("L_CONV")
    i("s_mul_i32 s12, s64, 20")
    i("s_add_u32 s12, s12, s65")
    i("s_sub_u32 s12, s12, 8")
    i("s_lshl_b32 s13, s12, 2")
    i("s_and_b32 s14, s3, 3")
    i("s_add_u32 s15, s13, s14")
    i("s_lshr_b32 s6, s3, 2")
    i("s_lshl_b32 s46, s6, 6")
    i("v_add_u32 v4, s46, v1")
    i("s_lshl_b32 s47, s15, 8")
    i("v_lshl_add_u32 v5, v4, 1, s47")
    i("s_lshr_b32 s46, s15, 1")
    i("s_lshl_b32 s46, s46, 2")
    i("s_waitcnt lgkmcnt(0)")
    i("global_load_ushort v10, v5, s[18:19]")
    i("global_load_ushort v11, v5, s[20:21]")
    i("global_load_ushort v12, v5, s[22:23]")
    i("global_load_ushort v13, v5, s[24:25]")
    i("s_load_dword s4, s[26:27], s46")
    i("s_load_dword s5, s[28:29], s46")
    i("v_mov_b32 v250, v4")
    setup()
    i("v_mov_b32 v4, v250")
    i("s_lshl_b32 s13, s12, 2")
    i("s_cmp_lt_u32 s3, 4")
    i("s_cbranch_scc1 L_CV_PH")
    i("v_subrev_u32 v6, 256, v0")
    i("v_mul_u32_u24 v6, %d, v6" % (8 * 1280))
    i("s_lshl_b32 s46, s13, 1")
    i("v_add_u32 v6, s46, v6")
    i("v_add_u32 v7, 5120, v6")
    for k in range(4):
        i("global_load_dwordx2 v[%d:%d], v6, s[16:17] offset:%d" % (100 + 2 * k, 101 + 2 * k, 1280 * k))
    i("s_branch L_CV_NOX")
    lab("L_CV_PH")
    for r in range(4): i("v_mov_b32 v%d, -1" % (60 + r))
    i("v_lshlrev_b32 v6, 4, v0")
    i("s_lshl_b32 s46, s12, 14")
    i("s_add_u32 s46, s46, 0x%x" % WS_H)
    for it in range(4):
        i("buffer_store_dwordx4 v[60:63], v6, s[8:11], s46 offen sc1")
        if it < 3: i("s_add_u32 s46, s46, 4096")
    lab("L_CV_NOX")
    i("s_mul_i32 s46, s14, %d" % FAC_CH)
    i("v_lshl_add_u32 v5, v4, 2, s46")
    i("s_waitcnt lgkmcnt(0)")
    i("s_and_b32 s46, s15, 1")
    i("s_lshl_b32 s46, s46, 4")
    i("s_lshr_b32 s4, s4, s46")
    i("s_lshl_b32 s4, s4, 16")
    i("s_lshr_b32 s5, s5, s46")
    i("s_lshl_b32 s5, s5, 16")
    i("v_mov_b32 v14, s4")
    i("v_mul_f32 v14, 0x%x, v14" % LOG2E)
    i("v_exp_f32 v14, v14")
    nop(1)
    round_bf16(14, 14)
    i("s_cmp_lt_u32 s3, 4")
    i("s_cbranch_scc1 L_CV_W0")
    i("s_waitcnt vmcnt(4)")
    i("s_branch L_CV_W1")
    lab("L_CV_W0")
    i("s_waitcnt vmcnt(4)")
    lab("L_CV_W1")
    stamp(1)
    if os.environ.get("TOUCH"):
        i("s_cmp_ge_u32 s3, 4")
        i("s_cbranch_scc1 L_CV_NT")
        i("s_lshl_b32 s46, s12, 2")
        i("s_add_u32 s46, s46, s3")
        i("s_cmp_lt_u32 s46, 320")
        i("s_cselect_b32 s4, s36, s40")
        i("s_cselect_b32 s6x, s37, s41".replace("s6x", "s7"))
        i("s_sub_u32 s47, s46, 320")
        i("s_cselect_b32 s46, s46, s47") if False else None
        i("s_cmp_lt_u32 s46, 320")
        i("s_cselect_b32 s46, s46, s47")
        i("s_mul_i32 s46, s46, %d" % (54 * 128))
        i("s_add_u32 s30, s4, s46")
        i("s_addc_u32 s31, s7, 0")
        i("v_lshlrev_b32 v200, 7, v1")
        i("s_mov_b32 exec_lo, -1")
        i("s_mov_b32 exec_hi, 0x3fffff")
        i("global_load_dword v201, v200, s[30:31]")
        i("s_mov_b64 exec, -1")
        lab("L_CV_NT")
    for r in (10, 11, 12, 13): i("v_lshlrev_b32 v%d, 16, v%d" % (r, r))
    i("v_mul_f32 v10, 0x%x, v10" % LOG2E)
    i("v_exp_f32 v10, v10")
    nop(1)
    round_bf16(10, 10)
    i("v_mul_f32 v10, v10, v14")
    i("v_mul_f32 v10, 0x%x, v10" % NLOG2E)
    i("v_mul_f32 v11, v11, v14")
    i("v_mul_f32 v11, %s, v11" % INV2PI)
    i("v_mul_f32 v12, v12, v14")
    i("v_mul_f32 v13, v13, v14")
    i("v_add_f32 v32, v12, v12")
    i("v_add_f32 v33, v13, v13")
    bases = [(20, 1), (22, 16), (24, 256), (26, 2), (28, 4), (30, 8)]
    for (dst, p) in bases:
        i("v_mul_f32 v%d, 0x%x, v10" % (dst, f2u(float(p))))
        i("v_mul_f32 v%d, 0x%x, v11" % (dst + 1, f2u(float(p))))
    for (dst, p) in bases:
        i("v_exp_f32 v%d, v%d" % (dst, dst))
        i("v_fract_f32 v%d, v%d" % (dst + 1, dst + 1))
    for n, (dst, p) in enumerate(bases):
        i("v_cos_f32 v%d, v%d" % (52 + n, dst + 1))
        i("v_sin_f32 v%d, v%d" % (dst + 1, dst + 1))
    nop(1)
    for n, (dst, p) in enumerate(bases):
        i("v_mul_f32 v%d, v%d, v%d" % (dst + 1, dst, dst + 1))
        i("v_mul_f32 v%d, v%d, v%d" % (dst, dst, 52 + n))
    i("v_mov_b32 v34, 1.0")
    i("v_mov_b32 v35, 0")
    i("v_mov_b32 v36, v32")
    i("v_mov_b32 v37, v33")
    chains = [dict(x=32, s=20, row=0, n=16, y=False, start=0), dict(x=34, s=22, row=47, n=16, y=True, start=0)]
    for (tau, s, row, n) in [(1, 26, 16, 9), (2, 28, 25, 5), (3, 28, 30, 5), (4, 30, 35, 3), (5, 30, 38, 3), (6, 30, 41, 3), (7, 30, 44, 3)]:
        chains.append(dict(x=36 + 2 * tau, s=s, row=row, n=n, y=False, start=tau))
    rnd = 0; pos = [0] * len(chains); tmpc = 0
    while any(pos[k] < c["n"] for k, c in enumerate(chains)):
        muls, fmas, cv, wr = [], [], [], []
        ti = 0
        if rnd < 7:
            t = 52 + 2 * ti; ti += 1
            x, d = 36 + 2 * rnd, 36 + 2 * (rnd + 1)
            muls.append("v_pk_mul_f32 v[%d:%d], v[%d:%d], v[24:25] op_sel:[0,0] op_sel_hi:[1,0]" % (t, t + 1, x, x + 1))
            fmas.append("v_pk_fma_f32 v[%d:%d], v[%d:%d], v[24:25], v[%d:%d] op_sel:[1,1,0] op_sel_hi:[0,1,1] neg_lo:[0,1,0]" % (d, d + 1, x, x + 1, t, t + 1))
        for k, c in enumerate(chains):
            if rnd >= c["start"] and pos[k] < c["n"]:
                x = c["x"]; p = 72 + (tmpc % 16); tmpc += 1
                cv.append("v_cvt_pk_bf16_f32 v%d, v%d, %sv%d" % (p, x, "" if c["y"] else "-", x + 1))
                wr.append("ds_write_b32 v5, v%d offset:%d" % (p, (c["row"] + pos[k]) * XROW))
                if pos[k] < c["n"] - 1:
                    t = 52 + 2 * ti; ti += 1
                    assert t + 1 < 72
                    muls.append("v_pk_mul_f32 v[%d:%d], v[%d:%d], v[%d:%d] op_sel:[0,0] op_sel_hi:[1,0]" % (t, t + 1, x, x + 1, c["s"], c["s"] + 1))
                    fmas.append("v_pk_fma_f32 v[%d:%d], v[%d:%d], v[%d:%d], v[%d:%d] op_sel:[1,1,0] op_sel_hi:[0,1,1] neg_lo:[0,1,0]" % (x, x + 1, x, x + 1, c["s"], c["s"] + 1, t, t + 1))
                pos[k] += 1
        if rnd in (1, 4, 7, 10):
            k = 4 + (rnd - 1) // 3
            lb = uid("XG")
            i("s_cmp_lt_u32 s3, 4")
            i("s_cbranch_scc1 %s" % lb)
            i("global_load_dwordx2 v[%d:%d], v7, s[16:17] offset:%d" % (100 + 2 * k, 101 + 2 * k, 1280 * (k & 3)))
            lab(lb)
        for s_ in cv + muls + wr + fmas: i(s_)
        rnd += 1
    stamp(2)
    i("s_cmp_lg_u32 s3, 4")
    i("s_cbranch_scc1 L_CV_B1")
    i("v_lshlrev_b32 v8, 2, v1")
    i("v_add_u32 v8, %d, v8" % MISC)
    i("v_mov_b32 v9, 0")
    i("ds_write_b32 v8, v9")
    lab("L_CV_B1")
    i("s_waitcnt lgkmcnt(0)")
    i("s_barrier")
    stamp(3)
    i("s_cmp_ge_u32 s3, 4")
    i("s_cbranch_scc1 L_CV_NORM")
    segp = {0: (0, 8, 4), 1: (16, 4, 2), 2: (25, 5, 2), 3: (35, 6, 3)}
    i("s_mul_i32 s46, s3, %d" % FAC_CH)
    i("v_lshrrev_b32 v8, 3, v2")
    i("v_bfe_u32 v9, v2, 2, 1")
    i("v_and_b32 v10, 3, v2")
    for t in range(4):
        b0, a0, c0 = segp[t]
        i("v_mul_u32_u24 v11, %d, v8" % a0)
        i("v_mul_u32_u24 v12, %d, v9" % c0)
        i("v_add3_u32 v11, v11, v12, v10")
        i("v_add_u32 v11, %d, v11" % b0)
        i("v_mul_u32_u24 v11, %d, v11" % XROW)
        i("v_lshl_add_u32 v11, v3, 4, v11")
        i("v_add_u32 v%d, s46, v11" % (16 + t))
    i("v_add_u32 v11, 47, v2")
    i("v_mul_u32_u24 v11, %d, v11" % XROW)
    i("v_lshl_add_u32 v11, v3, 4, v11")
    i("v_add_u32 v15, s46, v11")
    for mu in range(8):
        i("ds_read_b128 v[%d:%d], v15 offset:%d" % (32 + 4 * mu, 35 + 4 * mu, 64 * mu))
        i("ds_read_b128 v[%d:%d], v16 offset:%d" % (64 + 4 * mu, 67 + 4 * mu, 64 * mu))
    accs = [20, 24, 28, 192]
    for t in range(4):
        nxt = ["ds_read_b128 v[%d:%d], v%d offset:%d" % (64 + 32 * (t + 1) + 4 * mu, 67 + 32 * (t + 1) + 4 * mu, 17 + t, 64 * mu) for mu in range(8)] if t < 3 else []
        for s_ in nxt: i(s_)
        a0 = accs[t]
        for mu in range(8):
            if t == 0: i("s_waitcnt lgkmcnt(%d)" % min(15, 8 + 14 - 2 * mu))
            else: i("s_waitcnt lgkmcnt(%d)" % ((8 if nxt else 0) + 7 - mu))
            i("v_mfma_f32_16x16x32_bf16 v[%d:%d], v[%d:%d], v[%d:%d], %s" % (a0, a0 + 3, 64 + 32 * t + 4 * mu, 67 + 32 * t + 4 * mu, 32 + 4 * mu, 35 + 4 * mu, "0" if mu == 0 else "v[%d:%d]" % (a0, a0 + 3)))
    i("s_mul_i32 s46, s3, %d" % KCH)
    i("v_lshlrev_b32 v10, 5, v2")
    i("v_cmp_eq_u32 vcc, 0, v1")
    i("v_mov_b32 v11, s5")
    i("v_lshl_add_u32 v12, v3, 3, v10")
    i("v_cndmask_b32 v11, 0, v11, vcc")
    nop(4)
    i("v_add_f32 v20, v20, v11")
    i("v_cvt_pk_bf16_f32 v64, v23, v22")
    i("v_cvt_pk_bf16_f32 v65, v21, v20")
    i("v_sub_u32 v13, 4088, v12")
    i("v_add_u32 v13, s46, v13")
    i("ds_write_b64 v13, v[64:65]")
    i("v_cvt_pk_bf16_f32 v66, v26, v25")
    i("v_cvt_pk_bf16_f32 v67, v24, v24")
    i("v_sub_u32 v13, 3576, v12")
    i("v_add_u32 v13, s46, v13")
    i("ds_write_b64 v13, v[66:67]")
    i("v_cvt_pk_bf16_f32 v68, v30, v30")
    i("v_cvt_pk_bf16_f32 v69, v29, v29")
    i("v_cvt_pk_bf16_f32 v70, v29, v28")
    i("v_cvt_pk_bf16_f32 v71, v28, v28")
    i("v_lshrrev_b32 v11, 1, v3")
    i("v_lshl_add_u32 v12, v11, 9, v10")
    i("v_and_b32 v11, 1, v3")
    i("v_lshl_add_u32 v12, v11, 4, v12")
    i("v_sub_u32 v13, 3056, v12")
    i("v_add_u32 v13, s46, v13")
    i("ds_write_b128 v13, v[68:71]")
    i("v_cvt_pk_bf16_f32 v72, v194, v194")
    i("v_mov_b32 v73, v72")
    i("v_cvt_pk_bf16_f32 v74, v193, v193")
    i("v_mov_b32 v75, v74")
    i("v_mov_b32 v76, v74")
    i("v_cvt_pk_bf16_f32 v77, v193, v192")
    i("v_cvt_pk_bf16_f32 v78, v192, v192")
    i("v_mov_b32 v79, v78")
    i("v_lshl_add_u32 v12, v3, 9, v10")
    i("v_sub_u32 v13, 2016, v12")
    i("v_add_u32 v13, s46, v13")
    i("ds_write_b128 v13, v[72:75]")
    i("ds_write_b128 v13, v[76:79] offset:16")
    for r in range(4): i("v_mov_b32 v%d, 0" % (32 + r))
    i("v_bfe_u32 v8, v1, 2, 2")
    i("v_mul_u32_u24 v8, %d, v8" % KCP)
    i("v_and_b32 v9, 3, v1")
    i("v_lshl_add_u32 v8, v9, 4, v8")
    i("v_add_u32 v8, s46, v8")
    i("ds_write_b128 v8, v[32:35] offset:4096")
    i("v_lshl_add_u32 v8, v1, 3, s46")
    i("v_add_u32 v9, %d, v8" % KCP)
    i("v_add_u32 v10, %d, v8" % (2 * KCP))
    i("v_add_u32 v11, %d, v8" % (3 * KCP))
    i("s_waitcnt lgkmcnt(0)")
    for it in range(8):
        i("ds_read_b64 v[%d:%d], v8 offset:%d" % (32 + 4 * it, 33 + 4 * it, 512 * it))
        i("ds_read_b64 v[%d:%d], v8 offset:%d" % (34 + 4 * it, 35 + 4 * it, 512 * it + 8))
    for it in range(8):
        i("s_waitcnt lgkmcnt(%d)" % min(15, 14 - 2 * it + 3 * it))
        d = 32 + 4 * it; a = 64 + 4 * it
        i("v_alignbit_b32 v%d, v%d, v%d, 16" % (a, d + 1, d))
        i("v_alignbit_b32 v%d, v%d, v%d, 16" % (a + 1, d + 2, d + 1))
        i("v_alignbit_b32 v%d, v%d, v%d, 16" % (a + 2, d + 3, d + 2))
        o = 128 * it
        i("ds_write2_b32 v9, v%d, v%d offset0:%d offset1:%d" % (a, a + 1, o % 256, o % 256 + 1) if it < 2 else "ds_write2st64_b32 v9, v9, v9" ) if False else None
        if it and it % 1 == 0:
            i("v_add_u32 v9, 512, v9"); i("v_add_u32 v10, 512, v10"); i("v_add_u32 v11, 512, v11")
        i("ds_write2_b32 v9, v%d, v%d offset0:0 offset1:1" % (a, a + 1))
        i("ds_write2_b32 v10, v%d, v%d offset0:0 offset1:1" % (d + 1, d + 2))
        i("ds_write2_b32 v11, v%d, v%d offset0:0 offset1:1" % (a + 1, a + 2))
    i("s_waitcnt vmcnt(0)")
    i("s_branch L_CV_B2")
    lab("L_CV_NORM")
    if os.environ.get("NPRIO", "0") != "0": i("s_setprio %s" % os.environ.get("NPRIO"))
    w1_prep()
    i("s_cmp_lg_u32 s3, 4")
    i("s_cbranch_scc1 L_CV_NW")
    i("s_mov_b32 s46, %d" % DBG_GO1)
    poll(56, "s46", 1, 1, 8, sleep=1)
    lds_add(M_S1, 8)
    i("s_branch L_CV_NG")
    lab("L_CV_NW")
    lds_wait(M_S1, 1)
    lab("L_CV_NG")
    stamp(5)
    i("v_subrev_u32 v6, 256, v0")
    i("v_lshlrev_b32 v6, 6, v6")
    i("s_mov_b32 s46, 0x%x" % WS_ST1)
    for k in range(4):
        i("buffer_load_dwordx4 v[%d:%d], v6, s[8:11], s46 offen offset:%d sc1" % (120 + 4 * k, 123 + 4 * k, 16 * k))
    i("s_mov_b32 s46, 0x%x" % SEL_LO)
    i("s_mov_b32 s47, 0x%x" % SEL_HI)
    i("s_waitcnt vmcnt(4)")
    for ch in range(4):
        for ii in range(4):
            lo = 100 + 2 * (2 * ii) + (ch >> 1); hi = 100 + 2 * (2 * ii + 1) + (ch >> 1)
            i("v_perm_b32 v%d, v%d, v%d, s%d" % (136 + 4 * ch + ii, hi, lo, 46 + (ch & 1)))
    for k in range(8):
        for jj in range(2):
            x = 100 + 2 * k + jj
            i("v_lshlrev_b32 v%d, 16, v%d" % (168 + 4 * k + 2 * jj, x))
            i("v_and_b32 v%d, 0xffff0000, v%d" % (168 + 4 * k + 2 * jj + 1, x))
    i("s_waitcnt vmcnt(0)")
    stamp(8)
    for k in range(8):
        m = 120 + 2 * k; r = m + 1
        for jj in range(2):
            a = 168 + 4 * k + 2 * jj; b = a + 1
            i("v_sub_f32 v%d, v%d, v%d" % (a, a, m))
            i("v_sub_f32 v%d, v%d, v%d" % (b, b, m))
            i("v_cvt_pk_bf16_f32 v%d, v%d, v%d" % (8 + jj, a, b))
        for jj in range(2):
            a = 168 + 4 * k + 2 * jj; b = a + 1
            i("v_lshlrev_b32 v%d, 16, v%d" % (a, 8 + jj))
            i("v_and_b32 v%d, 0xffff0000, v%d" % (b, 8 + jj))
            i("v_mul_f32 v%d, v%d, v%d" % (a, a, r))
            i("v_mul_f32 v%d, v%d, v%d" % (b, b, r))
    for ch in range(4):
        for ii in range(4):
            i("v_cvt_pk_bf16_f32 v%d, v%d, v%d" % (152 + 4 * ch + ii, 168 + 4 * (2 * ii) + ch, 168 + 4 * (2 * ii + 1) + ch))
    i("v_subrev_u32 v6, 256, v0")
    i("v_bfe_u32 v7, v6, 2, 2")
    i("v_lshlrev_b32 v6, 6, v6")
    for ch in range(4):
        i("v_xor_b32 v8, %d, v7" % ch)
        i("v_lshl_add_u32 v%d, v8, 4, v6" % (20 + ch))
        i("v_add_u32 v9, %d, v%d" % (UL + 2048, 20 + ch))
        i("ds_write_b128 v9, v[%d:%d]" % (152 + 4 * ch, 155 + 4 * ch))
    i("v_mov_b32 v8, 0")
    i("v_mov_b32 v9, 0")
    i("v_subrev_u32 v6, 256, v0")
    i("v_lshlrev_b32 v6, 3, v6")
    i("v_add_u32 v6, %d, v6" % UL)
    i("ds_write_b64 v6, v[8:9]")
    lab("L_CV_B2")
    i("s_waitcnt lgkmcnt(0)")
    i("s_barrier")
    stamp(4)
    i("s_cmp_ge_u32 s3, 4")
    i("s_cbranch_scc1 L_CV_HELP")
    i("s_mul_i32 s15, s3, %d" % KCH)
    i("v_and_b32 v8, 3, v2")
    i("v_sub_u32 v8, 3, v8")
    i("v_mul_u32_u24 v8, %d, v8" % KCP)
    i("v_lshrrev_b32 v9, 2, v2")
    i("v_lshlrev_b32 v9, 3, v9")
    i("v_lshl_add_u32 v9, v3, 4, v9")
    i("v_sub_u32 v9, %d, v9" % (4104 - 4032))
    i("v_add3_u32 v10, v8, v9, s15")
    i("v_lshlrev_b32 v8, 1, v2")
    i("v_add_u32 v8, 1, v8")
    i("v_sub_u32 v8, v8, v3")
    i("v_ashrrev_i32 v9, 2, v8")
    i("v_lshlrev_b32 v8, 6, v8")
    i("v_add_u32 v8, %d, v8" % (UL + 256))
    for r in range(4):
        i("v_subrev_u32 v11, %d, v9" % r)
        i("v_and_b32 v11, 3, v11")
        i("v_xor_b32 v11, s3, v11")
        i("v_lshl_add_u32 v%d, v11, 4, v8" % (12 + r))
    def FR(s, ii): return 24 + 64 * s + 4 * ii
    def GR(s, jj): return 24 + 64 * s + 32 + 4 * jj
    ACC = 160
    def reads(rho):
        s = rho & 1; lst = []
        for ii in range(8):
            sig = rho + 8 * ii; off = 64 * (63 - sig)
            lst.append("ds_read_b64 v[%d:%d], v10 offset:%d" % (FR(s, ii), FR(s, ii) + 1, off))
            lst.append("ds_read_b64 v[%d:%d], v10 offset:%d" % (FR(s, ii) + 2, FR(s, ii) + 3, off + 8))
            lst.append("ds_read_b128 v[%d:%d], v%d offset:%d" % (GR(s, ii), GR(s, ii) + 3, 12 + (rho & 3), 2048 * ii + 256 * (7 - rho)))
        return lst
    for r in reads(0): i(r)
    i("v_lshrrev_b32 v16, 1, v3")
    i("v_lshl_add_u32 v16, v2, 1, v16")
    i("v_bfe_u32 v17, v16, 2, 2")
    i("v_xor_b32 v17, s3, v17")
    i("v_lshlrev_b32 v16, 6, v16")
    i("v_lshl_add_u32 v16, v17, 4, v16")
    i("v_and_b32 v17, 1, v3")
    i("v_lshl_add_u32 v16, v17, 3, v16")
    i("v_add_u32 v16, %d, v16" % XL)
    for rho in range(8):
        s = rho & 1
        nxt = reads(rho + 1) if rho < 7 else ["ds_read_b64 v[%d:%d], v16 offset:%d" % (200 + 2 * al, 201 + 2 * al, 2048 * al) for al in range(8)]
        if rho == 7: lds_wait(M_XT, 4, 18)
        i("s_waitcnt lgkmcnt(0)")
        mf = []
        for al in range(8):
            for ii in range(al + 1):
                jj = al - ii
                first = (rho == 0 and ii == 0)
                mf.append("v_mfma_f32_16x16x32_bf16 v[%d:%d], v[%d:%d], v[%d:%d], %s" % (
                    ACC + 4 * al, ACC + 4 * al + 3, FR(s, ii), FR(s, ii) + 3, GR(s, jj), GR(s, jj) + 3,
                    "0" if first else "v[%d:%d]" % (ACC + 4 * al, ACC + 4 * al + 3)))
        k = 0
        for n, m in enumerate(mf):
            i(m)
            if k < len(nxt) and n < 30:
                i(nxt[k]); k += 1
        while k < len(nxt):
            i(nxt[k]); k += 1
    stamp(5)
    i("s_waitcnt lgkmcnt(0)")
    lds_add(M_MD, 4)
    nop(2)
    for al in range(8):
        x0, x1 = 200 + 2 * al, 201 + 2 * al
        a = ACC + 4 * al
        i("v_lshlrev_b32 v20, 16, v%d" % x0)
        i("v_and_b32 v21, 0xffff0000, v%d" % x0)
        i("v_lshlrev_b32 v22, 16, v%d" % x1)
        i("v_and_b32 v23, 0xffff0000, v%d" % x1)
        i("v_pk_add_f32 v[20:21], v[20:21], v[%d:%d]" % (a, a + 1))
        i("v_pk_add_f32 v[22:23], v[22:23], v[%d:%d]" % (a + 2, a + 3))
        i("v_cvt_pk_bf16_f32 v%d, v20, v21" % (24 + 2 * al))
        i("v_cvt_pk_bf16_f32 v%d, v22, v23" % (25 + 2 * al))
    i("v_lshlrev_b32 v8, 5, v2")
    i("v_lshl_add_u32 v8, v3, 3, v8")
    i("s_lshl_b32 s46, s3, 12")
    i("s_add_u32 s46, s46, %d" % TL)
    i("v_add_u32 v8, s46, v8")
    lds_wait(M_MD, 4, 4)
    for al in range(8):
        i("ds_write_b64 v8, v[%d:%d] offset:%d" % (24 + 2 * al, 25 + 2 * al, 512 * al))
    i("s_waitcnt lgkmcnt(0)")
    lds_add(M_TR + 16, 4)
    lds_wait(M_TR + 16, 4)
    i("v_lshlrev_b32 v252, 2, v0")
    i("v_add_u32 v252, %d, v252" % TL)
    i("v_lshlrev_b32 v253, 4, v0")
    i("s_lshl_b32 s14, s12, 14")
    i("s_add_u32 s14, s14, 0x%x" % WS_H)
    i("s_mov_b32 s46, 0x%x" % SEL_LO)
    i("s_mov_b32 s47, 0x%x" % SEL_HI)
    for it in range(4):
        for ch in range(4):
            i("ds_read_b32 v%d, v252 offset:%d" % (8 + 4 * it + ch, ch * 4096 + it * 1024))
    for it in range(4):
        i("s_waitcnt lgkmcnt(%d)" % (12 - 4 * it))
        b = 8 + 4 * it; o = 32 + 4 * it
        i("v_perm_b32 v%d, v%d, v%d, s46" % (o, b + 1, b))
        i("v_perm_b32 v%d, v%d, v%d, s46" % (o + 1, b + 3, b + 2))
        i("v_perm_b32 v%d, v%d, v%d, s47" % (o + 2, b + 1, b))
        i("v_perm_b32 v%d, v%d, v%d, s47" % (o + 3, b + 3, b + 2))
        i("buffer_store_dwordx4 v[%d:%d], v253, s[8:11], s14 offen sc1" % (o, o + 3))
        if it < 3: i("s_add_u32 s14, s14, 4096")
    lds_add(M_TR, 4)
    i("s_cmp_lg_u32 s65, 8")
    i("s_cbranch_scc1 L_CV_NH")
    i("s_cmp_lg_u32 s3, 0")
    i("s_cbranch_scc1 L_CV_NH")
    i("s_lshl_b32 s13, s64, 7")
    i("s_add_u32 s13, s13, 0x%x" % (WS_FL + FL_HINT))
    set_flag(8, "s13", 4)
    lab("L_CV_NH")
    stamp(6)
    i("s_branch L_PHASE_B")
    lab("L_CV_HELP")
    i("s_setprio 0")
    for ch in range(4):
        i("v_add_u32 v9, %d, v%d" % (XL, 20 + ch))
        i("ds_write_b128 v9, v[%d:%d]" % (136 + 4 * ch, 139 + 4 * ch))
    i("s_waitcnt lgkmcnt(0)")
    lds_add(M_XT, 8)
    i("s_cmp_lg_u32 s3, 4")
    i("s_cbranch_scc1 L_CV_NCP")
    arrive_shard(FL_CP, 248)
    lab("L_CV_NCP")
    w1_load(W1MAP)
    stamp(12)
    h1_poison(248)
    stamp(9)
    lds_wait(M_MD, 4, 4, sleep=1)
    stamp(13)
    i("s_bitcmp1_b32 s67, 0")
    i("s_cbranch_scc1 L_CV_V6")
    i("s_waitcnt vmcnt(8)")
    i("s_branch L_CV_V8")
    lab("L_CV_V6")
    i("s_waitcnt vmcnt(6)")
    lab("L_CV_V8")
    stamp(14)
    w1_write(W1MAP[0:4])
    i("s_cmp_lg_u32 s3, 7")
    i("s_cbranch_scc1 L_CV_W4")
    lds_wait(M_TR, 4, 6, sleep=1)
    lab("L_CV_W4")
    w1_write(W1MAP[4:5])
    i("s_waitcnt vmcnt(0)")
    lds_add(M_GP, 248, rtn=True)
    i("s_cmp_lg_u32 s13, 3")
    i("s_cbranch_scc1 L_CV_NGP")
    arrive_shard(FL_CP2, 248)
    lab("L_CV_NGP")
    stamp(6)

    lab("L_PHASE_B")
    if STOP == "A": i("s_branch L_FIN")
    i("s_cmp_lg_u32 s3, 0")
    i("s_cbranch_scc1 L_B_W")
    lds_wait(M_S1, 1, 8)
    i("s_lshl_b32 s46, s64, 7")
    i("s_add_u32 s46, s46, 0x%x" % (WS_FL + FL_HINT))
    poll(8, "s46", 1, 1, 8, sleep=8)
    poll_shards(FL_CP, 8, sleep=16)
    lab("L_B_W")
    i("s_waitcnt lgkmcnt(0)")
    i("s_barrier")
    stamp(7)
    i("s_cmp_ge_u32 s3, 4")
    i("s_cbranch_scc1 L_B_LOAD")
    HB, RING, ACC, WF = 16, 13, 64, 120
    def HS(kap):
        j = kap % RING
        return 16 + 8 * j if j < 6 else 176 + 8 * (j - 6)
    i("s_lshl_b32 s12, s66, 7")
    i("s_lshl_b32 s13, s3, 5")
    i("s_add_u32 s12, s12, s13")
    i("v_lshlrev_b32 v5, 14, v3")
    i("v_lshl_add_u32 v5, v2, 4, v5")
    i("s_lshl_b32 s13, s12, 3")
    i("v_add_u32 v5, s13, v5")
    i("v_lshlrev_b32 v4, 4, v1")
    vq = []
    def hl(kap, half):
        r = HS(kap) + 4 * half
        i("s_mov_b32 s13, 0x%x" % (WS_H + kap * 8 * 16384 + half * 4 * 16384))
        i("buffer_load_dwordx4 v[%d:%d], v5, s[8:11], s13 offen sc1" % (r, r + 3))
        vq.append(("h", kap, half))
    INIT = int(os.environ.get("INIT", "4"))
    pend = [(k_, h_) for k_ in range(20) for h_ in range(2)]
    for _ in range(2 * INIT):
        hl(*pend.pop(0))
    i("v_lshrrev_b32 v6, 2, v2")
    i("v_lshl_add_u32 v6, v3, 2, v6")
    i("v_mul_u32_u24 v6, 224, v6")
    i("v_and_b32 v7, 3, v2")
    i("v_lshl_add_u32 v8, v7, 3, v6")
    i("v_add_u32 v9, %d, v8" % (8 * 7168))
    i("v_add_u32 v10, %d, v8" % (16 * 7168))
    def wreads(kap):
        s = kap & 1; base = 8 + kap // 8; o = (kap % 8) * 7168; lst = []
        for t in range(7):
            r = WF + 28 * s + 4 * t
            lst.append("ds_read_b64_tr_b16 v[%d:%d], v%d offset:%d" % (r, r + 1, base, o + 32 * t))
            lst.append("ds_read_b64_tr_b16 v[%d:%d], v%d offset:%d" % (r + 2, r + 3, base, o + 32 * t + 3584))
        return lst
    i("v_mov_b32 v11, %d" % (MISC + M_CH + 16))
    i("v_mov_b32 v12, 1")
    for r in wreads(0): i(r)
    def swaps(kap):
        r = HS(kap)
        return ["v_swap_b32 v%d, v%d" % (r + 2, r + 4), "v_swap_b32 v%d, v%d" % (r + 3, r + 5)]
    def wait_h(kap):
        idx = max(n for n, x in enumerate(vq) if x[0] == "h" and x[1] == kap)
        return "s_waitcnt vmcnt(%d)" % min(63, len(vq) - 1 - idx)
    slow = []
    EARLYCHK = os.environ.get("EARLYCHK", "1") == "1"
    def check_h(kap, part=0):
        r = HS(kap)
        if part in (0, 1):
            i("v_max3_u32 v6, v%d, v%d, v%d" % (r, r + 2, r + 4))
            i("v_max_u32 v6, v6, v%d" % (r + 6))
            i("v_cmp_eq_u32 vcc, -1, v6")
            if part == 1: return
        bad, back = uid("HBAD"), uid("HOK")
        i("s_cbranch_vccnz %s" % bad)
        lab(back)
        later = sorted(set(x[1] for x in vq if x[0] == "h" and x[1] > kap))
        slow.append((bad, back, kap, later))
    if os.environ.get("XMID"):
        i("s_mov_b32 s96, 0")
        i("s_mov_b32 s97, 0")
    i(wait_h(0))
    check_h(0)
    lds_add(M_CH + 28, 6)
    stamp(12)
    for s_ in swaps(0): i(s_)
    i("s_nop 1")
    w2pf = [(3, 0), (3, 1), (3, 2), (3, 3), (3, 4), (4, 0), (4, 1), (4, 2), (4, 3), (4, 4), (5, 0), (5, 1), (5, 2), (5, 3), (5, 4)]
    for kap in range(20):
        s = kap & 1
        nxt = wreads(kap + 1) if kap < 19 else []
        if os.environ.get("XMID") and kap in (4, 8, 12, 16): stamp({4: 3, 8: 4, 12: 5, 16: 6}[kap])
        if os.environ.get("XCYC") and kap == 12: i("s_memtime s[90:91]")
        if os.environ.get("XCYC") and kap == 16: i("s_memtime s[92:93]")
        i("s_waitcnt lgkmcnt(0)")
        k = 0; n = 0
        for t in range(7):
            for par in range(2):
                a = ACC + 8 * t + 4 * par
                h = HS(kap) + 4 * par
                w = WF + 28 * s + 4 * t
                i("v_mfma_f32_16x16x32_bf16 v[%d:%d], v[%d:%d], v[%d:%d], %s" % (a, a + 3, w, w + 3, h, h + 3, "0" if kap == 0 else "v[%d:%d]" % (a, a + 3)))
                if k < len(nxt):
                    i(nxt[k]); k += 1
                if n in (1, 5, 8, 12) and pend and pend[0][0] <= kap - 1 + RING:
                    hl(*pend.pop(0))
                    if not pend:
                        i("s_mov_b64 exec, 1")
                        i("ds_add_u32 v11, v12")
                        i("s_mov_b64 exec, -1")
                if EARLYCHK:
                    if n == 3 and kap < 19:
                        i(wait_h(kap + 1))
                        check_h(kap + 1, part=1)
                    if n == 9 and kap < 19:
                        check_h(kap + 1, part=2)
                    if n == 11 and kap < 19:
                        for s_ in swaps(kap + 1): i(s_)
                elif n == 11 and kap < 19:
                    i(wait_h(kap + 1))
                    check_h(kap + 1)
                    for s_ in swaps(kap + 1): i(s_)
                n += 1
    stamp(8)
    lds_wait(M_EP + 4, 2, 6)
    stamp(14)
    i("v_lshlrev_b32 v6, 4, v2")
    i("s_lshl_b32 s13, s3, 8")
    i("s_add_u32 s13, s13, %d" % (MISC + M_STAT))
    i("v_add_u32 v6, s13, v6")
    i("ds_read_b128 v[12:15], v6")
    i("v_lshlrev_b32 v7, 4, v3")
    i("v_add_u32 v7, %d, v7" % MISC)
    for t in range(7):
        i("ds_read_b128 v[%d:%d], v7 offset:%d" % (120 + 4 * t, 123 + 4 * t, M_CS + 64 * t))
        i("ds_read_b128 v[%d:%d], v7 offset:%d" % (148 + 4 * t, 151 + 4 * t, M_B1 + 64 * t))
    i("s_lshl_b32 s27, s66, 3")
    i("s_lshl_b32 s28, s3, 1")
    i("s_add_u32 s27, s27, s28")
    i("s_lshl_b32 s27, s27, 10")
    i("s_add_u32 s27, s27, 0x%x" % WS_H1)
    i("s_mul_i32 s28, s67, 7")
    i("s_waitcnt lgkmcnt(0)")
    def tile(t, par, o):
        a = ACC + 8 * t + 4 * par
        st = 12 + 2 * par
        cs = 120 + 4 * t; b1 = 148 + 4 * t
        tmp = 232 + 4 * ((t + par) & 1) + 8 * par
        for hh in range(2):
            i("v_pk_fma_f32 v[%d:%d], v[%d:%d], v[%d:%d], v[%d:%d] op_sel:[0,0,0] op_sel_hi:[1,0,1] neg_lo:[0,1,0] neg_hi:[0,1,0]" % (tmp + 2 * hh, tmp + 2 * hh + 1, cs + 2 * hh, cs + 2 * hh + 1, st, st + 1, b1 + 2 * hh, b1 + 2 * hh + 1))
        for hh in range(2):
            i("v_pk_fma_f32 v[%d:%d], v[%d:%d], v[%d:%d], v[%d:%d] op_sel:[0,1,0] op_sel_hi:[1,1,1]" % (tmp + 2 * hh, tmp + 2 * hh + 1, a + 2 * hh, a + 2 * hh + 1, st, st + 1, tmp + 2 * hh, tmp + 2 * hh + 1))
        for r in range(4): i("v_max_f32 v%d, 0, v%d" % (tmp + r, tmp + r))
        for hh in range(2):
            i("v_pk_mul_f32 v[%d:%d], v[%d:%d], v[%d:%d]" % (tmp + 2 * hh, tmp + 2 * hh + 1, tmp + 2 * hh, tmp + 2 * hh + 1, tmp + 2 * hh, tmp + 2 * hh + 1))
        i("v_cvt_pk_bf16_f32 v%d, v%d, v%d" % (o, tmp, tmp + 1))
        i("v_cvt_pk_bf16_f32 v%d, v%d, v%d" % (o + 1, tmp + 2, tmp + 3))
    def beta_off(t):
        i("s_add_u32 s29, s28, %d" % t)
        i("s_lshr_b32 s29, s29, 1")
        i("s_lshl_b32 s29, s29, 17")
        i("s_add_u32 s29, s29, s27")
    def epi(pairs, single, half):
        o = 16
        def do_single():
            nonlocal o
            beta_off(single)
            for par in range(2):
                tile(single, par, o)
                i("buffer_store_dwordx2 v[%d:%d], v4, s[8:11], s29 offen offset:%d sc1" % (o, o + 1, 1024 * par + 8 * half))
                o += 4
        if half == 1: do_single()
        for t in pairs:
            beta_off(t)
            for par in range(2):
                tile(t, par, o)
                tile(t + 1, par, o + 2)
                i("buffer_store_dwordx4 v[%d:%d], v4, s[8:11], s29 offen offset:%d sc1" % (o, o + 3, 1024 * par))
                o += 4
        if half == 0: do_single()
    stamp(1)
    i("s_bitcmp1_b32 s67, 0")
    i("s_cbranch_scc1 L_B_ODD")
    epi((0, 2, 4), 6, 0)
    i("s_branch L_B_STD")
    lab("L_B_ODD")
    epi((1, 3, 5), 0, 1)
    lab("L_B_STD")
    stamp(9)
    lds_add(M_CH + 40, 6)
    lds_wait(M_EP, 1, 6)
    i("s_branch L_PHASE_C")
    for (bad, back, kap, later) in slow:
        r = HS(kap)
        lab(bad)
        i("s_mov_b32 s47, 0")
        top = uid("HT")
        lab(top)
        i("s_sleep 2")
        i("s_mov_b32 s13, 0x%x" % (WS_H + kap * 8 * 16384))
        i("buffer_load_dwordx4 v[%d:%d], v5, s[8:11], s13 offen sc1" % (r, r + 3))
        i("s_mov_b32 s13, 0x%x" % (WS_H + kap * 8 * 16384 + 4 * 16384))
        i("buffer_load_dwordx4 v[%d:%d], v5, s[8:11], s13 offen sc1" % (r + 4, r + 7))
        i("s_waitcnt vmcnt(0)")
        i("v_max3_u32 v6, v%d, v%d, v%d" % (r, r + 2, r + 4))
        i("v_max_u32 v6, v6, v%d" % (r + 6))
        i("v_cmp_eq_u32 vcc, -1, v6")
        okl = uid("HR")
        i("s_cbranch_vccz %s" % okl)
        i("s_add_u32 s47, s47, 1")
        i("s_cmp_lt_u32 s47, %d" % SPIN_LIMIT)
        i("s_cbranch_scc1 %s" % top)
        lab(okl)
        for k2 in later:
            r2 = HS(k2)
            i("s_mov_b32 s13, 0x%x" % (WS_H + k2 * 8 * 16384))
            i("buffer_load_dwordx4 v[%d:%d], v5, s[8:11], s13 offen sc1" % (r2, r2 + 3))
            i("s_mov_b32 s13, 0x%x" % (WS_H + k2 * 8 * 16384 + 4 * 16384))
            i("buffer_load_dwordx4 v[%d:%d], v5, s[8:11], s13 offen sc1" % (r2 + 4, r2 + 7))
        i("s_waitcnt vmcnt(0)")
        i("s_branch %s" % back)

    lab("L_B_LOAD")
    lds_wait(M_CH + 28, 1, 4, sleep=4)
    i("s_setprio %s" % os.environ.get("LPRIO", "2"))
    i("s_lshl_b32 s12, s66, 7")
    i("s_lshl_b32 s13, s67, 3")
    i("s_add_u32 s12, s12, s13")
    i("s_sub_u32 s14, s3, 4")
    i("s_mul_i32 s14, s14, 40")
    i("v_lshrrev_b32 v5, 2, v1")
    i("v_add_u32 v5, s14, v5")
    i("v_and_b32 v6, 3, v1")
    i("v_lshlrev_b32 v7, 14, v5")
    i("v_lshl_add_u32 v7, v6, 4, v7")
    i("s_lshl_b32 s13, s12, 3")
    i("s_add_u32 s13, s13, 0x%x" % WS_H)
    i("s_mov_b32 s15, s13")
    i("s_mov_b32 s47, 0")
    for r in range(4): i("v_mov_b32 v%d, 0" % (24 + r))
    lab("L_LS_TOP")
    i("s_mov_b32 s13, s15")
    for k in range(3):
        if k == 2: i("s_mov_b64 exec, 0xffffffff")
        i("buffer_load_dwordx4 v[%d:%d], v7, s[8:11], s13 offen sc1" % (16 + 4 * k, 19 + 4 * k))
        i("s_add_u32 s13, s13, %d" % (16 * 16384))
    i("s_mov_b64 exec, -1")
    i("s_waitcnt vmcnt(0)")
    i("v_max3_u32 v8, v16, v18, v20")
    i("v_max3_u32 v9, v22, v24, v26")
    i("v_max_u32 v8, v8, v9")
    i("v_cmp_eq_u32 vcc, -1, v8")
    i("s_cbranch_vccz L_LS_OK")
    i("s_sleep 8")
    i("s_add_u32 s47, s47, 1")
    i("s_cmp_lt_u32 s47, %d" % SPIN_LIMIT)
    i("s_cbranch_scc1 L_LS_TOP")
    lab("L_LS_OK")
    i("v_mov_b32 v7, 0x3f803f80")
    for r in range(8, 16): i("v_mov_b32 v%d, 0" % r)
    for k in range(3):
        for hf in range(2):
            for dw in range(2):
                x = 16 + 4 * k + 2 * hf + dw
                i("v_dot2_f32_bf16 v%d, v%d, v7, v%d" % (8 + 4 * dw + 2 * hf, x, 8 + 4 * dw + 2 * hf))
                i("v_dot2_f32_bf16 v%d, v%d, v%d, v%d" % (9 + 4 * dw + 2 * hf, x, x, 9 + 4 * dw + 2 * hf))
    nop(3)
    for r in range(4): i("v_add_f32 v%d, v%d, v%d" % (8 + r, 8 + r, 12 + r))
    for rr in (8, 4):
        nop(2)
        for r in range(4):
            i("v_add_f32_dpp v%d, v%d, v%d row_ror:%d row_mask:0xf bank_mask:0xf" % (8 + r, 8 + r, 8 + r, rr))
    for op in ("v_permlane16_swap_b32", "v_permlane32_swap_b32"):
        for r in range(4): i("v_mov_b32 v%d, v%d" % (12 + r, 8 + r))
        nop(1)
        for r in range(4): i("%s v%d, v%d" % (op, 12 + r, 8 + r))
        nop(1)
        for r in range(4): i("v_add_f32 v%d, v%d, v%d" % (8 + r, 8 + r, 12 + r))
    i("s_sub_u32 s13, s3, 4")
    i("s_lshl_b32 s13, s13, 6")
    i("s_add_u32 s13, s13, %d" % (MISC + 2304))
    i("v_lshlrev_b32 v5, 4, v1")
    i("v_add_u32 v5, s13, v5")
    i("s_mov_b64 exec, 0xf")
    i("ds_write_b128 v5, v[8:11]")
    i("s_mov_b64 exec, -1")
    i("s_waitcnt lgkmcnt(0)")
    lds_add(M_ST, 4, rtn=True)
    i("s_cmp_eq_u32 s13, 0")
    i("s_cbranch_scc1 L_B_CSP")
    i("s_cmp_lg_u32 s13, 3")
    i("s_cbranch_scc1 L_B_LD1")
    i("s_mov_b64 exec, 0xf")
    i("v_lshlrev_b32 v5, 4, v1")
    i("v_add_u32 v5, %d, v5" % (MISC + 2304))
    for w in range(4):
        i("ds_read_b128 v[%d:%d], v5 offset:%d" % (16 + 4 * w, 19 + 4 * w, 64 * w))
    i("s_waitcnt lgkmcnt(0)")
    for w in range(1, 4):
        i("v_pk_add_f32 v[16:17], v[16:17], v[%d:%d]" % (16 + 4 * w, 17 + 4 * w))
        i("v_pk_add_f32 v[18:19], v[18:19], v[%d:%d]" % (18 + 4 * w, 19 + 4 * w))
    ln_finish(16, 17, True)
    ln_finish(18, 19, True)
    i("v_lshlrev_b32 v5, 4, v1")
    i("s_lshl_b32 s13, s12, 3")
    i("s_add_u32 s13, s13, 0x%x" % WS_ST2)
    i("buffer_store_dwordx4 v[16:19], v5, s[8:11], s13 offen sc1")
    i("s_mov_b64 exec, -1")
    i("v_lshlrev_b32 v5, 4, v1")
    i("s_lshl_b32 s13, s66, 10")
    i("s_add_u32 s13, s13, 0x%x" % WS_ST2)
    i("s_mov_b32 s47, 0")
    lab("L_ST2_TOP")
    i("buffer_load_dwordx4 v[16:19], v5, s[8:11], s13 offen sc1")
    i("s_waitcnt vmcnt(0)")
    i("v_max_u32 v8, v17, v19")
    i("v_cmp_eq_u32 vcc, -1, v8")
    i("s_cbranch_vccz L_ST2_OK")
    i("s_sleep 1")
    i("s_add_u32 s47, s47, 1")
    i("s_cmp_lt_u32 s47, %d" % SPIN_LIMIT)
    i("s_cbranch_scc1 L_ST2_TOP")
    lab("L_ST2_OK")
    i("v_add_u32 v6, %d, v5" % (MISC + M_STAT))
    i("ds_write_b128 v6, v[16:19]")
    i("s_waitcnt lgkmcnt(0)")
    lds_add(M_EP + 4, 6)
    i("s_branch L_B_LD1")
    lab("L_B_CSP")
    poll_shards(FL_CP2, 24, sleep=16)
    i("s_mul_i32 s14, s67, 112")
    i("v_lshlrev_b32 v5, 2, v1")
    i("s_lshl_b32 s13, s14, 2")
    i("s_add_u32 s13, s13, 0x%x" % WS_CS)
    i("buffer_load_dword v20, v5, s[8:11], s13 offen sc1")
    i("buffer_load_dword v21, v5, s[8:11], s13 offen offset:256 sc1")
    srd(4, 38, F * 2)
    i("v_lshlrev_b32 v6, 1, v1")
    i("s_lshl_b32 s13, s14, 1")
    i("buffer_load_ushort v22, v6, s[4:7], s13 offen")
    i("buffer_load_ushort v23, v6, s[4:7], s13 offen offset:128")
    i("s_waitcnt vmcnt(0)")
    i("v_lshlrev_b32 v22, 16, v22")
    i("v_lshlrev_b32 v23, 16, v23")
    i("v_add_u32 v6, %d, v5" % MISC)
    i("ds_write_b32 v6, v20 offset:%d" % M_CS)
    i("ds_write_b32 v6, v21 offset:%d" % (M_CS + 256))
    i("ds_write_b32 v6, v22 offset:%d" % M_B1)
    i("ds_write_b32 v6, v23 offset:%d" % (M_B1 + 256))
    i("s_waitcnt lgkmcnt(0)")
    lds_add(M_EP + 4, 6)
    lab("L_B_LD1")
    i("s_setprio 0")
    i("s_mov_b32 s46, %d" % DBG_GOW)
    poll(56, "s46", 1, 1, 8, sleep=2)
    lds_add(M_EP, 8)
    lds_wait(M_CH + 16, 4, 6, sleep=2)
    if os.environ.get("W2GATE", "0") == "1": lds_wait(M_EP + 4, 2, 6, sleep=2)
    i("v_lshlrev_b32 v4, 4, v1")
    if not os.environ.get("XNOW2"): w2_load(range(6), range(6))
    lds_wait(M_EP + 4, 2, 6, sleep=4)
    if os.environ.get("GATEC", "1") == "1": lds_wait(M_CH + 40, 4, 6, sleep=4)

    lab("L_PHASE_C")
    if STOP == "B": i("s_branch L_FIN")
    i("s_lshr_b32 s12, s64, 1")
    i("s_lshl_b32 s12, s12, 3")
    i("s_lshr_b32 s13, s65, 2")
    i("s_add_u32 s12, s12, s13")
    stamp(10)
    i("s_and_b32 s4, s3, 3")
    i("s_mul_i32 s5, s4, 7")
    i("s_lshr_b32 s6, s3, 2")
    i("s_mul_i32 s7, s6, 27")
    i("s_add_u32 s5, s5, s7")
    i("s_lshl_b32 s5, s5, 7")
    i("s_lshl_b32 s7, s12, 2")
    i("s_add_u32 s5, s5, s7")
    i("s_lshl_b32 s5, s5, 10")
    i("s_add_u32 s5, s5, 0x%x" % WS_H1)
    R2, ACC2 = 8, 40
    vqa, vqb = [], []
    def h1l(st, lt):
        r = R2 + 16 * (st & 1) + 4 * lt
        i("s_add_u32 s13, s5, %d" % (st * 131072))
        i("buffer_load_dwordx4 v[%d:%d], v4, s[8:11], s13 offen offset:%d sc1" % (r, r + 3, 1024 * lt))
        vqa.append(("h", st, lt)); vqb.append(("h", st, lt))
    def w2l(st, sl, both=False):
        lb = uid("W2S")
        if not both:
            i("s_cmp_ge_u32 s3, 4")
            i("s_cbranch_scc1 %s" % lb)
        w2_load([st], [sl])
        lab(lb)
        for dl in range(5):
            vqa.append(("w", st, dl))
            if both: vqb.append(("w", st, dl))
    W2PRE = int(os.environ.get("W2PRE", "6"))
    for st_ in range(max(1, W2PRE)): w2l(st_, st_)
    for lt in range(4): h1l(0, lt)
    if W2PRE < 2: w2l(1, 1)
    for lt in range(4): h1l(1, lt)
    for r in range(80): i("v_mov_b32 v%d, 0" % (ACC2 + r))
    srd(56, 42, D * 2)
    srd(48, 44, L * D * 2)
    i("s_mul_i32 s7, s60, 5")
    i("s_lshl_b32 s15, s12, 6")
    i("s_and_b32 s14, s3, 3")
    i("s_lshr_b32 s13, s14, 1")
    i("s_lshl_b32 s13, s13, 5")
    i("s_add_u32 s15, s15, s13")
    i("s_and_b32 s13, s14, 1")
    i("s_add_u32 s15, s15, s13")
    i("v_lshlrev_b32 v6, 1, v2")
    i("v_add_u32 v6, s15, v6")
    slow2 = []
    def wait_for(tag):
        ns = []
        for q in (vqa, vqb):
            idxs = [n for n, x in enumerate(q) if x == tag]
            if idxs: ns.append(len(q) - 1 - max(idxs))
        i("s_waitcnt vmcnt(%d)" % min(63, min(ns)))
    for st in range(7):
        if st == 6:
            i("s_cmp_eq_u32 s4, 3")
            i("s_cbranch_scc1 L_C_RED")
            wait_for(("w", 6, 4))
        if st + 2 <= 5 and st + 2 >= max(2, W2PRE): w2l(st + 2, st + 2)
        sl = st if st < 6 else 0
        for lt in range(4):
            hr = R2 + 16 * (st & 1) + 4 * lt
            if (st, lt) == (0, 0):
                wait_for(("h", st, lt))
                i("v_max_u32 v5, v%d, v%d" % (hr, hr + 2))
                i("v_cmp_eq_u32 vcc, -1, v5")
            bad, back = uid("GBAD"), uid("GOK")
            i("s_cbranch_vccnz %s" % bad)
            lab(back)
            later = [(x[1], x[2]) for x in vqb if x[0] == "h" and (x[1], x[2]) > (st, lt)]
            slow2.append((bad, back, st, lt, later))
            if st == 0 and lt == 0: stamp(2)
            nx = (st, lt + 1) if lt < 3 else (st + 1, 0)
            for dl in range(5):
                a = ACC2 + 16 * dl + 4 * lt
                w = W2R + 20 * sl + 4 * dl
                h = R2 + 16 * (st & 1) + 4 * lt
                i("v_mfma_f32_16x16x32_bf16 v[%d:%d], v[%d:%d], v[%d:%d], v[%d:%d]" % (a, a + 3, w, w + 3, h, h + 3, a, a + 3))
                if dl == 1 and nx[0] < 7:
                    nr = R2 + 16 * (nx[0] & 1) + 4 * nx[1]
                    wait_for(("h",) + nx)
                    i("v_max_u32 v5, v%d, v%d" % (nr, nr + 2))
                    i("v_cmp_eq_u32 vcc, -1, v5")
            if st + 2 < 7: h1l(st + 2, lt)
        if st == 0:
            w2l(6, 0, both=True)
        if st == 1:
            for j in range(3):
                i("s_lshr_b32 s46, s3, 2")
                i("s_add_u32 s46, s46, %d" % (2 * j))
                i("s_min_u32 s46, s46, 4")
                i("s_add_u32 s46, s46, s7")
                i("s_lshl_b32 s13, s46, 16")
                i("s_add_u32 s13, s13, 0x%x" % WS_H)
                i("v_lshlrev_b32 v7, 14, v3")
                i("v_lshl_add_u32 v7, v6, 3, v7")
                i("buffer_load_dwordx2 v[%d:%d], v7, s[8:11], s13 offen sc1" % (240 + 2 * j, 241 + 2 * j))
                i("s_lshl_b32 s13, s46, 5")
                i("v_lshlrev_b32 v7, 3, v3")
                i("buffer_load_dwordx2 v[%d:%d], v7, s[56:59], s13 offen" % (246 + 2 * j, 247 + 2 * j))
                for q in (vqa, vqb): q.append(("e", j, 0)); q.append(("e", j, 1))
    lab("L_C_RED")
    stamp(11)
    i("s_waitcnt vmcnt(0)")
    i("s_barrier")
    i("s_lshl_b32 s13, s3, 10")
    i("v_add_u32 v5, s13, v4")
    i("v_add_u32 v7, 65536, v5")
    i("v_add_u32 v8, 131072, v5")
    nop(4)
    for T in range(20):
        a = ACC2 + 4 * T
        base = (5, 7, 8)[T // 8]
        i("ds_write_b128 v%d, v[%d:%d] offset:%d" % (base, a, a + 3, (T % 8) * 8192))
    i("s_lshl_b32 s13, s3, 13")
    i("v_add_u32 v5, s13, v4")
    i("v_add_u32 v7, 65536, v5")
    i("v_add_u32 v8, 131072, v5")
    i("s_waitcnt lgkmcnt(0)")
    i("s_barrier")
    for j in range(3):
        if j == 2:
            i("s_cmp_ge_u32 s3, 4")
            i("s_cbranch_scc1 L_C_RD")
        for src in range(8):
            r = 120 + 32 * j + 4 * src
            i("ds_read_b128 v[%d:%d], v%d offset:%d" % (r, r + 3, (5, 7, 8)[j], src * 1024))
    lab("L_C_RD")
    i("s_waitcnt vmcnt(0)")
    for j in range(3):
        if j == 2:
            i("s_cmp_ge_u32 s3, 4")
            i("s_cbranch_scc1 L_FIN")
        i("s_waitcnt lgkmcnt(%d)" % (8 if j == 0 else 0))
        r = 120 + 32 * j
        for (x_, y_) in ((0, 4), (8, 12), (16, 20), (24, 28), (0, 8), (16, 24), (0, 16)):
            i("v_pk_add_f32 v[%d:%d], v[%d:%d], v[%d:%d]" % (r + x_, r + x_ + 1, r + x_, r + x_ + 1, r + y_, r + y_ + 1))
            i("v_pk_add_f32 v[%d:%d], v[%d:%d], v[%d:%d]" % (r + x_ + 2, r + x_ + 3, r + x_ + 2, r + x_ + 3, r + y_ + 2, r + y_ + 3))
        i("v_cvt_pk_bf16_f32 v30, v%d, v%d" % (r, r + 1))
        i("v_cvt_pk_bf16_f32 v31, v%d, v%d" % (r + 2, r + 3))
        for (src, dst) in ((30, 32), (31, 34), (246 + 2 * j, 36), (247 + 2 * j, 38)):
            i("v_lshlrev_b32 v%d, 16, v%d" % (dst, src))
            i("v_and_b32 v%d, 0xffff0000, v%d" % (dst + 1, src))
        i("v_pk_add_f32 v[32:33], v[32:33], v[36:37]")
        i("v_pk_add_f32 v[34:35], v[34:35], v[38:39]")
        i("v_cvt_pk_bf16_f32 v30, v32, v33")
        i("v_cvt_pk_bf16_f32 v31, v34, v35")
        for (src, dst) in ((30, 32), (31, 34), (240 + 2 * j, 36), (241 + 2 * j, 38)):
            i("v_lshlrev_b32 v%d, 16, v%d" % (dst, src))
            i("v_and_b32 v%d, 0xffff0000, v%d" % (dst + 1, src))
        i("v_pk_add_f32 v[32:33], v[32:33], v[36:37]")
        i("v_pk_add_f32 v[34:35], v[34:35], v[38:39]")
        i("v_cvt_pk_bf16_f32 v%d, v32, v33" % (24 + 2 * j))
        i("v_cvt_pk_bf16_f32 v%d, v34, v35" % (25 + 2 * j))
        i("s_lshr_b32 s46, s3, 2")
        i("s_add_u32 s46, s46, %d" % (2 * j))
        i("s_add_u32 s46, s46, s7")
        i("s_lshl_b32 s46, s46, 5")
        i("v_mul_u32_u24 v9, 1280, v6")
        i("v_lshl_add_u32 v9, v3, 3, v9")
        i("buffer_store_dwordx2 v[%d:%d], v9, s[48:51], s46 offen%s" % (24 + 2 * j, 25 + 2 * j, os.environ.get("OUTF", "")))
    lab("L_FIN")
    stamp_flush()
    lab("L_END")
    i("s_endpgm")
    for (bad, back, st, lt, later) in slow2:
        r = R2 + 16 * (st & 1) + 4 * lt
        lab(bad)
        i("s_mov_b32 s47, 0")
        top = uid("GT")
        lab(top)
        i("s_sleep 1")
        i("s_add_u32 s13, s5, %d" % (st * 131072))
        i("buffer_load_dwordx4 v[%d:%d], v4, s[8:11], s13 offen offset:%d sc1" % (r, r + 3, 1024 * lt))
        i("s_waitcnt vmcnt(0)")
        i("v_max_u32 v5, v%d, v%d" % (r, r + 2))
        i("v_cmp_eq_u32 vcc, -1, v5")
        okl = uid("GR")
        i("s_cbranch_vccz %s" % okl)
        i("s_add_u32 s47, s47, 1")
        i("s_cmp_lt_u32 s47, %d" % SPIN_LIMIT)
        i("s_cbranch_scc1 %s" % top)
        lab(okl)
        for (s2_, l2_) in later:
            r2 = R2 + 16 * (s2_ & 1) + 4 * l2_
            i("s_add_u32 s13, s5, %d" % (s2_ * 131072))
            i("buffer_load_dwordx4 v[%d:%d], v4, s[8:11], s13 offen offset:%d sc1" % (r2, r2 + 3, 1024 * l2_))
        i("s_waitcnt vmcnt(0)")
        i("s_branch %s" % back)
    lab("L_CODE_END")
    e('.section .rodata,"a"')
    e(".p2align 6")
    e(".amdhsa_kernel %s" % KNAME)
    e("  .amdhsa_next_free_vgpr 256")
    e("  .amdhsa_next_free_sgpr 102")
    e("  .amdhsa_accum_offset 256")
    e("  .amdhsa_group_segment_fixed_size 0")
    e("  .amdhsa_kernarg_size 120")
    e("  .amdhsa_user_sgpr_count 2")
    e("  .amdhsa_user_sgpr_kernarg_segment_ptr 1")
    e("  .amdhsa_system_sgpr_workgroup_id_x 1")
    e(".end_amdhsa_kernel")

if __name__ == "__main__":
    main()
    path = sys.argv[1] if len(sys.argv) > 1 else "cdna_kernels/%s.s" % NAME
    open(path, "w").write("\n".join(x for x in out if x is not None) + "\n")
    print("wrote", path, len(out), "lines")
```
